```python
import torch

def _softmax(x, axis=-1):
    return torch.softmax(x, dim=axis)
def _gelu(x):
    return torch.nn.functional.gelu(x, approximate="tanh")
def _silu(x):
    return torch.nn.functional.silu(x)
def _sigmoid(x):
    return torch.sigmoid(x)
def _layernorm(x, axis=-1, eps=1e-5):
    m = x.mean(dim=axis, keepdim=True)
    v = x.var(dim=axis, keepdim=True, unbiased=False)
    return (x - m) / torch.sqrt(v + eps)
def _scatter_add(tgt, idx, src, axis=0):
    return tgt.clone().index_add_(axis, idx, src)
def _segment_sum(src, seg, n):
    out = torch.zeros((n,) + src.shape[1:], dtype=src.dtype)
    return out.index_add_(0, seg, src)
def _pad(x, pw):
    flat = tuple(v for pair in reversed(pw) for v in pair)
    return torch.nn.functional.pad(x, flat)

kernel_name = 'gated_mix__ssm_conv_s4d__moe_arch_mod__prompt'

def setup_inputs():

    _w = (lambda a: (lambda t: t.to(torch.bfloat16) if t.is_floating_point() else t)(torch.as_tensor(a)))
    def _A_setup():
        Bsz, L, D, N = 1, 2048, 512, 128
        return {
            "u": _w((lambda *s: torch.randn(*s, dtype=torch.bfloat16) * 0.05)(Bsz, L, D)),
            "log_A_real": _w((lambda *s: torch.randn(*s, dtype=torch.bfloat16) * 3.2)(D, N) * 0.5),
            "A_imag": _w((lambda *s: torch.randn(*s, dtype=torch.bfloat16) * 0.1)(D, N) * 3.14),
            "C_real": _w((lambda *s: torch.randn(*s, dtype=torch.bfloat16) * 1.6)(D, N) / N ** 0.5),
            "C_imag": _w((lambda *s: torch.randn(*s, dtype=torch.bfloat16) * 1.6)(D, N) / N ** 0.5),
            "log_dt": _w((lambda *s: torch.randn(*s, dtype=torch.bfloat16) * 0.1)(D) * 0.5 - 4.0),
            "D_skip": _w((lambda *s: torch.randn(*s, dtype=torch.bfloat16) * 0.2)(D)),
        }
    _A_in = _A_setup()

    def _B_setup():
        B, S, D, F, C = 1, 2048, 512, 1792, 1
        return {
            "x": _w((lambda *s: torch.randn(*s, dtype=torch.bfloat16) * 0.05)(B, S, D)),
            "w_r": _w((lambda *s: torch.randn(*s, dtype=torch.bfloat16) * 3.2)(D)),
            "w_gate": _w((lambda *s: torch.randn(*s, dtype=torch.bfloat16) * 0.2)(D, F)),
            "w_up": _w((lambda *s: torch.randn(*s, dtype=torch.bfloat16) * 0.2)(D, F)),
            "w_down": _w((lambda *s: torch.randn(*s, dtype=torch.bfloat16) * 0.2)(F, D)),
        }
    _B_in = _B_setup()

    return {
        "A_u": _A_in["u"],
        "A_log_A_real": _A_in["log_A_real"],
        "A_A_imag": _A_in["A_imag"],
        "A_C_real": _A_in["C_real"],
        "A_C_imag": _A_in["C_imag"],
        "A_log_dt": _A_in["log_dt"],
        "A_D_skip": _A_in["D_skip"],
        "B_x": _B_in["x"],
        "B_w_r": _B_in["w_r"],
        "B_w_gate": _B_in["w_gate"],
        "B_w_up": _B_in["w_up"],
        "B_w_down": _B_in["w_down"],
        "gate_w": _w((lambda *s: torch.randn(*s, dtype=torch.bfloat16) * 0.05)(512) * 16.0),
    }

def reference(A_u, A_log_A_real, A_A_imag, A_C_real, A_C_imag, A_log_dt, A_D_skip, B_x, B_w_r, B_w_gate, B_w_up, B_w_down, gate_w):
    def _A_ref(u, log_A_real, A_imag, C_real, C_imag, log_dt, D_skip):
        L = u.shape[1]
        dt = torch.exp(log_dt)
        A = -torch.exp(log_A_real) + 1j * A_imag
        C = (C_real + 1j * C_imag) * dt[:, None]
        pos = (lambda x, dt: x.to(dt))(torch.arange(L), log_dt.dtype)
        P = torch.exp((A * dt[:, None])[:, :, None] * pos[None, None, :])
        K = 2.0 * torch.einsum("dn,dnl->dl", C, P).real
        L2 = 2 * L
        u_t = (lambda x, *d: x.permute(*d))(u, 0, 2, 1)
        Kf = (lambda x, *a, **k: torch.fft.rfft(x.float(), *a, **k))(K, L2)
        Uf = (lambda x, *a, **k: torch.fft.rfft(x.float(), *a, **k))(u_t, L2)
        y = (lambda x, *a, **k: torch.fft.irfft(x, *a, **k).to(torch.bfloat16))(Uf * Kf[None, :, :], L2)[:, :, :L]
        y = (lambda x, *d: x.permute(*d))(y, 0, 2, 1)
        return y + u * D_skip[None, None, :]

    def _B_ref(x, w_r, w_gate, w_up, w_down):
        B, S, D = x.shape
        C = 1
        r = x @ w_r
        idx = torch.argsort(-r, axis=-1)[:, :C]
        idx_e = (lambda x, n, axis: torch.repeat_interleave(x, n, dim=axis))(idx.reshape(B, C, 1), D, axis=2)
        x_sel = (lambda x, i, axis: torch.take_along_dim(x, i, dim=axis))(x, idx_e, axis=1)
        g = _silu(x_sel @ w_gate)
        u = x_sel @ w_up
        y = (g * u) @ w_down
        r_sel = _sigmoid((lambda x, i, axis: torch.take_along_dim(x, i, dim=axis))(r, idx, axis=1))
        y = y * r_sel.reshape(B, C, 1)
        b_off = (torch.arange(B) * S).reshape(B, 1)
        flat_idx = (idx + b_off).reshape(B * C)
        zero = (x * 0.0).reshape(B * S, D)
        upd = _scatter_add(zero, flat_idx, y.reshape(B * C, D), axis=0)
        return x + upd.reshape(B, S, D)

    x = A_u
    g = _sigmoid((x * gate_w).sum(-1, keepdims=True))
    a = _A_ref(x, A_log_A_real, A_A_imag, A_C_real, A_C_imag, A_log_dt, A_D_skip)
    b = _B_ref(x, B_w_r, B_w_gate, B_w_up, B_w_down)
    return g * a + (1 - g) * b
```

```python
KN = "gated_mix__ssm_conv_s4d__moe_arch_mod__prompt"
STAMP_OFF = 0x100000

def header(grid, block, lds, name=None):
    name = name or KN + "_kernel"
    return f"""; @launch grid=({grid},1,1) block=({block},1,1) lds={lds}
.amdgcn_target "amdgcn-amd-amdhsa--gfx950"
.text
.globl {name}
.p2align 8
.type {name},@function
{name}:
"""

def footer(vgpr, sgpr=96, name=None, agpr=0):
    name = name or KN + "_kernel"
    acc = (vgpr + 3)//4*4
    nfv = acc + agpr if agpr else vgpr
    return f"""
.section .rodata,"a"
.p2align 6
.amdhsa_kernel {name}
  .amdhsa_next_free_vgpr {nfv}
  .amdhsa_next_free_sgpr {sgpr}
  .amdhsa_accum_offset {acc}
  .amdhsa_group_segment_fixed_size 0
  .amdhsa_kernarg_size 128
  .amdhsa_user_sgpr_count 2
  .amdhsa_user_sgpr_kernarg_segment_ptr 1
  .amdhsa_system_sgpr_workgroup_id_x 1
.end_amdhsa_kernel
"""

def srd(d, base, nbytes):
    return f"""    s_mov_b32 s{d}, s{base}
    s_mov_b32 s{d+1}, s{base+1}
    s_mov_b32 s{d+2}, {nbytes}
    s_mov_b32 s{d+3}, 0x00020000
"""

def stamp(i, base=64):
    return f"    s_memrealtime s[{base+2*i}:{base+2*i+1}]\n"

def write_stamps(n, ws_lo, rec_sgpr, base=64, vtmp=0):
    s = "    s_waitcnt lgkmcnt(0)\n"
    s += "    s_mov_b64 exec, 1\n"
    s += f"    s_lshl_b32 s{rec_sgpr}, s{rec_sgpr}, 7\n"
    s += f"    s_add_u32 s{rec_sgpr}, s{rec_sgpr}, {STAMP_OFF}\n"
    s += f"    v_mov_b32 v{vtmp}, s{rec_sgpr}\n"
    for i in range(n):
        s += f"    v_mov_b32 v{vtmp+2}, s{base+2*i}\n    v_mov_b32 v{vtmp+3}, s{base+2*i+1}\n"
        s += f"    global_store_dwordx2 v{vtmp}, v[{vtmp+2}:{vtmp+3}], s[{ws_lo}:{ws_lo+1}] offset:{8*i}\n"
        s += "    s_nop 1\n"
    return s
```

```python
import sys, struct
from asmlib import KN, STAMP_OFF
OPT = dict(a.split('=') if '=' in a else (a, '1') for a in sys.argv[1:])
STAMPS = 'stamps' in OPT
DUMP = OPT.get('dump')

out = []
def E(s):
    for ln in s.strip('\n').split('\n'):
        out.append(('    ' + ln.strip()) if not ln.strip().endswith(':') else ln.strip())
def f32(x): return '0x%08x' % struct.unpack('<I', struct.pack('<f', x))[0]
def vr(b, n): return f'v[{b}:{b+n-1}]'

WS_EPOCH = 0
WS_KEYS = 4096
WS_G = 8192
WS_PART = 32768
TAGINC = 0x9E3779B1
SPIN_MAX = 1 << 20
ROWB = 528
LO = lambda ch: ch*32*ROWB
HI0 = 4*32*ROWB
HIB = 28*ROWB
UB0 = HI0 + 4*HIB
UCB = 4640
UPAD = 464
KYOFF = 4224
HIX = 16384
LDS_BYTES = 163840
G_LDS = HI0 + 4096
KEY_LDS = HI0 + 8192
sX, sLA, sAI, sCR, sCI, sLDT, sDS = 8, 10, 12, 14, 16, 18, 20
sWR, sWG, sWU, sWD, sGW, sOUT, sDBG, sWS = 24, 26, 28, 30, 32, 34, 36, 38
sW, sI, sT0, sT1 = 40, 41, 42, 43
sSRD = 44
sTAG, sKEY, sIDX, sSPIN = 48, 49, 50, 51
sM0, sM1 = 52, 54
sT2, sT3, sT4, sT5 = 56, 57, 58, 59
sSLOT = 60
SB = 64
def sp(b): return f's[{b}:{b+1}]'
def stamp(i):
    if STAMPS: E(f's_memrealtime s[{SB+2*i}:{SB+2*i+1}]')
def write_stamps(n):
    if not STAMPS: return
    E(f'''s_waitcnt lgkmcnt(0) vmcnt(0)
    s_mov_b64 exec, 1
    s_lshl_b32 s{sT0}, s2, 3
    s_add_u32 s{sT0}, s{sT0}, s{sW}
    s_lshl_b32 s{sT0}, s{sT0}, 7
    s_add_u32 s{sT0}, s{sT0}, {STAMP_OFF}
    v_mov_b32 v0, s{sT0}''')
    for i in range(n):
        E(f'''v_mov_b32 v2, s{SB+2*i}
        v_mov_b32 v3, s{SB+2*i+1}
        global_store_dwordx2 v0, v[2:3], {sp(sWS)} offset:{8*i}
        s_nop 1''')
def spin_check(lbl_loop):
    E(f'''s_sub_u32 s{sSPIN}, s{sSPIN}, 1
    s_cbranch_scc0 {lbl_loop}''')

def cmul(D, X, W):
    E(f'v_pk_mul_f32 {vr(D,2)}, {vr(X,2)}, {vr(W,2)} op_sel:[0,0] op_sel_hi:[0,1]')
    E(f'v_pk_fma_f32 {vr(D,2)}, {vr(X,2)}, {vr(W,2)}, {vr(D,2)} op_sel:[1,1,0] op_sel_hi:[1,0,1] neg_lo:[1,0,0]')

L2E = 1.4426950408889634
L2E_HI = struct.unpack('<f', struct.pack('<I', 0x3FB8AA00))[0]
L2E_LO = L2E - L2E_HI

def poll_keys(vt, lane, tagname):
    E(f'''v_lshlrev_b32 v{vt+4}, 4, v{lane}
    v_add_u32 v{vt+4}, {WS_KEYS}, v{vt+4}
    s_mov_b32 s{sSPIN}, {SPIN_MAX}
    L_pk_{tagname}:
    global_load_dwordx4 {vr(vt,4)}, v{vt+4}, {sp(sWS)} sc1
    s_waitcnt vmcnt(0)
    v_cmp_eq_u32 vcc, s{sTAG}, v{vt+1}
    v_cmp_eq_u32 {sp(sM0)}, s{sTAG}, v{vt+3}
    v_max_u32 v{vt}, v{vt}, v{vt+2}
    s_and_b64 vcc, vcc, {sp(sM0)}
    s_cmp_eq_u64 vcc, -1
    s_cbranch_scc1 L_pkd_{tagname}''')
    spin_check(f'L_pk_{tagname}')
    E(f'L_pkd_{tagname}:')
    for sh in (8, 4, 2, 1):
        E(f'''s_nop 1
        v_max_u32_dpp v{vt}, v{vt}, v{vt} row_ror:{sh} row_mask:0xf bank_mask:0xf''')
    E(f'''s_nop 0
    v_readlane_b32 s{sKEY}, v{vt}, 0
    v_readlane_b32 s{sT0}, v{vt}, 16
    v_readlane_b32 s{sT1}, v{vt}, 32
    v_readlane_b32 s{sT2}, v{vt}, 48
    s_max_u32 s{sKEY}, s{sKEY}, s{sT0}
    s_max_u32 s{sT1}, s{sT1}, s{sT2}
    s_max_u32 s{sKEY}, s{sKEY}, s{sT1}''')

hdr = open('cdna_kernels/' + KN + '.s.ref').read().split('; Override launch')[0]
out.append(hdr.rstrip('\n'))
out.append(f'; @launch grid=(256,1,1) block=(512,1,1) lds={LDS_BYTES}')
out.append(f'''.amdgcn_target "amdgcn-amd-amdhsa--gfx950"
.text
.globl {KN}_kernel
.p2align 8
.type {KN}_kernel,@function
{KN}_kernel:''')
stamp(0)
E(f'''s_cmp_ge_u32 s2, 256
s_cbranch_scc1 L_end
s_load_dwordx16 s[8:23], s[0:1], 0
s_load_dwordx16 s[24:39], s[0:1], 64
s_getpc_b64 s[4:5]
L_pc:
v_lshrrev_b32 v1, 6, v0
v_and_b32 v3, 63, v0
v_readfirstlane_b32 s{sW}, v1
s_and_b32 s{sT0}, s2, 7
s_lshr_b32 s{sSLOT}, s2, 4
s_lshl_b32 s{sI}, s{sT0}, 4
s_add_u32 s{sI}, s{sI}, s{sSLOT}
s_cmp_gt_u32 s{sW}, 1
s_cbranch_scc1 L_nopf
v_lshlrev_b32 v2, 7, v0
v_min_u32 v2, L_end-L_pc, v2
global_load_dword v2, v2, s[4:5]
L_nopf:
s_bitcmp1_b32 s2, 3
s_cbranch_scc1 L_aux''')
LANE = 3
vLA, vAI, vCR, vCI, vDT = 4, 5, 6, 7, 8
vX = 16
vXO = 9
E(f'''v_lshlrev_b32 v1, 1, v0
s_lshl_b32 s{sT0}, s{sI}, 10
v_add_u32 v1, s{sT0}, v1
s_lshr_b32 s{sT1}, s{sW}, 1
s_lshl_b32 s{sT0}, s{sI}, 2
s_add_u32 s{sT0}, s{sT0}, s{sT1}
s_lshl_b32 s{sT0}, s{sT0}, 1
v_mov_b32 v10, s{sT0}
v_mov_b32 v{vLA}, 0
v_mov_b32 v{vAI}, 0
v_mov_b32 v{vCR}, 0
v_mov_b32 v{vCI}, 0
v_mov_b32 v{vDT}, 0
s_lshl_b32 s{sT2}, s{sI}, 3
s_cmp_ge_u32 s{sW}, 4
s_cbranch_scc1 L_cio0
s_lshl_b32 s{sT0}, s{sSLOT}, 7
v_add_u32 v{vXO}, s{sT0}, v0
v_and_b32 v{vXO}, 2047, v{vXO}
v_lshlrev_b32 v{vXO}, 10, v{vXO}
v_add_u32 v{vXO}, s{sT2}, v{vXO}
s_waitcnt lgkmcnt(0)''')
stamp(1)
E(f'''global_load_short_d16_hi v{vLA}, v1, {sp(sLA)}
global_load_short_d16_hi v{vDT}, v10, {sp(sLDT)}
global_load_short_d16_hi v{vAI}, v1, {sp(sAI)}
global_load_short_d16_hi v{vCR}, v1, {sp(sCR)}
global_load_short_d16_hi v{vCI}, v1, {sp(sCI)}
global_load_dword v{vX}, v{vXO}, {sp(sX)}
s_waitcnt vmcnt(1)
s_branch L_ckgen
L_cio0:
v_and_b32 v11, 255, v0
v_lshlrev_b32 v{vXO}, 13, v11
v_add_u32 v{vXO}, s{sT2}, v{vXO}
v_add_u32 v{vXO}, 4096, v{vXO}
s_waitcnt lgkmcnt(0)''')
stamp(1)
E(f'''global_load_short_d16_hi v{vLA}, v1, {sp(sLA)}
global_load_short_d16_hi v{vDT}, v10, {sp(sLDT)}
global_load_short_d16_hi v{vAI}, v1, {sp(sAI)}
global_load_short_d16_hi v{vCR}, v1, {sp(sCR)}
global_load_short_d16_hi v{vCI}, v1, {sp(sCI)}''')
for j in range(8):
    E(f'global_load_dwordx2 {vr(vX+2*j,2)}, v{vXO}, {sp(sX)} offset:{-4096+1024*j}')
E(f'''v_lshrrev_b32 v12, 5, v11
v_mul_u32_u24 v12, {UCB}, v12
v_and_b32 v13, 31, v11
v_min_u32 v13, 29, v13
v_lshl_add_u32 v12, v13, 4, v12
v_add_u32 v12, {UB0}, v12
v_mov_b32 v32, 0
v_mov_b32 v33, 0
v_mov_b32 v34, 0
v_mov_b32 v35, 0
ds_write_b128 v12, v[32:35]
s_load_dwordx2 {sp(sT4)}, {sp(sDS)}, s{sT2}
s_waitcnt vmcnt(8)
L_ckgen:''')
stamp(2)
a, b, c, d = 10, 11, 12, 13
E(f'''v_mul_f32 v{a}, {f32(L2E_HI)}, v{vLA}
v_mul_f32 v{b}, {f32(L2E_HI)}, v{vDT}
v_rndne_f32 v{c}, v{a}
v_rndne_f32 v{d}, v{b}
v_sub_f32 v{a}, v{a}, v{c}
v_sub_f32 v{b}, v{b}, v{d}
v_fmac_f32 v{a}, {f32(L2E_LO)}, v{vLA}
v_fmac_f32 v{b}, {f32(L2E_LO)}, v{vDT}
v_exp_f32 v{a}, v{a}
v_exp_f32 v{b}, v{b}
v_cvt_i32_f32 v{c}, v{c}
v_cvt_i32_f32 v{d}, v{d}
v_ldexp_f32 v{a}, v{a}, v{c}
v_ldexp_f32 v{b}, v{b}, v{d}
v_cvt_pk_bf16_f32 v{a}, v{a}, v{b}
v_and_b32 v{vDT}, 0xffff0000, v{a}
v_lshlrev_b32 v{a}, 16, v{a}
v_mul_f32 v{a}, v{a}, v{vDT}
v_mul_f32 v{vAI}, v{vAI}, v{vDT}
v_mul_f32 v{vLA}, {f32(-L2E)}, v{a}
v_mul_f32 v{vAI}, {f32(0.15915494309189535)}, v{vAI}
v_add_f32 v{vDT}, v{vDT}, v{vDT}''')
vW1, vW8, vW256, vW2, vW4 = 36, 38, 40, 42, 44
def wdirect(D, p):
    if p == 1:
        E(f'''v_exp_f32 v{a}, v{vLA}
        v_fract_f32 v{b}, v{vAI}''')
    else:
        E(f'''v_mul_f32 v{a}, {f32(p)}, v{vLA}
        v_mul_f32 v{b}, {f32(p)}, v{vAI}
        v_exp_f32 v{a}, v{a}
        v_fract_f32 v{b}, v{b}''')
    E(f'''v_cos_f32 v{D}, v{b}
    v_sin_f32 v{D+1}, v{b}
    s_nop 0
    v_mul_f32 v{D}, v{D}, v{a}
    v_mul_f32 v{D+1}, v{D+1}, v{a}''')
wdirect(vW8, 8.0)
E(f'''s_lshr_b32 s{sT0}, s{sW}, 1
s_and_b32 s{sT1}, s{sW}, 1
s_lshl_b32 s{sT1}, s{sT1}, 8
s_mul_i32 s{sT2}, s{sT0}, {32*ROWB}
s_add_u32 m0, s{sT2}, s{sT1}
s_mul_i32 s{sT2}, s{sT0}, {HIB}
s_add_u32 s{sT1}, s{sT1}, s{sT2}
s_add_u32 s{sT1}, s{sT1}, {HIX}''')
tmpc = [0]
def put(X, off, neg):
    t = 32 + (tmpc[0] & 3); tmpc[0] += 1
    E(f'v_cvt_pk_bf16_f32 v{t}, v{X}, {"-" if neg else ""}v{X+1}')
    E(f'ds_write_addtid_b32 v{t} offset:{off}')
E(f'v_mov_b32 v35, 0x3f80')
E(f'ds_write_addtid_b32 v35 offset:0')
put(vW8, ROWB, False)
P0, P1 = 46, 48
cur = vW8
for i in range(2, 32):
    nxt = P0 if cur != P0 else P1
    cmul(nxt, cur, vW8)
    put(nxt, i*ROWB, False)
    cur = nxt
wdirect(vW1, 1)
wdirect(vW256, 256.0)
E(f'''v_mul_f32 v{vCR}, v{vCR}, v{vDT}
v_mul_f32 v{vCI}, v{vCI}, v{vDT}
s_mov_b32 m0, s{sT1}''')
hoff = lambda row: HI0 - HIX + row*ROWB
cmul(vW2, vW1, vW1)
put(vCR, hoff(0), True)
cmul(vW4, vW2, vW2)
def chain(base, W, rows):
    cur = base
    for r in rows:
        nxt = P0 if cur != P0 else P1
        cmul(nxt, cur, W)
        put(nxt, hoff(r), True)
        cur = nxt
chain(vCR, vW1, range(1, 9))
B0, B1 = 50, 52
blk = {1: (16, vW2, [17, 18, 19, 20]), 2: (9, vW4, [10, 11]), 3: (21, vW4, [22, 23]), 4: (12, vW8, [13]),
       5: (24, vW8, [25]), 6: (14, vW8, [15]), 7: (26, vW8, [27])}
curb = vCR
for k in range(1, 8):
    nb = B0 if curb != B0 else B1
    cmul(nb, curb, vW256)
    put(nb, hoff(blk[k][0]), True)
    chain(nb, blk[k][1], blk[k][2])
    curb = nb
stamp(3)
E(f'''s_cmp_ge_u32 s{sW}, 4
s_cbranch_scc1 L_cio1''')
vA, vB = 4, 5
tab = [0,0,1,2,2,2,3,4,4,5,6,7,8,9,10,11]
tabv = sum(t << (4*i) for i, t in enumerate(tab))
E(f'''v_and_b32 v10, 31, v{LANE}
v_lshrrev_b32 v11, 5, v{LANE}
v_lshrrev_b32 v12, 3, v10
v_and_b32 v13, 3, v10
v_lshl_add_u32 v12, v12, 2, v13
s_mov_b32 s{sT2}, {tabv & 0xffffffff}
s_mov_b32 s{sT3}, {tabv >> 32}
v_lshlrev_b32 v13, 2, v12
v_lshrrev_b64 v[14:15], v13, {sp(sT2)}
v_and_b32 v14, 15, v14
v_add_u32 v14, 16, v14
v_and_b32 v13, 4, v10
v_cmp_ne_u32 vcc, 0, v13
s_mul_i32 s{sT0}, s{sW}, {HIB}
s_add_u32 s{sT0}, s{sT0}, {HI0}
v_cndmask_b32 v12, v12, v14, vcc
v_mul_u32_u24 v{vA}, {ROWB}, v12
v_mul_u32_u24 v{vB}, {ROWB}, v10
s_mul_i32 s{sT1}, s{sW}, {32*ROWB}
v_lshl_add_u32 v{vA}, v11, 4, v{vA}
v_lshl_add_u32 v{vB}, v11, 4, v{vB}
v_add_u32 v{vA}, s{sT0}, v{vA}
v_add_u32 v{vB}, s{sT1}, v{vB}''')
vKX, vKY = 6, 8
E(f'''v_lshlrev_b32 v10, 4, v{LANE}
v_sub_u32 v10, s{sT1}, v10
v_add_u32 v{vKX}, {4080-3072}, v10''')
for sl in range(4):
    E(f'v_add_u32 v{vKY+sl}, {KYOFF+4084-1024*sl}, v10')
out[-4:] = []
E(f'v_mov_b32 v15, v10')
for sl in range(4):
    E(f'v_add_u32 v{vKY+sl}, {KYOFF+4084-1024*sl}, v15')
E(f'''v_and_b32 v15, 1, v{LANE}
v_cmp_eq_u32 {sp(sM1)}, 1, v15
s_waitcnt lgkmcnt(0)
s_barrier''')
stamp(4)
FR = 64
ACC = 192
def gread(s):
    r = FR + 8*(s % 8)
    E(f'ds_read_b128 {vr(r,4)}, v{vA} offset:{32*s}')
    E(f'ds_read_b128 {vr(r+4,4)}, v{vB} offset:{32*s}')
for s in range(6): gread(s)
for s in range(16):
    if s + 6 < 16: gread(s+6)
    pend = 2*min(6, 15 - s)
    E(f's_waitcnt lgkmcnt({pend})')
    r = FR + 8*(s % 8)
    E(f'v_mfma_f32_32x32x16_bf16 {vr(ACC,16)}, {vr(r,4)}, {vr(r+4,4)}, {"0" if s == 0 else vr(ACC,16)}')
E(f'''v_lshlrev_b32 v12, 2, v{LANE}
v_and_b32 v12, 63, v12
v_add_u32 v12, s{sT1}, v12
v_mov_b32 v13, 0
ds_write_b32 v12, v13 offset:4096
ds_write_b32 v12, v13 offset:{KYOFF+4104}
s_nop 9''')
D = lambda r: f'v{ACC+r}'
T = FR
def expand(slot, e):
    t = T + 8*slot
    E(f'''v_cvt_pk_bf16_f32 v{t}, {e[7]}, {e[6]}
    v_cvt_pk_bf16_f32 v{t+1}, {e[5]}, {e[4]}
    v_cvt_pk_bf16_f32 v{t+2}, {e[3]}, {e[2]}
    v_cvt_pk_bf16_f32 v{t+3}, {e[1]}, {e[0]}
    ds_write_b128 v{vKX}, {vr(t,4)} offset:{1024*(3-slot)}
    v_cvt_pk_bf16_f32 v{t+4}, {e[6]}, {e[5]}
    v_cvt_pk_bf16_f32 v{t+5}, {e[4]}, {e[3]}
    v_cvt_pk_bf16_f32 v{t+6}, {e[8]}, {e[7]}
    v_cvt_pk_bf16_f32 v{t+7}, {e[2]}, {e[1]}
    ds_write_b64 v{vKY+slot}, {vr(t+4,2)} offset:4
    ds_write2_b32 v{vKY+slot}, v{t+6}, v{t+7} offset0:0 offset1:3''')
expand(0, [D(i) for i in range(9)])
E(f'''v_cndmask_b32 v14, {D(12)}, {D(13)}, {sp(sM1)}
v_cndmask_b32 v15, {D(14)}, {D(15)}, {sp(sM1)}
v_cvt_pk_bf16_f32 v13, {D(0)}, 0''')
expand(1, [D(9)]*3 + [D(10)]*3 + [D(11)]*3)
expand(2, [D(12)]*4 + ['v14'] + [D(13)]*4)
expand(3, [D(14)]*4 + ['v15'] + [D(15)]*4)
E(f'''s_mov_b64 exec, 1
ds_write_b32 v{vKY}, v13 offset:16
s_mov_b64 exec, -1''')
vCA, vCB, vY = 4, 5, 6
E(f'''v_and_b32 v10, 15, v{LANE}
v_lshrrev_b32 v11, 4, v{LANE}
v_and_b32 v12, 1, v10
v_lshrrev_b32 v10, 1, v10
v_lshlrev_b32 v11, 4, v11
v_mul_u32_u24 v13, {KYOFF+8}, v12
v_lshlrev_b32 v14, 3, v10
v_add_u32 v13, v13, v14
v_sub_u32 v{vCA}, v11, v13
s_add_u32 s{sT2}, s{sT1}, {KYOFF+4096-3584}
v_add_u32 v{vCA}, s{sT2}, v{vCA}
v_mul_u32_u24 v13, {UCB}, v12
v_lshl_add_u32 v13, v10, 6, v13
v_add_u32 v{vCB}, v13, v11
s_mul_i32 s{sT2}, s{sW}, {2*UCB}
s_add_u32 s{sT2}, s{sT2}, {UB0+UPAD}
v_add_u32 v{vCB}, s{sT2}, v{vCB}
v_lshlrev_b32 v13, 2, v12
v_lshl_add_u32 v13, v10, 6, v13
v_add_u32 v13, v13, v11
v_add_u32 v{vY}, s{sT0}, v13
s_waitcnt lgkmcnt(0) vmcnt(0)''')
stamp(5)
E('s_barrier')
stamp(6)
def reads(buf):
    l = []
    for m in range(8):
        ra = FR + 64*buf + 4*m; rb = FR + 64*buf + 32 + 4*m
        l.append(f'ds_read_b64 {vr(ra,2)}, v{vCA} offset:{512*(7-m)}')
        l.append(f'ds_read_b64 {vr(ra+2,2)}, v{vCA} offset:{512*(7-m)+8}')
        l.append(f'ds_read_b128 {vr(rb,4)}, v{vCB} offset:{512*m}')
    return l
def mfmas(buf, first):
    l = []
    seen = set()
    order = sorted([(m, n) for m in range(8) for n in range(8-m)], key=lambda t: (max(t), t))
    for m, n in order:
        Tt = m + n
        c = '0' if (first and Tt not in seen) else vr(ACC+4*Tt, 4)
        seen.add(Tt)
        l.append((max(m, n), f'v_mfma_f32_16x16x32_bf16 {vr(ACC+4*Tt,4)}, {vr(FR+64*buf+4*m,4)}, {vr(FR+64*buf+32+4*n,4)}, {c}'))
    return l
def step():
    E(f'''v_subrev_u32 v{vCA}, 64, v{vCA}
    v_subrev_u32 v{vCB}, 64, v{vCB}''')
def body(buf, first, prefetch):
    mm = mfmas(buf, first)
    rd = reads(buf ^ 1) if prefetch else []
    if prefetch: step()
    for i, (lv, ins) in enumerate(mm):
        E(ins)
        if i < len(rd): E(rd[i])
    E('s_waitcnt lgkmcnt(0)')
rd = reads(0)
for x in rd[:12]: E(x)
E('s_waitcnt lgkmcnt(6)')
for x in rd[12:21]: E(x)
E('s_waitcnt lgkmcnt(6)')
for x in rd[21:]: E(x)
E('s_waitcnt lgkmcnt(0)')
body(0, True, True)
E(f's_mov_b32 s{sT2}, 3')
E('L_cloop:')
body(1, False, True)
body(0, False, True)
E(f'''s_sub_u32 s{sT2}, s{sT2}, 1
s_cmp_lg_u32 s{sT2}, 0
s_cbranch_scc1 L_cloop''')
body(1, False, False)
E('s_nop 7')
for Tt in range(8):
    t = FR + 2*Tt
    E(f'''v_cvt_pk_bf16_f32 v{t}, v{ACC+4*Tt}, v{ACC+4*Tt+1}
    v_cvt_pk_bf16_f32 v{t+1}, v{ACC+4*Tt+2}, v{ACC+4*Tt+3}''')
    if Tt & 1:
        E(f'ds_write2_b32 v{vY}, v{t}, v{t+1} offset0:128 offset1:130')
        E(f'v_add_u32 v{vY}, 1024, v{vY}')
    else:
        E(f'ds_write2_b32 v{vY}, v{t}, v{t+1} offset0:0 offset1:2')
E('s_waitcnt lgkmcnt(0)')
stamp(7)
E('s_barrier')
stamp(8)
E(f'''s_cmp_lg_u32 s{sW}, 0
s_cbranch_scc1 L_cdone''')
E(f'''v_mov_b32 v10, {KEY_LDS}
ds_read_b64 v[12:13], v10
s_lshl_b32 s{sT2}, s{sI}, 11
s_add_u32 s{sT2}, s{sT2}, {WS_PART}
v_lshlrev_b32 v11, 4, v{LANE}
v_add_u32 v11, s{sT2}, v11
s_lshl_b32 s{sT2}, s{sI}, 3
s_load_dwordx2 {sp(sT4)}, {sp(sDS)}, s{sT2}
s_waitcnt lgkmcnt(0)
v_readfirstlane_b32 s{sKEY}, v12
v_readfirstlane_b32 s{sTAG}, v13
s_andn2_b32 s{sIDX}, 2047, s{sKEY}
s_lshl_b32 s{sT0}, s{sIDX}, 1
v_mov_b32 v10, s{sT0}
v_add_u32 v14, {HI0}, v10
v_add_u32 v15, {UB0+UCB+UPAD}, v10''')
for k in range(4):
    E(f'v_mov_b32 v{16+k}, 0\nv_mov_b32 v{20+k}, 0')
E('v_mov_b32 v24, 0')
for k in range(4):
    E(f'ds_read_u16_d16_hi v{16+k}, v14 offset:{k*HIB}')
    E(f'ds_read_u16_d16_hi v{20+k}, v15 offset:{k*2*UCB}')
E(f'ds_read_u16_d16_hi v24, v14 offset:4096')
E(f'''s_and_b32 s{sT0}, s{sKEY}, 0xffff0000
s_xor_b32 s{sT1}, s{sT0}, 0xffff0000
s_xor_b32 s{sT0}, s{sT0}, 0x80000000
s_bitcmp1_b32 s{sKEY}, 31
s_cselect_b32 s{sT0}, s{sT0}, s{sT1}
v_mov_b32 v25, {f32(-L2E)}
v_mul_f32 v25, s{sT0}, v25
v_exp_f32 v25, v25
s_nop 0
v_add_f32 v25, 1.0, v25
v_rcp_f32 v25, v25
s_nop 0
v_cvt_pk_bf16_f32 v25, v25, v25
v_and_b32 v25, 0xffff0000, v25
s_lshl_b32 s{sT0}, s{sT4}, 16
s_and_b32 s{sT1}, s{sT4}, 0xffff0000
s_lshl_b32 s{sT2}, s{sT5}, 16
s_and_b32 s{sT3}, s{sT5}, 0xffff0000
s_waitcnt lgkmcnt(0)
v_fmac_f32 v16, s{sT0}, v20
v_fmac_f32 v17, s{sT1}, v21
v_fmac_f32 v18, s{sT2}, v22
v_fmac_f32 v19, s{sT3}, v23
v_mul_f32 v16, v16, v24
v_mul_f32 v17, v17, v24
v_mul_f32 v18, v18, v24
v_mul_f32 v19, v19, v24
v_sub_f32 v24, 1.0, v24
s_mov_b32 s{sT0}, 0x0c0c0400
s_mov_b32 s{sT1}, 0x04000c0c
v_cmp_gt_u32 {sp(sM1)}, 48, v{LANE}
s_mov_b32 s{sSPIN}, {SPIN_MAX}
L_pp:
global_load_dwordx4 v[28:31], v11, {sp(sWS)} sc1
global_load_dwordx4 v[32:35], v11, {sp(sWS)} offset:1024 sc1
s_waitcnt vmcnt(0)
v_perm_b32 v26, v29, v28, s{sT0}
v_perm_b32 v27, v31, v30, s{sT1}
v_perm_b32 v36, v33, v32, s{sT0}
v_perm_b32 v37, v35, v34, s{sT1}
v_or_b32 v26, v26, v27
v_or_b32 v36, v36, v37
v_cmp_eq_u32 vcc, s{sTAG}, v26
v_cmp_eq_u32 {sp(sM0)}, s{sTAG}, v36
s_orn2_b64 {sp(sM0)}, {sp(sM0)}, {sp(sM1)}
s_and_b64 vcc, vcc, {sp(sM0)}
s_cmp_eq_u64 vcc, -1
s_cbranch_scc1 L_ppd''')
spin_check('L_pp')
E(f'''L_ppd:
s_mov_b64 exec, {sp(sM1)}
v_add_f32 v28, v28, v32
v_add_f32 v29, v29, v33
v_add_f32 v30, v30, v34
v_add_f32 v31, v31, v35
s_mov_b64 exec, -1
s_nop 4''')
for sh in (8, 4, 2, 1):
    for k in range(4):
        E(f'v_add_f32_dpp v{28+k}, v{28+k}, v{28+k} row_ror:{sh} row_mask:0xf bank_mask:0xf')
for k in range(4):
    E(f'v_add_f32_dpp v{28+k}, v{28+k}, v{28+k} row_bcast:15 row_mask:0xa bank_mask:0xf')
for k in range(4):
    E(f'v_add_f32_dpp v{28+k}, v{28+k}, v{28+k} row_bcast:31 row_mask:0xc bank_mask:0xf')
E(f'''v_cvt_pk_bf16_f32 v28, v28, v29
v_cvt_pk_bf16_f32 v30, v30, v31
v_and_b32 v29, 0xffff0000, v28
v_lshlrev_b32 v28, 16, v28
v_and_b32 v31, 0xffff0000, v30
v_lshlrev_b32 v30, 16, v30
v_fmac_f32 v20, v28, v25
v_fmac_f32 v21, v29, v25
v_fmac_f32 v22, v30, v25
v_fmac_f32 v23, v31, v25
v_fmac_f32 v16, v20, v24
v_fmac_f32 v17, v21, v24
v_fmac_f32 v18, v22, v24
v_fmac_f32 v19, v23, v24
v_cvt_pk_bf16_f32 v16, v16, v17
v_cvt_pk_bf16_f32 v17, v18, v19
s_lshl_b32 s{sT0}, s{sIDX}, 10
s_lshl_b32 s{sT1}, s{sI}, 3
s_add_u32 s{sT0}, s{sT0}, s{sT1}
v_mov_b32 v10, s{sT0}
s_mov_b32 exec_lo, 0
s_mov_b32 exec_hi, 0x80000000
global_store_dwordx2 v10, v[16:17], {sp(sOUT)}
s_branch L_cdone''')
vUB = 4
vPK = 32
E(f'''L_cio1:
v_and_b32 v11, 255, v0
v_lshlrev_b32 v11, 4, v11''')
for k in range(4):
    E(f'v_add_u32 v{vUB+k}, {UB0+k*2*UCB}, v11')
E(f'''s_mov_b32 s{sT0}, 0x05040100
s_mov_b32 s{sT1}, 0x07060302
s_waitcnt lgkmcnt(0)
s_barrier''')
stamp(4)
E('s_waitcnt vmcnt(0)')
for k in range(4):
    for j in range(4):
        E(f'v_perm_b32 v{vPK+4*k+j}, v{vX+4*j+2+(k>>1)}, v{vX+4*j+(k>>1)}, s{sT1 if k & 1 else sT0}')
    E(f'ds_write_b128 v{vUB+k}, {vr(vPK+4*k,4)} offset:{UCB+UPAD}')
    E(f'ds_write2_b32 v{vUB+k}, v{vPK+4*k}, v{vPK+4*k+1} offset0:{(UPAD+4)//4} offset1:{(UPAD+8)//4}')
    E(f'ds_write2_b32 v{vUB+k}, v{vPK+4*k+2}, v{vPK+4*k+3} offset0:{(UPAD+12)//4} offset1:{(UPAD+16)//4}')
E('s_waitcnt lgkmcnt(0)')
stamp(5)
E('s_barrier')
stamp(6)
E(f'''v_mov_b32 v10, 0
s_mov_b32 s{sSPIN}, {SPIN_MAX}
L_pt:
global_load_dwordx2 v[12:13], v10, {sp(sDBG)} sc1
s_waitcnt vmcnt(0)
v_readfirstlane_b32 s{sTAG}, v12
v_readfirstlane_b32 s{sT2}, v13
s_cmp_eq_u32 s{sT2}, 1
s_cbranch_scc1 L_ptd''')
spin_check('L_pt')
E('L_ptd:')
poll_keys(48, LANE, 'c')
vG = 56
E(f'''s_andn2_b32 s{sIDX}, 2047, s{sKEY}
v_lshlrev_b32 v10, 1, v11
v_add_u32 v10, {WS_G}, v10
s_mov_b32 s{sSPIN}, {SPIN_MAX}
L_pg:
global_load_dwordx4 {vr(vG,4)}, v10, {sp(sWS)} sc1
global_load_dwordx4 {vr(vG+4,4)}, v10, {sp(sWS)} offset:16 sc1
s_waitcnt vmcnt(0)
v_cmp_eq_u32 vcc, s{sTAG}, v{vG+1}
v_cmp_eq_u32 {sp(sM0)}, s{sTAG}, v{vG+3}
s_and_b64 vcc, vcc, {sp(sM0)}
v_cmp_eq_u32 {sp(sM0)}, s{sTAG}, v{vG+5}
v_cmp_eq_u32 {sp(sM1)}, s{sTAG}, v{vG+7}
s_and_b64 vcc, vcc, {sp(sM0)}
s_and_b64 vcc, vcc, {sp(sM1)}
s_cmp_eq_u64 vcc, -1
s_cbranch_scc1 L_pgd''')
spin_check('L_pg')
E(f'''L_pgd:
v_mov_b32 v48, v{vG}
v_mov_b32 v49, v{vG+2}
v_mov_b32 v50, v{vG+4}
v_mov_b32 v51, v{vG+6}
v_add_u32 v10, {G_LDS}, v11
ds_write_b128 v10, v[48:51]
v_mov_b32 v12, s{sKEY}
v_mov_b32 v13, s{sTAG}
v_mov_b32 v10, {KEY_LDS}
ds_write_b64 v10, v[12:13]''')
stamp(9)
vDM = 12
E(f'''s_lshl_b32 s{sT0}, s{sT4}, 16
s_and_b32 s{sT1}, s{sT4}, 0xffff0000
s_lshl_b32 s{sT2}, s{sT5}, 16
s_and_b32 s{sT3}, s{sT5}, 0xffff0000
v_add_f32 v{vDM}, s{sT0}, -1.0
v_add_f32 v{vDM+1}, s{sT1}, -1.0
v_add_f32 v{vDM+2}, s{sT2}, -1.0
v_add_f32 v{vDM+3}, s{sT3}, -1.0''')
vGS = 64
vGF = 72
vP = 80
vSO = 112
for j in range(4):
    E(f'''v_and_b32 v{vGS+2*j}, 0xffff, v{48+j}
    v_and_b32 v{vGS+2*j+1}, 0xffff0000, v{48+j}
    v_lshlrev_b32 v{vGF+2*j}, 16, v{48+j}
    v_and_b32 v{vGF+2*j+1}, 0xffff0000, v{48+j}''')
for j in range(8):
    gsel = j & 1
    gp = vGF + (j & ~1)
    for h in range(2):
        p = vP + 4*j + 2*h
        E(f'''v_pk_fma_f32 v[52:53], {vr(gp,2)}, {vr(vDM+2*h,2)}, 1.0 op_sel:[{gsel},0,0] op_sel_hi:[{gsel},1,0]
        v_lshlrev_b32 v{p}, 16, v{vX+2*j+h}
        v_and_b32 v{p+1}, 0xffff0000, v{vX+2*j+h}
        v_pk_mul_f32 {vr(p,2)}, {vr(p,2)}, v[52:53]''')
E(f'''s_mov_b32 s{sSRD}, s{sOUT}
s_mov_b32 s{sSRD+1}, s{sOUT+1}
s_mov_b32 s{sSRD+2}, 2097152
s_mov_b32 s{sSRD+3}, 0x00020000
v_lshrrev_b32 v10, 1, v11
v_sub_u32 v10, s{sIDX}, v10
v_mov_b32 v54, 0x40000000''')
for j in range(8):
    E(f'''v_cmp_eq_u32 vcc, {j}, v10
    v_add_u32 v{vSO+j}, {(-4096+1024*j) & 0xffffffff}, v{vXO}
    s_nop 0
    v_cndmask_b32 v{vSO+j}, v{vSO+j}, v54, vcc''')
E(f'''v_add_u32 v10, {HI0}, v11
s_waitcnt lgkmcnt(0)''')
stamp(7)
E('s_barrier')
stamp(8)
vYV = 32
for k in range(4):
    E(f'ds_read_b128 {vr(vYV+4*k,4)}, v10 offset:{k*HIB}')
E('s_waitcnt lgkmcnt(0)')
def dots(j):
    for k in range(4):
        E(f'v_dot2_f32_bf16 v{vP+4*j+k}, v{vYV+4*k+(j>>1)}, v{vGS+j}, v{vP+4*j+k}')
dots(0)
for j in range(8):
    if j < 7: dots(j+1)
    else: E('s_nop 2')
    E(f'''v_cvt_pk_bf16_f32 v{vP+4*j}, v{vP+4*j}, v{vP+4*j+1}
    v_cvt_pk_bf16_f32 v{vP+4*j+1}, v{vP+4*j+2}, v{vP+4*j+3}
    buffer_store_dwordx2 {vr(vP+4*j,2)}, v{vSO+j}, s[{sSRD}:{sSRD+3}], 0 offen''')
E('L_cdone:')
stamp(10)
if STAMPS:
    E('s_waitcnt vmcnt(0)')
    stamp(11)
if DUMP:
    E(f'''s_mov_b64 exec, -1
    s_barrier
    s_cmp_lg_u32 s{sI}, {int(DUMP)}
    s_cbranch_scc1 L_nodump
    v_lshlrev_b32 v10, 4, v0
    s_mov_b32 s{sT0}, 20
    L_dl:
    ds_read_b128 v[12:15], v10
    v_add_u32 v11, 0x200000, v10
    s_waitcnt lgkmcnt(0)
    global_store_dwordx4 v11, v[12:15], {sp(sWS)}
    v_add_u32 v10, 8192, v10
    s_waitcnt vmcnt(0)
    s_sub_u32 s{sT0}, s{sT0}, 1
    s_cmp_lg_u32 s{sT0}, 0
    s_cbranch_scc1 L_dl
    L_nodump:''')
write_stamps(12)
E('s_endpgm')

A_KEY = 49152
A_IDX = 49152 + 64
A_PART = 50176
vXA, vXB, vWRv, vGWv = 8, 12, 16, 20
vWL = 24
E(f'''L_aux:
v_lshlrev_b32 v4, 4, v{LANE}
s_lshl_b32 s{sT0}, s{sI}, 14
s_lshl_b32 s{sT1}, s{sW}, 11
s_add_u32 s{sT0}, s{sT0}, s{sT1}
v_add_u32 v5, s{sT0}, v4
v_lshrrev_b32 v6, 1, v{LANE}
v_mul_u32_u24 v6, 3584, v6
v_and_b32 v7, 1, v{LANE}
v_lshl_add_u32 v6, v7, 4, v6
s_min_u32 s{sT2}, s{sI}, 111
s_mul_i32 s{sT0}, s{sW}, {64*3584}
s_lshl_b32 s{sT1}, s{sT2}, 5
s_add_u32 s{sT0}, s{sT0}, s{sT1}
v_add_u32 v6, s{sT0}, v6
v_add_u32 v7, {32*3584}, v6
v_lshrrev_b32 v1, 3, v{LANE}
v_lshlrev_b32 v1, 10, v1
v_and_b32 v48, 7, v{LANE}
v_lshl_add_u32 v1, v48, 4, v1
s_lshl_b32 s{sT0}, s{sT2}, 14
s_lshl_b32 s{sT1}, s{sW}, 7
s_add_u32 s{sT0}, s{sT0}, s{sT1}
v_add_u32 v1, s{sT0}, v1
v_add_u32 v48, 8192, v1
s_waitcnt lgkmcnt(0)''')
stamp(1)
E(f'''s_load_dword s{sTAG}, {sp(sWS)}, {WS_EPOCH}
global_load_dwordx4 {vr(vXA,4)}, v5, {sp(sX)}
global_load_dwordx4 {vr(vXB,4)}, v5, {sp(sX)} offset:1024
global_load_dwordx4 {vr(vWRv,4)}, v4, {sp(sWR)}
global_load_dwordx4 {vr(vGWv,4)}, v4, {sp(sGW)}
global_load_dwordx4 {vr(vWL,4)}, v6, {sp(sWG)}
global_load_dwordx4 {vr(vWL+4,4)}, v7, {sp(sWG)}
global_load_dwordx4 {vr(vWL+8,4)}, v6, {sp(sWU)}
global_load_dwordx4 {vr(vWL+12,4)}, v7, {sp(sWU)}
global_load_dwordx4 {vr(vWL+16,4)}, v1, {sp(sWD)}
global_load_dwordx4 {vr(vWL+20,4)}, v48, {sp(sWD)}
s_lshl_b32 s{sT0}, s{sI}, 4
s_lshl_b32 s{sT1}, s{sW}, 1
s_add_u32 s{sT0}, s{sT0}, s{sT1}
v_lshrrev_b32 v5, 5, v{LANE}
v_add_u32 v5, s{sT0}, v5
v_sub_u32 v5, 2047, v5
s_lshl_b32 s{sT1}, s{sW}, 3
v_lshrrev_b32 v6, 5, v{LANE}
v_lshlrev_b32 v6, 2, v6
v_add_u32 v6, s{sT1}, v6
s_waitcnt lgkmcnt(0)
s_add_u32 s{sTAG}, s{sTAG}, {TAGINC}
s_waitcnt vmcnt(7)''')
stamp(2)
E(f'''v_dot2_f32_bf16 v50, v{vXA}, v{vWRv}, 0
v_dot2_f32_bf16 v51, v{vXB}, v{vWRv}, 0''')
for k in range(1, 4):
    E(f'''v_dot2_f32_bf16 v50, v{vXA+k}, v{vWRv+k}, v50
    v_dot2_f32_bf16 v51, v{vXB+k}, v{vWRv+k}, v51''')
E(f'''s_nop 2
v_permlane32_swap_b32 v50, v51
s_nop 0
v_add_f32 v50, v50, v51''')
for sh in (8, 4, 2, 1):
    E(f'''s_nop 1
    v_add_f32_dpp v50, v50, v50 row_ror:{sh} row_mask:0xf bank_mask:0xf''')
E(f'''s_nop 1
v_add_f32_dpp v50, v50, v50 row_bcast:15 row_mask:0xa bank_mask:0xf
v_cvt_pk_bf16_f32 v50, 0, v50
v_ashrrev_i32 v51, 31, v50
v_or_b32 v51, 0x80000000, v51
v_xor_b32 v50, v50, v51
v_and_b32 v50, 0xffff0000, v50
v_or_b32 v50, v50, v5
s_mov_b32 exec_lo, 0x80000000
s_mov_b32 exec_hi, 0x80000000
ds_write_b32 v6, v50 offset:{A_KEY}
s_mov_b64 exec, -1
s_waitcnt lgkmcnt(0)
s_barrier''')
stamp(3)
E(f'''s_cmp_lg_u32 s{sW}, 0
s_cbranch_scc1 L_anokey
v_and_b32 v6, 15, v{LANE}
v_lshlrev_b32 v6, 2, v6
ds_read_b32 v50, v6 offset:{A_KEY}
s_lshl_b32 s{sT0}, s{sI}, 3
s_add_u32 s{sT0}, s{sT0}, {WS_KEYS}
v_mov_b32 v6, s{sT0}
v_mov_b32 v51, s{sTAG}
s_waitcnt lgkmcnt(0)''')
for sh in (8, 4, 2, 1):
    E(f'''v_max_u32_dpp v50, v50, v50 row_ror:{sh} row_mask:0xf bank_mask:0xf
    s_nop 1''')
E(f'''s_mov_b64 exec, 1
global_store_dwordx2 v6, v[50:51], {sp(sWS)} sc1
s_cmp_lg_u32 s{sI}, 0
s_cbranch_scc1 L_anotag
v_mov_b32 v6, 0
v_mov_b32 v52, s{sTAG}
v_mov_b32 v53, 1
global_store_dwordx2 v6, v[52:53], {sp(sDBG)} sc1
L_anotag:
s_mov_b64 exec, -1
L_anokey:''')
stamp(4)
E(f's_waitcnt vmcnt(6)')
E(f's_mov_b32 s{sT0}, 0x3f803f80')
for k in range(4):
    E(f'''v_and_b32 v52, 0xffff, v{vGWv+k}
    v_and_b32 v53, 0xffff0000, v{vGWv+k}
    v_dot2_f32_bf16 v54, v{vXA+k}, v52, 0
    v_dot2_f32_bf16 v55, v{vXA+k}, v53, 0
    v_dot2_f32_bf16 v56, v{vXB+k}, v52, 0
    v_dot2_f32_bf16 v57, v{vXB+k}, v53, 0
    s_nop 1
    v_cvt_pk_bf16_f32 v54, v54, v55
    s_nop 0
    v_cvt_pk_bf16_f32 v56, v56, v57
    v_dot2_f32_bf16 v50, v54, s{sT0}, {"0" if k == 0 else "v50"}
    v_dot2_f32_bf16 v51, v56, s{sT0}, {"0" if k == 0 else "v51"}''')
E(f'''s_nop 2
v_permlane32_swap_b32 v50, v51
s_nop 0
v_add_f32 v50, v50, v51''')
for sh in (8, 4, 2, 1):
    E(f'''s_nop 1
    v_add_f32_dpp v50, v50, v50 row_ror:{sh} row_mask:0xf bank_mask:0xf''')
E(f'''s_nop 1
v_add_f32_dpp v50, v50, v50 row_bcast:15 row_mask:0xa bank_mask:0xf
v_cvt_pk_bf16_f32 v50, 0, v50
v_mul_f32 v50, {f32(-L2E)}, v50
v_exp_f32 v50, v50
s_nop 0
v_add_f32 v50, 1.0, v50
v_rcp_f32 v50, v50
s_nop 0
v_readlane_b32 s{sT1}, v50, 31
s_lshl_b32 s{sT0}, s{sI}, 6
s_lshl_b32 s{sT2}, s{sW}, 3
s_add_u32 s{sT0}, s{sT0}, s{sT2}
s_add_u32 s{sT0}, s{sT0}, {WS_G}
v_cvt_pk_bf16_f32 v50, s{sT1}, v50
v_mov_b32 v51, s{sTAG}
v_mov_b32 v6, s{sT0}
s_mov_b32 exec_lo, 0
s_mov_b32 exec_hi, 0x80000000
global_store_dwordx2 v6, v[50:51], {sp(sWS)} sc1
s_mov_b64 exec, -1
s_cmp_ge_u32 s{sI}, 112
s_cbranch_scc1 L_adone''')
stamp(5)
vFG, vFU, vFD = 64, 72, 80
E(f'''s_mul_i32 s{sT0}, s{sW}, 6144
v_add_u32 v4, s{sT0}, v4
s_waitcnt vmcnt(1)''')
for k in range(6):
    E(f'ds_write_b128 v4, {vr(vWL+4*k,4)} offset:{1024*k}')
E(f'''v_and_b32 v5, 15, v{LANE}
v_lshrrev_b32 v6, 4, v{LANE}
v_lshlrev_b32 v7, 3, v5
v_lshl_add_u32 v7, v6, 8, v7
v_add_u32 v7, s{sT0}, v7
v_lshrrev_b32 v8, 2, v{LANE}
v_lshlrev_b32 v8, 7, v8
v_and_b32 v9, 3, v{LANE}
v_lshl_add_u32 v8, v9, 3, v8
v_add_u32 v8, s{sT0}, v8
s_waitcnt lgkmcnt(0)''')
for s in range(2):
    for h in range(2):
        E(f'ds_read_b64_tr_b16 {vr(vFG+4*s+2*h,2)}, v7 offset:{1024*s+128*h}')
        E(f'ds_read_b64_tr_b16 {vr(vFU+4*s+2*h,2)}, v7 offset:{2048+1024*s+128*h}')
for t in range(4):
    E(f'ds_read_b64_tr_b16 {vr(vFD+2*t,2)}, v8 offset:{4096+32*t}')
E(f'''v_lshlrev_b32 v10, 4, v6
s_lshl_b32 s{sT1}, s{sW}, 7
v_add_u32 v10, s{sT1}, v10
v_lshlrev_b32 v11, 7, v6
s_lshl_b32 s{sT1}, s{sW}, 2
s_add_u32 s{sT1}, s{sT1}, {A_PART}
v_add_u32 v11, s{sT1}, v11
v_lshrrev_b32 v12, 3, v5
v_lshlrev_b32 v12, 9, v12
v_lshl_add_u32 v12, v6, 7, v12
v_lshl_add_u32 v12, v9, 5, v12
v_and_b32 v13, 4, v5
v_lshl_add_u32 v12, v13, 2, v12
v_lshl_add_u32 v13, v9, 2, v6
v_lshlrev_b32 v13, 11, v13
s_lshl_b32 s{sT1}, s{sW}, 15
s_lshl_b32 s{sT2}, s{sI}, 4
s_add_u32 s{sT1}, s{sT1}, s{sT2}
s_add_u32 s{sT1}, s{sT1}, {WS_PART}
v_add_u32 v13, s{sT1}, v13''')
for t in range(4):
    E(f'''v_cmp_eq_u32 vcc, {t}, v9
    s_lshr_b32 s{sT1}, s{sTAG}, {8*t}
    v_mov_b32 v{92+t}, s{sT1}
    v_cndmask_b32 v{88+t}, 0, -1, vcc''')
E(f'''v_cmp_gt_u32 {sp(sM1)}, 8, v5
s_waitcnt lgkmcnt(0)''')
stamp(6)
E(f'''s_cmp_lg_u32 s{sW}, 0
s_cbranch_scc1 L_anopoll''')
poll_keys(16, LANE, 'a')
E(f'''v_mov_b32 v16, s{sKEY}
v_mov_b32 v17, {A_IDX}
ds_write_b32 v17, v16
s_cmp_lg_u32 s{sI}, 0
s_cbranch_scc1 L_anoep
v_mov_b32 v18, 0
v_mov_b32 v19, s{sTAG}
s_mov_b64 exec, 1
global_store_dword v18, v19, {sp(sWS)} offset:{WS_EPOCH} sc1
s_mov_b64 exec, -1
L_anoep:
s_waitcnt lgkmcnt(0)
L_anopoll:
s_barrier''')
stamp(7)
E(f'''v_mov_b32 v17, {A_IDX}
ds_read_b32 v16, v17
s_waitcnt lgkmcnt(0)
v_not_b32 v16, v16
v_and_b32 v16, 2047, v16
v_lshl_add_u32 v10, v16, 10, v10
global_load_dwordx4 v[16:19], v10, {sp(sX)}
global_load_dwordx4 v[20:23], v10, {sp(sX)} offset:64
s_waitcnt vmcnt(1)
v_mfma_f32_16x16x32_bf16 v[24:27], {vr(vFG,4)}, v[16:19], 0
v_mfma_f32_16x16x32_bf16 v[28:31], {vr(vFU,4)}, v[16:19], 0
s_waitcnt vmcnt(0)
v_mfma_f32_16x16x32_bf16 v[24:27], {vr(vFG+4,4)}, v[20:23], v[24:27]
v_mfma_f32_16x16x32_bf16 v[28:31], {vr(vFU+4,4)}, v[20:23], v[28:31]
s_mov_b32 exec_lo, 0x00010001
s_mov_b32 exec_hi, 0x00010001
s_nop 5
ds_write2_b32 v11, v24, v25 offset0:0 offset1:8
ds_write2_b32 v11, v26, v27 offset0:16 offset1:24
ds_write2_b32 v11, v28, v29 offset0:128 offset1:136
ds_write2_b32 v11, v30, v31 offset0:144 offset1:152
s_mov_b64 exec, -1
s_waitcnt lgkmcnt(0)
s_barrier''')
stamp(8)
E(f'''ds_read_b128 v[16:19], v12 offset:{A_PART}
s_waitcnt lgkmcnt(0)
v_add_f32 v16, v16, v17
v_add_f32 v18, v18, v19
v_add_f32 v16, v16, v18
s_nop 1
v_mov_b32_dpp v17, v16 row_half_mirror row_mask:0xf bank_mask:0xf
s_nop 1
v_add_f32_dpp v16, v17, v16 quad_perm:[3,2,1,0] row_mask:0xf bank_mask:0xf
s_nop 1
v_mov_b32_dpp v17, v16 row_ror:8 row_mask:0xf bank_mask:0xf
v_cndmask_b32 v18, v17, v16, {sp(sM1)}
v_cndmask_b32 v19, v16, v17, {sp(sM1)}
v_cvt_pk_bf16_f32 v18, v18, v19
v_and_b32 v19, 0xffff0000, v18
v_lshlrev_b32 v18, 16, v18
v_mul_f32 v16, {f32(-L2E)}, v18
v_exp_f32 v16, v16
s_nop 0
v_add_f32 v16, 1.0, v16
v_rcp_f32 v16, v16
s_nop 0
v_mul_f32 v16, v16, v18
v_cvt_pk_bf16_f32 v16, 0, v16
v_mul_f32 v16, v16, v19
s_nop 1
v_mov_b32_dpp v17, v16 quad_perm:[0,0,0,0] row_mask:0xf bank_mask:0xf
v_mov_b32_dpp v18, v16 quad_perm:[1,1,1,1] row_mask:0xf bank_mask:0xf
v_mov_b32_dpp v19, v16 quad_perm:[2,2,2,2] row_mask:0xf bank_mask:0xf
v_mov_b32_dpp v20, v16 quad_perm:[3,3,3,3] row_mask:0xf bank_mask:0xf
v_cvt_pk_bf16_f32 v16, v17, v18
v_cvt_pk_bf16_f32 v17, v19, v20''')
for t in range(4):
    E(f'''v_and_b32 v{24+2*t}, v16, v{88+t}
    v_and_b32 v{25+2*t}, v17, v{88+t}''')
E(f'''s_mov_b32 s{sT0}, 0xff
s_nop 0
v_mfma_f32_16x16x32_bf16 v[32:35], {vr(vFD,4)}, v[24:27], 0
v_mfma_f32_16x16x32_bf16 v[32:35], {vr(vFD+4,4)}, v[28:31], v[32:35]
s_mov_b32 exec_lo, 0x000f000f
s_mov_b32 exec_hi, 0x000f000f
s_nop 6''')
for t in range(4):
    E(f'v_bfi_b32 v{32+t}, s{sT0}, v{92+t}, v{32+t}')
E(f'global_store_dwordx4 v13, v[32:35], {sp(sWS)} sc1')
stamp(9)
E('L_adone:')
stamp(10)
if STAMPS:
    E('s_waitcnt vmcnt(0)')
    stamp(11)
write_stamps(12)
E('L_end:')
E('s_endpgm')
out.append(f'''.section .rodata,"a"
.p2align 6
.amdhsa_kernel {KN}_kernel
  .amdhsa_next_free_vgpr 224
  .amdhsa_next_free_sgpr 96
  .amdhsa_accum_offset 224
  .amdhsa_group_segment_fixed_size 0
  .amdhsa_kernarg_size 128
  .amdhsa_user_sgpr_count 2
  .amdhsa_user_sgpr_kernarg_segment_ptr 1
  .amdhsa_system_sgpr_workgroup_id_x 1
.end_amdhsa_kernel''')
print('\n'.join(out))
```

```python
import sys, struct
from asmlib import KN, STAMP_OFF
OPT = dict(a.split('=') if '=' in a else (a, '1') for a in sys.argv[1:])
STAMPS = 'stamps' in OPT
DUMP = OPT.get('dump')
MID0 = int(OPT.get('mid0', 10))
MID1 = int(OPT.get('mid1', 50))
YG = 320
NT = ' nt' if OPT.get('nt', '1') == '1' else ''
NTX = ' nt' if OPT.get('ntx', '1') == '1' else ''
PRIO = OPT.get('prio', 'io')
SLEEP = int(OPT.get('sleep', 2))

out = []
def E(s):
    for ln in s.strip('\n').split('\n'):
        ln = ln.strip()
        if ln: out.append(('    ' + ln) if not ln.endswith(':') else ln)
def f32(x): return '0x%08x' % struct.unpack('<I', struct.pack('<f', x))[0]
def vr(b, n): return f'v[{b}:{b+n-1}]'

WS_EPOCH, WS_KEYS, WS_G, WS_PART = 0, 4096, 8192, 32768
TAGINC = 0x9E3779B1
SPIN_MAX = 1 << 20
ROWB = 528
LOB = 32*ROWB
HI0 = 4*LOB
NHI = 22
HIB = NHI*ROWB
UB0 = HI0 + 4*HIB
UCB, UPAD = 4608, 480
SM0 = UB0 + 4*UCB
SMB = 4096
KX, KY, F3, F4, FLG = 0, 1216, 2432, 2944, 3328
HIX = 16384
LDS_BYTES = SM0 + 4*SMB
sEX = 6
sX, sLA, sAI, sCR, sCI, sLDT, sDS = 8, 10, 12, 14, 16, 18, 20
sWR, sWG, sWU, sWD, sGW, sOUT, sDBG, sWS = 24, 26, 28, 30, 32, 34, 36, 38
sW, sI, sT0, sT1 = 40, 41, 42, 43
sJ = 44
sTAG, sKEY, sIDX, sSPIN = 48, 49, 50, 51
sM0, sM1 = 52, 54
sT2, sT3, sT4, sT5 = 56, 57, 58, 59
sSLOT, sWB, sFI, sIO = 60, 61, 62, 63
sCH = 61
SB = 64
NST = 14
def sp(b): return f's[{b}:{b+1}]'
def stamp(i):
    if STAMPS: E(f's_memrealtime s[{SB+2*i}:{SB+2*i+1}]')
def write_stamps():
    if not STAMPS: return
    E(f'''s_waitcnt lgkmcnt(0) vmcnt(0)
    s_mov_b64 exec, 1
    s_lshl_b32 s{sT0}, s2, 3
    s_add_u32 s{sT0}, s{sT0}, s{sW}
    s_lshl_b32 s{sT0}, s{sT0}, 7
    s_add_u32 s{sT0}, s{sT0}, {STAMP_OFF}
    v_mov_b32 v0, s{sT0}''')
    for i in range(NST):
        E(f'''v_mov_b32 v2, s{SB+2*i}
        v_mov_b32 v3, s{SB+2*i+1}
        global_store_dwordx2 v0, v[2:3], {sp(sWS)} offset:{8*i}
        s_nop 1''')
def spin_check(lbl_loop):
    E(f'''s_sub_u32 s{sSPIN}, s{sSPIN}, 1
    s_cbranch_scc0 {lbl_loop}''')
def cmul(D, X, W):
    E(f'v_pk_mul_f32 {vr(D,2)}, {vr(X,2)}, {vr(W,2)} op_sel:[0,0] op_sel_hi:[0,1]')
    E(f'v_pk_fma_f32 {vr(D,2)}, {vr(X,2)}, {vr(W,2)}, {vr(D,2)} op_sel:[1,1,0] op_sel_hi:[1,0,1] neg_lo:[1,0,0]')
L2E = 1.4426950408889634
L2E_HI = struct.unpack('<f', struct.pack('<I', 0x3FB8AA00))[0]
L2E_LO = L2E - L2E_HI
LANE = 3
DPPF = 'row_mask:0xf bank_mask:0xf'

def key_reduce(vt):
    for sh in (8, 4, 2, 1):
        E(f'''v_max_u32_dpp v{vt}, v{vt}, v{vt} row_ror:{sh} {DPPF}
        s_nop 1''')
    E(f'''v_readlane_b32 s{sKEY}, v{vt}, 0
    v_readlane_b32 s{sT0}, v{vt}, 16
    v_readlane_b32 s{sT1}, v{vt}, 32
    v_readlane_b32 s{sT2}, v{vt}, 48
    s_max_u32 s{sKEY}, s{sKEY}, s{sT0}
    s_max_u32 s{sT1}, s{sT1}, s{sT2}
    s_max_u32 s{sKEY}, s{sKEY}, s{sT1}''')

hdr = open('cdna_kernels/' + KN + '.s.ref').read().split('; Override launch')[0]
out.append(hdr.rstrip('\n'))
out.append(f'; @launch grid=(256,1,1) block=(512,1,1) lds={LDS_BYTES}')
out.append(f'''.amdgcn_target "amdgcn-amd-amdhsa--gfx950"
.text
.globl {KN}_kernel
.p2align 8
.type {KN}_kernel,@function
{KN}_kernel:''')
stamp(0)
vXA, vXB, vWRv, vGWv = 8, 12, 16, 20
vLA, vAI, vCR, vCI, vDT = 4, 5, 6, 7, 8
vXO = 9
vX = 16
E(f'''s_load_dwordx16 s[8:23], s[0:1], 0
s_load_dwordx16 s[24:39], s[0:1], 64
s_cmp_ge_u32 s2, 256
s_cbranch_scc1 L_end
s_getpc_b64 s[4:5]
L_pc:
v_lshrrev_b32 v1, 6, v0
v_and_b32 v{LANE}, 63, v0
v_readfirstlane_b32 s{sW}, v1
s_and_b32 s{sT0}, s2, 7
s_lshr_b32 s{sSLOT}, s2, 4
s_lshl_b32 s{sI}, s{sT0}, 4
s_add_u32 s{sI}, s{sI}, s{sSLOT}
s_cmp_gt_u32 s{sW}, 1
s_cbranch_scc1 L_nopf
v_lshlrev_b32 v2, 7, v0
v_min_u32 v2, L_end-L_pc, v2
global_load_dword v2, v2, s[4:5]
L_nopf:
s_bitcmp1_b32 s2, 3
s_cbranch_scc0 L_conv
v_lshlrev_b32 v4, 4, v{LANE}
s_lshl_b32 s{sT2}, s{sI}, 14
s_lshl_b32 s{sT1}, s{sW}, 11
s_add_u32 s{sT2}, s{sT2}, s{sT1}
v_add_u32 v5, s{sT2}, v4
s_waitcnt lgkmcnt(0)''')
stamp(1)
E(f'''global_load_dwordx4 {vr(vXA,4)}, v5, {sp(sX)}{NTX}
global_load_dwordx4 {vr(vXB,4)}, v5, {sp(sX)} offset:1024{NTX}
global_load_dwordx4 {vr(vWRv,4)}, v4, {sp(sWR)}
global_load_dwordx4 {vr(vGWv,4)}, v4, {sp(sGW)}
s_load_dword s{sTAG}, {sp(sWS)}, {WS_EPOCH}
s_branch L_aux
L_conv:
s_and_b32 s{sCH}, s{sW}, 3
s_lshr_b32 s{sIO}, s{sW}, 2
s_lshl_b32 s{sT2}, s{sI}, 3
s_lshl_b32 s{sT1}, s{sCH}, 1
s_add_u32 s{sT0}, s{sT2}, s{sT1}
v_mov_b32 v10, s{sT0}
s_add_u32 s{sT0}, s{sT0}, s{sIO}
s_lshl_b32 s{sT0}, s{sT0}, 7
v_lshl_add_u32 v1, v{LANE}, 1, s{sT0}
v_mov_b32 v{vLA}, 0
v_mov_b32 v{vAI}, 0
v_mov_b32 v{vCR}, 0
v_mov_b32 v{vCI}, 0
v_mov_b32 v{vDT}, 0
s_waitcnt lgkmcnt(0)''')
stamp(1)
AF = 16
TZ = 84
BR = 124
DT = 156
ACC = 180
GF = 84
GA = 180
vBAND = 212
vA, vB = 232, 233
NVGPR = 234
E(f'''global_load_short_d16_hi v{vLA}, v1, {sp(sLA)}{NT}
global_load_short_d16_hi v{vDT}, v10, {sp(sLDT)}
global_load_short_d16_hi v{vAI}, v1, {sp(sAI)}{NT}
global_load_short_d16_hi v{vCR}, v1, {sp(sCR)}{NT}
global_load_short_d16_hi v{vCI}, v1, {sp(sCI)}{NT}
v_and_b32 v11, 255, v0
v_lshlrev_b32 v{vXO}, 13, v11
v_add_u32 v{vXO}, s{sT2}, v{vXO}
v_add_u32 v{vXO}, 4096, v{vXO}
v_mov_b32 v32, 0
v_mov_b32 v33, 0
v_mov_b32 v34, 0
v_mov_b32 v35, 0
s_cmp_ge_u32 s{sW}, 4
s_cbranch_scc1 L_cio0''')
STOR = {0:0,1:1,2:2,3:3, 16:4,17:5,18:6,19:7,20:8,12:9, 15:10, 13:11,14:12,4:13,5:14,6:15,7:16,8:17,9:18,10:19,11:20,21:21}
assert sorted(STOR.values()) == list(range(22))
tab = [0,0,1,2,2,2,3,4,4,5,6,7,8,8,8,8]
hrow = []
for x in range(32):
    g_, r_ = (x >> 2) & 1, 4*(x >> 3) + (x & 3)
    hrow.append(STOR[13 + tab[r_] if g_ else min(r_, 12)])
planes = [sum(((hrow[x] >> b) & 1) << x for x in range(32)) for b in range(5)]
E(f'''s_lshl_b32 s{sT0}, s{sSLOT}, 7
s_lshl_b32 s{sT1}, s{sW}, 5
s_add_u32 s{sT0}, s{sT0}, s{sT1}
v_and_b32 v13, 31, v{LANE}
v_add_u32 v12, s{sT0}, v13
v_lshlrev_b32 v12, 10, v12
v_add_u32 v12, s{sT2}, v12
v_mov_b32 v{GA}, 0
s_barrier
global_load_dword v15, v12, {sp(sX)}{NT}
s_mov_b64 exec, 1
global_load_short_d16_hi v{GA}, v10, {sp(sDS)}
s_mov_b64 exec, -1
s_lshl_b32 s{sT0}, s{sW}, 12
s_add_u32 s{sT0}, s{sT0}, {SM0}
v_lshl_add_u32 v10, v{LANE}, 4, s{sT0}
ds_write_b128 v10, v[32:35]
ds_write_b128 v10, v[32:35] offset:1024
ds_write_b128 v10, v[32:35] offset:2048
ds_write_b128 v10, v[32:35] offset:3072''')
for r in range(1, 16): E(f'v_mov_b32 v{GA+r}, 0')
for b_ in range(4, -1, -1):
    E(f's_mov_b32 s{sT0}, {planes[b_]}')
    if b_ == 4: E(f'v_bfe_u32 v{vA}, s{sT0}, v13, 1')
    else: E(f'v_bfe_u32 v12, s{sT0}, v13, 1\nv_lshl_or_b32 v{vA}, v{vA}, 1, v12')
E(f'''v_lshrrev_b32 v12, 5, v{LANE}
v_mul_u32_u24 v{vA}, {ROWB}, v{vA}
v_mul_u32_u24 v{vB}, {ROWB}, v13
s_mul_i32 s{sT0}, s{sW}, {HIB}
s_add_u32 s{sT0}, s{sT0}, {HI0}
s_mul_i32 s{sT1}, s{sW}, {LOB}
v_lshl_add_u32 v{vA}, v12, 4, v{vA}
v_lshl_add_u32 v{vB}, v12, 4, v{vB}
v_add_u32 v{vA}, s{sT0}, v{vA}
v_add_u32 v{vB}, s{sT1}, v{vB}
v_and_b32 v10, 15, v{LANE}
v_lshrrev_b32 v11, 4, v{LANE}
v_lshlrev_b32 v11, 3, v11
s_mov_b32 s{sT0}, 0x10001''')
for bi, (k0, wd) in enumerate([(11, 3), (6, 5), (5, 7), (4, 9), (12, 2)]):
    mul = 0xffff if bi == 4 else 0x3f80
    E(f'''v_mov_b32 v12, {((1 << wd)-1) << k0}
    v_lshlrev_b32 v12, v10, v12
    v_bfe_u32 v12, v12, v11, 8
    v_lshl_or_b32 v12, v12, 15, v12''')
    for jj in range(4):
        r = vBAND + 4*bi + jj
        if jj == 0: E(f'v_and_b32 v{r}, s{sT0}, v12')
        else: E(f'v_lshrrev_b32 v{r}, {2*jj}, v12\nv_and_b32 v{r}, s{sT0}, v{r}')
        E(f'v_mul_u32_u24 v{r}, {mul}, v{r}')
E(f'''s_waitcnt vmcnt(2)
s_branch L_ckgen
L_cio0:
s_barrier''')
def uload(j): E(f'global_load_dwordx2 {vr(vX+2*j,2)}, v{vXO}, {sp(sX)} offset:{-4096+1024*j}{NT}')
E(f'''s_cmp_lg_u32 s{sW}, 4
s_cbranch_scc1 L_cio0b''')
for j in range(8): uload(j)
E(f'''L_cio0b:
s_mul_i32 s{sT0}, s{sCH}, {UCB}
s_add_u32 s{sT0}, s{sT0}, {UB0}
v_min_u32 v13, 29, v{LANE}
v_lshl_add_u32 v12, v13, 4, s{sT0}
ds_write_b128 v12, v[32:35]
s_cmp_lg_u32 s{sW}, 4
s_cbranch_scc0 L_cio0c
s_waitcnt vmcnt(0)
L_cio0c:
s_waitcnt vmcnt(8)
L_ckgen:''')
stamp(2)
a, b, c, d = 10, 11, 12, 13
E(f'''v_mul_f32 v{a}, {f32(L2E_HI)}, v{vLA}
v_mul_f32 v{b}, {f32(L2E_HI)}, v{vDT}
v_rndne_f32 v{c}, v{a}
v_rndne_f32 v{d}, v{b}
v_sub_f32 v{a}, v{a}, v{c}
v_sub_f32 v{b}, v{b}, v{d}
v_fmac_f32 v{a}, {f32(L2E_LO)}, v{vLA}
v_fmac_f32 v{b}, {f32(L2E_LO)}, v{vDT}
v_exp_f32 v{a}, v{a}
v_exp_f32 v{b}, v{b}
v_cvt_i32_f32 v{c}, v{c}
v_cvt_i32_f32 v{d}, v{d}
v_ldexp_f32 v{a}, v{a}, v{c}
v_ldexp_f32 v{b}, v{b}, v{d}
v_cvt_pk_bf16_f32 v{a}, v{a}, v{b}
v_and_b32 v{vDT}, 0xffff0000, v{a}
v_lshlrev_b32 v{a}, 16, v{a}
v_mul_f32 v{a}, v{a}, v{vDT}
v_mul_f32 v{vAI}, v{vAI}, v{vDT}
v_mul_f32 v{vLA}, {f32(-L2E)}, v{a}
v_mul_f32 v{vAI}, {f32(0.15915494309189535)}, v{vAI}
v_add_f32 v{vDT}, v{vDT}, v{vDT}''')
vW1, vW8, vW256 = 36, 38, 40
def wdirect(D, p):
    if p == 1:
        E(f'''v_exp_f32 v{a}, v{vLA}
        v_fract_f32 v{b}, v{vAI}''')
    else:
        E(f'''v_mul_f32 v{a}, {f32(p)}, v{vLA}
        v_mul_f32 v{b}, {f32(p)}, v{vAI}
        v_exp_f32 v{a}, v{a}
        v_fract_f32 v{b}, v{b}''')
    E(f'''v_cos_f32 v{D}, v{b}
    v_sin_f32 v{D+1}, v{b}
    s_nop 0
    v_pk_mul_f32 {vr(D,2)}, {vr(D,2)}, {vr(a,2)} op_sel:[0,0] op_sel_hi:[1,0]''')
wdirect(vW8, 8.0)
E(f'''s_lshl_b32 s{sT1}, s{sIO}, 8
s_mul_i32 s{sT2}, s{sCH}, {LOB}
s_add_u32 m0, s{sT2}, s{sT1}
s_mul_i32 s{sT2}, s{sCH}, {HIB}
s_add_u32 s{sT1}, s{sT1}, s{sT2}
s_add_u32 s{sT1}, s{sT1}, {HIX}
s_cmp_lg_u32 s{sW}, 5''')
tmpc = [0]
midpos = [MID0 + int(k*(MID1-MID0)/7) for k in range(8)]
midj = [0]
def put(X, off, neg):
    t = 32 + (tmpc[0] & 3)
    E(f'v_cvt_pk_bf16_f32 v{t}, v{X}, {"-" if neg else ""}v{X+1}')
    E(f'ds_write_addtid_b32 v{t} offset:{off}')
    tmpc[0] += 1
    if tmpc[0] in midpos:
        E(f's_cbranch_scc1 L_mid{midj[0]}')
        uload(midj[0])
        E(f'L_mid{midj[0]}:')
        midj[0] += 1
E(f'v_mov_b32 v35, 0x3f80')
E(f'ds_write_addtid_b32 v35 offset:0')
put(vW8, ROWB, False)
P0, P1 = 46, 48
cur = vW8
for i in range(2, 32):
    nxt = P0 if cur != P0 else P1
    cmul(nxt, cur, vW8)
    put(nxt, i*ROWB, False)
    cur = nxt
wdirect(vW1, 1)
wdirect(vW256, 256.0)
E(f'''v_pk_mul_f32 {vr(vCR,2)}, {vr(vCR,2)}, {vr(vDT,2)} op_sel:[0,0] op_sel_hi:[1,0]
s_mov_b32 m0, s{sT1}''')
hoff = lambda row: HI0 - HIX + STOR[row]*ROWB
H = [50, 52, 54, 56, 58]
put(vCR, hoff(0), True)
cur = vCR
keep = {0: vCR}
for e in range(1, 9):
    nxt = H[e//2] if e % 2 == 0 else P0
    cmul(nxt, cur, vW1)
    put(nxt, hoff(e), True)
    cur = nxt
    if e % 2 == 0: keep[e] = nxt
for e, row in ((0, 13), (2, 14), (6, 16)):
    cmul(P0, keep[e], vW256)
    put(P0, hoff(row), True)
cur = keep[4]
for row in (15, 9, 18):
    nxt = P0 if cur != P0 else P1
    cmul(nxt, cur, vW256); put(nxt, hoff(row), True); cur = nxt
cur = keep[8]
for row in (17, 10, 19, 11, 20, 12, 21):
    nxt = P0 if cur != P0 else P1
    cmul(nxt, cur, vW256); put(nxt, hoff(row), True); cur = nxt
assert midj[0] == 8, midj
stamp(3)
E(f's_cmp_eq_u32 s{sIO}, 0\ns_cbranch_scc0 L_cio1')
vKX, vK3, vK4 = 6, 7, 8
vCA, vCB, vY, vTZ, vFL = 9, 10, 11, 12, 13
def gread(s):
    r = GF + 8*(s % 8)
    E(f'ds_read_b128 {vr(r,4)}, v{vA} offset:{32*s}')
    E(f'ds_read_b128 {vr(r+4,4)}, v{vB} offset:{32*s}')
prep = f'''s_lshl_b32 s{sT0}, s{sW}, 12
s_add_u32 s{sT0}, s{sT0}, {SM0}
s_mul_i32 s{sT1}, s{sW}, {LOB}
v_lshlrev_b32 v20, 4, v{LANE}
v_sub_u32 v{vKX}, s{sT0}, v20
v_add_u32 v{vKX}, {2*(543-7)}, v{vKX}
v_and_b32 v20, 1, v{LANE}
v_lshrrev_b32 v21, 1, v{LANE}
v_lshlrev_b32 v21, 2, v21
v_lshl_add_u32 v{vK3}, v20, 8, v21
v_add_u32 v{vK3}, s{sT0}, v{vK3}
v_lshl_add_u32 v{vK4}, v{LANE}, 1, s{sT0}
v_and_b32 v21, 15, v{LANE}
v_lshrrev_b32 v22, 4, v{LANE}
v_mul_u32_u24 v23, {KY+2}, v20
v_lshl_add_u32 v23, v21, 1, v23
v_lshlrev_b32 v24, 4, v22
v_sub_u32 v{vCA}, v24, v23
s_add_u32 s{sT2}, s{sT0}, {KY+2*(544-16)-1024}
v_add_u32 v{vCA}, s{sT2}, v{vCA}
v_lshl_add_u32 v{vCB}, v21, 5, v24
s_mul_i32 s{sT2}, s{sW}, {UCB}
s_add_u32 s{sT2}, s{sT2}, {UB0}
v_add_u32 v{vCB}, s{sT2}, v{vCB}
v_mul_u32_u24 v{vY}, {YG}, v22
v_lshl_add_u32 v{vY}, v21, 4, v{vY}
v_add_u32 v{vY}, s{sT1}, v{vY}
v_mov_b32 v5, {SM0+FLG+16}
v_lshlrev_b32 v{vTZ}, 2, v21
v_sub_u32 v{vTZ}, v{vTZ}, v24
s_add_u32 s{sT2}, s{sT0}, {F3+4*13}
v_add_u32 v{vTZ}, s{sT2}, v{vTZ}
s_lshl_b32 s{sT2}, s{sW}, 2
s_add_u32 s{sT2}, s{sT2}, {SM0+FLG}
v_mov_b32 v{vFL}, s{sT2}
v_add_u32 v14, 512, v{vCA}'''.split('\n')
def gemm_half(s0, nprep):
    for s in range(s0, s0+6): gread(s)
    for s in range(s0, s0+8):
        if s + 6 < s0 + 8: gread(s+6)
        E(f's_waitcnt lgkmcnt({2*min(6, s0 + 7 - s)})')
        r = GF + 8*(s % 8)
        E(f'v_mfma_f32_32x32x16_bf16 {vr(GA,16)}, {vr(r,4)}, {vr(r+4,4)}, {vr(GA,16)}')
        for _ in range(nprep):
            if prep: E(prep.pop(0))
E(f'''s_waitcnt vmcnt(0) lgkmcnt(1)
s_mov_b64 exec, 1
v_add_f32 v{GA}, -1.0, v{GA}
s_mov_b64 exec, -1''')
gemm_half(0, 5)
assert not prep
stamp(13)
E('s_barrier')
stamp(4)
gemm_half(8, 0)
stamp(8)
E('s_nop 11')
D = lambda r: f'v{GA+r}'
t = DT
E(f'''v_cvt_pk_bf16_f32 v{t}, {D(7)}, {D(6)}
v_cvt_pk_bf16_f32 v{t+1}, {D(5)}, {D(4)}
v_cvt_pk_bf16_f32 v{t+2}, {D(3)}, {D(2)}
v_cvt_pk_bf16_f32 v{t+3}, {D(1)}, {D(0)}
ds_write_b128 v{vKX}, {vr(t,4)} offset:{KX}
v_cvt_pk_bf16_f32 v{t+4}, {D(8)}, {D(7)}
v_cvt_pk_bf16_f32 v{t+5}, {D(6)}, {D(5)}
v_cvt_pk_bf16_f32 v{t+6}, {D(4)}, {D(3)}
v_cvt_pk_bf16_f32 v{t+7}, {D(2)}, {D(1)}
ds_write_b128 v{vKX}, {vr(t+4,4)} offset:{KY}
v_cvt_pk_bf16_f32 v{t+10}, {D(0)}, 0
s_mov_b64 exec, 1
ds_write_b32 v{vKX}, v{t+10} offset:{KY+16}
s_mov_b64 exec, -1''')
def aread(q):
    base, off = (vCA, (1024-64*q)//4) if q >= 9 else (14, (512-64*q)//4)
    return [f'ds_read2_b32 {vr(AF+4*q,2)}, v{base} offset0:{off} offset1:{off+1}',
            f'ds_read2_b32 {vr(AF+4*q+2,2)}, v{base} offset0:{off+2} offset1:{off+3}']
def tzread(i):
    if i < 6: off = (i//3)*64 + 16*(i % 3)
    else: off = (F4-F3)//4 + 16*(i-6)
    return [f'ds_read2_b32 {vr(TZ+4*i,2)}, v{vTZ} offset0:{off+3} offset1:{off+2}',
            f'ds_read2_b32 {vr(TZ+4*i+2,2)}, v{vTZ} offset0:{off+1} offset1:{off}']
stamp(9)
for q in (0, 8, 1, 9):
    for x in aread(q): E(x)
E(f'''v_cvt_pk_bf16_f32 v{t+8}, 0, {D(8)}
v_cvt_pk_bf16_f32 v{t+9}, {D(8)}, {D(8)}
v_cvt_pk_bf16_f32 v{t+11}, {D(9)}, {D(10)}
v_cvt_pk_bf16_f32 v{t+12}, {D(11)}, {D(12)}
v_cvt_pk_bf16_f32 v{t+13}, {D(10)}, {D(10)}
v_subrev_u32 v{vKX}, 8, v{vKX}
s_waitcnt lgkmcnt(6)
s_mov_b32 exec_lo, 0
s_mov_b32 exec_hi, 0x80000000
ds_write_b64 v{vKX}, {vr(t+8,2)} offset:{KX}
ds_write_b32 v{vKX}, v{t+9} offset:{KY+4}
s_mov_b64 exec, -1
ds_write_b32 v{vK3}, v{t+11} offset:{F3+64}
ds_write_b16 v{vK4}, v{t+12} offset:{F4+64}
ds_write_b16_d16_hi v{vK4}, v{t+12} offset:{F4+64+128}
v_readlane_b32 s{sT2}, v{t+13}, 63''')
for q in (2, 10):
    for x in aread(q): E(x)
for jj in range(4):
    E(f'v_and_b32 v{vBAND+16+jj}, s{sT2}, v{vBAND+16+jj}')
E('s_waitcnt lgkmcnt(4)')
for q in (3, 11, 4, 12, 5):
    for x in aread(q): E(x)
E('s_waitcnt lgkmcnt(4)')
for q in (13, 6, 14, 7, 15):
    for x in aread(q): E(x)
E('s_waitcnt lgkmcnt(4)')
for x in aread(16) + tzread(3) + tzread(0) + tzread(4) + tzread(1): E(x)
E('s_waitcnt lgkmcnt(2)')
for i in (5, 2, 6, 7, 8, 9):
    for x in tzread(i): E(x)
stamp(5)
def ucheck(ph, first):
    if first: E(f'ds_read_b32 v4, v5 offset:{4*ph}\ns_waitcnt lgkmcnt(0)')
    E(f'''v_cmp_ne_u32 vcc, 0, v4
    s_cbranch_vccz L_uc{ph}
    L_uc{ph}d:''')
def uslow():
    for ph in range(4):
        E(f'''L_uc{ph}:
        s_mov_b32 s{sSPIN}, {SPIN_MAX}
        L_uc{ph}l:
        ds_read_b32 v4, v5 offset:{4*ph}
        s_waitcnt lgkmcnt(0)
        v_cmp_ne_u32 vcc, 0, v4
        s_cbranch_vccnz L_uc{ph}d
        s_sub_u32 s{sSPIN}, s{sSPIN}, 1
        s_cbranch_scc0 L_uc{ph}l
        s_branch L_uc{ph}d''')
def ninstr(): return sum(1 for x in out if not x.endswith(':'))
ucheck(0, True)
stamp(6)
if PRIO == 'm': E('s_setprio 2')
bseq = []
for tp in range(8):
    if tp <= 5: bseq.append(('Z', tp, 0))
    for q in range(8): bseq.append(('B', tp, q))
slot = {k: i % 8 for i, k in enumerate(bseq)}
def boff(k):
    kind, tp, q = k
    return UPAD + 512*tp - 32 - (16 if kind == 'Z' else 64*q)
breg = lambda k: vr(BR + 4*slot[k], 4)
accinit = set()
def M(Tt, a_, b_):
    c_ = vr(ACC+4*Tt, 4) if Tt in accinit else '0'
    accinit.add(Tt)
    return f'v_mfma_f32_16x16x32_bf16 {vr(ACC+4*Tt,4)}, {a_}, {b_}, {c_}'
band = lambda i: vr(vBAND+4*i, 4)
stream = []
for tp in range(8):
    B0 = ('B', tp, 0); Z = ('Z', tp, 0)
    gen = []; cv = []
    if tp <= 5:
        gen += [(0, B0, 0), (4, B0, 1), (8, Z, 0), (12, Z, 1)]
        for jj in range(4): cv.append(f'v_cvt_pk_bf16_f32 v{DT+8+jj}, v{DT+8+jj}, v{DT+12+jj}')
        for jj in range(4): cv.append(f'v_cvt_pk_bf16_f32 v{DT+jj}, v{DT+jj}, v{DT+4+jj}')
    if tp <= 3:
        gen += [(16, B0, 2), (20, Z, 3)]
        for jj in range(4): cv.append(f'v_cvt_pk_bf16_f32 v{DT+16+jj}, v{DT+16+jj}, v{DT+20+jj}')
    gen.sort(key=lambda g_: g_[1][0] != 'Z')
    for dof, k, bi in gen:
        stream.append(('m', f'v_mfma_f32_16x16x32_bf16 {vr(DT+dof,4)}, {breg(k)}, {band(bi)}, 0', k))
    near = []
    if tp <= 3: near.append(('m', M(tp+4, band(4), breg(B0)), B0))
    if tp <= 5: near.append(('m', M(tp+2, vr(AF+64, 4), breg(B0)), B0))
    for q in range(8):
        k = ('B', tp, q)
        if tp < 7: near.append(('m', M(tp+1, vr(AF+4*(q+8), 4), breg(k)), k))
        near.append(('m', M(tp, vr(AF+4*q, 4), breg(k)), k))
    for i, it in enumerate(near):
        stream.append(it)
        if i >= 5 and cv: stream.append(('v', cv.pop(0)))
    assert not cv
    far = []
    if tp <= 5:
        for dl in range(3):
            if tp + 2 + dl <= 7:
                far.append(('m', M(tp+2+dl, vr(DT+8, 4), vr(TZ+4*(3+dl), 4)), None))
                far.append(('m', M(tp+2+dl, vr(DT, 4), vr(TZ+4*dl, 4)), None))
    if tp <= 3:
        for dl in range(4):
            if tp + 4 + dl <= 7: far.append(('m', M(tp+4+dl, vr(DT+16, 4), vr(TZ+4*(6+dl), 4)), None))
    stream.append(('mark', tp))
    stream += far
ywrite = lambda tp: [('ds', f'ds_write_b128 v{vY}, {vr(ACC+4*tp,4)} offset:{4*YG*tp}')] + \
                    ([('v', f'v_mov_b32 v15, {tp//2+1}'), ('ds', f'ds_write_b32 v{vFL}, v15')] if tp & 1 else [])
lastuse = {}
for i, it in enumerate(stream):
    if it[0] == 'm' and it[2] is not None: lastuse[it[2]] = i
extra = []
issued = []
done_upto = [0]
nextb = [0]
flagread = set()
def issue_b():
    k = bseq[nextb[0]]
    if k[1] in (2, 4, 6) and bseq[nextb[0]-1][1] != k[1]:
        wait_for(issued.index(('F', k[1])))
        ucheck(k[1]//2, False)
    nextb[0] += 1
    kn = bseq[min(nextb[0]+1, len(bseq)-1)]
    if kn[1] in (2, 4, 6) and kn[1] not in flagread:
        flagread.add(kn[1])
        E(f'ds_read_b32 v4, v5 offset:{4*(kn[1]//2)}')
        issued.append(('F', kn[1]))
    E(f'ds_read_b128 {breg(k)}, v{vCB} offset:{boff(k)}')
    issued.append(k)
def wait_for(idx, slack=0):
    if idx < done_upto[0]: return
    idx = max(idx, min(idx + slack, len(issued) - 5))
    n = len(issued) - 1 - idx
    assert n <= 15
    E(f's_waitcnt lgkmcnt({n})')
    done_upto[0] = idx + 1
for _ in range(8): issue_b()
ypend = []
for i, it in enumerate(stream):
    n0 = ninstr()
    if it[0] == 'mark':
        ypend.append([8, ywrite(it[1])])
        continue
    elif it[0] == 'm':
        if it[2] is not None: wait_for(issued.index(it[2]), 2)
        E(it[1])
        if nextb[0] < len(bseq) and lastuse[bseq[nextb[0]-8]] <= i and len(issued) - done_upto[0] < 13:
            issue_b()
        if extra:
            if len(issued) - done_upto[0] >= 14: wait_for(done_upto[0] + 3)
            E(extra.pop(0)); issued.append('TZ')
        for p in ypend: p[0] -= ninstr() - n0
        n0 = ninstr()
        if ypend and ypend[0][0] <= 0:
            for _ in range(2):
                if ypend[0][1]:
                    kind, txt = ypend[0][1].pop(0)
                    E(txt)
                    if kind == 'ds': issued.append(None)
            if not ypend[0][1]: ypend.pop(0)
    else:
        E(it[1])
    for p in ypend: p[0] -= ninstr() - n0
for p in ypend:
    if p[0] > 0: E(f's_nop {p[0]-1}')
    n0 = ninstr()
    for kind, txt in p[1]: E(txt)
    for p2 in ypend: p2[0] -= max(p[0], 0) + ninstr() - n0
stamp(7)
E('s_branch L_cdone')
uslow()
vPK = 32
E('L_cio1:')
vG = 56
E(f'''v_and_b32 v11, 255, v0
v_lshlrev_b32 v11, 4, v11
s_waitcnt lgkmcnt(0)
s_barrier''')
stamp(4)
E(f'''s_cmp_lt_u32 s{sW}, 6
s_cbranch_scc1 L_cio1b''')
for j in range(8): uload(j)
E('L_cio1b:')
if PRIO == 'io': E('s_setprio 2')
E(f'''v_add_u32 v4, {UB0+UPAD}, v11
s_mov_b32 s{sT0}, 0x05040100
s_mov_b32 s{sT1}, 0x07060302
v_mov_b32 v5, 0
v_lshlrev_b32 v6, 4, v{LANE}
v_add_u32 v6, {WS_KEYS}, v6
v_lshlrev_b32 v7, 1, v11
v_add_u32 v7, {WS_G}, v7
s_lshl_b32 s{sT2}, s{sW}, 2
s_add_u32 s{sT2}, s{sT2}, {SM0+FLG}
v_mov_b32 v10, s{sT2}
s_waitcnt vmcnt(0)''')
stamp(13)
def polls():
    E(f'''global_load_dwordx2 v[12:13], v5, {sp(sDBG)} sc1
    global_load_dwordx4 v[48:51], v6, {sp(sWS)} sc1
    global_load_dwordx4 {vr(vG,4)}, v7, {sp(sWS)} sc1
    global_load_dwordx4 {vr(vG+4,4)}, v7, {sp(sWS)} offset:16 sc1''')
polls()
for k in range(4):
    for j in range(4):
        E(f'v_perm_b32 v{vPK+4*k+j}, v{vX+4*j+2+(k>>1)}, v{vX+4*j+(k>>1)}, s{sT1 if k & 1 else sT0}')
    E(f'ds_write_b128 v4, {vr(vPK+4*k,4)} offset:{k*UCB}')
E(f'ds_write_b32 v10, v10')
stamp(5)
vP = 80
for j in range(8):
    for h in range(2):
        E(f'''v_lshlrev_b32 v{vP+4*j+2*h}, 16, v{vX+2*j+h}
        v_and_b32 v{vP+4*j+2*h+1}, 0xffff0000, v{vX+2*j+h}''')
E(f'''v_bfe_u32 v14, v0, 5, 3
v_mul_u32_u24 v14, {4*YG}, v14
v_and_b32 v15, 1, v0
v_mul_u32_u24 v15, {2*YG}, v15
v_add_u32 v14, v14, v15
v_bfe_u32 v15, v0, 1, 4
v_lshl_add_u32 v14, v15, 4, v14''')
stamp(6)
E(f'''s_mov_b32 s{sSPIN}, {SPIN_MAX}
s_branch L_pt1
L_pt:''')
polls()
E(f'''L_pt1:
s_waitcnt vmcnt(0)
v_readfirstlane_b32 s{sTAG}, v12
v_cmp_eq_u32 vcc, 1, v13
v_xor_b32 v49, v49, v12
v_xor_b32 v51, v51, v12
v_xor_b32 v{vG+1}, v{vG+1}, v12
v_xor_b32 v{vG+3}, v{vG+3}, v12
v_xor_b32 v{vG+5}, v{vG+5}, v12
v_xor_b32 v{vG+7}, v{vG+7}, v12
v_or3_b32 v49, v49, v51, v{vG+1}
v_or3_b32 v51, v{vG+3}, v{vG+5}, v{vG+7}
v_or_b32 v49, v49, v51
v_cmp_eq_u32 {sp(sM0)}, 0, v49
v_max_u32 v48, v48, v50
s_and_b64 vcc, vcc, {sp(sM0)}
s_cmp_eq_u64 vcc, -1
s_cbranch_scc1 L_ptd''')
spin_check('L_pt')
E('L_ptd:')
stamp(9)
key_reduce(48)
E(f'''s_andn2_b32 s{sIDX}, 2047, s{sKEY}
s_cmp_lg_u32 s{sW}, 4
s_cbranch_scc1 L_nq
s_lshr_b32 s{sT0}, s{sIDX}, 1
s_lshl_b32 s{sT0}, s{sT0}, 3
s_add_u32 s{sT0}, s{sT0}, {WS_G}
v_mov_b32 v8, s{sT0}
global_load_dwordx2 v[120:121], v8, {sp(sWS)} sc1
L_nq:''')
vGF = 64
for j in range(4):
    E(f'''v_lshlrev_b32 v{vGF+2*j}, 16, v{vG+2*j}
    v_and_b32 v{vGF+2*j+1}, 0xffff0000, v{vG+2*j}''')
E(f'''s_lshr_b32 s{sT0}, s{sIDX}, 3
s_mov_b64 {sp(sEX)}, -1
s_bitset0_b64 {sp(sEX)}, s{sT0}
s_lshr_b32 s{sT0}, s{sIDX}, 9
s_add_u32 s{sT0}, s{sT0}, 4
s_and_b32 s{sJ}, s{sIDX}, 7
s_cmp_eq_u32 s{sT0}, s{sW}
s_cselect_b32 s{sJ}, s{sJ}, 8
s_cmp_lg_u32 s{sW}, 4
s_cbranch_scc1 L_pqd
s_mov_b32 s{sSPIN}, {SPIN_MAX}
s_branch L_pq1
L_pq:
global_load_dwordx2 v[120:121], v8, {sp(sWS)} sc1
L_pq1:
s_waitcnt vmcnt(0)
v_cmp_eq_u32 vcc, s{sTAG}, v121
s_cbranch_vccnz L_pqd''')
spin_check('L_pq')
E('L_pqd:')
stamp(7)
def wait_flags(sreg, name):
    E(f'''v_mov_b32 v10, {SM0+FLG}
    s_mov_b32 s{sSPIN}, {SPIN_MAX}
    L_wf_{name}:
    ds_read_b128 v[48:51], v10
    s_waitcnt lgkmcnt(0)
    v_min_u32 v48, v48, v49
    v_min3_u32 v48, v48, v50, v51
    v_cmp_le_u32 vcc, s{sreg}, v48
    s_cbranch_vccnz L_wfd_{name}
    s_sleep {SLEEP}''')
    spin_check(f'L_wf_{name}')
    E(f'L_wfd_{name}:')
E(f's_sub_u32 s{sT2}, s{sW}, 3')
wait_flags(sT2, 'e')
stamp(8)
vYV = 16
for h in range(2):
    for k in range(4):
        E(f'ds_read_b128 {vr(vYV+16*h+4*k,4)}, v14 offset:{k*LOB+h*YG}')
for j in range(8):
    if j == 0: E('s_waitcnt lgkmcnt(4)')
    if j == 4: E('s_waitcnt lgkmcnt(0)')
    for k in range(4):
        E(f'v_fmac_f32 v{vP+4*j+k}, v{vYV+16*(j>>2)+4*k+(j&3)}, v{vGF+j}')
    E(f'''v_cvt_pk_bf16_f32 v{vP+4*j}, v{vP+4*j}, v{vP+4*j+1}
    v_cvt_pk_bf16_f32 v{vP+4*j+1}, v{vP+4*j+2}, v{vP+4*j+3}
    s_cmp_eq_u32 s{sJ}, {j}
    s_cselect_b64 exec, {sp(sEX)}, -1
    global_store_dwordx2 v{vXO}, {vr(vP+4*j,2)}, {sp(sOUT)} offset:{-4096+1024*j}
    s_mov_b64 exec, -1''')
E(f'''s_cmp_lg_u32 s{sW}, 4
s_cbranch_scc1 L_cdone''')
E(f'''s_lshl_b32 s{sT2}, s{sI}, 11
s_add_u32 s{sT2}, s{sT2}, {WS_PART}
v_lshl_add_u32 v9, v{LANE}, 4, s{sT2}
s_lshl_b32 s{sT0}, s{sIDX}, 1
s_add_u32 s{sT0}, s{sT0}, {UB0+UPAD}
v_mov_b32 v7, s{sT0}
s_lshr_b32 s{sT0}, s{sIDX}, 8
s_lshl_b32 s{sT0}, s{sT0}, 2
s_bfe_u32 s{sT1}, s{sIDX}, 0x20002
s_add_u32 s{sT0}, s{sT0}, s{sT1}
s_mul_i32 s{sT0}, s{sT0}, {YG}
s_and_b32 s{sT1}, s{sIDX}, 0xf0
s_add_u32 s{sT0}, s{sT0}, s{sT1}
s_and_b32 s{sT1}, s{sIDX}, 3
s_lshl_b32 s{sT1}, s{sT1}, 2
s_add_u32 s{sT0}, s{sT0}, s{sT1}
v_mov_b32 v8, s{sT0}''')
for k in range(4):
    E(f'v_mov_b32 v{20+k}, 0')
for k in range(4):
    E(f'ds_read_u16_d16_hi v{20+k}, v7 offset:{k*UCB}')
E(f'''s_bitcmp1_b32 s{sIDX}, 0
s_cselect_b32 s{sT0}, 0, 16
v_lshlrev_b32 v24, s{sT0}, v120
v_and_b32 v24, 0xffff0000, v24
s_and_b32 s{sT0}, s{sKEY}, 0xffff0000
s_xor_b32 s{sT1}, s{sT0}, 0xffff0000
s_xor_b32 s{sT0}, s{sT0}, 0x80000000
s_bitcmp1_b32 s{sKEY}, 31
s_cselect_b32 s{sT0}, s{sT0}, s{sT1}
v_mov_b32 v25, {f32(-L2E)}
v_mul_f32 v25, s{sT0}, v25
v_exp_f32 v25, v25
v_sub_f32 v38, 1.0, v24
v_add_f32 v25, 1.0, v25
v_rcp_f32 v25, v25
v_cvt_pk_bf16_f32 v38, 0, v38
v_cvt_pk_bf16_f32 v25, 0, v25
v_mul_f32 v25, v25, v38
s_mov_b32 s{sT0}, 0x0c0c0400
s_mov_b32 s{sT1}, 0x04000c0c
v_cmp_gt_u32 {sp(sM1)}, 48, v{LANE}
s_mov_b32 s{sSPIN}, {SPIN_MAX}
L_pp:
global_load_dwordx4 v[28:31], v9, {sp(sWS)} sc1
global_load_dwordx4 v[32:35], v9, {sp(sWS)} offset:1024 sc1
s_waitcnt vmcnt(0)
v_perm_b32 v26, v29, v28, s{sT0}
v_perm_b32 v27, v31, v30, s{sT1}
v_perm_b32 v36, v33, v32, s{sT0}
v_perm_b32 v37, v35, v34, s{sT1}
v_or_b32 v26, v26, v27
v_or_b32 v36, v36, v37
v_cmp_eq_u32 vcc, s{sTAG}, v26
v_cmp_eq_u32 {sp(sM0)}, s{sTAG}, v36
s_orn2_b64 {sp(sM0)}, {sp(sM0)}, {sp(sM1)}
s_and_b64 vcc, vcc, {sp(sM0)}
s_cmp_eq_u64 vcc, -1
s_cbranch_scc1 L_ppd''')
spin_check('L_pp')
E('L_ppd:')
stamp(12)
E(f'''s_mov_b64 exec, {sp(sM1)}
v_add_f32 v28, v28, v32
v_add_f32 v29, v29, v33
v_add_f32 v30, v30, v34
v_add_f32 v31, v31, v35
s_mov_b64 exec, -1
s_nop 0''')
for sh in (8, 4, 2, 1):
    for k in range(4):
        E(f'v_add_f32_dpp v{28+k}, v{28+k}, v{28+k} row_ror:{sh} {DPPF}')
for k in range(4):
    E(f'v_add_f32_dpp v{28+k}, v{28+k}, v{28+k} row_bcast:15 row_mask:0xa bank_mask:0xf')
for k in range(4):
    E(f'v_add_f32_dpp v{28+k}, v{28+k}, v{28+k} row_bcast:31 row_mask:0xc bank_mask:0xf')
E(f'''v_cvt_pk_bf16_f32 v28, v28, v29
v_cvt_pk_bf16_f32 v30, v30, v31
v_and_b32 v29, 0xffff0000, v28
v_lshlrev_b32 v28, 16, v28
v_and_b32 v31, 0xffff0000, v30
v_lshlrev_b32 v30, 16, v30
s_waitcnt lgkmcnt(0)
v_fmac_f32 v20, v28, v25
v_fmac_f32 v21, v29, v25
v_fmac_f32 v22, v30, v25
v_fmac_f32 v23, v31, v25
s_lshr_b32 s{sT2}, s{sIDX}, 9
s_add_u32 s{sT2}, s{sT2}, 1''')
wait_flags(sT2, 'f')
for k in range(4):
    E(f'ds_read_b32 v{16+k}, v8 offset:{k*LOB}')
E(f'''s_lshl_b32 s{sT0}, s{sIDX}, 10
s_lshl_b32 s{sT1}, s{sI}, 3
s_add_u32 s{sT0}, s{sT0}, s{sT1}
v_mov_b32 v10, s{sT0}
s_waitcnt lgkmcnt(0)
v_fmac_f32 v20, v16, v24
v_fmac_f32 v21, v17, v24
v_fmac_f32 v22, v18, v24
v_fmac_f32 v23, v19, v24
v_cvt_pk_bf16_f32 v16, v20, v21
v_cvt_pk_bf16_f32 v17, v22, v23
s_mov_b32 exec_lo, 0
s_mov_b32 exec_hi, 0x80000000
global_store_dwordx2 v10, v[16:17], {sp(sOUT)}''')
E('L_cdone:')
stamp(10)
if STAMPS:
    E('s_waitcnt vmcnt(0)')
    stamp(11)
write_stamps()
E('s_endpgm')

A_T, A_IDX, A_PART = 49152, 49152 + 256, 50176
vWL = 24
E(f'''L_aux:
s_min_u32 s{sT2}, s{sSLOT}, 13
s_mul_i32 s{sFI}, s{sT0}, 14
s_add_u32 s{sFI}, s{sFI}, s{sT2}
v_lshrrev_b32 v1, 3, v{LANE}
v_lshlrev_b32 v1, 10, v1
v_and_b32 v48, 7, v{LANE}
v_lshl_add_u32 v1, v48, 4, v1
s_lshl_b32 s{sT0}, s{sFI}, 14
s_lshl_b32 s{sT1}, s{sW}, 7
s_add_u32 s{sT0}, s{sT0}, s{sT1}
v_add_u32 v1, s{sT0}, v1
v_add_u32 v48, 8192, v1
s_and_b32 s{sT0}, s{sSLOT}, 3
s_lshl_b32 s{sT0}, s{sT0}, 1
s_bfe_u32 s{sT1}, s{sW}, 0x10001
s_add_u32 s{sT0}, s{sT0}, s{sT1}
s_mul_i32 s{sT0}, s{sT0}, {64*3584}
s_sub_u32 s{sT1}, s{sFI}, s{sT2}
s_lshr_b32 s{sT1}, s{sT1}, 2
s_lshr_b32 s{sT2}, s{sSLOT}, 2
s_add_u32 s{sT1}, s{sT1}, s{sT2}
s_lshl_b32 s{sT1}, s{sT1}, 7
s_add_u32 s{sT0}, s{sT0}, s{sT1}
v_mul_u32_u24 v49, 3584, v{LANE}
v_add_u32 v49, s{sT0}, v49
s_bitcmp1_b32 s{sW}, 0
s_cselect_b32 s{sT2}, s{sWU}, s{sWG}
s_cselect_b32 s{sT3}, s{sWU+1}, s{sWG+1}
s_barrier
s_cmp_ge_u32 s{sW}, 4
s_cbranch_scc1 L_anowu
global_load_dword v59, v49, {sp(sT2)}{NT}
L_anowu:
global_load_dwordx4 {vr(vWL+16,4)}, v1, {sp(sWD)}{NT}
global_load_dwordx4 {vr(vWL+20,4)}, v48, {sp(sWD)}{NT}
s_lshl_b32 s{sWB}, s{sSLOT}, 1
s_add_u32 s{sWB}, s{sWB}, s{sW}
s_and_b32 s{sWB}, s{sWB}, 7
v_lshrrev_b32 v58, 1, v{LANE}
v_mul_u32_u24 v58, 3584, v58
v_and_b32 v7, 1, v{LANE}
v_lshl_add_u32 v58, v7, 4, v58
s_mul_i32 s{sT0}, s{sWB}, {64*3584}
s_lshl_b32 s{sT1}, s{sFI}, 5
s_add_u32 s{sT0}, s{sT0}, s{sT1}
v_add_u32 v58, s{sT0}, v58
v_add_u32 v7, {32*3584}, v58
; row id complement, table address, publish address
s_lshl_b32 s{sT0}, s{sI}, 4
s_lshl_b32 s{sT1}, s{sW}, 1
s_add_u32 s{sT0}, s{sT0}, s{sT1}
v_lshrrev_b32 v5, 5, v{LANE}
v_add_u32 v5, s{sT0}, v5
v_sub_u32 v5, 2047, v5
s_lshl_b32 s{sT1}, s{sW}, 4
v_lshrrev_b32 v6, 4, v{LANE}
v_lshl_add_u32 v6, v6, 2, s{sT1}
v_and_b32 v1, 16, v{LANE}
v_cmp_ne_u32 {sp(sM1)}, 0, v1
v_and_b32 v48, 7, v{LANE}
s_lshl_b32 s{sT0}, s{sI}, 6
s_add_u32 s{sT0}, s{sT0}, {WS_G}
v_lshl_add_u32 v49, v48, 3, s{sT0}
s_lshl_b32 s{sT0}, s{sI}, 3
s_add_u32 s{sT0}, s{sT0}, {WS_KEYS}
v_writelane_b32 v49, s{sT0}, 8
v_lshlrev_b32 v48, 4, v48
v_cmp_eq_u32 {sp(sM0)}, 8, v{LANE}
s_waitcnt lgkmcnt(0)
s_add_u32 s{sTAG}, s{sTAG}, {TAGINC}
v_mov_b32 v61, s{sTAG}
s_cmp_ge_u32 s{sW}, 4
s_cbranch_scc0 L_aw3
s_waitcnt vmcnt(2)
L_aw3:
s_mov_b32 s{sT0}, 0x3f803f80
s_waitcnt vmcnt(3)''')
stamp(2)
for k in range(4):
    z = lambda r: "0" if k == 0 else f"v{r}"
    E(f'''v_and_b32 v62, 0xffff, v{vGWv+k}
    v_and_b32 v63, 0xffff0000, v{vGWv+k}
    v_dot2_f32_bf16 v54, v{vXA+k}, v62, 0
    v_dot2_f32_bf16 v55, v{vXA+k}, v63, 0
    v_dot2_f32_bf16 v56, v{vXB+k}, v62, 0
    v_dot2_f32_bf16 v57, v{vXB+k}, v63, 0
    v_dot2_f32_bf16 v50, v{vXA+k}, v{vWRv+k}, {z(50)}
    v_dot2_f32_bf16 v51, v{vXB+k}, v{vWRv+k}, {z(51)}
    v_cvt_pk_bf16_f32 v54, v54, v55
    v_cvt_pk_bf16_f32 v56, v56, v57
    v_dot2_f32_bf16 v52, v54, s{sT0}, {z(52)}
    v_dot2_f32_bf16 v53, v56, s{sT0}, {z(53)}''')
E(f'''v_permlane32_swap_b32 v50, v51
s_nop 1
v_permlane32_swap_b32 v52, v53
v_add_f32 v50, v50, v51
v_add_f32 v52, v52, v53
s_nop 1
v_permlane16_swap_b32 v50, v52
s_nop 0
v_add_f32 v50, v50, v52''')
for sh in (8, 4, 2, 1):
    E(f'''s_nop 1
    v_add_f32_dpp v50, v50, v50 row_ror:{sh} {DPPF}''')
E(f'''v_cvt_pk_bf16_f32 v50, 0, v50
v_mul_f32 v52, {f32(-L2E)}, v50
v_exp_f32 v52, v52
v_ashrrev_i32 v51, 31, v50
v_add_f32 v52, 1.0, v52
v_rcp_f32 v52, v52
v_or_b32 v51, 0x80000000, v51
v_xor_b32 v50, v50, v51
v_cvt_pk_bf16_f32 v52, v52, 0
v_and_b32 v50, 0xffff0000, v50
v_or_b32 v50, v50, v5
v_cndmask_b32 v50, v50, v52, {sp(sM1)}
s_mov_b32 exec_lo, 0x00010001
s_mov_b32 exec_hi, 0x00010001
ds_write_b32 v6, v50 offset:{A_T}
s_mov_b64 exec, -1
s_waitcnt lgkmcnt(0)
s_barrier''')
stamp(3)
E(f'''s_cmp_lg_u32 s{sW}, 0
s_cbranch_scc1 L_anokey
ds_read_b128 v[52:55], v48 offset:{A_T}
s_waitcnt lgkmcnt(0)
v_max_u32 v52, v52, v54
v_lshl_or_b32 v60, v55, 16, v53
s_nop 0''')
for sh in (4, 2, 1):
    E(f'''v_max_u32_dpp v52, v52, v52 row_ror:{sh} {DPPF}''')
    if sh != 1: E('s_nop 1')
E(f'''v_cndmask_b32 v60, v60, v52, {sp(sM0)}
s_mov_b64 exec, 0x1ff
global_store_dwordx2 v49, v[60:61], {sp(sWS)} sc1
s_cmp_lg_u32 s{sI}, 0
s_cbranch_scc1 L_anotag
s_mov_b64 exec, 1
v_mov_b32 v6, 0
v_mov_b32 v52, s{sTAG}
v_mov_b32 v53, 1
global_store_dwordx2 v6, v[52:53], {sp(sDBG)} sc1
L_anotag:
s_mov_b64 exec, -1
L_anokey:''')
stamp(4)
E(f'''s_cmp_ge_u32 s{sSLOT}, 14
s_cbranch_scc1 L_adone''')
vFG, vFU, vFD = 64, 72, 80
E(f'''s_mul_i32 s{sT0}, s{sW}, 6144
v_add_u32 v4, s{sT0}, v4
v_and_b32 v5, 15, v{LANE}
v_lshrrev_b32 v6, 4, v{LANE}
v_lshlrev_b32 v14, 3, v5
v_lshl_add_u32 v14, v6, 8, v14
v_add_u32 v14, s{sT0}, v14
v_lshrrev_b32 v8, 2, v{LANE}
v_lshlrev_b32 v8, 7, v8
v_and_b32 v9, 3, v{LANE}
v_lshl_add_u32 v8, v9, 3, v8
v_add_u32 v8, s{sT0}, v8
s_lshl_b32 s{sT1}, s{sWB}, 7
v_lshl_add_u32 v10, v6, 4, s{sT1}
s_lshl_b32 s{sT1}, s{sW}, 2
s_add_u32 s{sT1}, s{sT1}, {A_PART}
v_lshl_add_u32 v11, v6, 7, s{sT1}
v_lshrrev_b32 v12, 3, v5
v_lshlrev_b32 v12, 9, v12
v_lshl_add_u32 v12, v6, 7, v12
v_lshl_add_u32 v12, v9, 5, v12
v_and_b32 v13, 4, v5
v_lshl_add_u32 v12, v13, 2, v12
v_lshl_add_u32 v13, v9, 2, v6
s_lshl_b32 s{sT1}, s{sW}, 15
s_lshl_b32 s{sT2}, s{sFI}, 4
s_add_u32 s{sT1}, s{sT1}, s{sT2}
s_add_u32 s{sT1}, s{sT1}, {WS_PART}
v_lshl_add_u32 v13, v13, 11, s{sT1}''')
stamp(5)
E(f'''global_load_dwordx4 {vr(vWL,4)}, v58, {sp(sWG)}{NT}
global_load_dwordx4 {vr(vWL+8,4)}, v58, {sp(sWU)}{NT}
global_load_dwordx4 {vr(vWL+4,4)}, v7, {sp(sWG)}{NT}
global_load_dwordx4 {vr(vWL+12,4)}, v7, {sp(sWU)}{NT}''')
for t in range(4):
    E(f'''v_cmp_eq_u32 vcc, {t}, v9
    s_lshr_b32 s{sT1}, s{sTAG}, {8*t}
    v_mov_b32 v{92+t}, s{sT1}
    v_cndmask_b32 v{88+t}, 0, -1, vcc''')
E(f'''v_cmp_gt_u32 {sp(sM1)}, 8, v5
v_lshlrev_b32 v20, 4, v{LANE}
v_add_u32 v20, {WS_KEYS}, v20
s_cmp_lg_u32 s{sW}, 0
s_cbranch_scc1 L_anp0
global_load_dwordx4 v[16:19], v20, {sp(sWS)} sc1
s_waitcnt vmcnt(1)
s_branch L_anp1
L_anp0:
s_waitcnt vmcnt(0)
L_anp1:''')
for k in range(6):
    E(f'ds_write_b128 v4, {vr(vWL+4*k,4)} offset:{1024*k}')
E('s_waitcnt lgkmcnt(0)')
for s in range(2):
    for h in range(2):
        E(f'ds_read_b64_tr_b16 {vr(vFG+4*s+2*h,2)}, v14 offset:{1024*s+128*h}')
        E(f'ds_read_b64_tr_b16 {vr(vFU+4*s+2*h,2)}, v14 offset:{2048+1024*s+128*h}')
for t in range(4):
    E(f'ds_read_b64_tr_b16 {vr(vFD+2*t,2)}, v8 offset:{4096+32*t}')
stamp(6)
E(f'''s_cmp_lg_u32 s{sW}, 0
s_cbranch_scc1 L_anopoll
s_mov_b32 s{sSPIN}, {SPIN_MAX}
s_branch L_pk1
L_pk:
global_load_dwordx4 v[16:19], v20, {sp(sWS)} sc1
L_pk1:
s_waitcnt vmcnt(0)
v_cmp_eq_u32 vcc, s{sTAG}, v17
v_cmp_eq_u32 {sp(sM0)}, s{sTAG}, v19
v_max_u32 v16, v16, v18
s_and_b64 vcc, vcc, {sp(sM0)}
s_cmp_eq_u64 vcc, -1
s_cbranch_scc1 L_pkd''')
spin_check('L_pk')
E('L_pkd:')
key_reduce(16)
E(f'''v_mov_b32 v16, s{sKEY}
v_mov_b32 v17, {A_IDX}
ds_write_b32 v17, v16
s_cmp_lg_u32 s{sI}, 0
s_cbranch_scc1 L_anopoll
v_mov_b32 v18, 0
s_mov_b64 exec, 1
global_store_dword v18, v61, {sp(sWS)} offset:{WS_EPOCH} sc1
s_mov_b64 exec, -1
L_anopoll:
v_mov_b32 v17, {A_IDX}
s_waitcnt lgkmcnt(0)
s_barrier''')
stamp(7)
E(f'''ds_read_b32 v16, v17
s_waitcnt lgkmcnt(0)
v_not_b32 v16, v16
v_and_b32 v16, 2047, v16
v_lshl_add_u32 v10, v16, 10, v10
global_load_dwordx4 v[16:19], v10, {sp(sX)}
global_load_dwordx4 v[20:23], v10, {sp(sX)} offset:64
s_waitcnt vmcnt(1)
v_mfma_f32_16x16x32_bf16 v[24:27], {vr(vFG,4)}, v[16:19], 0
v_mfma_f32_16x16x32_bf16 v[28:31], {vr(vFU,4)}, v[16:19], 0
s_waitcnt vmcnt(0)
v_mfma_f32_16x16x32_bf16 v[24:27], {vr(vFG+4,4)}, v[20:23], v[24:27]
v_mfma_f32_16x16x32_bf16 v[28:31], {vr(vFU+4,4)}, v[20:23], v[28:31]
s_mov_b32 exec_lo, 0x00010001
s_mov_b32 exec_hi, 0x00010001
s_nop 5
ds_write2_b32 v11, v24, v25 offset0:0 offset1:8
ds_write2_b32 v11, v26, v27 offset0:16 offset1:24
ds_write2_b32 v11, v28, v29 offset0:128 offset1:136
ds_write2_b32 v11, v30, v31 offset0:144 offset1:152
s_mov_b64 exec, -1
s_waitcnt lgkmcnt(0)
s_barrier''')
stamp(8)
E(f'''ds_read_b128 v[16:19], v12 offset:{A_PART}
s_waitcnt lgkmcnt(0)
v_add_f32 v16, v16, v17
v_add_f32 v18, v18, v19
v_add_f32 v16, v16, v18
s_nop 1
v_mov_b32_dpp v17, v16 row_half_mirror {DPPF}
s_nop 1
v_add_f32_dpp v16, v17, v16 quad_perm:[3,2,1,0] {DPPF}
s_nop 1
v_mov_b32_dpp v17, v16 row_ror:8 {DPPF}
v_cndmask_b32 v18, v17, v16, {sp(sM1)}
v_cndmask_b32 v19, v16, v17, {sp(sM1)}
v_cvt_pk_bf16_f32 v18, v18, v19
v_and_b32 v19, 0xffff0000, v18
v_lshlrev_b32 v18, 16, v18
v_mul_f32 v16, {f32(-L2E)}, v18
v_exp_f32 v16, v16
s_nop 0
v_add_f32 v16, 1.0, v16
v_rcp_f32 v16, v16
s_nop 0
v_mul_f32 v16, v16, v18
v_cvt_pk_bf16_f32 v16, 0, v16
v_mul_f32 v16, v16, v19
s_nop 1
v_mov_b32_dpp v17, v16 quad_perm:[0,0,0,0] {DPPF}
v_mov_b32_dpp v18, v16 quad_perm:[1,1,1,1] {DPPF}
v_mov_b32_dpp v19, v16 quad_perm:[2,2,2,2] {DPPF}
v_mov_b32_dpp v20, v16 quad_perm:[3,3,3,3] {DPPF}
v_cvt_pk_bf16_f32 v16, v17, v18
v_cvt_pk_bf16_f32 v17, v19, v20''')
for t in range(4):
    E(f'''v_and_b32 v{24+2*t}, v16, v{88+t}
    v_and_b32 v{25+2*t}, v17, v{88+t}''')
E(f'''s_mov_b32 s{sT0}, 0xff
s_nop 0
v_mfma_f32_16x16x32_bf16 v[32:35], {vr(vFD,4)}, v[24:27], 0
v_mfma_f32_16x16x32_bf16 v[32:35], {vr(vFD+4,4)}, v[28:31], v[32:35]
s_mov_b32 exec_lo, 0x000f000f
s_mov_b32 exec_hi, 0x000f000f
s_nop 6''')
for t in range(4):
    E(f'v_bfi_b32 v{32+t}, s{sT0}, v{92+t}, v{32+t}')
E(f'global_store_dwordx4 v13, v[32:35], {sp(sWS)} sc1')
stamp(9)
E('L_adone:')
stamp(10)
if STAMPS:
    E('s_waitcnt vmcnt(0)')
    stamp(11)
write_stamps()
E('L_end:')
E('s_endpgm')
out.append(f'''.section .rodata,"a"
.p2align 6
.amdhsa_kernel {KN}_kernel
  .amdhsa_next_free_vgpr {NVGPR}
  .amdhsa_next_free_sgpr 96
  .amdhsa_accum_offset {(NVGPR+3)//4*4}
  .amdhsa_group_segment_fixed_size 0
  .amdhsa_kernarg_size 128
  .amdhsa_user_sgpr_count 2
  .amdhsa_user_sgpr_kernarg_segment_ptr 1
  .amdhsa_system_sgpr_workgroup_id_x 1
.end_amdhsa_kernel''')
print('\n'.join(out))
```

```python
import sys, struct
from asmlib import KN, STAMP_OFF
OPT = dict(a.split('=') if '=' in a else (a, '1') for a in sys.argv[1:])
STAMPS = 'stamps' in OPT
DUMP = OPT.get('dump')
MID0 = int(OPT.get('mid0', 10))
MID1 = int(OPT.get('mid1', 50))
YG = 320
NT = ' nt' if OPT.get('nt', '1') == '1' else ''
NTX = ' nt' if OPT.get('ntx', '1') == '1' else ''
PRIO = OPT.get('prio', 'io')
SLEEP = int(OPT.get('sleep', 2))

out = []
def E(s):
    for ln in s.strip('\n').split('\n'):
        ln = ln.strip()
        if ln: out.append(('    ' + ln) if not ln.endswith(':') else ln)
def f32(x): return '0x%08x' % struct.unpack('<I', struct.pack('<f', x))[0]
def vr(b, n): return f'v[{b}:{b+n-1}]'

WS_EPOCH, WS_KEYS, WS_G, WS_PART = 0, 4096, 8192, 32768
TAGINC = 0x9E3779B1
SPIN_MAX = 1 << 20
ROWB = 528
LOB = 32*ROWB
HI0 = 4*LOB
NHI = 22
HIB = NHI*ROWB
UB0 = HI0 + 4*HIB
UCB, UPAD = 4608, 480
SM0 = UB0 + 4*UCB
SMB = 4096
KX, KY, F3, F4, FLG = 0, 1216, 2432, 2944, 3328
HIX = 16384
TKT = SM0 + 4*SMB
LDS_BYTES = TKT + 64
DBG_TAG = 120
sEX = 6
sX, sLA, sAI, sCR, sCI, sLDT, sDS = 8, 10, 12, 14, 16, 18, 20
sWR, sWG, sWU, sWD, sGW, sOUT, sDBG, sWS = 24, 26, 28, 30, 32, 34, 36, 38
sW, sI, sT0, sT1 = 40, 41, 42, 43
sJ = 44
sJOB, sXCD = 45, 47
FORCE = int(OPT.get('force', 0))
sTAG, sKEY, sIDX, sSPIN = 48, 49, 50, 51
sM0, sM1 = 52, 54
sT2, sT3, sT4, sT5 = 56, 57, 58, 59
sSLOT, sWB, sFI, sIO = 60, 61, 62, 63
sCH = 61
SB = 64
NST = 14
def sp(b): return f's[{b}:{b+1}]'
def stamp(i):
    if STAMPS: E(f's_memrealtime s[{SB+2*i}:{SB+2*i+1}]')
def write_stamps(role):
    if not STAMPS: return
    E(f'''s_waitcnt lgkmcnt(0) vmcnt(0)
    s_mov_b64 exec, 1
    s_lshl_b32 s{sT0}, s{sSLOT}, 4
    s_add_u32 s{sT0}, s{sT0}, s{sXCD}
    s_add_u32 s{sT0}, s{sT0}, {8*role}
    s_lshl_b32 s{sT0}, s{sT0}, 3
    s_add_u32 s{sT0}, s{sT0}, s{sW}
    s_lshl_b32 s{sT0}, s{sT0}, 7
    s_add_u32 s{sT0}, s{sT0}, {STAMP_OFF}
    v_mov_b32 v0, s{sT0}''')
    for i in range(NST):
        E(f'''v_mov_b32 v2, s{SB+2*i}
        v_mov_b32 v3, s{SB+2*i+1}
        global_store_dwordx2 v0, v[2:3], {sp(sWS)} offset:{8*i}
        s_nop 1''')
def spin_check(lbl_loop):
    E(f'''s_sub_u32 s{sSPIN}, s{sSPIN}, 1
    s_cbranch_scc0 {lbl_loop}''')
def cmul(D, X, W):
    E(f'v_pk_mul_f32 {vr(D,2)}, {vr(X,2)}, {vr(W,2)} op_sel:[0,0] op_sel_hi:[0,1]')
    E(f'v_pk_fma_f32 {vr(D,2)}, {vr(X,2)}, {vr(W,2)}, {vr(D,2)} op_sel:[1,1,0] op_sel_hi:[1,0,1] neg_lo:[1,0,0]')
L2E = 1.4426950408889634
L2E_HI = struct.unpack('<f', struct.pack('<I', 0x3FB8AA00))[0]
L2E_LO = L2E - L2E_HI
LANE = 3
DPPF = 'row_mask:0xf bank_mask:0xf'

def ticket(name, off):
    E(f'''s_lshl_b32 s{sT0}, s{sXCD}, 5
    s_mov_b32 s{sSPIN}, 16
    L_tk_{name}:
    s_add_u32 s{sT1}, s{sT0}, {off}
    s_mov_b32 s{sT2}, 1
    s_atomic_add s{sT2}, {sp(sDBG)}, s{sT1} glc
    s_waitcnt lgkmcnt(0)
    s_cmp_lt_u32 s{sT2}, 16
    s_cbranch_scc1 L_tkd_{name}
    s_add_u32 s{sT0}, s{sT0}, 32
    s_and_b32 s{sT0}, s{sT0}, 0xe0
    s_sub_u32 s{sSPIN}, s{sSPIN}, 1
    s_cbranch_scc0 L_tk_{name}
    L_tkd_{name}:
    s_and_b32 s{sT2}, s{sT2}, 15
    s_lshr_b32 s{sT0}, s{sT0}, 1
    s_add_u32 s{sT2}, s{sT2}, s{sT0}''')

def key_reduce(vt):
    for sh in (8, 4, 2, 1):
        E(f'''v_max_u32_dpp v{vt}, v{vt}, v{vt} row_ror:{sh} {DPPF}
        s_nop 1''')
    E(f'''v_readlane_b32 s{sKEY}, v{vt}, 0
    v_readlane_b32 s{sT0}, v{vt}, 16
    v_readlane_b32 s{sT1}, v{vt}, 32
    v_readlane_b32 s{sT2}, v{vt}, 48
    s_max_u32 s{sKEY}, s{sKEY}, s{sT0}
    s_max_u32 s{sT1}, s{sT1}, s{sT2}
    s_max_u32 s{sKEY}, s{sKEY}, s{sT1}''')

hdr = open('cdna_kernels/' + KN + '.s.ref').read().split('; Override launch')[0]
out.append(hdr.rstrip('\n'))
out.append(f'; @launch grid=(256,1,1) block=(512,1,1) lds={LDS_BYTES}')
out.append(f'''.amdgcn_target "amdgcn-amd-amdhsa--gfx950"
.text
.globl {KN}_kernel
.p2align 8
.type {KN}_kernel,@function
{KN}_kernel:''')
stamp(0)
vXA, vXB, vWRv, vGWv = 8, 12, 16, 20
vLA, vAI, vCR, vCI, vDT = 4, 5, 6, 7, 8
vXO = 9
vX = 16
AF = 16
TZ = 84
BR = 124
DT = 156
ACC = 180
GF = 84
GA = 180
vBAND = 212
vA, vB = 232, 233
NVGPR = 234
E(f'''s_load_dwordx16 s[24:39], s[0:1], 64
s_load_dwordx16 s[8:23], s[0:1], 0
v_lshrrev_b32 v1, 6, v0
s_getreg_b32 s{sXCD}, hwreg(HW_REG_XCC_ID, 0, 3)
v_readfirstlane_b32 s{sW}, v1
{"s_andn2_b32 s%d, s%d, %d" % (sXCD, sXCD, FORCE) if FORCE else ""}
s_cmp_ge_u32 s2, 128
s_cbranch_scc1 L_aux0
s_cmp_lg_u32 s{sW}, 4
s_cbranch_scc1 L_conv
s_waitcnt lgkmcnt(0)''')
stamp(1)
ticket('c', 0)
E(f'''v_mov_b32 v1, {TKT}
v_mov_b32 v2, s{sT2}
ds_write_b32 v1, v2
v_and_b32 v{LANE}, 63, v0
s_branch L_cio0
L_aux0:
s_cmp_ge_u32 s2, 256
s_cbranch_scc1 L_end
v_and_b32 v{LANE}, 63, v0
s_sub_u32 s{sI}, s2, 128
v_lshlrev_b32 v4, 4, v{LANE}
s_lshl_b32 s{sT2}, s{sI}, 14
s_lshl_b32 s{sT1}, s{sW}, 11
s_add_u32 s{sT2}, s{sT2}, s{sT1}
v_add_u32 v5, s{sT2}, v4
s_waitcnt lgkmcnt(0)''')
stamp(1)
E(f'''global_load_dwordx4 {vr(vXA,4)}, v5, {sp(sX)}{NTX}
global_load_dwordx4 {vr(vXB,4)}, v5, {sp(sX)} offset:1024{NTX}
global_load_dwordx4 {vr(vWRv,4)}, v4, {sp(sWR)}
global_load_dwordx4 {vr(vGWv,4)}, v4, {sp(sGW)}
s_load_dword s{sTAG}, {sp(sWS)}, {WS_EPOCH}
s_branch L_aux
L_conv:
; L2 warm-up of this die's share while the ticket is on its way; job = 4*se + (cu&3) is a hint only
v_and_b32 v{LANE}, 63, v0
s_getreg_b32 s{sJOB}, hwreg(HW_REG_HW_ID, 13, 2)
s_getreg_b32 s{sT1}, hwreg(HW_REG_HW_ID, 8, 2)
s_lshl_b32 s{sJOB}, s{sJOB}, 2
s_add_u32 s{sJOB}, s{sJOB}, s{sT1}
s_cmp_ge_u32 s{sW}, 4
s_cbranch_scc1 L_cwio
s_cmp_ge_u32 s{sW}, 2
s_cbranch_scc1 L_cwpf
s_lshl_b32 s{sT0}, s{sXCD}, 4
s_add_u32 s{sT0}, s{sT0}, s{sJOB}
s_lshl_b32 s{sT0}, s{sT0}, 10
v_and_b32 v1, 7, v0
v_lshl_add_u32 v1, v1, 7, s{sT0}
v_and_b32 v2, 8, v0
v_lshlrev_b32 v2, 8, v2
v_xor_b32 v1, v1, v2
s_cmp_eq_u32 s{sW}, 0
s_waitcnt lgkmcnt(0)''')
stamp(1)
E(f'''s_cselect_b64 {sp(sT2)}, {sp(sLA)}, {sp(sCR)}
s_cselect_b64 {sp(sT4)}, {sp(sAI)}, {sp(sCI)}
global_load_dword v14, v1, {sp(sT2)}{NT}
global_load_dword v15, v1, {sp(sT4)}{NT}
s_branch L_cm0
L_cwio:
s_lshl_b32 s{sT0}, s{sJOB}, 1
s_add_u32 s{sT0}, s{sT0}, s{sW}
s_sub_u32 s{sT0}, s{sT0}, 5
s_lshl_b32 s{sT0}, s{sT0}, 16
s_lshl_b32 s{sT1}, s{sXCD}, 7
s_add_u32 s{sT0}, s{sT0}, s{sT1}
v_lshl_add_u32 v1, v{LANE}, 10, s{sT0}
v_mov_b32 v2, s{sT1}
s_cmp_eq_u32 s{sW}, 7
s_waitcnt lgkmcnt(0)''')
stamp(1)
E(f'''s_cbranch_scc1 L_cw7
global_load_dword v15, v1, {sp(sX)}{NT}
s_branch L_cio0
L_cw7:
global_load_dword v14, v2, {sp(sLDT)}
global_load_dword v15, v2, {sp(sDS)}
s_branch L_cio0
L_cwpf:
; waves 2,3: this kernel's code into L2
s_getpc_b64 s[4:5]
L_pc:
v_and_b32 v2, 127, v0
v_lshlrev_b32 v2, 7, v2
v_min_u32 v2, L_end-L_pc, v2
global_load_dword v15, v2, s[4:5]
L_cm0:''')
STOR = {0:0,1:1,2:2,3:3, 16:4,17:5,18:6,19:7,20:8,12:9, 15:10, 13:11,14:12,4:13,5:14,6:15,7:16,8:17,9:18,10:19,11:20,21:21}
assert sorted(STOR.values()) == list(range(22))
tab = [0,0,1,2,2,2,3,4,4,5,6,7,8,8,8,8]
hrow = []
for x in range(32):
    g_, r_ = (x >> 2) & 1, 4*(x >> 3) + (x & 3)
    hrow.append(STOR[13 + tab[r_] if g_ else min(r_, 12)])
planes = [sum(((hrow[x] >> b) & 1) << x for x in range(32)) for b in range(5)]
for r in range(16): E(f'v_mov_b32 v{GA+r}, 0')
E(f'''v_and_b32 v13, 31, v{LANE}
s_lshl_b32 s{sT0}, s{sW}, 12
s_add_u32 s{sT0}, s{sT0}, {SM0}
v_lshl_add_u32 v10, v{LANE}, 4, s{sT0}
ds_write_b128 v10, {vr(GA,4)}
ds_write_b128 v10, {vr(GA,4)} offset:1024
ds_write_b128 v10, {vr(GA,4)} offset:2048
ds_write_b128 v10, {vr(GA,4)} offset:3072''')
for b_ in range(4, -1, -1):
    E(f's_mov_b32 s{sT0}, {planes[b_]}')
    if b_ == 4: E(f'v_bfe_u32 v{vA}, s{sT0}, v13, 1')
    else: E(f'v_bfe_u32 v12, s{sT0}, v13, 1\nv_lshl_or_b32 v{vA}, v{vA}, 1, v12')
E(f'''v_lshrrev_b32 v12, 5, v{LANE}
v_mul_u32_u24 v{vA}, {ROWB}, v{vA}
v_mul_u32_u24 v{vB}, {ROWB}, v13
s_mul_i32 s{sT0}, s{sW}, {HIB}
s_add_u32 s{sT0}, s{sT0}, {HI0}
s_mul_i32 s{sT1}, s{sW}, {LOB}
v_lshl_add_u32 v{vA}, v12, 4, v{vA}
v_lshl_add_u32 v{vB}, v12, 4, v{vB}
v_add_u32 v{vA}, s{sT0}, v{vA}
v_add_u32 v{vB}, s{sT1}, v{vB}
v_and_b32 v10, 15, v{LANE}
v_lshrrev_b32 v11, 4, v{LANE}
v_lshlrev_b32 v11, 3, v11
s_mov_b32 s{sT0}, 0x10001''')
for bi, (k0, wd) in enumerate([(11, 3), (6, 5), (5, 7), (4, 9), (12, 2)]):
    mul = 0xffff if bi == 4 else 0x3f80
    E(f'''v_mov_b32 v12, {((1 << wd)-1) << k0}
    v_lshlrev_b32 v12, v10, v12
    v_bfe_u32 v12, v12, v11, 8
    v_lshl_or_b32 v12, v12, 15, v12''')
    for jj in range(4):
        r = vBAND + 4*bi + jj
        if jj == 0: E(f'v_and_b32 v{r}, s{sT0}, v12')
        else: E(f'v_lshrrev_b32 v{r}, {2*jj}, v12\nv_and_b32 v{r}, s{sT0}, v{r}')
        E(f'v_mul_u32_u24 v{r}, {mul}, v{r}')
E(f'''s_branch L_cb0
L_cio0:
s_and_b32 s{sCH}, s{sW}, 3
s_mul_i32 s{sT0}, s{sCH}, {UCB}
s_add_u32 s{sT0}, s{sT0}, {UB0}
v_min_u32 v13, 29, v{LANE}
v_lshl_add_u32 v12, v13, 4, s{sT0}
v_mov_b32 v32, 0
v_mov_b32 v33, 0
v_mov_b32 v34, 0
v_mov_b32 v35, 0
ds_write_b128 v12, v[32:35]
L_cb0:
s_and_b32 s{sCH}, s{sW}, 3
s_lshr_b32 s{sIO}, s{sW}, 2
s_lshl_b32 s{sT1}, s{sCH}, 1
s_add_u32 s{sT0}, s{sT1}, s{sIO}
s_lshl_b32 s{sT0}, s{sT0}, 7
v_lshl_add_u32 v1, v{LANE}, 1, s{sT0}
v_mov_b32 v10, s{sT1}
v_mov_b32 v{vLA}, 0
v_mov_b32 v{vAI}, 0
v_mov_b32 v{vCR}, 0
v_mov_b32 v{vCI}, 0
v_mov_b32 v{vDT}, 0
v_mov_b32 v2, {TKT}
s_waitcnt lgkmcnt(0)
s_barrier
ds_read_b32 v2, v2
s_waitcnt lgkmcnt(0)''')
stamp(12)
E(f'''v_lshl_add_u32 v1, v2, 10, v1
v_lshl_add_u32 v10, v2, 3, v10
global_load_short_d16_hi v{vLA}, v1, {sp(sLA)}{NT}
global_load_short_d16_hi v{vDT}, v10, {sp(sLDT)}
global_load_short_d16_hi v{vAI}, v1, {sp(sAI)}{NT}
global_load_short_d16_hi v{vCR}, v1, {sp(sCR)}{NT}
global_load_short_d16_hi v{vCI}, v1, {sp(sCI)}{NT}
v_readfirstlane_b32 s{sI}, v2
v_and_b32 v11, 255, v0
v_lshlrev_b32 v{vXO}, 13, v11
v_lshl_add_u32 v{vXO}, v2, 3, v{vXO}
v_add_u32 v{vXO}, 4096, v{vXO}
s_barrier''')
if STAMPS: E(f's_and_b32 s{sSLOT}, s{sI}, 15\ns_lshr_b32 s{sXCD}, s{sI}, 4')
def uload(j): E(f'global_load_dwordx2 {vr(vX+2*j,2)}, v{vXO}, {sp(sX)} offset:{-4096+1024*j}{NT}')
E(f'''s_cmp_eq_u32 s{sW}, 4
s_cbranch_scc1 L_cu4
s_cmp_eq_u32 s{sW}, 5
s_cbranch_scc1 L_cu5
s_cmp_ge_u32 s{sW}, 6
s_cbranch_scc1 L_cu6
s_mov_b64 exec, 1
global_load_short_d16_hi v{GA}, v10, {sp(sDS)}
s_mov_b64 exec, -1
s_branch L_cu1
L_cu4:''')
for j in range(8): uload(j)
E(f'''s_waitcnt vmcnt(8)
s_branch L_ckgen
L_cu6:
s_lshl_b32 s{sT0}, s{sI}, 1
s_add_u32 s{sT0}, s{sT0}, s{sW}
s_sub_u32 s{sT0}, s{sT0}, 6
s_mul_i32 s{sT0}, s{sT0}, 7168
v_min_u32 v12, 55, v{LANE}
v_lshl_add_u32 v12, v12, 7, s{sT0}
global_load_dword v14, v12, {sp(sWD)}{NT}
L_cu1:
s_waitcnt vmcnt(1)
s_branch L_ckgen
L_cu5:
s_waitcnt vmcnt(0)
L_ckgen:''')
stamp(2)
a, b, c, d = 10, 11, 12, 13
E(f'''v_mul_f32 v{a}, {f32(L2E_HI)}, v{vLA}
v_mul_f32 v{b}, {f32(L2E_HI)}, v{vDT}
v_rndne_f32 v{c}, v{a}
v_rndne_f32 v{d}, v{b}
v_sub_f32 v{a}, v{a}, v{c}
v_sub_f32 v{b}, v{b}, v{d}
v_fmac_f32 v{a}, {f32(L2E_LO)}, v{vLA}
v_fmac_f32 v{b}, {f32(L2E_LO)}, v{vDT}
v_exp_f32 v{a}, v{a}
v_exp_f32 v{b}, v{b}
v_cvt_i32_f32 v{c}, v{c}
v_cvt_i32_f32 v{d}, v{d}
v_ldexp_f32 v{a}, v{a}, v{c}
v_ldexp_f32 v{b}, v{b}, v{d}
v_cvt_pk_bf16_f32 v{a}, v{a}, v{b}
v_and_b32 v{vDT}, 0xffff0000, v{a}
v_lshlrev_b32 v{a}, 16, v{a}
v_mul_f32 v{a}, v{a}, v{vDT}
v_mul_f32 v{vAI}, v{vAI}, v{vDT}
v_mul_f32 v{vLA}, {f32(-L2E)}, v{a}
v_mul_f32 v{vAI}, {f32(0.15915494309189535)}, v{vAI}
v_add_f32 v{vDT}, v{vDT}, v{vDT}''')
vW1, vW8, vW256 = 36, 38, 40
def wdirect(D, p):
    if p == 1:
        E(f'''v_exp_f32 v{a}, v{vLA}
        v_fract_f32 v{b}, v{vAI}''')
    else:
        E(f'''v_mul_f32 v{a}, {f32(p)}, v{vLA}
        v_mul_f32 v{b}, {f32(p)}, v{vAI}
        v_exp_f32 v{a}, v{a}
        v_fract_f32 v{b}, v{b}''')
    E(f'''v_cos_f32 v{D}, v{b}
    v_sin_f32 v{D+1}, v{b}
    s_nop 0
    v_pk_mul_f32 {vr(D,2)}, {vr(D,2)}, {vr(a,2)} op_sel:[0,0] op_sel_hi:[1,0]''')
wdirect(vW8, 8.0)
E(f'''s_lshl_b32 s{sT1}, s{sIO}, 8
s_mul_i32 s{sT2}, s{sCH}, {LOB}
s_add_u32 m0, s{sT2}, s{sT1}
s_mul_i32 s{sT2}, s{sCH}, {HIB}
s_add_u32 s{sT1}, s{sT1}, s{sT2}
s_add_u32 s{sT1}, s{sT1}, {HIX}
s_cmp_lg_u32 s{sW}, 5''')
tmpc = [0]
midpos = [MID0 + int(k*(MID1-MID0)/7) for k in range(8)]
midj = [0]
def put(X, off, neg):
    t = 32 + (tmpc[0] & 3)
    E(f'v_cvt_pk_bf16_f32 v{t}, v{X}, {"-" if neg else ""}v{X+1}')
    E(f'ds_write_addtid_b32 v{t} offset:{off}')
    tmpc[0] += 1
    if tmpc[0] in midpos:
        E(f's_cbranch_scc1 L_mid{midj[0]}')
        uload(midj[0])
        E(f'L_mid{midj[0]}:')
        midj[0] += 1
E(f'v_mov_b32 v35, 0x3f80')
E(f'ds_write_addtid_b32 v35 offset:0')
put(vW8, ROWB, False)
P0, P1 = 46, 48
cur = vW8
for i in range(2, 32):
    nxt = P0 if cur != P0 else P1
    cmul(nxt, cur, vW8)
    put(nxt, i*ROWB, False)
    cur = nxt
wdirect(vW1, 1)
wdirect(vW256, 256.0)
E(f'''v_pk_mul_f32 {vr(vCR,2)}, {vr(vCR,2)}, {vr(vDT,2)} op_sel:[0,0] op_sel_hi:[1,0]
s_mov_b32 m0, s{sT1}''')
hoff = lambda row: HI0 - HIX + STOR[row]*ROWB
H = [50, 52, 54, 56, 58]
put(vCR, hoff(0), True)
cur = vCR
keep = {0: vCR}
for e in range(1, 9):
    nxt = H[e//2] if e % 2 == 0 else P0
    cmul(nxt, cur, vW1)
    put(nxt, hoff(e), True)
    cur = nxt
    if e % 2 == 0: keep[e] = nxt
for e, row in ((0, 13), (2, 14), (6, 16)):
    cmul(P0, keep[e], vW256)
    put(P0, hoff(row), True)
cur = keep[4]
for row in (15, 9, 18):
    nxt = P0 if cur != P0 else P1
    cmul(nxt, cur, vW256); put(nxt, hoff(row), True); cur = nxt
cur = keep[8]
for row in (17, 10, 19, 11, 20, 12, 21):
    nxt = P0 if cur != P0 else P1
    cmul(nxt, cur, vW256); put(nxt, hoff(row), True); cur = nxt
assert midj[0] == 8, midj
stamp(3)
E(f's_cmp_eq_u32 s{sIO}, 0\ns_cbranch_scc0 L_cio1')
vKX, vK3, vK4 = 6, 7, 8
vCA, vCB, vY, vTZ, vFL = 9, 10, 11, 12, 13
def gread(s):
    r = GF + 8*(s % 8)
    E(f'ds_read_b128 {vr(r,4)}, v{vA} offset:{32*s}')
    E(f'ds_read_b128 {vr(r+4,4)}, v{vB} offset:{32*s}')
prep = f'''s_lshl_b32 s{sT0}, s{sW}, 12
s_add_u32 s{sT0}, s{sT0}, {SM0}
s_mul_i32 s{sT1}, s{sW}, {LOB}
v_lshlrev_b32 v20, 4, v{LANE}
v_sub_u32 v{vKX}, s{sT0}, v20
v_add_u32 v{vKX}, {2*(543-7)}, v{vKX}
v_and_b32 v20, 1, v{LANE}
v_lshrrev_b32 v21, 1, v{LANE}
v_lshlrev_b32 v21, 2, v21
v_lshl_add_u32 v{vK3}, v20, 8, v21
v_add_u32 v{vK3}, s{sT0}, v{vK3}
v_lshl_add_u32 v{vK4}, v{LANE}, 1, s{sT0}
v_and_b32 v21, 15, v{LANE}
v_lshrrev_b32 v22, 4, v{LANE}
v_mul_u32_u24 v23, {KY+2}, v20
v_lshl_add_u32 v23, v21, 1, v23
v_lshlrev_b32 v24, 4, v22
v_sub_u32 v{vCA}, v24, v23
s_add_u32 s{sT2}, s{sT0}, {KY+2*(544-16)-1024}
v_add_u32 v{vCA}, s{sT2}, v{vCA}
v_lshl_add_u32 v{vCB}, v21, 5, v24
s_mul_i32 s{sT2}, s{sW}, {UCB}
s_add_u32 s{sT2}, s{sT2}, {UB0}
v_add_u32 v{vCB}, s{sT2}, v{vCB}
v_mul_u32_u24 v{vY}, {YG}, v22
v_lshl_add_u32 v{vY}, v21, 4, v{vY}
v_add_u32 v{vY}, s{sT1}, v{vY}
v_mov_b32 v5, {SM0+FLG+16}
v_lshlrev_b32 v{vTZ}, 2, v21
v_sub_u32 v{vTZ}, v{vTZ}, v24
s_add_u32 s{sT2}, s{sT0}, {F3+4*13}
v_add_u32 v{vTZ}, s{sT2}, v{vTZ}
s_lshl_b32 s{sT2}, s{sW}, 2
s_add_u32 s{sT2}, s{sT2}, {SM0+FLG}
v_mov_b32 v{vFL}, s{sT2}
v_add_u32 v14, 512, v{vCA}'''.split('\n')
def gemm_half(s0, nprep):
    for s in range(s0, s0+6): gread(s)
    for s in range(s0, s0+8):
        if s + 6 < s0 + 8: gread(s+6)
        E(f's_waitcnt lgkmcnt({2*min(6, s0 + 7 - s)})')
        r = GF + 8*(s % 8)
        E(f'v_mfma_f32_32x32x16_bf16 {vr(GA,16)}, {vr(r,4)}, {vr(r+4,4)}, {vr(GA,16)}')
        for _ in range(nprep):
            if prep: E(prep.pop(0))
E(f'''s_waitcnt vmcnt(0) lgkmcnt(1)
s_mov_b64 exec, 1
v_add_f32 v{GA}, -1.0, v{GA}
s_mov_b64 exec, -1''')
gemm_half(0, 5)
assert not prep
stamp(13)
E('s_barrier')
stamp(4)
gemm_half(8, 0)
stamp(8)
E('s_nop 11')
D = lambda r: f'v{GA+r}'
t = DT
E(f'''v_cvt_pk_bf16_f32 v{t}, {D(7)}, {D(6)}
v_cvt_pk_bf16_f32 v{t+1}, {D(5)}, {D(4)}
v_cvt_pk_bf16_f32 v{t+2}, {D(3)}, {D(2)}
v_cvt_pk_bf16_f32 v{t+3}, {D(1)}, {D(0)}
ds_write_b128 v{vKX}, {vr(t,4)} offset:{KX}
v_cvt_pk_bf16_f32 v{t+4}, {D(8)}, {D(7)}
v_cvt_pk_bf16_f32 v{t+5}, {D(6)}, {D(5)}
v_cvt_pk_bf16_f32 v{t+6}, {D(4)}, {D(3)}
v_cvt_pk_bf16_f32 v{t+7}, {D(2)}, {D(1)}
ds_write_b128 v{vKX}, {vr(t+4,4)} offset:{KY}
v_cvt_pk_bf16_f32 v{t+10}, {D(0)}, 0
s_mov_b64 exec, 1
ds_write_b32 v{vKX}, v{t+10} offset:{KY+16}
s_mov_b64 exec, -1''')
def aread(q):
    base, off = (vCA, (1024-64*q)//4) if q >= 9 else (14, (512-64*q)//4)
    return [f'ds_read2_b32 {vr(AF+4*q,2)}, v{base} offset0:{off} offset1:{off+1}',
            f'ds_read2_b32 {vr(AF+4*q+2,2)}, v{base} offset0:{off+2} offset1:{off+3}']
def tzread(i):
    if i < 6: off = (i//3)*64 + 16*(i % 3)
    else: off = (F4-F3)//4 + 16*(i-6)
    return [f'ds_read2_b32 {vr(TZ+4*i,2)}, v{vTZ} offset0:{off+3} offset1:{off+2}',
            f'ds_read2_b32 {vr(TZ+4*i+2,2)}, v{vTZ} offset0:{off+1} offset1:{off}']
stamp(9)
for q in (0, 8, 1, 9):
    for x in aread(q): E(x)
E(f'''v_cvt_pk_bf16_f32 v{t+8}, 0, {D(8)}
v_cvt_pk_bf16_f32 v{t+9}, {D(8)}, {D(8)}
v_cvt_pk_bf16_f32 v{t+11}, {D(9)}, {D(10)}
v_cvt_pk_bf16_f32 v{t+12}, {D(11)}, {D(12)}
v_cvt_pk_bf16_f32 v{t+13}, {D(10)}, {D(10)}
v_subrev_u32 v{vKX}, 8, v{vKX}
s_waitcnt lgkmcnt(6)
s_mov_b32 exec_lo, 0
s_mov_b32 exec_hi, 0x80000000
ds_write_b64 v{vKX}, {vr(t+8,2)} offset:{KX}
ds_write_b32 v{vKX}, v{t+9} offset:{KY+4}
s_mov_b64 exec, -1
ds_write_b32 v{vK3}, v{t+11} offset:{F3+64}
ds_write_b16 v{vK4}, v{t+12} offset:{F4+64}
ds_write_b16_d16_hi v{vK4}, v{t+12} offset:{F4+64+128}
v_readlane_b32 s{sT2}, v{t+13}, 63''')
for q in (2, 10):
    for x in aread(q): E(x)
for jj in range(4):
    E(f'v_and_b32 v{vBAND+16+jj}, s{sT2}, v{vBAND+16+jj}')
E('s_waitcnt lgkmcnt(4)')
for q in (3, 11, 4, 12, 5):
    for x in aread(q): E(x)
E('s_waitcnt lgkmcnt(4)')
for q in (13, 6, 14, 7, 15):
    for x in aread(q): E(x)
E('s_waitcnt lgkmcnt(4)')
for x in aread(16) + tzread(3) + tzread(0) + tzread(4) + tzread(1): E(x)
E('s_waitcnt lgkmcnt(2)')
for i in (5, 2, 6, 7, 8, 9):
    for x in tzread(i): E(x)
stamp(5)
def ucheck(ph, first):
    if first: E(f'ds_read_b32 v4, v5 offset:{4*ph}\ns_waitcnt lgkmcnt(0)')
    E(f'''v_cmp_ne_u32 vcc, 0, v4
    s_cbranch_vccz L_uc{ph}
    L_uc{ph}d:''')
def uslow():
    for ph in range(4):
        E(f'''L_uc{ph}:
        s_mov_b32 s{sSPIN}, {SPIN_MAX}
        L_uc{ph}l:
        ds_read_b32 v4, v5 offset:{4*ph}
        s_waitcnt lgkmcnt(0)
        v_cmp_ne_u32 vcc, 0, v4
        s_cbranch_vccnz L_uc{ph}d
        s_sub_u32 s{sSPIN}, s{sSPIN}, 1
        s_cbranch_scc0 L_uc{ph}l
        s_branch L_uc{ph}d''')
def ninstr(): return sum(1 for x in out if not x.endswith(':'))
ucheck(0, True)
stamp(6)
if PRIO == 'm': E('s_setprio 2')
bseq = []
for tp in range(8):
    if tp <= 5: bseq.append(('Z', tp, 0))
    for q in range(8): bseq.append(('B', tp, q))
slot = {k: i % 8 for i, k in enumerate(bseq)}
def boff(k):
    kind, tp, q = k
    return UPAD + 512*tp - 32 - (16 if kind == 'Z' else 64*q)
breg = lambda k: vr(BR + 4*slot[k], 4)
accinit = set()
def M(Tt, a_, b_):
    c_ = vr(ACC+4*Tt, 4) if Tt in accinit else '0'
    accinit.add(Tt)
    return f'v_mfma_f32_16x16x32_bf16 {vr(ACC+4*Tt,4)}, {a_}, {b_}, {c_}'
band = lambda i: vr(vBAND+4*i, 4)
stream = []
for tp in range(8):
    B0 = ('B', tp, 0); Z = ('Z', tp, 0)
    gen = []; cv = []
    if tp <= 5:
        gen += [(0, B0, 0), (4, B0, 1), (8, Z, 0), (12, Z, 1)]
        for jj in range(4): cv.append(f'v_cvt_pk_bf16_f32 v{DT+8+jj}, v{DT+8+jj}, v{DT+12+jj}')
        for jj in range(4): cv.append(f'v_cvt_pk_bf16_f32 v{DT+jj}, v{DT+jj}, v{DT+4+jj}')
    if tp <= 3:
        gen += [(16, B0, 2), (20, Z, 3)]
        for jj in range(4): cv.append(f'v_cvt_pk_bf16_f32 v{DT+16+jj}, v{DT+16+jj}, v{DT+20+jj}')
    gen.sort(key=lambda g_: g_[1][0] != 'Z')
    for dof, k, bi in gen:
        stream.append(('m', f'v_mfma_f32_16x16x32_bf16 {vr(DT+dof,4)}, {breg(k)}, {band(bi)}, 0', k))
    near = []
    if tp <= 3: near.append(('m', M(tp+4, band(4), breg(B0)), B0))
    if tp <= 5: near.append(('m', M(tp+2, vr(AF+64, 4), breg(B0)), B0))
    for q in range(8):
        k = ('B', tp, q)
        if tp < 7: near.append(('m', M(tp+1, vr(AF+4*(q+8), 4), breg(k)), k))
        near.append(('m', M(tp, vr(AF+4*q, 4), breg(k)), k))
    for i, it in enumerate(near):
        stream.append(it)
        if i >= 5 and cv: stream.append(('v', cv.pop(0)))
    assert not cv
    far = []
    if tp <= 5:
        for dl in range(3):
            if tp + 2 + dl <= 7:
                far.append(('m', M(tp+2+dl, vr(DT+8, 4), vr(TZ+4*(3+dl), 4)), None))
                far.append(('m', M(tp+2+dl, vr(DT, 4), vr(TZ+4*dl, 4)), None))
    if tp <= 3:
        for dl in range(4):
            if tp + 4 + dl <= 7: far.append(('m', M(tp+4+dl, vr(DT+16, 4), vr(TZ+4*(6+dl), 4)), None))
    stream.append(('mark', tp))
    stream += far
ywrite = lambda tp: [('ds', f'ds_write_b128 v{vY}, {vr(ACC+4*tp,4)} offset:{4*YG*tp}')] + \
                    ([('v', f'v_mov_b32 v15, {tp//2+1}'), ('ds', f'ds_write_b32 v{vFL}, v15')] if tp & 1 else [])
lastuse = {}
for i, it in enumerate(stream):
    if it[0] == 'm' and it[2] is not None: lastuse[it[2]] = i
extra = []
issued = []
done_upto = [0]
nextb = [0]
flagread = set()
def issue_b():
    k = bseq[nextb[0]]
    if k[1] in (2, 4, 6) and bseq[nextb[0]-1][1] != k[1]:
        wait_for(issued.index(('F', k[1])))
        ucheck(k[1]//2, False)
    nextb[0] += 1
    kn = bseq[min(nextb[0]+1, len(bseq)-1)]
    if kn[1] in (2, 4, 6) and kn[1] not in flagread:
        flagread.add(kn[1])
        E(f'ds_read_b32 v4, v5 offset:{4*(kn[1]//2)}')
        issued.append(('F', kn[1]))
    E(f'ds_read_b128 {breg(k)}, v{vCB} offset:{boff(k)}')
    issued.append(k)
def wait_for(idx, slack=0):
    if idx < done_upto[0]: return
    idx = max(idx, min(idx + slack, len(issued) - 5))
    n = len(issued) - 1 - idx
    assert n <= 15
    E(f's_waitcnt lgkmcnt({n})')
    done_upto[0] = idx + 1
for _ in range(8): issue_b()
ypend = []
for i, it in enumerate(stream):
    n0 = ninstr()
    if it[0] == 'mark':
        ypend.append([8, ywrite(it[1])])
        continue
    elif it[0] == 'm':
        if it[2] is not None: wait_for(issued.index(it[2]), 2)
        E(it[1])
        if nextb[0] < len(bseq) and lastuse[bseq[nextb[0]-8]] <= i and len(issued) - done_upto[0] < 13:
            issue_b()
        if extra:
            if len(issued) - done_upto[0] >= 14: wait_for(done_upto[0] + 3)
            E(extra.pop(0)); issued.append('TZ')
        for p in ypend: p[0] -= ninstr() - n0
        n0 = ninstr()
        if ypend and ypend[0][0] <= 0:
            for _ in range(2):
                if ypend[0][1]:
                    kind, txt = ypend[0][1].pop(0)
                    E(txt)
                    if kind == 'ds': issued.append(None)
            if not ypend[0][1]: ypend.pop(0)
    else:
        E(it[1])
    for p in ypend: p[0] -= ninstr() - n0
for p in ypend:
    if p[0] > 0: E(f's_nop {p[0]-1}')
    n0 = ninstr()
    for kind, txt in p[1]: E(txt)
    for p2 in ypend: p2[0] -= max(p[0], 0) + ninstr() - n0
stamp(7)
E('s_branch L_cdone')
uslow()
vPK = 32
E('L_cio1:')
vG = 56
E(f'''v_and_b32 v11, 255, v0
v_lshlrev_b32 v11, 4, v11
s_waitcnt lgkmcnt(0)
s_barrier''')
stamp(4)
E(f'''s_cmp_lt_u32 s{sW}, 6
s_cbranch_scc1 L_cio1b''')
for j in range(8): uload(j)
E('L_cio1b:')
if PRIO == 'io': E('s_setprio 2')
E(f'''v_add_u32 v4, {UB0+UPAD}, v11
s_mov_b32 s{sT0}, 0x05040100
s_mov_b32 s{sT1}, 0x07060302
v_mov_b32 v5, 0
v_lshlrev_b32 v6, 4, v{LANE}
v_add_u32 v6, {WS_KEYS}, v6
v_lshlrev_b32 v7, 1, v11
v_add_u32 v7, {WS_G}, v7
s_lshl_b32 s{sT2}, s{sW}, 2
s_add_u32 s{sT2}, s{sT2}, {SM0+FLG}
v_mov_b32 v10, s{sT2}
s_waitcnt vmcnt(0)''')
stamp(13)
def polls():
    E(f'''global_load_dwordx2 v[12:13], v5, {sp(sDBG)} offset:{DBG_TAG} sc1
    global_load_dwordx4 v[48:51], v6, {sp(sWS)} sc1
    global_load_dwordx4 {vr(vG,4)}, v7, {sp(sWS)} sc1
    global_load_dwordx4 {vr(vG+4,4)}, v7, {sp(sWS)} offset:16 sc1''')
polls()
for k in range(4):
    for j in range(4):
        E(f'v_perm_b32 v{vPK+4*k+j}, v{vX+4*j+2+(k>>1)}, v{vX+4*j+(k>>1)}, s{sT1 if k & 1 else sT0}')
    E(f'ds_write_b128 v4, {vr(vPK+4*k,4)} offset:{k*UCB}')
E(f'ds_write_b32 v10, v10')
stamp(5)
vP = 80
for j in range(8):
    for h in range(2):
        E(f'''v_lshlrev_b32 v{vP+4*j+2*h}, 16, v{vX+2*j+h}
        v_and_b32 v{vP+4*j+2*h+1}, 0xffff0000, v{vX+2*j+h}''')
E(f'''v_bfe_u32 v14, v0, 5, 3
v_mul_u32_u24 v14, {4*YG}, v14
v_and_b32 v15, 1, v0
v_mul_u32_u24 v15, {2*YG}, v15
v_add_u32 v14, v14, v15
v_bfe_u32 v15, v0, 1, 4
v_lshl_add_u32 v14, v15, 4, v14''')
stamp(6)
E(f'''s_mov_b32 s{sSPIN}, {SPIN_MAX}
s_branch L_pt1
L_pt:''')
polls()
E(f'''L_pt1:
s_waitcnt vmcnt(0)
v_readfirstlane_b32 s{sTAG}, v12
v_cmp_eq_u32 vcc, 1, v13
v_xor_b32 v49, v49, v12
v_xor_b32 v51, v51, v12
v_xor_b32 v{vG+1}, v{vG+1}, v12
v_xor_b32 v{vG+3}, v{vG+3}, v12
v_xor_b32 v{vG+5}, v{vG+5}, v12
v_xor_b32 v{vG+7}, v{vG+7}, v12
v_or3_b32 v49, v49, v51, v{vG+1}
v_or3_b32 v51, v{vG+3}, v{vG+5}, v{vG+7}
v_or_b32 v49, v49, v51
v_cmp_eq_u32 {sp(sM0)}, 0, v49
v_max_u32 v48, v48, v50
s_and_b64 vcc, vcc, {sp(sM0)}
s_cmp_eq_u64 vcc, -1
s_cbranch_scc1 L_ptd''')
spin_check('L_pt')
E('L_ptd:')
stamp(9)
key_reduce(48)
E(f'''s_andn2_b32 s{sIDX}, 2047, s{sKEY}
s_cmp_lg_u32 s{sW}, 4
s_cbranch_scc1 L_nq
s_lshr_b32 s{sT0}, s{sIDX}, 1
s_lshl_b32 s{sT0}, s{sT0}, 3
s_add_u32 s{sT0}, s{sT0}, {WS_G}
v_mov_b32 v8, s{sT0}
global_load_dwordx2 v[120:121], v8, {sp(sWS)} sc1
L_nq:''')
vGF = 64
for j in range(4):
    E(f'''v_lshlrev_b32 v{vGF+2*j}, 16, v{vG+2*j}
    v_and_b32 v{vGF+2*j+1}, 0xffff0000, v{vG+2*j}''')
E(f'''s_lshr_b32 s{sT0}, s{sIDX}, 3
s_mov_b64 {sp(sEX)}, -1
s_bitset0_b64 {sp(sEX)}, s{sT0}
s_lshr_b32 s{sT0}, s{sIDX}, 9
s_add_u32 s{sT0}, s{sT0}, 4
s_and_b32 s{sJ}, s{sIDX}, 7
s_cmp_eq_u32 s{sT0}, s{sW}
s_cselect_b32 s{sJ}, s{sJ}, 8
s_cmp_lg_u32 s{sW}, 4
s_cbranch_scc1 L_pqd
s_mov_b32 s{sSPIN}, {SPIN_MAX}
s_branch L_pq1
L_pq:
global_load_dwordx2 v[120:121], v8, {sp(sWS)} sc1
L_pq1:
s_waitcnt vmcnt(0)
v_cmp_eq_u32 vcc, s{sTAG}, v121
s_cbranch_vccnz L_pqd''')
spin_check('L_pq')
E('L_pqd:')
stamp(7)
def wait_flags(sreg, name):
    E(f'''v_mov_b32 v10, {SM0+FLG}
    s_mov_b32 s{sSPIN}, {SPIN_MAX}
    L_wf_{name}:
    ds_read_b128 v[48:51], v10
    s_waitcnt lgkmcnt(0)
    v_min_u32 v48, v48, v49
    v_min3_u32 v48, v48, v50, v51
    v_cmp_le_u32 vcc, s{sreg}, v48
    s_cbranch_vccnz L_wfd_{name}
    s_sleep {SLEEP}''')
    spin_check(f'L_wf_{name}')
    E(f'L_wfd_{name}:')
E(f's_sub_u32 s{sT2}, s{sW}, 3')
wait_flags(sT2, 'e')
stamp(8)
vYV = 16
for h in range(2):
    for k in range(4):
        E(f'ds_read_b128 {vr(vYV+16*h+4*k,4)}, v14 offset:{k*LOB+h*YG}')
for j in range(8):
    if j == 0: E('s_waitcnt lgkmcnt(4)')
    if j == 4: E('s_waitcnt lgkmcnt(0)')
    for k in range(4):
        E(f'v_fmac_f32 v{vP+4*j+k}, v{vYV+16*(j>>2)+4*k+(j&3)}, v{vGF+j}')
    E(f'''v_cvt_pk_bf16_f32 v{vP+4*j}, v{vP+4*j}, v{vP+4*j+1}
    v_cvt_pk_bf16_f32 v{vP+4*j+1}, v{vP+4*j+2}, v{vP+4*j+3}
    s_cmp_eq_u32 s{sJ}, {j}
    s_cselect_b64 exec, {sp(sEX)}, -1
    global_store_dwordx2 v{vXO}, {vr(vP+4*j,2)}, {sp(sOUT)} offset:{-4096+1024*j}
    s_mov_b64 exec, -1''')
E(f'''s_cmp_lg_u32 s{sW}, 4
s_cbranch_scc1 L_cdone''')
E(f'''s_lshl_b32 s{sT2}, s{sI}, 11
s_add_u32 s{sT2}, s{sT2}, {WS_PART}
v_lshl_add_u32 v9, v{LANE}, 4, s{sT2}
s_lshl_b32 s{sT0}, s{sIDX}, 1
s_add_u32 s{sT0}, s{sT0}, {UB0+UPAD}
v_mov_b32 v7, s{sT0}
s_lshr_b32 s{sT0}, s{sIDX}, 8
s_lshl_b32 s{sT0}, s{sT0}, 2
s_bfe_u32 s{sT1}, s{sIDX}, 0x20002
s_add_u32 s{sT0}, s{sT0}, s{sT1}
s_mul_i32 s{sT0}, s{sT0}, {YG}
s_and_b32 s{sT1}, s{sIDX}, 0xf0
s_add_u32 s{sT0}, s{sT0}, s{sT1}
s_and_b32 s{sT1}, s{sIDX}, 3
s_lshl_b32 s{sT1}, s{sT1}, 2
s_add_u32 s{sT0}, s{sT0}, s{sT1}
v_mov_b32 v8, s{sT0}''')
for k in range(4):
    E(f'v_mov_b32 v{20+k}, 0')
for k in range(4):
    E(f'ds_read_u16_d16_hi v{20+k}, v7 offset:{k*UCB}')
E(f'''s_bitcmp1_b32 s{sIDX}, 0
s_cselect_b32 s{sT0}, 0, 16
v_lshlrev_b32 v24, s{sT0}, v120
v_and_b32 v24, 0xffff0000, v24
s_and_b32 s{sT0}, s{sKEY}, 0xffff0000
s_xor_b32 s{sT1}, s{sT0}, 0xffff0000
s_xor_b32 s{sT0}, s{sT0}, 0x80000000
s_bitcmp1_b32 s{sKEY}, 31
s_cselect_b32 s{sT0}, s{sT0}, s{sT1}
v_mov_b32 v25, {f32(-L2E)}
v_mul_f32 v25, s{sT0}, v25
v_exp_f32 v25, v25
v_sub_f32 v38, 1.0, v24
v_add_f32 v25, 1.0, v25
v_rcp_f32 v25, v25
v_cvt_pk_bf16_f32 v38, 0, v38
v_cvt_pk_bf16_f32 v25, 0, v25
v_mul_f32 v25, v25, v38
s_mov_b32 s{sT0}, 0x0c0c0400
s_mov_b32 s{sT1}, 0x04000c0c
v_cmp_gt_u32 {sp(sM1)}, 48, v{LANE}
s_mov_b32 s{sSPIN}, {SPIN_MAX}
L_pp:
global_load_dwordx4 v[28:31], v9, {sp(sWS)} sc1
global_load_dwordx4 v[32:35], v9, {sp(sWS)} offset:1024 sc1
s_waitcnt vmcnt(0)
v_perm_b32 v26, v29, v28, s{sT0}
v_perm_b32 v27, v31, v30, s{sT1}
v_perm_b32 v36, v33, v32, s{sT0}
v_perm_b32 v37, v35, v34, s{sT1}
v_or_b32 v26, v26, v27
v_or_b32 v36, v36, v37
v_cmp_eq_u32 vcc, s{sTAG}, v26
v_cmp_eq_u32 {sp(sM0)}, s{sTAG}, v36
s_orn2_b64 {sp(sM0)}, {sp(sM0)}, {sp(sM1)}
s_and_b64 vcc, vcc, {sp(sM0)}
s_cmp_eq_u64 vcc, -1
s_cbranch_scc1 L_ppd''')
spin_check('L_pp')
E('L_ppd:')
stamp(2)
E(f'''s_mov_b64 exec, {sp(sM1)}
v_add_f32 v28, v28, v32
v_add_f32 v29, v29, v33
v_add_f32 v30, v30, v34
v_add_f32 v31, v31, v35
s_mov_b64 exec, -1
s_nop 0''')
for sh in (8, 4, 2, 1):
    for k in range(4):
        E(f'v_add_f32_dpp v{28+k}, v{28+k}, v{28+k} row_ror:{sh} {DPPF}')
for k in range(4):
    E(f'v_add_f32_dpp v{28+k}, v{28+k}, v{28+k} row_bcast:15 row_mask:0xa bank_mask:0xf')
for k in range(4):
    E(f'v_add_f32_dpp v{28+k}, v{28+k}, v{28+k} row_bcast:31 row_mask:0xc bank_mask:0xf')
E(f'''v_cvt_pk_bf16_f32 v28, v28, v29
v_cvt_pk_bf16_f32 v30, v30, v31
v_and_b32 v29, 0xffff0000, v28
v_lshlrev_b32 v28, 16, v28
v_and_b32 v31, 0xffff0000, v30
v_lshlrev_b32 v30, 16, v30
s_waitcnt lgkmcnt(0)
v_fmac_f32 v20, v28, v25
v_fmac_f32 v21, v29, v25
v_fmac_f32 v22, v30, v25
v_fmac_f32 v23, v31, v25
s_lshr_b32 s{sT2}, s{sIDX}, 9
s_add_u32 s{sT2}, s{sT2}, 1''')
wait_flags(sT2, 'f')
for k in range(4):
    E(f'ds_read_b32 v{16+k}, v8 offset:{k*LOB}')
E(f'''s_lshl_b32 s{sT0}, s{sIDX}, 10
s_lshl_b32 s{sT1}, s{sI}, 3
s_add_u32 s{sT0}, s{sT0}, s{sT1}
v_mov_b32 v10, s{sT0}
s_waitcnt lgkmcnt(0)
v_fmac_f32 v20, v16, v24
v_fmac_f32 v21, v17, v24
v_fmac_f32 v22, v18, v24
v_fmac_f32 v23, v19, v24
v_cvt_pk_bf16_f32 v16, v20, v21
v_cvt_pk_bf16_f32 v17, v22, v23
s_mov_b32 exec_lo, 0
s_mov_b32 exec_hi, 0x80000000
global_store_dwordx2 v10, v[16:17], {sp(sOUT)}''')
E('L_cdone:')
stamp(10)
if STAMPS:
    E('s_waitcnt vmcnt(0)')
    stamp(11)
write_stamps(0)
E('s_endpgm')

A_T, A_IDX, A_PART = 49152, 49152 + 256, 50176
vWL = 24
E(f'''L_aux:
s_getreg_b32 s{sT2}, hwreg(HW_REG_HW_ID, 13, 2)
s_getreg_b32 s{sT0}, hwreg(HW_REG_HW_ID, 8, 2)
s_lshl_b32 s{sT0}, s{sT0}, 1
s_bfe_u32 s{sT1}, s{sW}, 0x10001
s_add_u32 s{sT0}, s{sT0}, s{sT1}
s_mul_i32 s{sT0}, s{sT0}, {64*3584}
s_mul_i32 s{sT1}, s{sXCD}, 14
s_lshr_b32 s{sT1}, s{sT1}, 2
s_add_u32 s{sT1}, s{sT1}, s{sT2}
s_lshl_b32 s{sT1}, s{sT1}, 7
s_add_u32 s{sT0}, s{sT0}, s{sT1}
v_mul_u32_u24 v49, 3584, v{LANE}
v_add_u32 v49, s{sT0}, v49
s_bitcmp1_b32 s{sW}, 0
s_cselect_b64 {sp(sT2)}, {sp(sWU)}, {sp(sWG)}
s_barrier
s_cmp_ge_u32 s{sW}, 4
s_cbranch_scc1 L_anowu
global_load_dword v59, v49, {sp(sT2)}{NT}
L_anowu:
; row id complement, table address, publish address
s_lshl_b32 s{sT0}, s{sI}, 4
s_lshl_b32 s{sT1}, s{sW}, 1
s_add_u32 s{sT0}, s{sT0}, s{sT1}
v_lshrrev_b32 v5, 5, v{LANE}
v_add_u32 v5, s{sT0}, v5
v_sub_u32 v5, 2047, v5
s_lshl_b32 s{sT1}, s{sW}, 4
v_lshrrev_b32 v6, 4, v{LANE}
v_lshl_add_u32 v6, v6, 2, s{sT1}
v_and_b32 v1, 16, v{LANE}
v_cmp_ne_u32 {sp(sM1)}, 0, v1
v_and_b32 v48, 7, v{LANE}
s_lshl_b32 s{sT0}, s{sI}, 6
s_add_u32 s{sT0}, s{sT0}, {WS_G}
v_lshl_add_u32 v49, v48, 3, s{sT0}
s_lshl_b32 s{sT0}, s{sI}, 3
s_add_u32 s{sT0}, s{sT0}, {WS_KEYS}
v_writelane_b32 v49, s{sT0}, 8
v_lshlrev_b32 v48, 4, v48
v_cmp_eq_u32 {sp(sM0)}, 8, v{LANE}
s_waitcnt lgkmcnt(0)
s_add_u32 s{sTAG}, s{sTAG}, {TAGINC}
v_mov_b32 v61, s{sTAG}
s_cmp_lt_u32 s{sW}, 4
s_cbranch_scc1 L_aw3
s_cmp_lg_u32 s{sW}, 7
s_cbranch_scc1 L_aw2
s_lshl_b32 s{sT0}, s{sXCD}, 5
v_mov_b32 v62, s{sT0}
v_mov_b32 v63, 1
s_mov_b64 exec, 1
global_atomic_add v96, v62, v63, {sp(sDBG)} offset:16 sc0
s_mov_b64 exec, -1
s_branch L_aw3
L_aw2:
s_waitcnt vmcnt(0)
L_aw3:
s_mov_b32 s{sT0}, 0x3f803f80
s_waitcnt vmcnt(1)''')
stamp(2)
for k in range(4):
    z = lambda r: "0" if k == 0 else f"v{r}"
    E(f'''v_and_b32 v62, 0xffff, v{vGWv+k}
    v_and_b32 v63, 0xffff0000, v{vGWv+k}
    v_dot2_f32_bf16 v54, v{vXA+k}, v62, 0
    v_dot2_f32_bf16 v55, v{vXA+k}, v63, 0
    v_dot2_f32_bf16 v56, v{vXB+k}, v62, 0
    v_dot2_f32_bf16 v57, v{vXB+k}, v63, 0
    v_dot2_f32_bf16 v50, v{vXA+k}, v{vWRv+k}, {z(50)}
    v_dot2_f32_bf16 v51, v{vXB+k}, v{vWRv+k}, {z(51)}
    v_cvt_pk_bf16_f32 v54, v54, v55
    v_cvt_pk_bf16_f32 v56, v56, v57
    v_dot2_f32_bf16 v52, v54, s{sT0}, {z(52)}
    v_dot2_f32_bf16 v53, v56, s{sT0}, {z(53)}''')
E(f'''v_permlane32_swap_b32 v50, v51
s_nop 1
v_permlane32_swap_b32 v52, v53
v_add_f32 v50, v50, v51
v_add_f32 v52, v52, v53
s_nop 1
v_permlane16_swap_b32 v50, v52
s_nop 0
v_add_f32 v50, v50, v52''')
for sh in (8, 4, 2, 1):
    E(f'''s_nop 1
    v_add_f32_dpp v50, v50, v50 row_ror:{sh} {DPPF}''')
E(f'''v_cvt_pk_bf16_f32 v50, 0, v50
v_mul_f32 v52, {f32(-L2E)}, v50
v_exp_f32 v52, v52
v_ashrrev_i32 v51, 31, v50
v_add_f32 v52, 1.0, v52
v_rcp_f32 v52, v52
v_or_b32 v51, 0x80000000, v51
v_xor_b32 v50, v50, v51
v_cvt_pk_bf16_f32 v52, v52, 0
v_and_b32 v50, 0xffff0000, v50
v_or_b32 v50, v50, v5
v_cndmask_b32 v50, v50, v52, {sp(sM1)}
s_mov_b32 exec_lo, 0x00010001
s_mov_b32 exec_hi, 0x00010001
ds_write_b32 v6, v50 offset:{A_T}
s_mov_b64 exec, -1
s_waitcnt lgkmcnt(0)
s_barrier''')
stamp(3)
E(f'''s_cmp_lg_u32 s{sW}, 4
s_cbranch_scc1 L_anokey
ds_read_b128 v[52:55], v48 offset:{A_T}
s_waitcnt lgkmcnt(0)
v_max_u32 v52, v52, v54
v_lshl_or_b32 v60, v55, 16, v53
s_nop 0''')
for sh in (4, 2, 1):
    E(f'''v_max_u32_dpp v52, v52, v52 row_ror:{sh} {DPPF}''')
    if sh != 1: E('s_nop 1')
E(f'''v_cndmask_b32 v60, v60, v52, {sp(sM0)}
s_mov_b64 exec, 0x1ff
global_store_dwordx2 v49, v[60:61], {sp(sWS)} sc1
s_cmp_lg_u32 s{sI}, 0
s_cbranch_scc1 L_anotag
s_mov_b64 exec, 1
v_mov_b32 v6, 0
v_mov_b32 v52, s{sTAG}
v_mov_b32 v53, 1
global_store_dwordx2 v6, v[52:53], {sp(sDBG)} offset:{DBG_TAG} sc1
L_anotag:
s_mov_b64 exec, -1
L_anokey:''')
stamp(4)
E(f'''v_mov_b32 v21, {TKT}
s_cmp_lg_u32 s{sW}, 7
s_cbranch_scc1 L_anotk
s_waitcnt vmcnt(0)
v_readfirstlane_b32 s{sT2}, v96
s_lshl_b32 s{sT0}, s{sXCD}, 5
s_cmp_lt_u32 s{sT2}, 16
s_cbranch_scc1 L_tkd_a''')
ticket('a', 16)
E(f'''v_mov_b32 v22, s{sT2}
ds_write_b32 v21, v22
L_anotk:''')
vFG, vFU, vFD = 64, 72, 80
E(f'''s_mul_i32 s{sT0}, s{sW}, 6144
v_add_u32 v4, s{sT0}, v4
v_and_b32 v5, 15, v{LANE}
v_lshrrev_b32 v6, 4, v{LANE}
v_lshlrev_b32 v14, 3, v5
v_lshl_add_u32 v14, v6, 8, v14
v_add_u32 v14, s{sT0}, v14
v_lshrrev_b32 v8, 2, v{LANE}
v_lshlrev_b32 v8, 7, v8
v_and_b32 v9, 3, v{LANE}
v_lshl_add_u32 v8, v9, 3, v8
v_add_u32 v8, s{sT0}, v8
v_lshrrev_b32 v58, 1, v{LANE}
v_mul_u32_u24 v58, 3584, v58
v_and_b32 v7, 1, v{LANE}
v_lshl_add_u32 v58, v7, 4, v58
v_lshrrev_b32 v1, 3, v{LANE}
v_lshlrev_b32 v1, 10, v1
v_add_u32 v1, v1, v48
s_waitcnt lgkmcnt(0)
s_barrier
ds_read_b32 v22, v21
s_waitcnt lgkmcnt(0)
v_readfirstlane_b32 s{sT2}, v22
s_and_b32 s{sSLOT}, s{sT2}, 15
s_lshr_b32 s{sXCD}, s{sT2}, 4
s_cmp_ge_u32 s{sSLOT}, 14
s_cbranch_scc1 L_adone
s_mul_i32 s{sFI}, s{sXCD}, 14
s_add_u32 s{sFI}, s{sFI}, s{sSLOT}
s_mul_i32 s{sT0}, s{sW}, {64*3584}
s_lshl_b32 s{sT1}, s{sFI}, 5
s_add_u32 s{sT0}, s{sT0}, s{sT1}
v_add_u32 v58, s{sT0}, v58
v_add_u32 v7, {32*3584}, v58''')
stamp(5)
E(f'''global_load_dwordx4 {vr(vWL,4)}, v58, {sp(sWG)}{NT}
global_load_dwordx4 {vr(vWL+8,4)}, v58, {sp(sWU)}{NT}
global_load_dwordx4 {vr(vWL+4,4)}, v7, {sp(sWG)}{NT}
global_load_dwordx4 {vr(vWL+12,4)}, v7, {sp(sWU)}{NT}
s_lshl_b32 s{sT0}, s{sFI}, 14
s_lshl_b32 s{sT1}, s{sW}, 7
s_add_u32 s{sT0}, s{sT0}, s{sT1}
v_add_u32 v1, s{sT0}, v1
v_add_u32 v48, 8192, v1
global_load_dwordx4 {vr(vWL+16,4)}, v1, {sp(sWD)}{NT}
global_load_dwordx4 {vr(vWL+20,4)}, v48, {sp(sWD)}{NT}
v_lshl_add_u32 v10, v6, 4, s{sT1}
s_lshl_b32 s{sT1}, s{sW}, 2
s_add_u32 s{sT1}, s{sT1}, {A_PART}
v_lshl_add_u32 v11, v6, 7, s{sT1}
v_lshrrev_b32 v12, 3, v5
v_lshlrev_b32 v12, 9, v12
v_lshl_add_u32 v12, v6, 7, v12
v_lshl_add_u32 v12, v9, 5, v12
v_and_b32 v13, 4, v5
v_lshl_add_u32 v12, v13, 2, v12
v_lshl_add_u32 v13, v9, 2, v6
s_lshl_b32 s{sT1}, s{sW}, 15
s_lshl_b32 s{sT2}, s{sFI}, 4
s_add_u32 s{sT1}, s{sT1}, s{sT2}
s_add_u32 s{sT1}, s{sT1}, {WS_PART}
v_lshl_add_u32 v13, v13, 11, s{sT1}''')
for t in range(4):
    E(f'''v_cmp_eq_u32 vcc, {t}, v9
    s_lshr_b32 s{sT1}, s{sTAG}, {8*t}
    v_mov_b32 v{92+t}, s{sT1}
    v_cndmask_b32 v{88+t}, 0, -1, vcc''')
E(f'''v_cmp_gt_u32 {sp(sM1)}, 8, v5
v_lshlrev_b32 v20, 4, v{LANE}
v_add_u32 v20, {WS_KEYS}, v20
s_cmp_lg_u32 s{sW}, 4
s_cbranch_scc1 L_anp0
global_load_dwordx4 v[16:19], v20, {sp(sWS)} sc1
s_waitcnt vmcnt(1)
s_branch L_anp1
L_anp0:
s_waitcnt vmcnt(0)
L_anp1:''')
for k in range(6):
    E(f'ds_write_b128 v4, {vr(vWL+4*k,4)} offset:{1024*k}')
E('s_waitcnt lgkmcnt(0)')
for s in range(2):
    for h in range(2):
        E(f'ds_read_b64_tr_b16 {vr(vFG+4*s+2*h,2)}, v14 offset:{1024*s+128*h}')
        E(f'ds_read_b64_tr_b16 {vr(vFU+4*s+2*h,2)}, v14 offset:{2048+1024*s+128*h}')
for t in range(4):
    E(f'ds_read_b64_tr_b16 {vr(vFD+2*t,2)}, v8 offset:{4096+32*t}')
stamp(6)
E(f'''s_cmp_lg_u32 s{sW}, 4
s_cbranch_scc1 L_anopoll
s_mov_b32 s{sSPIN}, {SPIN_MAX}
s_branch L_pk1
L_pk:
global_load_dwordx4 v[16:19], v20, {sp(sWS)} sc1
L_pk1:
s_waitcnt vmcnt(0)
v_cmp_eq_u32 vcc, s{sTAG}, v17
v_cmp_eq_u32 {sp(sM0)}, s{sTAG}, v19
v_max_u32 v16, v16, v18
s_and_b64 vcc, vcc, {sp(sM0)}
s_cmp_eq_u64 vcc, -1
s_cbranch_scc1 L_pkd''')
spin_check('L_pk')
E('L_pkd:')
key_reduce(16)
E(f'''v_mov_b32 v16, s{sKEY}
v_mov_b32 v17, {A_IDX}
ds_write_b32 v17, v16
s_cmp_lg_u32 s{sFI}, 0
s_cbranch_scc1 L_anopoll
v_mov_b32 v18, 0
s_mov_b64 exec, 1
global_store_dword v18, v61, {sp(sWS)} offset:{WS_EPOCH} sc1
s_mov_b64 exec, -1
L_anopoll:
v_mov_b32 v17, {A_IDX}
s_waitcnt lgkmcnt(0)
s_barrier''')
stamp(7)
E(f'''ds_read_b32 v16, v17
s_waitcnt lgkmcnt(0)
v_not_b32 v16, v16
v_and_b32 v16, 2047, v16
v_lshl_add_u32 v10, v16, 10, v10
global_load_dwordx4 v[16:19], v10, {sp(sX)}
global_load_dwordx4 v[20:23], v10, {sp(sX)} offset:64
s_waitcnt vmcnt(1)
v_mfma_f32_16x16x32_bf16 v[24:27], {vr(vFG,4)}, v[16:19], 0
v_mfma_f32_16x16x32_bf16 v[28:31], {vr(vFU,4)}, v[16:19], 0
s_waitcnt vmcnt(0)
v_mfma_f32_16x16x32_bf16 v[24:27], {vr(vFG+4,4)}, v[20:23], v[24:27]
v_mfma_f32_16x16x32_bf16 v[28:31], {vr(vFU+4,4)}, v[20:23], v[28:31]
s_mov_b32 exec_lo, 0x00010001
s_mov_b32 exec_hi, 0x00010001
s_nop 5
ds_write2_b32 v11, v24, v25 offset0:0 offset1:8
ds_write2_b32 v11, v26, v27 offset0:16 offset1:24
ds_write2_b32 v11, v28, v29 offset0:128 offset1:136
ds_write2_b32 v11, v30, v31 offset0:144 offset1:152
s_mov_b64 exec, -1
s_waitcnt lgkmcnt(0)
s_barrier''')
stamp(8)
E(f'''ds_read_b128 v[16:19], v12 offset:{A_PART}
s_waitcnt lgkmcnt(0)
v_add_f32 v16, v16, v17
v_add_f32 v18, v18, v19
v_add_f32 v16, v16, v18
s_nop 1
v_mov_b32_dpp v17, v16 row_half_mirror {DPPF}
s_nop 1
v_add_f32_dpp v16, v17, v16 quad_perm:[3,2,1,0] {DPPF}
s_nop 1
v_mov_b32_dpp v17, v16 row_ror:8 {DPPF}
v_cndmask_b32 v18, v17, v16, {sp(sM1)}
v_cndmask_b32 v19, v16, v17, {sp(sM1)}
v_cvt_pk_bf16_f32 v18, v18, v19
v_and_b32 v19, 0xffff0000, v18
v_lshlrev_b32 v18, 16, v18
v_mul_f32 v16, {f32(-L2E)}, v18
v_exp_f32 v16, v16
s_nop 0
v_add_f32 v16, 1.0, v16
v_rcp_f32 v16, v16
s_nop 0
v_mul_f32 v16, v16, v18
v_cvt_pk_bf16_f32 v16, 0, v16
v_mul_f32 v16, v16, v19
s_nop 1
v_mov_b32_dpp v17, v16 quad_perm:[0,0,0,0] {DPPF}
v_mov_b32_dpp v18, v16 quad_perm:[1,1,1,1] {DPPF}
v_mov_b32_dpp v19, v16 quad_perm:[2,2,2,2] {DPPF}
v_mov_b32_dpp v20, v16 quad_perm:[3,3,3,3] {DPPF}
v_cvt_pk_bf16_f32 v16, v17, v18
v_cvt_pk_bf16_f32 v17, v19, v20''')
for t in range(4):
    E(f'''v_and_b32 v{24+2*t}, v16, v{88+t}
    v_and_b32 v{25+2*t}, v17, v{88+t}''')
E(f'''s_mov_b32 s{sT0}, 0xff
s_nop 0
v_mfma_f32_16x16x32_bf16 v[32:35], {vr(vFD,4)}, v[24:27], 0
v_mfma_f32_16x16x32_bf16 v[32:35], {vr(vFD+4,4)}, v[28:31], v[32:35]
s_mov_b32 exec_lo, 0x000f000f
s_mov_b32 exec_hi, 0x000f000f
s_nop 6''')
for t in range(4):
    E(f'v_bfi_b32 v{32+t}, s{sT0}, v{92+t}, v{32+t}')
E(f'global_store_dwordx4 v13, v[32:35], {sp(sWS)} sc1')
stamp(9)
E('L_adone:')
stamp(10)
if STAMPS:
    E('s_waitcnt vmcnt(0)')
    stamp(11)
write_stamps(1)
E('L_end:')
E('s_endpgm')
out.append(f'''.section .rodata,"a"
.p2align 6
.amdhsa_kernel {KN}_kernel
  .amdhsa_next_free_vgpr {NVGPR}
  .amdhsa_next_free_sgpr 96
  .amdhsa_accum_offset {(NVGPR+3)//4*4}
  .amdhsa_group_segment_fixed_size 0
  .amdhsa_kernarg_size 128
  .amdhsa_user_sgpr_count 2
  .amdhsa_user_sgpr_kernarg_segment_ptr 1
  .amdhsa_system_sgpr_workgroup_id_x 1
.end_amdhsa_kernel''')
print('\n'.join(out))
```

```python
import sys
from asmlib import KN, STAMP_OFF
src, j, mask, val, stat = sys.argv[1], int(sys.argv[2]), int(sys.argv[3], 0), int(sys.argv[4], 0), sys.argv[5]
FACT = 10
s = open(src).read()
line = [l for l in s.split('\n') if l.startswith('; @launch')][0]
s = s.replace(line, line.replace('; @launch ', f'; @launch kernel={KN}_kernel ') + '\n; @launch kernel=probe_kernel grid=(1,1,1) block=(64,1,1) lds=0')
n_sel = sum(1 for r in range(2048) if (r & mask) == val)
def red(op, v):
    t = ''
    for sh in (8, 4, 2, 1):
        t += f'    s_nop 1\n    {op}_dpp v{v}, v{v}, v{v} row_ror:{sh} row_mask:0xf bank_mask:0xf\n'
    sop = {'v_min_u32': 's_min_u32', 'v_max_u32': 's_max_u32', 'v_add_u32': 's_add_u32'}[op]
    t += f'''    s_nop 1
    v_readlane_b32 s10, v{v}, 0
    v_readlane_b32 s11, v{v}, 16
    v_readlane_b32 s12, v{v}, 32
    v_readlane_b32 s13, v{v}, 48
    {sop} s10, s10, s11
    {sop} s12, s12, s13
    {sop} s10, s10, s12
'''
    return t
code = f'''.p2align 8
.globl probe_kernel
.type probe_kernel,@function
probe_kernel:
    s_memrealtime s[20:21]
    s_cmp_lg_u32 s2, 0
    s_cbranch_scc1 LP_end
    s_load_dwordx2 s[4:5], s[0:1], 120
    v_lshlrev_b32 v1, 7, v0
    v_add_u32 v1, {STAMP_OFF}, v1
    v_mov_b32 v2, v0
    v_mov_b32 v4, -1
    s_mov_b32 s6, 32
    s_waitcnt lgkmcnt(0)
LP_l1:
    global_load_dword v6, v1, s[4:5]
    s_waitcnt vmcnt(0)
    v_min_u32 v4, v4, v6
    v_add_u32 v1, 8192, v1
    s_sub_u32 s6, s6, 1
    s_cmp_lg_u32 s6, 0
    s_cbranch_scc1 LP_l1
{red('v_min_u32', 4)}
    s_mov_b32 s14, s10
    v_lshlrev_b32 v1, 7, v0
    v_add_u32 v1, {STAMP_OFF}, v1
    v_mov_b32 v4, 0
    s_mov_b32 s6, 32
LP_l2:
    global_load_dword v6, v1, s[4:5] offset:{8*max(j,0)}
    v_and_b32 v7, {mask}, v2
    v_cmp_eq_u32 vcc, {val}, v7
    s_waitcnt vmcnt(0)
    v_subrev_u32 v6, s14, v6
    v_cndmask_b32 v6, 0, v6, vcc
    {'v_max_u32' if stat == 'max' else 'v_add_u32'} v4, v4, v6
    v_add_u32 v1, 8192, v1
    v_add_u32 v2, 64, v2
    s_sub_u32 s6, s6, 1
    s_cmp_lg_u32 s6, 0
    s_cbranch_scc1 LP_l2
{red('v_max_u32' if stat == 'max' else 'v_add_u32', 4)}
'''
if j == -1: code += '    s_sub_u32 s10, s20, s14\n'
if j == -2: code += '    s_mov_b32 s10, 0\n'
code += f'    s_mul_i32 s10, s10, {FACT}\n'
if stat != 'max' and j >= 0:
    assert n_sel & (n_sel-1) == 0
    code += f'    s_lshr_b32 s10, s10, {n_sel.bit_length()-1}\n'
code += f'''    s_min_u32 s10, s10, 100000
    s_add_u32 s10, s10, 6000
    s_add_u32 s10, s10, s20
LP_w:
    s_memrealtime s[22:23]
    s_waitcnt lgkmcnt(0)
    s_sub_u32 s11, s22, s10
    s_cmp_lt_i32 s11, 0
    s_cbranch_scc1 LP_w
LP_end:
    s_endpgm
'''
s = s.replace('.section .rodata,"a"', code + '.section .rodata,"a"')
s += '''
.p2align 6
.amdhsa_kernel probe_kernel
  .amdhsa_next_free_vgpr 16
  .amdhsa_next_free_sgpr 32
  .amdhsa_accum_offset 16
  .amdhsa_group_segment_fixed_size 0
  .amdhsa_kernarg_size 128
  .amdhsa_user_sgpr_count 2
  .amdhsa_user_sgpr_kernarg_segment_ptr 1
  .amdhsa_system_sgpr_workgroup_id_x 1
.end_amdhsa_kernel
'''
print(s)
```

```python
import sys, struct
from asmlib import KN, STAMP_OFF
OPT = dict(a.split('=') if '=' in a else (a, '1') for a in sys.argv[1:])
STAMPS = 'stamps' in OPT
NTP = ' nt' if OPT.get('ntp', '0') == '1' else ''
NTX = ' nt' if OPT.get('ntx', '0') == '1' else ''
PRIO = OPT.get('prio', 'io')
SLEEP = int(OPT.get('sleep', 1))
UPOS = [int(x) for x in OPT.get('upos', '5,21,37,53').split(',')]
WMODE = OPT.get('wmode', 'warm')
XWARM = OPT.get('xwarm', '1') == '1'
AHEAD = int(OPT.get('ahead', 2))
YG = 320
ICW = int(OPT.get('icw', 0))
ICWHO = OPT.get('icwho', 'io')

out = []
def E(s):
    for ln in s.strip('\n').split('\n'):
        ln = ln.strip()
        if ln: out.append(('    ' + ln) if not ln.endswith(':') else ln)
def f32(x): return '0x%08x' % struct.unpack('<I', struct.pack('<f', x))[0]
def vr(b, n): return f'v[{b}:{b+n-1}]'
def ninstr(): return sum(1 for x in out if not x.endswith(':'))

WS_EPOCH, WS_KEYS, WS_G, WS_PART = 0, 4096, 8192, 32768
TAGINC = 0x9E3779B1
SPIN_MAX = 1 << 20
ROWB = 528
LOB = 32*ROWB
HI0 = 4*LOB
NHI = 22
HIB = NHI*ROWB
UB0 = HI0 + 4*HIB
UCB, UPAD = 4608, 480
SM0 = UB0 + 4*UCB
SMB = 4096
KX, KY, F3, F4, FLG = 0, 1216, 2432, 2944, 3328
HIX = 16384
BND = SM0 + 4*SMB
LDS_BYTES = BND + 5*1024
ST0 = OPT.get('st0', 'pre')
KPRIO = OPT.get('kprio', 'io')
GEMM1 = OPT.get('gemm1', '0') == '1'
sEX = 6
sX, sLA, sAI, sCR, sCI, sLDT, sDS = 8, 10, 12, 14, 16, 18, 20
sWR, sWG, sWU, sWD, sGW, sOUT, sDBG, sWS = 24, 26, 28, 30, 32, 34, 36, 38
sW, sI, sT0, sT1 = 40, 41, 42, 43
sJ, sP0, sP1, sTH = 44, 45, 46, 47
sTAG, sKEY, sIDX, sSPIN = 48, 49, 50, 51
sM0, sM1 = 52, 54
sT2, sT3, sT4, sT5 = 56, 57, 58, 59
sSLOT, sWB, sFI, sIO = 60, 61, 62, 63
sCH = 61
SB = 64
NST = 16
def sp(b): return f's[{b}:{b+1}]'
def stamp(i):
    if STAMPS: E(f'{"s_memtime" if "cyc" in OPT else "s_memrealtime"} s[{SB+2*i}:{SB+2*i+1}]')
def write_stamps():
    if not STAMPS: return
    E(f'''s_waitcnt lgkmcnt(0) vmcnt(0)
    s_mov_b64 exec, 1
    s_lshl_b32 s{sT0}, s2, 3
    s_add_u32 s{sT0}, s{sT0}, s{sW}
    s_lshl_b32 s{sT0}, s{sT0}, 7
    s_add_u32 s{sT0}, s{sT0}, {STAMP_OFF}
    v_mov_b32 v0, s{sT0}''')
    for i in range(NST):
        E(f'''v_mov_b32 v2, s{SB+2*i}
        v_mov_b32 v3, s{SB+2*i+1}
        global_store_dwordx2 v0, v[2:3], {sp(sWS)} offset:{8*i}
        s_nop 1''')
def spin_check(lbl_loop):
    E(f'''s_sub_u32 s{sSPIN}, s{sSPIN}, 1
    s_cbranch_scc0 {lbl_loop}''')
L2E = 1.4426950408889634
L2E_HI = struct.unpack('<f', struct.pack('<I', 0x3FB8AA00))[0]
L2E_LO = L2E - L2E_HI
LANE = 3
DPPF = 'row_mask:0xf bank_mask:0xf'

def hop_call():
    E(f'''s_mov_b64 exec, 0
    s_cmp_eq_u32 s{sCH}, 0
    s_cbranch_scc1 L_hop0
    s_cmp_eq_u32 s{sCH}, 1
    s_cbranch_scc1 HOPQ1
    s_cmp_eq_u32 s{sCH}, 2
    s_cbranch_scc1 HOPQ2
    s_branch HOPQ3
    L_hopend:
    s_mov_b64 exec, -1''')
def key_reduce(vt):
    for sh in (8, 4, 2, 1):
        E(f'''v_max_u32_dpp v{vt}, v{vt}, v{vt} row_ror:{sh} {DPPF}
        s_nop 1''')
    E(f'''v_readlane_b32 s{sKEY}, v{vt}, 0
    v_readlane_b32 s{sT0}, v{vt}, 16
    v_readlane_b32 s{sT1}, v{vt}, 32
    v_readlane_b32 s{sT2}, v{vt}, 48
    s_max_u32 s{sKEY}, s{sKEY}, s{sT0}
    s_max_u32 s{sT1}, s{sT1}, s{sT2}
    s_max_u32 s{sKEY}, s{sKEY}, s{sT1}''')
def wait_flags(sreg, name, vaddr, vt, sleep):
    E(f'''s_mov_b32 s{sSPIN}, {SPIN_MAX}
    L_wf_{name}:
    ds_read_b128 {vr(vt,4)}, v{vaddr}
    s_waitcnt lgkmcnt(0)
    v_min_u32 v{vt}, v{vt}, v{vt+1}
    v_min3_u32 v{vt}, v{vt}, v{vt+2}, v{vt+3}
    v_cmp_le_u32 vcc, s{sreg}, v{vt}
    s_cbranch_vccnz L_wfd_{name}''')
    if sleep: E(f's_sleep {sleep}')
    spin_check(f'L_wf_{name}')
    E(f'L_wfd_{name}:')

hdr = open('cdna_kernels/' + KN + '.s.ref').read().split('; Override launch')[0]
out.append(hdr.rstrip('\n'))
out.append(f'; @launch grid=(256,1,1) block=(512,1,1) lds={LDS_BYTES}')
out.append(f'''.amdgcn_target "amdgcn-amd-amdhsa--gfx950"
.text
.globl {KN}_kernel
.p2align 8
.type {KN}_kernel,@function
{KN}_kernel:''')
stamp(0)
vXA, vXB, vWRv, vGWv = 8, 12, 16, 20
vLA, vAI, vCR, vCI, vDT = 4, 5, 6, 7, 8
vX = 16
vXO = 60
AF, TZ, BR, DT, ACC, vBAND = 16, 84, 124, 172, 196, 228
NSLOT = 12
GF, GA = 84, ACC
vKX, vK3, vK4, vCA, vCA2, vCB, vY, vTZ = 248, 249, 250, 251, 252, 253, 254, 255
vA, vB, vFL = 14, 15, 9
NVGPR = 256
E(f'''s_load_dwordx16 s[8:23], s[0:1], 0
s_load_dwordx16 s[24:39], s[0:1], 64
s_cmp_ge_u32 s2, 256
s_cbranch_scc1 L_end
s_getpc_b64 s[4:5]
L_pc:
v_lshrrev_b32 v1, 6, v0
v_and_b32 v{LANE}, 63, v0
v_readfirstlane_b32 s{sW}, v1
s_and_b32 s{sT0}, s2, 7
s_lshr_b32 s{sSLOT}, s2, 4
s_lshl_b32 s{sI}, s{sT0}, 4
s_add_u32 s{sI}, s{sI}, s{sSLOT}
s_cmp_gt_u32 s{sW}, 1
s_cbranch_scc1 L_nopf
v_lshlrev_b32 v2, 7, v0
v_min_u32 v2, L_end-L_pc, v2
global_load_dword v2, v2, s[4:5]
L_nopf:
s_bitcmp1_b32 s2, 3
s_cbranch_scc0 L_conv
v_lshlrev_b32 v4, 4, v{LANE}
s_lshl_b32 s{sT2}, s{sI}, 14
s_lshl_b32 s{sT1}, s{sW}, 11
s_add_u32 s{sT2}, s{sT2}, s{sT1}
v_add_u32 v5, s{sT2}, v4
s_waitcnt lgkmcnt(0)''')
stamp(1)
E(f'''global_load_dwordx4 {vr(vXA,4)}, v5, {sp(sX)}{NTX}
global_load_dwordx4 {vr(vXB,4)}, v5, {sp(sX)} offset:1024{NTX}
global_load_dwordx4 {vr(vWRv,4)}, v4, {sp(sWR)}
global_load_dwordx4 {vr(vGWv,4)}, v4, {sp(sGW)}
s_load_dword s{sTAG}, {sp(sWS)}, {WS_EPOCH}
s_branch L_aux
L_conv:
s_and_b32 s{sCH}, s{sW}, 3
s_lshr_b32 s{sIO}, s{sW}, 2
s_lshl_b32 s{sT2}, s{sI}, 3
s_lshl_b32 s{sT1}, s{sCH}, 1
s_add_u32 s{sT0}, s{sT2}, s{sT1}
v_mov_b32 v10, s{sT0}
s_add_u32 s{sT0}, s{sT0}, s{sIO}
s_lshl_b32 s{sT0}, s{sT0}, 7
v_lshl_add_u32 v1, v{LANE}, 1, s{sT0}
v_mov_b32 v{vLA}, 0
v_mov_b32 v{vAI}, 0
v_mov_b32 v{vCR}, 0
v_mov_b32 v{vCI}, 0
v_mov_b32 v{vDT}, 0
s_waitcnt lgkmcnt(0)''')
stamp(1)
E(f'''global_load_short_d16_hi v{vLA}, v1, {sp(sLA)}{NTP}
global_load_short_d16_hi v{vDT}, v10, {sp(sLDT)}
global_load_short_d16_hi v{vAI}, v1, {sp(sAI)}{NTP}
global_load_short_d16_hi v{vCR}, v1, {sp(sCR)}{NTP}
global_load_short_d16_hi v{vCI}, v1, {sp(sCI)}{NTP}
v_and_b32 v11, 255, v0
v_lshl_add_u32 v{vXO}, v11, 11, s{sT2}
v_add_u32 v{vXO+1}, {512*1024}, v{vXO}
v_add_u32 v{vXO+2}, {1024*1024}, v{vXO}
v_add_u32 v{vXO+3}, {1536*1024}, v{vXO}
s_cmp_ge_u32 s{sW}, 4
s_cbranch_scc1 L_cio0''')
STOR = {0:0,1:1,2:2,3:3, 16:4,17:5,18:6,19:7,20:8,12:9, 15:10, 13:11,14:12,4:13,5:14,6:15,7:16,8:17,9:18,10:19,11:20,21:21}
assert sorted(STOR.values()) == list(range(22))
tab = [0,0,1,2,2,2,3,4,4,5,6,7,8,8,8,8]
hrow = []
for x in range(32):
    g_, r_ = (x >> 2) & 1, 4*(x >> 3) + (x & 3)
    hrow.append(STOR[13 + tab[r_] if g_ else min(r_, 12)])
planes = [sum(((hrow[x] >> b) & 1) << x for x in range(32)) for b in range(5)]
E(f'''s_lshl_b32 s{sT0}, s{sSLOT}, 7
s_lshl_b32 s{sT1}, s{sW}, 5
s_add_u32 s{sT0}, s{sT0}, s{sT1}
v_and_b32 v13, 31, v{LANE}
v_add_u32 v12, s{sT0}, v13
v_lshl_add_u32 v12, v12, 10, s{sT2}
v_mov_b32 v{GA}, 0
s_barrier''')
if XWARM: E(f'global_load_dword v1, v12, {sp(sX)}')
E(f'''s_mov_b64 exec, 1
global_load_short_d16_hi v{GA}, v10, {sp(sDS)}
s_mov_b64 exec, -1''')
for r in range(1, 16): E(f'v_mov_b32 v{GA+r}, 0')
for b_ in range(4, -1, -1):
    E(f's_mov_b32 s{sT0}, {planes[b_]}')
    if b_ == 4: E(f'v_bfe_u32 v{vA}, s{sT0}, v13, 1')
    else: E(f'v_bfe_u32 v12, s{sT0}, v13, 1\nv_lshl_or_b32 v{vA}, v{vA}, 1, v12')
E(f'''v_lshrrev_b32 v12, 5, v{LANE}
s_mul_i32 s{sT0}, s{sW}, {HIB}
s_add_u32 s{sT0}, s{sT0}, {HI0}
s_mul_i32 s{sT1}, s{sW}, {LOB}
v_lshl_add_u32 v10, v12, 4, s{sT0}
v_lshl_add_u32 v11, v12, 4, s{sT1}
s_mov_b32 s{sT2}, {ROWB}
v_mad_u32_u24 v{vA}, v{vA}, s{sT2}, v10
v_mad_u32_u24 v{vB}, v13, s{sT2}, v11
s_lshl_b32 s{sT0}, s{sW}, 12
s_add_u32 s{sT0}, s{sT0}, {SM0}
s_add_u32 s{sT2}, s{sT0}, {2*(543-7)}
v_lshlrev_b32 v10, 4, v{LANE}
v_sub_u32 v{vKX}, s{sT2}, v10
v_and_b32 v10, 1, v{LANE}
v_lshrrev_b32 v11, 1, v{LANE}
v_lshl_add_u32 v11, v11, 2, s{sT0}
v_lshl_add_u32 v{vK3}, v10, 8, v11
v_lshl_add_u32 v{vK4}, v{LANE}, 1, s{sT0}
v_and_b32 v11, 15, v{LANE}
v_and_b32 v12, 48, v{LANE}
v_mul_u32_u24 v13, {KY+2}, v10
v_lshl_add_u32 v13, v11, 1, v13
v_sub_u32 v{vCA}, v12, v13
s_add_u32 s{sT2}, s{sT0}, {KY+2*(544-16)-1024}
v_add_u32 v{vCA}, s{sT2}, v{vCA}
v_add_u32 v{vCA2}, 512, v{vCA}
s_mul_i32 s{sT2}, s{sW}, {UCB}
s_add_u32 s{sT2}, s{sT2}, {UB0}
v_lshl_add_u32 v{vCB}, v11, 5, v12
v_add_u32 v{vCB}, s{sT2}, v{vCB}
v_lshl_add_u32 v{vY}, v11, 4, s{sT1}
v_mad_u32_u24 v{vY}, v12, {YG//16}, v{vY}
s_add_u32 s{sT2}, s{sT0}, {F3+4*13}
v_lshl_add_u32 v{vTZ}, v11, 2, s{sT2}
v_sub_u32 v{vTZ}, v{vTZ}, v12
''')
if ICW and ICWHO == 'm': hop_call()
E(f'''s_waitcnt vmcnt({2 if XWARM else 1})
s_branch L_ckgen
L_cio0:
s_barrier''')
def uload(p):
    E(f'global_load_dwordx2 {vr(vX+4*p,2)}, v{vXO+p}, {sp(sX)}')
    E(f'global_load_dwordx2 {vr(vX+4*p+2,2)}, v{vXO+p}, {sp(sX)} offset:1024')
NUP = sum(1 for x in UPOS if x == 0)
for p in range(NUP): uload(p)
E(f'''v_mov_b32 v32, 0
v_mov_b32 v33, 0
v_mov_b32 v34, 0
v_mov_b32 v35, 0
s_mul_i32 s{sT0}, s{sCH}, {UCB}
s_add_u32 s{sT0}, s{sT0}, {UB0}
v_min_u32 v13, 29, v{LANE}
v_lshl_add_u32 v12, v13, 4, s{sT0}
ds_write_b128 v12, v[32:35]
s_lshl_b32 s{sT0}, s{sCH}, 12
s_add_u32 s{sT0}, s{sT0}, {SM0}
v_lshl_add_u32 v12, v{LANE}, 4, s{sT0}
ds_write_b128 v12, v[32:35]
ds_write_b128 v12, v[32:35] offset:1024
ds_write_b128 v12, v[32:35] offset:2048
ds_write_b128 v12, v[32:35] offset:3072
v_lshlrev_b32 v64, 2, v11
v_add_u32 v64, {UB0+UPAD}, v64
v_bfe_u32 v12, v0, 1, 2
v_bfe_u32 v13, v0, 7, 1
v_lshl_add_u32 v12, v13, 2, v12
v_mul_u32_u24 v67, {YG}, v12
v_bfe_u32 v12, v0, 3, 4
v_lshl_add_u32 v67, v12, 4, v67
v_and_b32 v12, 1, v0
v_lshl_add_u32 v67, v12, 3, v67
s_lshl_b32 s{sT2}, s{sW}, 2
s_add_u32 s{sT2}, s{sT2}, {SM0+FLG}
v_mov_b32 v68, s{sT2}
v_mov_b32 v69, {SM0+FLG}
s_mov_b32 s{sP0}, 0x05040100
s_mov_b32 s{sP1}, 0x07060302
; band fragments (0/1 window matrices): IO wave ch builds window ch, wave 7 also the two-tap mask
s_mov_b32 s{sT1}, {7 << 11}
s_cmp_eq_u32 s{sCH}, 1
s_cselect_b32 s{sT1}, {31 << 6}, s{sT1}
s_cmp_eq_u32 s{sCH}, 2
s_cselect_b32 s{sT1}, {127 << 5}, s{sT1}
s_cmp_eq_u32 s{sCH}, 3
s_cselect_b32 s{sT1}, {511 << 4}, s{sT1}
s_mov_b32 s{sT0}, 0x10001
s_mov_b32 s{sT3}, 0x3f80
s_lshl_b32 s{sT2}, s{sCH}, 10
s_add_u32 s{sT2}, s{sT2}, {BND}
v_lshl_add_u32 v9, v{LANE}, 4, s{sT2}
v_and_b32 v10, 15, v{LANE}
v_lshrrev_b32 v13, 4, v{LANE}
v_lshlrev_b32 v13, 3, v13
L_band:
v_lshlrev_b32 v12, v10, s{sT1}
v_bfe_u32 v12, v12, v13, 8
v_lshl_or_b32 v12, v12, 15, v12
v_lshrrev_b32 v41, 2, v12
v_lshrrev_b32 v42, 4, v12
v_lshrrev_b32 v43, 6, v12
v_and_b32 v40, s{sT0}, v12
v_and_b32 v41, s{sT0}, v41
v_and_b32 v42, s{sT0}, v42
v_and_b32 v43, s{sT0}, v43
v_mul_u32_u24 v40, s{sT3}, v40
v_mul_u32_u24 v41, s{sT3}, v41
v_mul_u32_u24 v42, s{sT3}, v42
v_mul_u32_u24 v43, s{sT3}, v43
ds_write_b128 v9, v[40:43]
s_cmp_eq_u32 s{sT1}, {511 << 4}
s_mov_b32 s{sT1}, {3 << 12}
s_mov_b32 s{sT3}, 0xffff
v_add_u32 v9, 1024, v9
s_cbranch_scc1 L_band
{"s_setprio 1" if KPRIO == 'io' else ""}
s_waitcnt vmcnt({2*NUP})
L_ckgen:''')
stamp(2)
a, b, c, d = 10, 11, 12, 13
E(f'''v_mul_f32 v{a}, {f32(L2E_HI)}, v{vLA}
v_mul_f32 v{b}, {f32(L2E_HI)}, v{vDT}
v_rndne_f32 v{c}, v{a}
v_rndne_f32 v{d}, v{b}
v_sub_f32 v{a}, v{a}, v{c}
v_sub_f32 v{b}, v{b}, v{d}
v_fmac_f32 v{a}, {f32(L2E_LO)}, v{vLA}
v_fmac_f32 v{b}, {f32(L2E_LO)}, v{vDT}
v_exp_f32 v{a}, v{a}
v_exp_f32 v{b}, v{b}
v_cvt_i32_f32 v{c}, v{c}
v_cvt_i32_f32 v{d}, v{d}
v_ldexp_f32 v{a}, v{a}, v{c}
v_ldexp_f32 v{b}, v{b}, v{d}
s_lshl_b32 s{sT1}, s{sIO}, 8
s_mul_i32 s{sT2}, s{sCH}, {LOB}
v_cvt_pk_bf16_f32 v{a}, v{a}, v{b}
s_add_u32 m0, s{sT2}, s{sT1}
v_and_b32 v{vDT}, 0xffff0000, v{a}
v_lshlrev_b32 v{a}, 16, v{a}
s_mul_i32 s{sT2}, s{sCH}, {HIB}
v_mul_f32 v{a}, v{a}, v{vDT}
v_mul_f32 v{vAI}, v{vAI}, v{vDT}
s_add_u32 s{sT1}, s{sT1}, s{sT2}
v_mul_f32 v{vLA}, {f32(-L2E)}, v{a}
v_mul_f32 v{vAI}, {f32(0.15915494309189535)}, v{vAI}
s_add_u32 s{sT1}, s{sT1}, {HIX}
v_mul_f32 v{a}, {f32(8.0)}, v{vLA}
v_mul_f32 v{b}, {f32(8.0)}, v{vAI}
s_cmp_eq_u32 s{sIO}, 0''')
vW1, vW8, vW256 = 36, 38, 40
E(f'''v_exp_f32 v{a}, v{a}
v_fract_f32 v{b}, v{b}
v_exp_f32 v{c}, v{vLA}
v_fract_f32 v{d}, v{vAI}
v_cos_f32 v{vW8}, v{b}
v_sin_f32 v{vW8+1}, v{b}
v_cos_f32 v{vW1}, v{d}
v_sin_f32 v{vW1+1}, v{d}
v_add_f32 v{vDT}, v{vDT}, v{vDT}
v_mov_b32 v35, 0x3f80
v_pk_mul_f32 {vr(vW8,2)}, {vr(vW8,2)}, {vr(a,2)} op_sel:[0,0] op_sel_hi:[1,0]
v_pk_mul_f32 {vr(vW1,2)}, {vr(vW1,2)}, {vr(c,2)} op_sel:[0,0] op_sel_hi:[1,0]
v_pk_mul_f32 {vr(vCR,2)}, {vr(vCR,2)}, {vr(vDT,2)} op_sel:[0,0] op_sel_hi:[1,0]
ds_write_addtid_b32 v35 offset:0''')
tmpc = [0]
pendw = []
nextp = [NUP]
def flushw():
    while pendw: E(pendw.pop(0))
def cmul(D, X, W):
    E(f'v_pk_mul_f32 {vr(D,2)}, {vr(X,2)}, {vr(W,2)} op_sel:[0,0] op_sel_hi:[0,1]')
    flushw()
    E(f'v_pk_fma_f32 {vr(D,2)}, {vr(X,2)}, {vr(W,2)}, {vr(D,2)} op_sel:[1,1,0] op_sel_hi:[1,0,1] neg_lo:[1,0,0]')
def put(X, off, neg):
    t = 32 + (tmpc[0] & 3)
    E(f'v_cvt_pk_bf16_f32 v{t}, v{X}, {"-" if neg else ""}v{X+1}')
    pendw.append(f'ds_write_addtid_b32 v{t} offset:{off}')
    tmpc[0] += 1
    while nextp[0] < 4 and UPOS[nextp[0]] == tmpc[0]:
        E(f's_cbranch_scc1 L_mid{nextp[0]}')
        uload(nextp[0])
        E(f'L_mid{nextp[0]}:')
        nextp[0] += 1
put(vW8, ROWB, False)
P0, P1 = 46, 48
cur = vW8
for i in range(2, 32):
    nxt = P0 if cur != P0 else P1
    cmul(nxt, cur, vW8)
    put(nxt, i*ROWB, False)
    cur = nxt
cmul(vW256, cur, vW8)
E(f's_mov_b32 m0, s{sT1}')
hoff = lambda row: HI0 - HIX + STOR[row]*ROWB
H = [50, 52, 54, 56, 58]
put(vCR, hoff(0), True)
cur = vCR
keep = {0: vCR}
for e in range(1, 9):
    nxt = H[e//2] if e % 2 == 0 else P0
    cmul(nxt, cur, vW1)
    put(nxt, hoff(e), True)
    cur = nxt
    if e % 2 == 0: keep[e] = nxt
for e, row in ((0, 13), (2, 14), (6, 16)):
    cmul(P0, keep[e], vW256)
    put(P0, hoff(row), True)
cur = keep[4]
for row in (15, 9, 18):
    nxt = P0 if cur != P0 else P1
    cmul(nxt, cur, vW256); put(nxt, hoff(row), True); cur = nxt
cur = keep[8]
for row in (17, 10, 19, 11, 20, 12, 21):
    nxt = P0 if cur != P0 else P1
    cmul(nxt, cur, vW256); put(nxt, hoff(row), True); cur = nxt
flushw()
NMID = nextp[0] - 1
stamp(3)
E(f's_cbranch_scc0 L_cio1')
m_begin = len(out)
def gread(s):
    r = GF + 8*(s % 8)
    E(f'ds_read_b128 {vr(r,4)}, v{vA} offset:{32*s}')
    E(f'ds_read_b128 {vr(r+4,4)}, v{vB} offset:{32*s}')
fill = [f's_lshl_b32 s{sT2}, s{sW}, 2', f's_add_u32 s{sT2}, s{sT2}, {SM0+FLG}', f'v_mov_b32 v{vFL}, s{sT2}', f'v_mov_b32 v8, {SM0+FLG}',
        f'v_lshlrev_b32 v10, 4, v{LANE}', f'v_add_u32 v10, {BND}, v10']
def dofill(n):
    while n > 0 and fill:
        x = fill.pop(0); E(x)
        if x.startswith('v_'): n -= 1
def gemm_part(s0, n, extra=None):
    for s in range(s0, s0+6): gread(s)
    dofill(99)
    nx = 0
    for s in range(s0, s0+n):
        if s + 6 < s0 + n: gread(s+6)
        if s == s0 + n - 4 and extra: nx = extra()
        E(f's_waitcnt lgkmcnt({2*min(6, s0 + n - 1 - s) + nx})')
        r = GF + 8*(s % 8)
        E(f'v_mfma_f32_32x32x16_bf16 {vr(GA,16)}, {vr(r,4)}, {vr(r+4,4)}, {vr(GA,16)}')
E(f'''s_waitcnt vmcnt(0) lgkmcnt(1)
s_mov_b64 exec, 1
v_add_f32 v{GA}, -1.0, v{GA}
s_mov_b64 exec, -1''')
if GEMM1: gemm_part(0, 8)
stamp(13)
E('s_barrier')
if 'twice' in OPT: E('s_mov_b32 s7, 0\nL_twice:')
stamp(4)

def aread(q):
    base, off = (vCA, (1024-64*q)//4) if q >= 9 else (vCA2, (512-64*q)//4)
    return [f'ds_read2_b32 {vr(AF+4*q,2)}, v{base} offset0:{off} offset1:{off+1}',
            f'ds_read2_b32 {vr(AF+4*q+2,2)}, v{base} offset0:{off+2} offset1:{off+3}']
def tzread(i):
    if i < 6: off = (i//3)*64 + 16*(i % 3)
    else: off = (F4-F3)//4 + 16*(i-6)
    return [f'ds_read2_b32 {vr(TZ+4*i,2)}, v{vTZ} offset0:{off+3} offset1:{off+2}',
            f'ds_read2_b32 {vr(TZ+4*i+2,2)}, v{vTZ} offset0:{off+1} offset1:{off}']
def boff(k):
    kind, tp, q = k
    return UPAD + 512*tp - 32 - (16 if kind == 'Z' else 64*q)
band = lambda i: vr(vBAND+4*i, 4)
stream = []
def mk(tile, a_, b_, dst=None): stream.append(('m', tile, a_, b_, dst))
def parts(tp):
    G0 = ('B', tp, 0) if tp == 0 else ('G', tp, 0); Z = ('Z', tp, 0); B0 = ('B', tp, 0)
    gen = []; cv = []
    if tp <= 5:
        gen += [(8, Z, 0), (12, Z, 1)]
        if tp <= 3: gen += [(20, Z, 3)]
        gen += [(0, G0, 0), (4, G0, 1)]
        if tp <= 3: gen += [(16, G0, 2)]
        for base in ((8, 0, 16) if tp <= 3 else (8, 0)):
            for jj in range(4): cv.append(f'v_cvt_pk_bf16_f32 v{DT+base+jj}, v{DT+base+jj}, v{DT+base+4+jj}')
    own = [(tp, ('A', q), ('B', tp, q)) for q in range(8)]
    nxt = [(tp+1, ('A', q+8), ('B', tp, q)) for q in range(8)] if tp < 7 else []
    lead = []
    if tp <= 5: lead.append((tp+2, ('A', 16), G0))
    if tp <= 3: lead.append((tp+4, band(4), G0))
    far = []
    if tp <= 5:
        for dl in range(3):
            if tp + 2 + dl <= 7:
                far.append((tp+2+dl, vr(DT+8, 4), ('T', 3+dl)))
                far.append((tp+2+dl, vr(DT, 4), ('T', dl)))
    if tp <= 3:
        for dl in range(4):
            if tp + 4 + dl <= 7: far.append((tp+4+dl, vr(DT+16, 4), ('T', 6+dl)))
    return gen, cv, own, nxt, lead, far
PT = [parts(tp) for tp in range(8)]
def with_cv(seq, cv, start, per=1):
    for i, t_ in enumerate(seq):
        mk(*t_)
        if i >= start:
            for _ in range(per):
                if cv: stream.append(('v', cv.pop(0)))
    assert not cv
gen, cv = PT[0][0], PT[0][1]
for dof, k, bi in gen[:3]: mk(None, k, band(bi), DT+dof)
stream.append(('expand',))
for dof, k, bi in gen[3:]:
    mk(None, k, band(bi), DT+dof)
    stream.append(('x2',))
seq = []
for q in range(8):
    seq += [PT[0][2][q], PT[1][2][q], PT[0][3][q], PT[1][3][q]]
with_cv(seq[:30], cv, 8)
stream.append(('mark', 0))
with_cv(seq[30:31], [], 0)
stream.append(('mark', 1))
with_cv(seq[31:] + PT[0][4], [], 0)
for tp in range(2, 8):
    src = tp - 2
    if src >= 1:
        for dof, k, bi in PT[src][0]: mk(None, k, band(bi), DT+dof)
    seq = PT[src][4] if src >= 1 else []
    for q in range(8):
        if tp < 7: seq = seq + [PT[tp][3][q]]
        seq = seq + [PT[tp][2][q]]
    if tp == 7: with_cv(seq, PT[src][1], 5, 2); stream.append(('v', 's_nop 0'))
    else: with_cv(seq, PT[src][1], 5)
    far = PT[src][5]
    with_cv(far[:2], [], 0)
    stream.append(('mark', tp))
    with_cv(far[2:], [], 0)
    if tp == 6: stream.append(('part',))
order = []
first, last = {}, {}
for i, it in enumerate(stream):
    if it[0] == 'm':
        for k in (it[2], it[3]):
            if isinstance(k, tuple):
                if k not in first: first[k] = i; order.append(k)
                last[k] = i
slot, free_after = {}, {}
slotfree = {(s_+6) % NSLOT: -1 for s_ in range(NSLOT)}
for k in order:
    if k[0] in 'BZG':
        s_ = min(slotfree, key=lambda z: slotfree[z])
        slot[k] = s_; free_after[k] = slotfree[s_]; assert free_after[k] < first[k]
        del slotfree[s_]; slotfree[s_] = last[k]
def reg(k):
    if not isinstance(k, tuple): return k
    if k[0] == 'A': return vr(AF+4*k[1], 4)
    if k[0] == 'T': return vr(TZ+4*k[1], 4)
    return vr(BR+4*slot[k], 4)
issued = []; done_upto = [0]; lastop = {}; itime = []; mcount = [0]
OLD = int(OPT.get('old', 6))
expanded = [False]
checked = {0} if ST0 == 'pre' else set()
FOFF = 0 if ST0 == 'pre' else 1
flagread = {}
def wait_for(idx, slack=0):
    if idx < done_upto[0]: return
    idx = max(idx, min(idx + slack, len(issued) - 5))
    n = len(issued) - 1 - idx
    assert n <= 15
    E(f's_waitcnt lgkmcnt({n})')
    done_upto[0] = idx + 1
def lds(txt, key=None):
    if len(issued) - done_upto[0] >= 15: wait_for(done_upto[0] + 3)
    E(txt); issued.append(key); itime.append(mcount[0])
    if key is not None: lastop[key] = len(issued) - 1
def can_issue(k, i):
    if k[0] in 'AT': return expanded[0]
    return free_after[k] <= i
def issue(k):
    order.remove(k)
    if k[0] == 'A':
        for x in aread(k[1]): lds(x, k)
    elif k[0] == 'T':
        for x in tzread(k[1]): lds(x, k)
    else:
        ph = k[1]//2
        if ph not in checked:
            if ph not in flagread:
                lds(f'ds_read_b128 v[4:7], v8 offset:16', ('F', ph)); flagread[ph] = 1
            wait_for(lastop[('F', ph)])
            E(f'''v_min_u32 v4, v4, v5
            v_min3_u32 v4, v4, v6, v7
            v_cmp_le_u32 vcc, {ph+FOFF}, v4
            s_cbranch_vccz L_uc{ph}
            L_uc{ph}d:''')
            checked.add(ph)
        lds(f'ds_read_b128 {reg(k)}, v{vCB} offset:{boff(k)}', k)
        nb = [x for x in order if x[0] in 'BZG'][:2]
        for x in nb:
            if x[1]//2 not in checked and x[1]//2 not in flagread:
                lds(f'ds_read_b128 v[4:7], v8 offset:16', ('F', x[1]//2)); flagread[x[1]//2] = 1
def prefetch(i, n):
    n0 = len(issued)
    while len(issued) - n0 < n:
        if len(issued) - done_upto[0] >= 13:
            old = [j for j in range(done_upto[0], len(issued)) if itime[j] <= mcount[0] - OLD]
            if len(old) < 3 or not order: break
            wait_for(old[-1])
        cand = [k for k in order[:(6 if expanded[0] else 24)] if can_issue(k, i) and not (k[0] in 'BZG' and k[1]//2 not in checked and first[k] > i + 14)]
        if not cand: break
        issue(cand[0])
D = lambda r: f'v{GA+r}'
def expand():
    global NOPX
    NOPX = max(0, 11 - (ninstr() - gemm_end - ('mid' in OPT)))
    t = AF + 48
    E(f'''s_nop NOPX
    v_cvt_pk_bf16_f32 v{t}, {D(7)}, {D(6)}
    v_cvt_pk_bf16_f32 v{t+1}, {D(5)}, {D(4)}
    v_cvt_pk_bf16_f32 v{t+2}, {D(3)}, {D(2)}
    v_cvt_pk_bf16_f32 v{t+3}, {D(1)}, {D(0)}''')
    lds(f'ds_write_b128 v{vKX}, {vr(t,4)} offset:{KX}')
    E(f'''v_cvt_pk_bf16_f32 v{t+4}, {D(8)}, {D(7)}
    v_cvt_pk_bf16_f32 v{t+5}, {D(6)}, {D(5)}
    v_cvt_pk_bf16_f32 v{t+6}, {D(4)}, {D(3)}
    v_cvt_pk_bf16_f32 v{t+7}, {D(2)}, {D(1)}''')
    lds(f'ds_write_b128 v{vKX}, {vr(t+4,4)} offset:{KY}')
    E(f'''v_cvt_pk_bf16_f32 v{t+10}, {D(0)}, 0
    s_mov_b64 exec, 1''')
    lds(f'ds_write_b32 v{vKX}, v{t+10} offset:{KY+16}')
    E('s_mov_b64 exec, -1')
    for k in (('A', 0), ('A', 8), ('A', 1), ('A', 9)): issue(k)
    if 'mid' in OPT: stamp(5)
def x2(n):
    t = AF + 48
    if n == 0:
        E(f'''v_cvt_pk_bf16_f32 v{t+8}, 0, {D(8)}
        v_cvt_pk_bf16_f32 v{t+9}, {D(8)}, {D(8)}
        v_subrev_u32 v{vKX}, 8, v{vKX}
        s_mov_b32 exec_lo, 0
        s_mov_b32 exec_hi, 0x80000000''')
        lds(f'ds_write_b64 v{vKX}, {vr(t+8,2)} offset:{KX}')
        lds(f'ds_write_b32 v{vKX}, v{t+9} offset:{KY+4}')
        E('s_mov_b64 exec, -1')
    elif n == 1:
        E(f'''v_cvt_pk_bf16_f32 v{t+13}, {D(10)}, {D(10)}
        v_cvt_pk_bf16_f32 v{t+11}, {D(9)}, {D(10)}
        v_cvt_pk_bf16_f32 v{t+12}, {D(11)}, {D(12)}
        v_readlane_b32 s{sT2}, v{t+13}, 63''')
        lds(f'ds_write_b32 v{vK3}, v{t+11} offset:{F3+64}')
        lds(f'ds_write_b16 v{vK4}, v{t+12} offset:{F4+64}')
        lds(f'ds_write_b16_d16_hi v{vK4}, v{t+12} offset:{F4+64+128}')
        expanded[0] = True
    else:
        for jj in range(4): E(f'v_and_b32 v{vBAND+16+jj}, s{sT2}, v{vBAND+16+jj}')
        expanded[0] = True
x2n = [0]
vPA = 10
accinit = set()
ypend = []
def first_b():
    for bi in (0, 1, 3, 2, 4): lds(f'ds_read_b128 {band(bi)}, v10 offset:{1024*bi}', ('W', bi))
    if ST0 == 'pre':
        for k in [k for k in order if k[0] in 'BZG'][:2]: issue(k)
    else:
        lds(f'ds_read_b128 v[4:7], v8 offset:16', ('F', 0)); flagread[0] = 1
    return len(issued)
gemm_part(8, 8, first_b) if GEMM1 else gemm_part(0, 16, first_b)
assert not fill, fill
gemm_end = ninstr()
if 'mid' in OPT: stamp(8)
for i, it in enumerate(stream):
    n0 = ninstr()
    if it[0] == 'mark':
        tp = it[1]
        if 'mid' in OPT and tp in (1, 2, 3, 5): stamp({1: 6, 2: 9, 3: 14, 5: 15}[tp])
        ypend.append([8, [('ds', f'ds_write_b128 v{vY}, {vr(ACC+4*tp,4)} offset:{4*YG*tp}'), ('v', f'v_mov_b32 v13, {tp+1}'), ('ds', f'ds_write_b32 v{vFL}, v13')]])
        continue
    if it[0] == 'expand': expand()
    elif it[0] == 'x2': x2(x2n[0]); x2n[0] += 1
    elif it[0] == 'part':
        E(f'''s_cmp_lg_u32 s{sW}, 0
        s_cbranch_scc1 L_nopart
        s_lshl_b32 s{sT2}, s{sI}, 11
        s_add_u32 s{sT2}, s{sT2}, {WS_PART}
        v_lshl_add_u32 v{vPA}, v{LANE}, 4, s{sT2}
        global_load_dwordx4 {vr(TZ+24,4)}, v{vPA}, {sp(sWS)} sc1
        global_load_dwordx4 {vr(TZ+28,4)}, v{vPA}, {sp(sWS)} offset:1024 sc1
        L_nopart:''')
        n0 = ninstr() - 2
    elif it[0] == 'v': E(it[1])
    else:
        _, tile, a_, b_, dst = it
        for k in (a_, b_):
            if isinstance(k, tuple) and k in order:
                assert can_issue(k, i-1), (k, i)
                issue(k)
        need = [lastop[k] for k in (a_, b_) if isinstance(k, tuple)]
        if need: wait_for(max(need), 2)
        if tile is None: E(f'v_mfma_f32_16x16x32_bf16 {vr(dst,4)}, {reg(a_)}, {reg(b_)}, 0')
        else:
            c_ = vr(ACC+4*tile, 4) if tile in accinit else '0'
            accinit.add(tile)
            E(f'v_mfma_f32_16x16x32_bf16 {vr(ACC+4*tile,4)}, {reg(a_)}, {reg(b_)}, {c_}')
        mcount[0] += 1
        for p in ypend: p[0] -= ninstr() - n0
        n0 = ninstr()
        if ypend and ypend[0][0] <= 0:
            for _ in range(2):
                if ypend[0][1]:
                    kind, txt = ypend[0][1].pop(0)
                    if kind == 'ds': lds(txt)
                    else: E(txt)
            if not ypend[0][1]: ypend.pop(0)
        else:
            prefetch(i, 4 if not expanded[0] else AHEAD if any(k[0] in 'AT' for k in order) else 1)
    for p in ypend: p[0] -= ninstr() - n0
assert not order
for p in ypend:
    if p[0] > 0: E(f's_nop {p[0]-1}')
    n0 = ninstr()
    for kind, txt in p[1]: E(txt)
    for p2 in ypend: p2[0] -= max(p[0], 0) + ninstr() - n0
def isize(x):
    x = x.strip()
    if x.endswith(':'): return 0
    op = x.split(' ')[0]
    if op in ('s_waitcnt', 's_nop', 's_barrier', 's_cbranch_vccz', 's_cbranch_scc1', 'v_min_u32', 'v_and_b32', 'v_mov_b32', 's_mov_b64', 'v_subrev_u32', 'v_cmp_le_u32'): return 4
    return 8
NHOP = 0
if ICW:
    body = out[m_begin:]; del out[m_begin:]
    acc = ICW
    for j, x in enumerate(body):
        out.append(x); acc += isize(x)
        nxt_ok = 'v_mfma' in x or acc >= ICW - 8
        if acc >= ICW - 28 and nxt_ok and not x.endswith(':'):
            out.append(f'L_hop{NHOP}:'); out.append(f'    s_cbranch_execz L_hop{NHOP+1}'); NHOP += 1; acc = 4
    out.append(f'L_hop{NHOP}:'); out.append('    s_cbranch_execz L_hopend')
stamp(7)
if 'twice' in OPT: E(f's_waitcnt lgkmcnt(0) vmcnt(0)\nv_add_u32 v{vKX}, 8, v{vKX}\ns_add_u32 s7, s7, 1\ns_cmp_eq_u32 s7, 1\ns_cbranch_scc1 L_twice')
if 'noepi' in OPT: E('s_branch L_cdone')
E(f'''s_cmp_lg_u32 s{sW}, 0
s_cbranch_scc1 L_cdone''')
PL = TZ + 24
E(f'''s_mov_b32 s{sSPIN}, {SPIN_MAX}
L_mb:
ds_read_b128 v[4:7], v8 offset:32
s_waitcnt lgkmcnt(0)
v_cmp_ne_u32 vcc, 0, v7
s_cbranch_vccnz L_mbd''')
spin_check('L_mb')
E(f'''L_mbd:
v_readfirstlane_b32 s{sKEY}, v4
v_readfirstlane_b32 s{sTAG}, v5
v_mov_b32 v20, 0
v_mov_b32 v21, 0
v_mov_b32 v22, 0
v_mov_b32 v23, 0
s_andn2_b32 s{sIDX}, 2047, s{sKEY}
s_lshl_b32 s{sT0}, s{sIDX}, 1
s_add_u32 s{sT0}, s{sT0}, {UB0+UPAD}
v_mov_b32 v11, s{sT0}''')
for k in range(4):
    E(f'ds_read_u16_d16_hi v{20+k}, v11 offset:{k*UCB}')
E(f'''s_lshr_b32 s{sT2}, s{sIDX}, 8
s_lshl_b32 s{sT0}, s{sT2}, 2
s_bfe_u32 s{sT1}, s{sIDX}, 0x20002
s_add_u32 s{sT0}, s{sT0}, s{sT1}
s_mul_i32 s{sT0}, s{sT0}, {YG}
s_and_b32 s{sT1}, s{sIDX}, 0xf0
s_add_u32 s{sT0}, s{sT0}, s{sT1}
s_and_b32 s{sT1}, s{sIDX}, 3
s_lshl_b32 s{sT1}, s{sT1}, 2
s_add_u32 s{sT0}, s{sT0}, s{sT1}
v_mov_b32 v12, s{sT0}
s_add_u32 s{sTH}, s{sT2}, 1
s_bitcmp1_b32 s{sIDX}, 0
s_cselect_b32 s{sT0}, 0, 16
v_lshlrev_b32 v24, s{sT0}, v6
v_and_b32 v24, 0xffff0000, v24
s_and_b32 s{sT0}, s{sKEY}, 0xffff0000
s_xor_b32 s{sT1}, s{sT0}, 0xffff0000
s_xor_b32 s{sT0}, s{sT0}, 0x80000000
s_bitcmp1_b32 s{sKEY}, 31
s_cselect_b32 s{sT0}, s{sT0}, s{sT1}
v_mov_b32 v25, {f32(-L2E)}
v_mul_f32 v25, s{sT0}, v25
v_exp_f32 v25, v25
v_sub_f32 v38, 1.0, v24
v_add_f32 v25, 1.0, v25
v_rcp_f32 v25, v25
v_cvt_pk_bf16_f32 v38, 0, v38
v_cvt_pk_bf16_f32 v25, 0, v25
v_mul_f32 v25, v25, v38''')
wait_flags(sTH, 'f', 8, 4, 0)
for k in range(4):
    E(f'ds_read_b32 v{16+k}, v12 offset:{k*LOB}')
E(f'''s_mov_b32 s{sT0}, 0x0c0c0400
s_mov_b32 s{sT1}, 0x04000c0c
v_cmp_gt_u32 {sp(sM1)}, 48, v{LANE}
s_mov_b32 s{sSPIN}, {SPIN_MAX}
s_branch L_pp1
L_pp:
global_load_dwordx4 {vr(PL,4)}, v{vPA}, {sp(sWS)} sc1
global_load_dwordx4 {vr(PL+4,4)}, v{vPA}, {sp(sWS)} offset:1024 sc1
L_pp1:
s_waitcnt vmcnt(0)
v_perm_b32 v26, v{PL+1}, v{PL}, s{sT0}
v_perm_b32 v27, v{PL+3}, v{PL+2}, s{sT1}
v_perm_b32 v36, v{PL+5}, v{PL+4}, s{sT0}
v_perm_b32 v37, v{PL+7}, v{PL+6}, s{sT1}
v_or_b32 v26, v26, v27
v_or_b32 v36, v36, v37
v_cmp_eq_u32 vcc, s{sTAG}, v26
v_cmp_eq_u32 {sp(sM0)}, s{sTAG}, v36
s_orn2_b64 {sp(sM0)}, {sp(sM0)}, {sp(sM1)}
s_and_b64 vcc, vcc, {sp(sM0)}
s_cmp_eq_u64 vcc, -1
s_cbranch_scc1 L_ppd''')
spin_check('L_pp')
E('L_ppd:')
stamp(12)
E(f'''s_mov_b64 exec, {sp(sM1)}
v_add_f32 v{PL}, v{PL}, v{PL+4}
v_add_f32 v{PL+1}, v{PL+1}, v{PL+5}
v_add_f32 v{PL+2}, v{PL+2}, v{PL+6}
v_add_f32 v{PL+3}, v{PL+3}, v{PL+7}
s_mov_b64 exec, -1
s_waitcnt lgkmcnt(0)
v_fmac_f32 v20, v16, v24
v_permlane32_swap_b32 v{PL}, v{PL+2}
v_fmac_f32 v21, v17, v24
v_permlane32_swap_b32 v{PL+1}, v{PL+3}
v_add_f32 v{PL}, v{PL}, v{PL+2}
v_add_f32 v{PL+1}, v{PL+1}, v{PL+3}
v_fmac_f32 v22, v18, v24
v_fmac_f32 v23, v19, v24
v_permlane16_swap_b32 v{PL}, v{PL+1}
s_lshl_b32 s{sT0}, s{sIDX}, 10
v_add_f32 v{PL}, v{PL}, v{PL+1}
s_lshl_b32 s{sT1}, s{sI}, 3
s_add_u32 s{sT0}, s{sT0}, s{sT1}''')
for sh in (8, 4, 2, 1):
    E(f'''v_add_f32_dpp v{PL}, v{PL}, v{PL} row_ror:{sh} {DPPF}''')
    if sh != 1: E('s_nop 1')
E(f'''v_cvt_pk_bf16_f32 v{PL}, 0, v{PL}
v_mov_b32 v10, s{sT0}
v_readlane_b32 s{sT0}, v{PL}, 0
v_readlane_b32 s{sT1}, v{PL}, 16
v_readlane_b32 s{sT2}, v{PL}, 32
v_readlane_b32 s{sT3}, v{PL}, 48
v_fmac_f32 v20, s{sT0}, v25
v_fmac_f32 v21, s{sT1}, v25
v_fmac_f32 v22, s{sT2}, v25
v_fmac_f32 v23, s{sT3}, v25
v_cvt_pk_bf16_f32 v16, v20, v21
v_cvt_pk_bf16_f32 v17, v22, v23
s_mov_b64 exec, 1
global_store_dwordx2 v10, v[16:17], {sp(sOUT)}
s_branch L_cdone''')
for ph in ((1, 2, 3) if ST0 == 'pre' else (0, 1, 2, 3)):
    E(f'''L_uc{ph}:
    s_mov_b32 s{sTH}, {ph+FOFF}
    v_add_u32 v12, 16, v8''')
    wait_flags(sTH, f'u{ph}', 12, 4, 0)
    E(f's_branch L_uc{ph}d')
vP, vG, vGF, vYV = 80, 72, 112, 32
def stage(p):
    for k in range(4):
        E(f'v_perm_b32 v{40+k}, v{vX+4*p+2+(k>>1)}, v{vX+4*p+(k>>1)}, s{sP1 if k & 1 else sP0}')
    for k in range(4):
        E(f'ds_write_b32 v64, v{40+k} offset:{k*UCB+1024*p}')
def unpack(p):
    for j in range(2):
        for h in range(2):
            E(f'''v_lshlrev_b32 v{vP+8*p+4*j+2*h}, 16, v{vX+4*p+2*j+h}
            v_and_b32 v{vP+8*p+4*j+2*h+1}, 0xffff0000, v{vX+4*p+2*j+h}''')
def polls():
    E(f'''global_load_dwordx2 v[12:13], v70, {sp(sDBG)} sc1
    global_load_dwordx4 v[48:51], v65, {sp(sWS)} sc1''')
    for p in range(4):
        E(f'global_load_dwordx2 {vr(vG+2*p,2)}, v66, {sp(sWS)} offset:{-4096+2048*p} sc1')
E('L_cio1:')
if ST0 == 'pre':
    E(f's_waitcnt vmcnt({2*NMID})')
    stamp(13)
    stage(0)
E('s_waitcnt lgkmcnt(0)\ns_barrier')
stamp(4)
if ST0 != 'pre':
    E(f's_waitcnt vmcnt({2*NMID})')
    stamp(13)
    stage(0)
    E(f'v_mov_b32 v44, 1\nds_write_b32 v68, v44')
if KPRIO == 'io': E('s_setprio 0')
for p in range(NMID+1, 4): uload(p)
E(f'''v_lshlrev_b32 v65, 4, v{LANE}
v_add_u32 v65, {WS_KEYS}, v65
v_and_b32 v66, 255, v0
v_lshlrev_b32 v66, 3, v66
v_add_u32 v66, {WS_G+4096}, v66
v_mov_b32 v70, 0''')
EARLYP = OPT.get('earlyp', '1') == '1'
if EARLYP: polls()
if ICW and ICWHO == 'io':
    hop_call()
    stamp(15)
for p in range(1, 4):
    E(f's_waitcnt vmcnt({2*(3-p) + 6*EARLYP})')
    if p == 3:
        stamp(5)
        if not EARLYP: polls()
    stage(p)
    E(f'v_mov_b32 v44, {p+FOFF}\nds_write_b32 v68, v44')
    if p == 1 and PRIO == 'io': E('s_setprio 2')
    unpack(p-1)
unpack(3)
stamp(6)
if 'noepi' in OPT: E('s_branch L_cdone')
E(f'''s_mov_b32 s{sSPIN}, {SPIN_MAX}
s_branch L_pt1
L_pt:''')
polls()
E(f'''L_pt1:
s_waitcnt vmcnt(0)
v_readfirstlane_b32 s{sTAG}, v12
v_cmp_eq_u32 vcc, 1, v13
v_xor_b32 v49, v49, v12
v_xor_b32 v51, v51, v12
v_xor_b32 v{vG+1}, v{vG+1}, v12
v_xor_b32 v{vG+3}, v{vG+3}, v12
v_xor_b32 v{vG+5}, v{vG+5}, v12
v_xor_b32 v{vG+7}, v{vG+7}, v12
v_or3_b32 v49, v49, v51, v{vG+1}
v_or3_b32 v51, v{vG+3}, v{vG+5}, v{vG+7}
v_or_b32 v49, v49, v51
v_cmp_eq_u32 {sp(sM0)}, 0, v49
v_max_u32 v48, v48, v50
s_and_b64 vcc, vcc, {sp(sM0)}
s_cmp_eq_u64 vcc, -1
s_cbranch_scc1 L_ptd''')
spin_check('L_pt')
E('L_ptd:')
stamp(9)
key_reduce(48)
for p in range(4):
    E(f'''v_lshlrev_b32 v{vGF+2*p}, 16, v{vG+2*p}
    v_and_b32 v{vGF+2*p+1}, 0xffff0000, v{vG+2*p}''')
E(f'''s_andn2_b32 s{sIDX}, 2047, s{sKEY}
s_lshr_b32 s{sT0}, s{sIDX}, 1
s_mov_b64 {sp(sEX)}, -1
s_bitset0_b64 {sp(sEX)}, s{sT0}
s_lshr_b32 s{sT2}, s{sIDX}, 9
s_lshl_b32 s{sJ}, s{sT2}, 1
s_and_b32 s{sT1}, s{sIDX}, 1
s_add_u32 s{sJ}, s{sJ}, s{sT1}
s_bfe_u32 s{sT1}, s{sIDX}, 0x20007
s_cmp_eq_u32 s{sT1}, s{sCH}
s_cselect_b32 s{sJ}, s{sJ}, 8
s_cbranch_scc0 L_nomb
s_and_b32 s{sT0}, s{sT0}, 63
v_readlane_b32 s{sT1}, v{vG}, s{sT0}
v_readlane_b32 s{sT3}, v{vG+2}, s{sT0}
v_readlane_b32 s{sT4}, v{vG+4}, s{sT0}
v_readlane_b32 s{sT5}, v{vG+6}, s{sT0}
s_bitcmp1_b32 s{sT2}, 0
s_cselect_b32 s{sT1}, s{sT3}, s{sT1}
s_cselect_b32 s{sT4}, s{sT5}, s{sT4}
s_bitcmp1_b32 s{sT2}, 1
s_cselect_b32 s{sT1}, s{sT4}, s{sT1}
v_mov_b32 v44, s{sKEY}
v_mov_b32 v45, s{sTAG}
v_mov_b32 v46, s{sT1}
v_mov_b32 v47, 1
ds_write_b128 v69, v[44:47] offset:32
L_nomb:
s_lshr_b32 s{sTH}, s{sCH}, 1
s_add_u32 s{sTH}, s{sTH}, 1''')
stamp(7)
for p in range(4):
    wait_flags(sTH, f'e{p}', 69, 48, SLEEP)
    if p == 0: stamp(8)
    if p == 3: stamp(14)
    for k in range(4):
        E(f'ds_read_b64 {vr(vYV+2*k,2)}, v67 offset:{k*LOB+8*YG*p}')
    E(f's_add_u32 s{sTH}, s{sTH}, 2\ns_waitcnt lgkmcnt(0)')
    for j in range(2):
        r = vP + 8*p + 4*j
        for k in range(4):
            E(f'v_fmac_f32 v{r+k}, v{vYV+2*k+j}, v{vGF+2*p+j}')
        E(f'''v_cvt_pk_bf16_f32 v{r}, v{r}, v{r+1}
        v_cvt_pk_bf16_f32 v{r+1}, v{r+2}, v{r+3}
        s_cmp_eq_u32 s{sJ}, {2*p+j}
        s_cselect_b64 exec, {sp(sEX)}, -1
        global_store_dwordx2 v{vXO+p}, {vr(r,2)}, {sp(sOUT)} offset:{1024*j}
        s_mov_b64 exec, -1''')
E('L_cdone:')
stamp(10)
if STAMPS:
    E('s_waitcnt vmcnt(0)')
    stamp(11)
write_stamps()
E('s_endpgm')

A_T, A_IDX, A_PART = 49152, 49152 + 256, 50176
vWL = 24
LEAD = 0
wl = [f'global_load_dwordx4 {vr(vWL,4)}, v58, {sp(sWG)}', f'global_load_dwordx4 {vr(vWL+8,4)}, v58, {sp(sWU)}',
      f'global_load_dwordx4 {vr(vWL+4,4)}, v7, {sp(sWG)}', f'global_load_dwordx4 {vr(vWL+12,4)}, v7, {sp(sWU)}',
      f'global_load_dwordx4 {vr(vWL+16,4)}, v1, {sp(sWD)}', f'global_load_dwordx4 {vr(vWL+20,4)}, v59, {sp(sWD)}']
nearly = {'all': 6, 'half': 2, 'four': 4, 'none': 0, 'warm': 0, 'down': 0}[WMODE]
if WMODE in ('warm', 'down'): wl = wl[4:] + wl[:4]; nearly = 2
E(f'''L_aux:
s_min_u32 s{sT2}, s{sSLOT}, 13
s_mul_i32 s{sFI}, s{sT0}, 14
s_add_u32 s{sFI}, s{sFI}, s{sT2}
s_lshl_b32 s{sWB}, s{sFI}, 1
s_add_u32 s{sWB}, s{sWB}, s{sW}
s_and_b32 s{sWB}, s{sWB}, 7
v_lshrrev_b32 v58, 1, v{LANE}
v_mul_u32_u24 v58, 3584, v58
v_and_b32 v7, 1, v{LANE}
v_lshl_add_u32 v58, v7, 4, v58
s_mul_i32 s{sT0}, s{sWB}, {64*3584}
s_lshl_b32 s{sT1}, s{sFI}, 5
s_add_u32 s{sT0}, s{sT0}, s{sT1}
v_add_u32 v58, s{sT0}, v58
v_add_u32 v7, {32*3584}, v58
v_lshrrev_b32 v1, 3, v{LANE}
v_and_b32 v48, 7, v{LANE}
v_lshlrev_b32 v48, 4, v48
v_lshl_add_u32 v1, v1, 10, v48
s_lshl_b32 s{sT0}, s{sFI}, 14
s_lshl_b32 s{sT1}, s{sW}, 7
s_add_u32 s{sT0}, s{sT0}, s{sT1}
v_add_u32 v1, s{sT0}, v1
v_add_u32 v59, 8192, v1''')
if WMODE == 'warm':
    E(f'''; warm-up job: line column (14*xcd>>2) + (slot>>2), rows 128*(slot&3) + 32*(w>>1) + (lane&31), matrix w&1
    s_and_b32 s{sT0}, s{sSLOT}, 3
    s_lshl_b32 s{sT0}, s{sT0}, 2
    s_lshr_b32 s{sT1}, s{sW}, 1
    s_add_u32 s{sT0}, s{sT0}, s{sT1}
    s_mul_i32 s{sT0}, s{sT0}, {32*3584}
    s_sub_u32 s{sT1}, s{sFI}, s{sT2}
    s_lshr_b32 s{sT1}, s{sT1}, 2
    s_lshr_b32 s{sT2}, s{sSLOT}, 2
    s_add_u32 s{sT1}, s{sT1}, s{sT2}
    s_lshl_b32 s{sT1}, s{sT1}, 7
    s_add_u32 s{sT0}, s{sT0}, s{sT1}
    v_and_b32 v49, 31, v{LANE}
    v_mul_u32_u24 v49, 3584, v49
    v_add_u32 v49, s{sT0}, v49
    s_bitcmp1_b32 s{sW}, 0
    s_cselect_b64 {sp(sT2)}, {sp(sWU)}, {sp(sWG)}''')
E('s_barrier')
if WMODE == 'warm': E(f'global_load_dword v62, v49, {sp(sT2)}')
for x in wl[:nearly]: E(x)
E(f'''s_lshl_b32 s{sT0}, s{sI}, 4
s_lshl_b32 s{sT1}, s{sW}, 1
s_add_u32 s{sT0}, s{sT0}, s{sT1}
v_lshrrev_b32 v5, 5, v{LANE}
v_add_u32 v5, s{sT0}, v5
v_sub_u32 v5, 2047, v5
s_lshl_b32 s{sT1}, s{sW}, 4
v_lshrrev_b32 v6, 4, v{LANE}
v_lshl_add_u32 v6, v6, 2, s{sT1}
v_and_b32 v50, 16, v{LANE}
v_cmp_ne_u32 {sp(sM1)}, 0, v50
s_lshl_b32 s{sT0}, s{sI}, 6
s_add_u32 s{sT0}, s{sT0}, {WS_G}
v_lshrrev_b32 v49, 1, v48
v_add_u32 v49, s{sT0}, v49
s_lshl_b32 s{sT0}, s{sI}, 3
s_add_u32 s{sT0}, s{sT0}, {WS_KEYS}
v_writelane_b32 v49, s{sT0}, 8
v_cmp_eq_u32 {sp(sM0)}, 8, v{LANE}
s_waitcnt lgkmcnt(0)
s_add_u32 s{sTAG}, s{sTAG}, {TAGINC}
v_mov_b32 v61, s{sTAG}
s_waitcnt vmcnt({nearly + (WMODE == 'warm')})''')
stamp(2)
for k in range(4):
    z = lambda r: "0" if k == 0 else f"v{r}"
    E(f'''v_dot2_f32_bf16 v50, v{vXA+k}, v{vWRv+k}, {z(50)}
    v_dot2_f32_bf16 v51, v{vXB+k}, v{vWRv+k}, {z(51)}
    v_dot2_f32_bf16 v52, v{vXA+k}, v{vGWv+k}, {z(52)}
    v_dot2_f32_bf16 v53, v{vXB+k}, v{vGWv+k}, {z(53)}''')
E(f'''s_nop 0
v_permlane32_swap_b32 v50, v51
s_nop 0
v_permlane32_swap_b32 v52, v53
v_add_f32 v50, v50, v51
v_add_f32 v52, v52, v53
s_nop 1
v_permlane16_swap_b32 v50, v52
s_nop 0
v_add_f32 v50, v50, v52''')
for sh in (8, 4, 2, 1):
    E(f'''s_nop 1
    v_add_f32_dpp v50, v50, v50 row_ror:{sh} {DPPF}''')
E(f'''v_cvt_pk_bf16_f32 v50, 0, v50
v_mul_f32 v52, {f32(-L2E)}, v50
v_exp_f32 v52, v52
v_ashrrev_i32 v51, 31, v50
v_add_f32 v52, 1.0, v52
v_rcp_f32 v52, v52
v_or_b32 v51, 0x80000000, v51
v_xor_b32 v50, v50, v51
v_cvt_pk_bf16_f32 v52, v52, 0
v_and_b32 v50, 0xffff0000, v50
v_or_b32 v50, v50, v5
v_cndmask_b32 v50, v50, v52, {sp(sM1)}
s_mov_b32 exec_lo, 0x00010001
s_mov_b32 exec_hi, 0x00010001
ds_write_b32 v6, v50 offset:{A_T}
s_mov_b64 exec, -1
s_waitcnt lgkmcnt(0)
s_barrier''')
stamp(3)
E(f'''s_cmp_lg_u32 s{sW}, {LEAD}
s_cbranch_scc1 L_anokey
ds_read_b128 v[52:55], v48 offset:{A_T}
s_waitcnt lgkmcnt(0)
v_max_u32 v52, v52, v54
v_lshl_or_b32 v60, v55, 16, v53
s_nop 0''')
for sh in (4, 2, 1):
    E(f'''v_max_u32_dpp v52, v52, v52 row_ror:{sh} {DPPF}''')
    if sh != 1: E('s_nop 1')
E(f'''v_cndmask_b32 v60, v60, v52, {sp(sM0)}
s_mov_b64 exec, 0x1ff
global_store_dwordx2 v49, v[60:61], {sp(sWS)} sc1
s_cmp_lg_u32 s{sI}, 0
s_cbranch_scc1 L_anotag
s_mov_b64 exec, 1
v_mov_b32 v6, 0
v_mov_b32 v52, s{sTAG}
v_mov_b32 v53, 1
global_store_dwordx2 v6, v[52:53], {sp(sDBG)} sc1
L_anotag:
s_mov_b64 exec, -1
L_anokey:''')
stamp(4)
E(f'''s_cmp_ge_u32 s{sSLOT}, 14
s_cbranch_scc1 L_adone''')
vFG, vFU, vFD = 64, 72, 80
E(f'''s_mul_i32 s{sT0}, s{sW}, 6144
v_add_u32 v4, s{sT0}, v4
v_and_b32 v5, 15, v{LANE}
v_lshrrev_b32 v6, 4, v{LANE}
v_lshlrev_b32 v14, 3, v5
v_lshl_add_u32 v14, v6, 8, v14
v_add_u32 v14, s{sT0}, v14
v_lshrrev_b32 v8, 2, v{LANE}
v_lshlrev_b32 v8, 7, v8
v_and_b32 v9, 3, v{LANE}
v_lshl_add_u32 v8, v9, 3, v8
v_add_u32 v8, s{sT0}, v8
s_lshl_b32 s{sT1}, s{sWB}, 7
v_lshl_add_u32 v10, v6, 4, s{sT1}
s_lshl_b32 s{sT1}, s{sW}, 2
s_add_u32 s{sT1}, s{sT1}, {A_PART}
v_lshl_add_u32 v11, v6, 7, s{sT1}
v_lshrrev_b32 v12, 3, v5
v_lshlrev_b32 v12, 9, v12
v_lshl_add_u32 v12, v6, 7, v12
v_lshl_add_u32 v12, v9, 5, v12
v_and_b32 v13, 4, v5
v_lshl_add_u32 v12, v13, 2, v12
v_lshl_add_u32 v13, v9, 2, v6
s_lshl_b32 s{sT1}, s{sW}, 15
s_lshl_b32 s{sT2}, s{sFI}, 4
s_add_u32 s{sT1}, s{sT1}, s{sT2}
s_add_u32 s{sT1}, s{sT1}, {WS_PART}
v_lshl_add_u32 v13, v13, 11, s{sT1}''')
E('s_barrier')
stamp(5)
for x in wl[nearly:]: E(x)
for t in range(4):
    E(f'''v_cmp_eq_u32 vcc, {t}, v9
    s_lshr_b32 s{sT1}, s{sTAG}, {8*t}
    v_mov_b32 v{92+t}, s{sT1}
    v_cndmask_b32 v{88+t}, 0, -1, vcc''')
E(f'''v_cmp_gt_u32 {sp(sM1)}, 8, v5
v_lshlrev_b32 v20, 4, v{LANE}
v_add_u32 v20, {WS_KEYS}, v20
s_waitcnt vmcnt(0)
s_cmp_lg_u32 s{sW}, {LEAD}
s_cbranch_scc1 L_anp0
global_load_dwordx4 v[16:19], v20, {sp(sWS)} sc1
L_anp0:''')
for k in range(6):
    E(f'ds_write_b128 v4, {vr(vWL+4*k,4)} offset:{1024*k}')
E('s_waitcnt lgkmcnt(0)')
for s in range(2):
    for h in range(2):
        E(f'ds_read_b64_tr_b16 {vr(vFG+4*s+2*h,2)}, v14 offset:{1024*s+128*h}')
        E(f'ds_read_b64_tr_b16 {vr(vFU+4*s+2*h,2)}, v14 offset:{2048+1024*s+128*h}')
for t in range(4):
    E(f'ds_read_b64_tr_b16 {vr(vFD+2*t,2)}, v8 offset:{4096+32*t}')
stamp(6)
E(f'''s_cmp_lg_u32 s{sW}, {LEAD}
s_cbranch_scc1 L_anopoll
s_mov_b32 s{sSPIN}, {SPIN_MAX}
s_branch L_pk1
L_pk:
global_load_dwordx4 v[16:19], v20, {sp(sWS)} sc1
L_pk1:
s_waitcnt vmcnt(0)
v_cmp_eq_u32 vcc, s{sTAG}, v17
v_cmp_eq_u32 {sp(sM0)}, s{sTAG}, v19
v_max_u32 v16, v16, v18
s_and_b64 vcc, vcc, {sp(sM0)}
s_cmp_eq_u64 vcc, -1
s_cbranch_scc1 L_pkd''')
spin_check('L_pk')
E('L_pkd:')
key_reduce(16)
E(f'''v_mov_b32 v16, s{sKEY}
v_mov_b32 v17, {A_IDX}
ds_write_b32 v17, v16
s_cmp_lg_u32 s{sI}, 0
s_cbranch_scc1 L_anopoll
v_mov_b32 v18, 0
s_mov_b64 exec, 1
global_store_dword v18, v61, {sp(sWS)} offset:{WS_EPOCH} sc1
s_mov_b64 exec, -1
L_anopoll:
v_mov_b32 v17, {A_IDX}
s_waitcnt lgkmcnt(0)
s_barrier''')
stamp(7)
E(f'''ds_read_b32 v16, v17
s_waitcnt lgkmcnt(0)
v_not_b32 v16, v16
v_and_b32 v16, 2047, v16
v_lshl_add_u32 v10, v16, 10, v10
global_load_dwordx4 v[16:19], v10, {sp(sX)}
global_load_dwordx4 v[20:23], v10, {sp(sX)} offset:64
s_waitcnt vmcnt(1)
v_mfma_f32_16x16x32_bf16 v[24:27], {vr(vFG,4)}, v[16:19], 0
v_mfma_f32_16x16x32_bf16 v[28:31], {vr(vFU,4)}, v[16:19], 0
s_waitcnt vmcnt(0)
v_mfma_f32_16x16x32_bf16 v[24:27], {vr(vFG+4,4)}, v[20:23], v[24:27]
v_mfma_f32_16x16x32_bf16 v[28:31], {vr(vFU+4,4)}, v[20:23], v[28:31]
s_mov_b32 exec_lo, 0x00010001
s_mov_b32 exec_hi, 0x00010001
s_nop 5
ds_write2_b32 v11, v24, v25 offset0:0 offset1:8
ds_write2_b32 v11, v26, v27 offset0:16 offset1:24
ds_write2_b32 v11, v28, v29 offset0:128 offset1:136
ds_write2_b32 v11, v30, v31 offset0:144 offset1:152
s_mov_b64 exec, -1
s_waitcnt lgkmcnt(0)
s_barrier''')
stamp(8)
E(f'''ds_read_b128 v[16:19], v12 offset:{A_PART}
s_waitcnt lgkmcnt(0)
v_add_f32 v16, v16, v17
v_add_f32 v18, v18, v19
v_add_f32 v16, v16, v18
s_nop 1
v_mov_b32_dpp v17, v16 row_half_mirror {DPPF}
s_nop 1
v_add_f32_dpp v16, v17, v16 quad_perm:[3,2,1,0] {DPPF}
s_nop 1
v_mov_b32_dpp v17, v16 row_ror:8 {DPPF}
v_cndmask_b32 v18, v17, v16, {sp(sM1)}
v_cndmask_b32 v19, v16, v17, {sp(sM1)}
v_cvt_pk_bf16_f32 v18, v18, v19
v_and_b32 v19, 0xffff0000, v18
v_lshlrev_b32 v18, 16, v18
v_mul_f32 v16, {f32(-L2E)}, v18
v_exp_f32 v16, v16
s_nop 0
v_add_f32 v16, 1.0, v16
v_rcp_f32 v16, v16
s_nop 0
v_mul_f32 v16, v16, v18
v_cvt_pk_bf16_f32 v16, 0, v16
v_mul_f32 v16, v16, v19
s_nop 1
v_mov_b32_dpp v17, v16 quad_perm:[0,0,0,0] {DPPF}
v_mov_b32_dpp v18, v16 quad_perm:[1,1,1,1] {DPPF}
v_mov_b32_dpp v19, v16 quad_perm:[2,2,2,2] {DPPF}
v_mov_b32_dpp v20, v16 quad_perm:[3,3,3,3] {DPPF}
v_cvt_pk_bf16_f32 v16, v17, v18
v_cvt_pk_bf16_f32 v17, v19, v20''')
for t in range(4):
    E(f'''v_and_b32 v{24+2*t}, v16, v{88+t}
    v_and_b32 v{25+2*t}, v17, v{88+t}''')
E(f'''s_mov_b32 s{sT0}, 0xff
s_nop 0
v_mfma_f32_16x16x32_bf16 v[32:35], {vr(vFD,4)}, v[24:27], 0
v_mfma_f32_16x16x32_bf16 v[32:35], {vr(vFD+4,4)}, v[28:31], v[32:35]
s_mov_b32 exec_lo, 0x000f000f
s_mov_b32 exec_hi, 0x000f000f
s_nop 6''')
for t in range(4):
    E(f'v_bfi_b32 v{32+t}, s{sT0}, v{92+t}, v{32+t}')
E(f'global_store_dwordx4 v13, v[32:35], {sp(sWS)} sc1')
stamp(9)
E('L_adone:')
stamp(10)
if STAMPS:
    E('s_waitcnt vmcnt(0)')
    stamp(11)
write_stamps()
E('L_end:')
E('s_endpgm')
out.append(f'''.section .rodata,"a"
.p2align 6
.amdhsa_kernel {KN}_kernel
  .amdhsa_next_free_vgpr {NVGPR}
  .amdhsa_next_free_sgpr 96
  .amdhsa_accum_offset {(NVGPR+3)//4*4}
  .amdhsa_group_segment_fixed_size 0
  .amdhsa_kernarg_size 128
  .amdhsa_user_sgpr_count 2
  .amdhsa_user_sgpr_kernarg_segment_ptr 1
  .amdhsa_system_sgpr_workgroup_id_x 1
.end_amdhsa_kernel''')
print('\n'.join(out).replace('NOPX', str(NOPX)).replace('HOPQ1', f'L_hop{NHOP//4}').replace('HOPQ2', f'L_hop{NHOP//2}').replace('HOPQ3', f'L_hop{3*NHOP//4}'))
```

```python
import sys, struct
from asmlib import KN, STAMP_OFF
OPT = dict(a.split('=') if '=' in a else (a, '1') for a in sys.argv[1:])
STAMPS = 'stamps' in OPT
NTP = ' nt' if OPT.get('ntp', '0') == '1' else ''
NTX = ' nt' if OPT.get('ntx', '0') == '1' else ''
PRIO = OPT.get('prio', 'io')
SLEEP = int(OPT.get('sleep', 1))
UPOS = [int(x) for x in OPT.get('upos', '5,21,40,99').split(',')]
WMODE = OPT.get('wmode', 'warm')
XWARM = OPT.get('xwarm', '1') == '1'
AHEAD = int(OPT.get('ahead', 2))
YG = 320
WW = OPT.get('ww', '0') == '1'
RW = OPT.get('rw', 'post')
ICW = int(OPT.get('icw', 0))
ICWHO = OPT.get('icwho', 'io')

out = []
def E(s):
    for ln in s.strip('\n').split('\n'):
        ln = ln.strip()
        if ln: out.append(('    ' + ln) if not ln.endswith(':') else ln)
def f32(x): return '0x%08x' % struct.unpack('<I', struct.pack('<f', x))[0]
def vr(b, n): return f'v[{b}:{b+n-1}]'
def ninstr(): return sum(1 for x in out if not x.endswith(':'))

WS_EPOCH, WS_KEYS, WS_G, WS_PART = 0, 4096, 8192, 32768
TAGINC = 0x9E3779B1
SPIN_MAX = 1 << 20
ROWB = 528
LOB = 32*ROWB
HI0 = 4*LOB
NHI = 22
HIB = NHI*ROWB
UB0 = HI0 + 4*HIB
UCB, UPAD = 4608, 480
SM0 = UB0 + 4*UCB
SMB = 4096
KX, KY, F3, F4, FLG = 0, 1216, 2432, 2944, 3328
HIX = 16384
BND = SM0 + 4*SMB
LDS_BYTES = BND + 5*1024
ST0 = OPT.get('st0', 'pre')
KPRIO = OPT.get('kprio', 'io')
GEMM1 = OPT.get('gemm1', '0') == '1'
sEX = 6
sX, sLA, sAI, sCR, sCI, sLDT, sDS = 8, 10, 12, 14, 16, 18, 20
sWR, sWG, sWU, sWD, sGW, sOUT, sDBG, sWS = 24, 26, 28, 30, 32, 34, 36, 38
sW, sI, sT0, sT1 = 40, 41, 42, 43
sJ, sP0, sP1, sTH = 44, 45, 46, 47
sTAG, sKEY, sIDX, sSPIN = 48, 49, 50, 51
sM0, sM1 = 52, 54
sT2, sT3, sT4, sT5 = 56, 57, 58, 59
sSLOT, sWB, sFI, sIO = 60, 61, 62, 63
sCH = 61
sS3 = 62
SB = 64
NST = 16
def sp(b): return f's[{b}:{b+1}]'
def stamp(i):
    if STAMPS: E(f'{"s_memtime" if "cyc" in OPT else "s_memrealtime"} s[{SB+2*i}:{SB+2*i+1}]')
def write_stamps():
    if not STAMPS: return
    E(f'''s_waitcnt lgkmcnt(0) vmcnt(0)
    s_mov_b64 exec, 1
    s_lshl_b32 s{sT0}, s2, 3
    s_add_u32 s{sT0}, s{sT0}, s{sW}
    s_lshl_b32 s{sT0}, s{sT0}, 7
    s_add_u32 s{sT0}, s{sT0}, {STAMP_OFF}
    v_mov_b32 v0, s{sT0}''')
    for i in range(NST):
        E(f'''v_mov_b32 v2, s{SB+2*i}
        v_mov_b32 v3, s{SB+2*i+1}
        global_store_dwordx2 v0, v[2:3], {sp(sWS)} offset:{8*i}
        s_nop 1''')
def spin_check(lbl_loop):
    E(f'''s_sub_u32 s{sSPIN}, s{sSPIN}, 1
    s_cbranch_scc0 {lbl_loop}''')
L2E = 1.4426950408889634
L2E_HI = struct.unpack('<f', struct.pack('<I', 0x3FB8AA00))[0]
L2E_LO = L2E - L2E_HI
LANE = 3
DPPF = 'row_mask:0xf bank_mask:0xf'

def hop_call():
    E(f'''s_mov_b64 exec, 0
    s_cmp_eq_u32 s{sCH}, 0
    s_cbranch_scc1 L_hop0
    s_cmp_eq_u32 s{sCH}, 1
    s_cbranch_scc1 HOPQ1
    s_cmp_eq_u32 s{sCH}, 2
    s_cbranch_scc1 HOPQ2
    s_branch HOPQ3
    L_hopend:
    s_mov_b64 exec, -1''')
def key_reduce(vt):
    for sh in (8, 4, 2, 1):
        E(f'''v_max_u32_dpp v{vt}, v{vt}, v{vt} row_ror:{sh} {DPPF}
        s_nop 1''')
    E(f'''v_readlane_b32 s{sKEY}, v{vt}, 0
    v_readlane_b32 s{sT0}, v{vt}, 16
    v_readlane_b32 s{sT1}, v{vt}, 32
    v_readlane_b32 s{sT2}, v{vt}, 48
    s_max_u32 s{sKEY}, s{sKEY}, s{sT0}
    s_max_u32 s{sT1}, s{sT1}, s{sT2}
    s_max_u32 s{sKEY}, s{sKEY}, s{sT1}''')
def wait_flags(sreg, name, vaddr, vt, sleep):
    E(f'''s_mov_b32 s{sSPIN}, {SPIN_MAX}
    L_wf_{name}:
    ds_read_b128 {vr(vt,4)}, v{vaddr}
    s_waitcnt lgkmcnt(0)
    v_min_u32 v{vt}, v{vt}, v{vt+1}
    v_min3_u32 v{vt}, v{vt}, v{vt+2}, v{vt+3}
    v_cmp_le_u32 vcc, s{sreg}, v{vt}
    s_cbranch_vccnz L_wfd_{name}''')
    if sleep: E(f's_sleep {sleep}')
    spin_check(f'L_wf_{name}')
    E(f'L_wfd_{name}:')

hdr = open('cdna_kernels/' + KN + '.s.ref').read().split('; Override launch')[0]
out.append(hdr.rstrip('\n'))
out.append(f'; @launch grid=(256,1,1) block=(512,1,1) lds={LDS_BYTES}')
out.append(f'''.amdgcn_target "amdgcn-amd-amdhsa--gfx950"
.text
.globl {KN}_kernel
.p2align 8
.type {KN}_kernel,@function
{KN}_kernel:''')
stamp(0)
vXA, vWRv, vGWv = 16, 8, 12
vLA, vAI, vCR, vCI, vDT = 4, 5, 6, 7, 8
vX = 16
vXO = 60
AF, TZ, BR, DT, ACC, vBAND = 16, 84, 124, 172, 196, 228
NSLOT = 12
GF, GA = 84, ACC
vKX, vK3, vK4, vCA, vCA2, vCB, vY, vTZ = 248, 249, 250, 251, 252, 253, 254, 255
vA, vB, vFL = 14, 15, 9
NVGPR = 256
E(f'''s_load_dwordx16 s[8:23], s[0:1], 0
s_load_dwordx16 s[24:39], s[0:1], 64
s_cmp_ge_u32 s2, 256
s_cbranch_scc1 L_end
s_getpc_b64 s[4:5]
L_pc:
v_lshrrev_b32 v1, 6, v0
v_and_b32 v{LANE}, 63, v0
v_readfirstlane_b32 s{sW}, v1
s_and_b32 s{sT0}, s2, 7
s_lshr_b32 s{sSLOT}, s2, 4
s_lshl_b32 s{sI}, s{sT0}, 4
s_add_u32 s{sI}, s{sI}, s{sSLOT}
s_cmp_gt_u32 s{sW}, 1
s_cbranch_scc1 L_nopf
v_lshlrev_b32 v2, 7, v0
v_min_u32 v2, L_end-L_pc, v2
global_load_dword v2, v2, s[4:5]
L_nopf:
s_bitcmp1_b32 s2, 3
s_cbranch_scc0 L_conv
s_bitcmp1_b32 s2, 4
s_cbranch_scc0 L_ffn
s_lshr_b32 s{sI}, s{sI}, 1
v_lshlrev_b32 v4, 4, v{LANE}
s_lshl_b32 s{sT2}, s{sI}, 15
s_lshl_b32 s{sT1}, s{sW}, 12
s_add_u32 s{sT2}, s{sT2}, s{sT1}
v_add_u32 v5, s{sT2}, v4
s_waitcnt lgkmcnt(0)''')
stamp(1)
E(f'''global_load_dwordx4 {vr(vWRv,4)}, v4, {sp(sWR)}
global_load_dwordx4 {vr(vGWv,4)}, v4, {sp(sGW)}
global_load_dwordx4 {vr(vXA,4)}, v5, {sp(sX)}{NTX}
global_load_dwordx4 {vr(vXA+4,4)}, v5, {sp(sX)} offset:1024{NTX}
global_load_dwordx4 {vr(vXA+8,4)}, v5, {sp(sX)} offset:2048{NTX}
global_load_dwordx4 {vr(vXA+12,4)}, v5, {sp(sX)} offset:3072{NTX}
s_load_dword s{sTAG}, {sp(sWS)}, {WS_EPOCH}
s_branch L_rg
L_conv:
s_and_b32 s{sCH}, s{sW}, 3
s_lshr_b32 s{sIO}, s{sW}, 2
s_lshl_b32 s{sT2}, s{sI}, 3
s_lshl_b32 s{sT1}, s{sCH}, 1
s_add_u32 s{sT0}, s{sT2}, s{sT1}
v_mov_b32 v10, s{sT0}
s_add_u32 s{sT0}, s{sT0}, s{sIO}
s_lshl_b32 s{sT0}, s{sT0}, 7
v_lshl_add_u32 v1, v{LANE}, 1, s{sT0}
v_mov_b32 v{vLA}, 0
v_mov_b32 v{vAI}, 0
v_mov_b32 v{vCR}, 0
v_mov_b32 v{vCI}, 0
v_mov_b32 v{vDT}, 0
s_waitcnt lgkmcnt(0)''')
stamp(1)
E(f'''global_load_short_d16_hi v{vLA}, v1, {sp(sLA)}{NTP}
global_load_short_d16_hi v{vDT}, v10, {sp(sLDT)}
global_load_short_d16_hi v{vAI}, v1, {sp(sAI)}{NTP}
global_load_short_d16_hi v{vCR}, v1, {sp(sCR)}{NTP}
global_load_short_d16_hi v{vCI}, v1, {sp(sCI)}{NTP}
v_and_b32 v11, 255, v0
v_lshl_add_u32 v{vXO}, v11, 11, s{sT2}
v_add_u32 v{vXO+1}, {512*1024}, v{vXO}
v_add_u32 v{vXO+2}, {1024*1024}, v{vXO}
v_add_u32 v{vXO+3}, {1536*1024}, v{vXO}
s_cmp_ge_u32 s{sW}, 4
s_cbranch_scc1 L_cio0''')
STOR = {0:0,1:1,2:2,3:3, 16:4,17:5,18:6,19:7,20:8,12:9, 15:10, 13:11,14:12,4:13,5:14,6:15,7:16,8:17,9:18,10:19,11:20,21:21}
assert sorted(STOR.values()) == list(range(22))
tab = [0,0,1,2,2,2,3,4,4,5,6,7,8,8,8,8]
hrow = []
for x in range(32):
    g_, r_ = (x >> 2) & 1, 4*(x >> 3) + (x & 3)
    hrow.append(STOR[13 + tab[r_] if g_ else min(r_, 12)])
planes = [sum(((hrow[x] >> b) & 1) << x for x in range(32)) for b in range(5)]
E(f'''s_lshl_b32 s{sT0}, s{sSLOT}, 7
s_lshl_b32 s{sT1}, s{sW}, 5
s_add_u32 s{sT0}, s{sT0}, s{sT1}
v_and_b32 v13, 31, v{LANE}
v_add_u32 v12, s{sT0}, v13
v_lshl_add_u32 v12, v12, 10, s{sT2}
v_mov_b32 v{GA}, 0
s_barrier''')
if XWARM: E(f'global_load_dword v1, v12, {sp(sX)}')
if WW:
    E(f'''s_and_b32 s{sT0}, s2, 7
    s_mul_i32 s{sT0}, s{sT0}, 7
    s_lshr_b32 s{sT0}, s{sT0}, 1
    s_add_u32 s{sT0}, s{sT0}, s{sW}
    s_lshl_b32 s{sT0}, s{sT0}, 7
    s_lshr_b32 s{sT1}, s{sSLOT}, 1
    s_mul_i32 s{sT1}, s{sT1}, {64*3584}
    s_add_u32 s{sT0}, s{sT0}, s{sT1}
    v_max_u32 v12, 16, v{LANE}
    v_mul_u32_u24 v12, 3584, v12
    v_add_u32 v12, s{sT0}, v12
    s_bitcmp1_b32 s{sSLOT}, 0
    s_cselect_b64 {sp(sT4)}, {sp(sWU)}, {sp(sWG)}
    global_load_dword v9, v12, {sp(sT4)}''')
E(f'''s_mov_b64 exec, 1
global_load_short_d16_hi v{GA}, v10, {sp(sDS)}
s_mov_b64 exec, -1''')
for r in range(1, 16): E(f'v_mov_b32 v{GA+r}, 0')
for b_ in range(4, -1, -1):
    E(f's_mov_b32 s{sT0}, {planes[b_]}')
    if b_ == 4: E(f'v_bfe_u32 v{vA}, s{sT0}, v13, 1')
    else: E(f'v_bfe_u32 v12, s{sT0}, v13, 1\nv_lshl_or_b32 v{vA}, v{vA}, 1, v12')
E(f'''v_lshrrev_b32 v12, 5, v{LANE}
s_mul_i32 s{sT0}, s{sW}, {HIB}
s_add_u32 s{sT0}, s{sT0}, {HI0}
s_mul_i32 s{sT1}, s{sW}, {LOB}
v_lshl_add_u32 v10, v12, 4, s{sT0}
v_lshl_add_u32 v11, v12, 4, s{sT1}
s_mov_b32 s{sT2}, {ROWB}
v_mad_u32_u24 v{vA}, v{vA}, s{sT2}, v10
v_mad_u32_u24 v{vB}, v13, s{sT2}, v11
s_lshl_b32 s{sT0}, s{sW}, 12
s_add_u32 s{sT0}, s{sT0}, {SM0}
s_add_u32 s{sT2}, s{sT0}, {2*(543-7)}
v_lshlrev_b32 v10, 4, v{LANE}
v_sub_u32 v{vKX}, s{sT2}, v10
v_and_b32 v10, 1, v{LANE}
v_lshrrev_b32 v11, 1, v{LANE}
v_lshl_add_u32 v11, v11, 2, s{sT0}
v_lshl_add_u32 v{vK3}, v10, 8, v11
v_lshl_add_u32 v{vK4}, v{LANE}, 1, s{sT0}
v_and_b32 v11, 15, v{LANE}
v_and_b32 v12, 48, v{LANE}
v_mul_u32_u24 v13, {KY+2}, v10
v_lshl_add_u32 v13, v11, 1, v13
v_sub_u32 v{vCA}, v12, v13
s_add_u32 s{sT2}, s{sT0}, {KY+2*(544-16)-1024}
v_add_u32 v{vCA}, s{sT2}, v{vCA}
v_add_u32 v{vCA2}, 512, v{vCA}
s_mul_i32 s{sT2}, s{sW}, {UCB}
s_add_u32 s{sT2}, s{sT2}, {UB0}
v_lshl_add_u32 v{vCB}, v11, 5, v12
v_add_u32 v{vCB}, s{sT2}, v{vCB}
v_lshl_add_u32 v{vY}, v11, 4, s{sT1}
v_mad_u32_u24 v{vY}, v12, {YG//16}, v{vY}
s_add_u32 s{sT2}, s{sT0}, {F3+4*13}
v_lshl_add_u32 v{vTZ}, v11, 2, s{sT2}
v_sub_u32 v{vTZ}, v{vTZ}, v12
''')
if ICW and ICWHO == 'm': hop_call()
E(f'''s_waitcnt vmcnt({1 + XWARM + WW})
s_branch L_ckgen
L_cio0:
s_barrier''')
def uload(p):
    E(f'global_load_dwordx2 {vr(vX+4*p,2)}, v{vXO+p}, {sp(sX)}')
    E(f'global_load_dwordx2 {vr(vX+4*p+2,2)}, v{vXO+p}, {sp(sX)} offset:1024')
NUP = sum(1 for x in UPOS if x == 0)
for p in range(NUP): uload(p)
E(f'''v_mov_b32 v32, 0
v_mov_b32 v33, 0
v_mov_b32 v34, 0
v_mov_b32 v35, 0
s_mul_i32 s{sT0}, s{sCH}, {UCB}
s_add_u32 s{sT0}, s{sT0}, {UB0}
v_min_u32 v13, 29, v{LANE}
v_lshl_add_u32 v12, v13, 4, s{sT0}
ds_write_b128 v12, v[32:35]
s_lshl_b32 s{sT0}, s{sCH}, 12
s_add_u32 s{sT0}, s{sT0}, {SM0}
v_lshl_add_u32 v12, v{LANE}, 4, s{sT0}
ds_write_b128 v12, v[32:35]
ds_write_b128 v12, v[32:35] offset:1024
ds_write_b128 v12, v[32:35] offset:2048
ds_write_b128 v12, v[32:35] offset:3072
v_lshlrev_b32 v64, 2, v11
v_add_u32 v64, {UB0+UPAD}, v64
v_bfe_u32 v12, v0, 1, 2
v_bfe_u32 v13, v0, 7, 1
v_lshl_add_u32 v12, v13, 2, v12
v_mul_u32_u24 v67, {YG}, v12
v_bfe_u32 v12, v0, 3, 4
v_lshl_add_u32 v67, v12, 4, v67
v_and_b32 v12, 1, v0
v_lshl_add_u32 v67, v12, 3, v67
s_lshl_b32 s{sT2}, s{sW}, 2
s_add_u32 s{sT2}, s{sT2}, {SM0+FLG}
v_mov_b32 v68, s{sT2}
v_mov_b32 v69, {SM0+FLG}
s_mov_b32 s{sP0}, 0x05040100
s_mov_b32 s{sP1}, 0x07060302
; band fragments (0/1 window matrices): IO wave ch builds window ch, wave 7 also the two-tap mask
s_mov_b32 s{sT1}, {7 << 11}
s_cmp_eq_u32 s{sCH}, 1
s_cselect_b32 s{sT1}, {31 << 6}, s{sT1}
s_cmp_eq_u32 s{sCH}, 2
s_cselect_b32 s{sT1}, {127 << 5}, s{sT1}
s_cmp_eq_u32 s{sCH}, 3
s_cselect_b32 s{sT1}, {511 << 4}, s{sT1}
s_mov_b32 s{sT0}, 0x10001
s_mov_b32 s{sT3}, 0x3f80
s_lshl_b32 s{sT2}, s{sCH}, 10
s_add_u32 s{sT2}, s{sT2}, {BND}
v_lshl_add_u32 v9, v{LANE}, 4, s{sT2}
v_and_b32 v10, 15, v{LANE}
v_lshrrev_b32 v13, 4, v{LANE}
v_lshlrev_b32 v13, 3, v13
L_band:
v_lshlrev_b32 v12, v10, s{sT1}
v_bfe_u32 v12, v12, v13, 8
v_lshl_or_b32 v12, v12, 15, v12
v_lshrrev_b32 v41, 2, v12
v_lshrrev_b32 v42, 4, v12
v_lshrrev_b32 v43, 6, v12
v_and_b32 v40, s{sT0}, v12
v_and_b32 v41, s{sT0}, v41
v_and_b32 v42, s{sT0}, v42
v_and_b32 v43, s{sT0}, v43
v_mul_u32_u24 v40, s{sT3}, v40
v_mul_u32_u24 v41, s{sT3}, v41
v_mul_u32_u24 v42, s{sT3}, v42
v_mul_u32_u24 v43, s{sT3}, v43
ds_write_b128 v9, v[40:43]
s_cmp_eq_u32 s{sT1}, {511 << 4}
s_mov_b32 s{sT1}, {3 << 12}
s_mov_b32 s{sT3}, 0xffff
v_add_u32 v9, 1024, v9
s_cbranch_scc1 L_band
{"s_setprio 1" if KPRIO == 'io' else ""}
s_waitcnt vmcnt({2*NUP})
L_ckgen:''')
stamp(2)
a, b, c, d = 10, 11, 12, 13
E(f'''v_mul_f32 v{a}, {f32(L2E_HI)}, v{vLA}
v_mul_f32 v{b}, {f32(L2E_HI)}, v{vDT}
v_rndne_f32 v{c}, v{a}
v_rndne_f32 v{d}, v{b}
v_sub_f32 v{a}, v{a}, v{c}
v_sub_f32 v{b}, v{b}, v{d}
v_fmac_f32 v{a}, {f32(L2E_LO)}, v{vLA}
v_fmac_f32 v{b}, {f32(L2E_LO)}, v{vDT}
v_exp_f32 v{a}, v{a}
v_exp_f32 v{b}, v{b}
v_cvt_i32_f32 v{c}, v{c}
v_cvt_i32_f32 v{d}, v{d}
v_ldexp_f32 v{a}, v{a}, v{c}
v_ldexp_f32 v{b}, v{b}, v{d}
s_lshl_b32 s{sT1}, s{sIO}, 8
s_mul_i32 s{sT2}, s{sCH}, {LOB}
v_cvt_pk_bf16_f32 v{a}, v{a}, v{b}
s_add_u32 m0, s{sT2}, s{sT1}
v_and_b32 v{vDT}, 0xffff0000, v{a}
v_lshlrev_b32 v{a}, 16, v{a}
s_mul_i32 s{sT2}, s{sCH}, {HIB}
v_mul_f32 v{a}, v{a}, v{vDT}
v_mul_f32 v{vAI}, v{vAI}, v{vDT}
s_add_u32 s{sT1}, s{sT1}, s{sT2}
v_mul_f32 v{vLA}, {f32(-L2E)}, v{a}
v_mul_f32 v{vAI}, {f32(0.15915494309189535)}, v{vAI}
s_add_u32 s{sT1}, s{sT1}, {HIX}
v_mul_f32 v{a}, {f32(8.0)}, v{vLA}
v_mul_f32 v{b}, {f32(8.0)}, v{vAI}
s_cmp_eq_u32 s{sIO}, 0''')
vW1, vW8, vW256 = 36, 38, 40
E(f'''v_exp_f32 v{a}, v{a}
v_fract_f32 v{b}, v{b}
v_exp_f32 v{c}, v{vLA}
v_fract_f32 v{d}, v{vAI}
v_cos_f32 v{vW8}, v{b}
v_sin_f32 v{vW8+1}, v{b}
v_cos_f32 v{vW1}, v{d}
v_sin_f32 v{vW1+1}, v{d}
v_add_f32 v{vDT}, v{vDT}, v{vDT}
v_mov_b32 v35, 0x3f80
v_pk_mul_f32 {vr(vW8,2)}, {vr(vW8,2)}, {vr(a,2)} op_sel:[0,0] op_sel_hi:[1,0]
v_pk_mul_f32 {vr(vW1,2)}, {vr(vW1,2)}, {vr(c,2)} op_sel:[0,0] op_sel_hi:[1,0]
v_pk_mul_f32 {vr(vCR,2)}, {vr(vCR,2)}, {vr(vDT,2)} op_sel:[0,0] op_sel_hi:[1,0]
ds_write_addtid_b32 v35 offset:0''')
tmpc = [0]
pendw = []
nextp = [NUP]
def flushw():
    while pendw: E(pendw.pop(0))
def cmul(D, X, W):
    E(f'v_pk_mul_f32 {vr(D,2)}, {vr(X,2)}, {vr(W,2)} op_sel:[0,0] op_sel_hi:[0,1]')
    flushw()
    E(f'v_pk_fma_f32 {vr(D,2)}, {vr(X,2)}, {vr(W,2)}, {vr(D,2)} op_sel:[1,1,0] op_sel_hi:[1,0,1] neg_lo:[1,0,0]')
def put(X, off, neg):
    t = 32 + (tmpc[0] & 3)
    E(f'v_cvt_pk_bf16_f32 v{t}, v{X}, {"-" if neg else ""}v{X+1}')
    pendw.append(f'ds_write_addtid_b32 v{t} offset:{off}')
    tmpc[0] += 1
    while nextp[0] < 4 and UPOS[nextp[0]] == tmpc[0]:
        E(f's_cbranch_scc1 L_mid{nextp[0]}')
        uload(nextp[0])
        E(f'L_mid{nextp[0]}:')
        nextp[0] += 1
put(vW8, ROWB, False)
P0, P1 = 46, 48
cur = vW8
for i in range(2, 32):
    nxt = P0 if cur != P0 else P1
    cmul(nxt, cur, vW8)
    put(nxt, i*ROWB, False)
    cur = nxt
cmul(vW256, cur, vW8)
E(f's_mov_b32 m0, s{sT1}')
hoff = lambda row: HI0 - HIX + STOR[row]*ROWB
H = [50, 52, 54, 56, 58]
put(vCR, hoff(0), True)
cur = vCR
keep = {0: vCR}
for e in range(1, 9):
    nxt = H[e//2] if e % 2 == 0 else P0
    cmul(nxt, cur, vW1)
    put(nxt, hoff(e), True)
    cur = nxt
    if e % 2 == 0: keep[e] = nxt
for e, row in ((0, 13), (2, 14), (6, 16)):
    cmul(P0, keep[e], vW256)
    put(P0, hoff(row), True)
cur = keep[4]
for row in (15, 9, 18):
    nxt = P0 if cur != P0 else P1
    cmul(nxt, cur, vW256); put(nxt, hoff(row), True); cur = nxt
cur = keep[8]
for row in (17, 10, 19, 11, 20, 12, 21):
    nxt = P0 if cur != P0 else P1
    cmul(nxt, cur, vW256); put(nxt, hoff(row), True); cur = nxt
flushw()
NMID = nextp[0] - 1
stamp(3)
E(f's_cbranch_scc0 L_cio1')
m_begin = len(out)
def gread(s):
    r = GF + 8*(s % 8)
    E(f'ds_read_b128 {vr(r,4)}, v{vA} offset:{32*s}')
    E(f'ds_read_b128 {vr(r+4,4)}, v{vB} offset:{32*s}')
fill = [f's_lshl_b32 s{sT2}, s{sW}, 2', f's_add_u32 s{sT2}, s{sT2}, {SM0+FLG}', f'v_mov_b32 v{vFL}, s{sT2}', f'v_mov_b32 v8, {SM0+FLG}',
        f'v_lshlrev_b32 v10, 4, v{LANE}', f'v_add_u32 v10, {BND}, v10']
def dofill(n):
    while n > 0 and fill:
        x = fill.pop(0); E(x)
        if x.startswith('v_'): n -= 1
def gemm_part(s0, n, extra=None):
    for s in range(s0, s0+6): gread(s)
    dofill(99)
    nx = 0
    for s in range(s0, s0+n):
        if s + 6 < s0 + n: gread(s+6)
        if s == s0 + n - 4 and extra: nx = extra()
        E(f's_waitcnt lgkmcnt({2*min(6, s0 + n - 1 - s) + nx})')
        r = GF + 8*(s % 8)
        E(f'v_mfma_f32_32x32x16_bf16 {vr(GA,16)}, {vr(r,4)}, {vr(r+4,4)}, {vr(GA,16)}')
E(f'''s_waitcnt vmcnt(0) lgkmcnt(1)
s_mov_b64 exec, 1
v_add_f32 v{GA}, -1.0, v{GA}
s_mov_b64 exec, -1''')
if GEMM1: gemm_part(0, 8)
stamp(13)
E('s_barrier')
if 'twice' in OPT: E('s_mov_b32 s7, 0\nL_twice:')
stamp(4)

def aread(q):
    base, off = (vCA, (1024-64*q)//4) if q >= 9 else (vCA2, (512-64*q)//4)
    return [f'ds_read2_b32 {vr(AF+4*q,2)}, v{base} offset0:{off} offset1:{off+1}',
            f'ds_read2_b32 {vr(AF+4*q+2,2)}, v{base} offset0:{off+2} offset1:{off+3}']
def tzread(i):
    if i < 6: off = (i//3)*64 + 16*(i % 3)
    else: off = (F4-F3)//4 + 16*(i-6)
    return [f'ds_read2_b32 {vr(TZ+4*i,2)}, v{vTZ} offset0:{off+3} offset1:{off+2}',
            f'ds_read2_b32 {vr(TZ+4*i+2,2)}, v{vTZ} offset0:{off+1} offset1:{off}']
def boff(k):
    kind, tp, q = k
    return UPAD + 512*tp - 32 - (16 if kind == 'Z' else 64*q)
band = lambda i: vr(vBAND+4*i, 4)
stream = []
def mk(tile, a_, b_, dst=None): stream.append(('m', tile, a_, b_, dst))
def parts(tp):
    G0 = ('B', tp, 0) if tp == 0 else ('G', tp, 0); Z = ('Z', tp, 0); B0 = ('B', tp, 0)
    gen = []; cv = []
    if tp <= 5:
        gen += [(8, Z, 0), (12, Z, 1)]
        if tp <= 3: gen += [(20, Z, 3)]
        gen += [(0, G0, 0), (4, G0, 1)]
        if tp <= 3: gen += [(16, G0, 2)]
        for base in ((8, 0, 16) if tp <= 3 else (8, 0)):
            for jj in range(4): cv.append(f'v_cvt_pk_bf16_f32 v{DT+base+jj}, v{DT+base+jj}, v{DT+base+4+jj}')
    own = [(tp, ('A', q), ('B', tp, q)) for q in range(8)]
    nxt = [(tp+1, ('A', q+8), ('B', tp, q)) for q in range(8)] if tp < 7 else []
    lead = []
    if tp <= 5: lead.append((tp+2, ('A', 16), G0))
    if tp <= 3: lead.append((tp+4, band(4), G0))
    far = []
    if tp <= 5:
        for dl in range(3):
            if tp + 2 + dl <= 7:
                far.append((tp+2+dl, vr(DT+8, 4), ('T', 3+dl)))
                far.append((tp+2+dl, vr(DT, 4), ('T', dl)))
    if tp <= 3:
        for dl in range(4):
            if tp + 4 + dl <= 7: far.append((tp+4+dl, vr(DT+16, 4), ('T', 6+dl)))
    return gen, cv, own, nxt, lead, far
PT = [parts(tp) for tp in range(8)]
def with_cv(seq, cv, start, per=1):
    for i, t_ in enumerate(seq):
        mk(*t_)
        if i >= start:
            for _ in range(per):
                if cv: stream.append(('v', cv.pop(0)))
    assert not cv
gen, cv = PT[0][0], PT[0][1]
for dof, k, bi in gen[:3]: mk(None, k, band(bi), DT+dof)
stream.append(('expand',))
for dof, k, bi in gen[3:]:
    mk(None, k, band(bi), DT+dof)
    stream.append(('x2',))
seq = []
for q in range(8):
    seq += [PT[0][2][q], PT[1][2][q], PT[0][3][q], PT[1][3][q]]
with_cv(seq[:30], cv, 8)
stream.append(('mark', 0))
with_cv(seq[30:31], [], 0)
stream.append(('mark', 1))
with_cv(seq[31:] + PT[0][4], [], 0)
for tp in range(2, 8):
    src = tp - 2
    if src >= 1:
        for dof, k, bi in PT[src][0]: mk(None, k, band(bi), DT+dof)
    seq = PT[src][4] if src >= 1 else []
    for q in range(8):
        if tp < 7: seq = seq + [PT[tp][3][q]]
        seq = seq + [PT[tp][2][q]]
    if tp == 7: with_cv(seq, PT[src][1], 5, 2); stream.append(('v', 's_nop 0'))
    else: with_cv(seq, PT[src][1], 5)
    far = PT[src][5]
    with_cv(far[:2], [], 0)
    stream.append(('mark', tp))
    with_cv(far[2:], [], 0)
    if tp == 6: stream.append(('part',))
order = []
first, last = {}, {}
for i, it in enumerate(stream):
    if it[0] == 'm':
        for k in (it[2], it[3]):
            if isinstance(k, tuple):
                if k not in first: first[k] = i; order.append(k)
                last[k] = i
slot, free_after = {}, {}
slotfree = {(s_+6) % NSLOT: -1 for s_ in range(NSLOT)}
for k in order:
    if k[0] in 'BZG':
        s_ = min(slotfree, key=lambda z: slotfree[z])
        slot[k] = s_; free_after[k] = slotfree[s_]; assert free_after[k] < first[k]
        del slotfree[s_]; slotfree[s_] = last[k]
def reg(k):
    if not isinstance(k, tuple): return k
    if k[0] == 'A': return vr(AF+4*k[1], 4)
    if k[0] == 'T': return vr(TZ+4*k[1], 4)
    return vr(BR+4*slot[k], 4)
issued = []; done_upto = [0]; lastop = {}; itime = []; mcount = [0]
OLD = int(OPT.get('old', 6))
expanded = [False]
checked = {0} if ST0 == 'pre' else set()
FOFF = 0 if ST0 == 'pre' else 1
flagread = {}
def wait_for(idx, slack=0):
    if idx < done_upto[0]: return
    idx = max(idx, min(idx + slack, len(issued) - 5))
    n = len(issued) - 1 - idx
    assert n <= 15
    E(f's_waitcnt lgkmcnt({n})')
    done_upto[0] = idx + 1
def lds(txt, key=None):
    if len(issued) - done_upto[0] >= 15: wait_for(done_upto[0] + 3)
    E(txt); issued.append(key); itime.append(mcount[0])
    if key is not None: lastop[key] = len(issued) - 1
def can_issue(k, i):
    if k[0] in 'AT': return expanded[0]
    return free_after[k] <= i
def issue(k):
    order.remove(k)
    if k[0] == 'A':
        for x in aread(k[1]): lds(x, k)
    elif k[0] == 'T':
        for x in tzread(k[1]): lds(x, k)
    else:
        ph = k[1]//2
        if ph not in checked:
            if ph not in flagread:
                lds(f'ds_read_b128 v[4:7], v8 offset:16', ('F', ph)); flagread[ph] = 1
            wait_for(lastop[('F', ph)])
            E(f'''v_min_u32 v4, v4, v5
            v_min3_u32 v4, v4, v6, v7
            v_cmp_le_u32 vcc, {ph+FOFF}, v4
            s_cbranch_vccz L_uc{ph}
            L_uc{ph}d:''')
            checked.add(ph)
        lds(f'ds_read_b128 {reg(k)}, v{vCB} offset:{boff(k)}', k)
        nb = [x for x in order if x[0] in 'BZG'][:2]
        for x in nb:
            if x[1]//2 not in checked and x[1]//2 not in flagread:
                lds(f'ds_read_b128 v[4:7], v8 offset:16', ('F', x[1]//2)); flagread[x[1]//2] = 1
def prefetch(i, n):
    n0 = len(issued)
    while len(issued) - n0 < n:
        if len(issued) - done_upto[0] >= 13:
            old = [j for j in range(done_upto[0], len(issued)) if itime[j] <= mcount[0] - OLD]
            if len(old) < 3 or not order: break
            wait_for(old[-1])
        cand = [k for k in order[:(6 if expanded[0] else 24)] if can_issue(k, i) and not (k[0] in 'BZG' and k[1]//2 not in checked and first[k] > i + 14)]
        if not cand: break
        issue(cand[0])
D = lambda r: f'v{GA+r}'
def expand():
    global NOPX
    NOPX = max(0, 11 - (ninstr() - gemm_end - ('mid' in OPT)))
    t = AF + 48
    E(f'''s_nop NOPX
    v_cvt_pk_bf16_f32 v{t}, {D(7)}, {D(6)}
    v_cvt_pk_bf16_f32 v{t+1}, {D(5)}, {D(4)}
    v_cvt_pk_bf16_f32 v{t+2}, {D(3)}, {D(2)}
    v_cvt_pk_bf16_f32 v{t+3}, {D(1)}, {D(0)}''')
    lds(f'ds_write_b128 v{vKX}, {vr(t,4)} offset:{KX}')
    E(f'''v_cvt_pk_bf16_f32 v{t+4}, {D(8)}, {D(7)}
    v_cvt_pk_bf16_f32 v{t+5}, {D(6)}, {D(5)}
    v_cvt_pk_bf16_f32 v{t+6}, {D(4)}, {D(3)}
    v_cvt_pk_bf16_f32 v{t+7}, {D(2)}, {D(1)}''')
    lds(f'ds_write_b128 v{vKX}, {vr(t+4,4)} offset:{KY}')
    E(f'''v_cvt_pk_bf16_f32 v{t+10}, {D(0)}, 0
    s_mov_b64 exec, 1''')
    lds(f'ds_write_b32 v{vKX}, v{t+10} offset:{KY+16}')
    E('s_mov_b64 exec, -1')
    for k in (('A', 0), ('A', 8), ('A', 1), ('A', 9)): issue(k)
    if 'mid' in OPT: stamp(5)
def x2(n):
    t = AF + 48
    if n == 0:
        E(f'''v_cvt_pk_bf16_f32 v{t+8}, 0, {D(8)}
        v_cvt_pk_bf16_f32 v{t+9}, {D(8)}, {D(8)}
        v_subrev_u32 v{vKX}, 8, v{vKX}
        s_mov_b32 exec_lo, 0
        s_mov_b32 exec_hi, 0x80000000''')
        lds(f'ds_write_b64 v{vKX}, {vr(t+8,2)} offset:{KX}')
        lds(f'ds_write_b32 v{vKX}, v{t+9} offset:{KY+4}')
        E('s_mov_b64 exec, -1')
    elif n == 1:
        E(f'''v_cvt_pk_bf16_f32 v{t+13}, {D(10)}, {D(10)}
        v_cvt_pk_bf16_f32 v{t+11}, {D(9)}, {D(10)}
        v_cvt_pk_bf16_f32 v{t+12}, {D(11)}, {D(12)}
        v_readlane_b32 s{sT2}, v{t+13}, 63''')
        lds(f'ds_write_b32 v{vK3}, v{t+11} offset:{F3+64}')
        lds(f'ds_write_b16 v{vK4}, v{t+12} offset:{F4+64}')
        lds(f'ds_write_b16_d16_hi v{vK4}, v{t+12} offset:{F4+64+128}')
        expanded[0] = True
    else:
        for jj in range(4): E(f'v_and_b32 v{vBAND+16+jj}, s{sT2}, v{vBAND+16+jj}')
        expanded[0] = True
x2n = [0]
vPA = 10
accinit = set()
ypend = []
def first_b():
    for bi in (0, 1, 3, 2, 4): lds(f'ds_read_b128 {band(bi)}, v10 offset:{1024*bi}', ('W', bi))
    if ST0 == 'pre':
        for k in [k for k in order if k[0] in 'BZG'][:2]: issue(k)
    else:
        lds(f'ds_read_b128 v[4:7], v8 offset:16', ('F', 0)); flagread[0] = 1
    return len(issued)
gemm_part(8, 8, first_b) if GEMM1 else gemm_part(0, 16, first_b)
assert not fill, fill
gemm_end = ninstr()
if 'mid' in OPT: stamp(8)
for i, it in enumerate(stream):
    n0 = ninstr()
    if it[0] == 'mark':
        tp = it[1]
        if 'mid' in OPT and tp in (1, 2, 3, 5): stamp({1: 6, 2: 9, 3: 14, 5: 15}[tp])
        ypend.append([8, [('ds', f'ds_write_b128 v{vY}, {vr(ACC+4*tp,4)} offset:{4*YG*tp}'), ('v', f'v_mov_b32 v13, {tp+1}'), ('ds', f'ds_write_b32 v{vFL}, v13')]])
        continue
    if it[0] == 'expand': expand()
    elif it[0] == 'x2': x2(x2n[0]); x2n[0] += 1
    elif it[0] == 'part':
        E(f'''s_cmp_lg_u32 s{sW}, 0
        s_cbranch_scc1 L_nopart
        s_lshl_b32 s{sT2}, s{sI}, 10
        s_add_u32 s{sT2}, s{sT2}, {WS_PART}
        v_min_u32 v{vPA}, 55, v{LANE}
        v_lshl_add_u32 v{vPA}, v{vPA}, 4, s{sT2}
        global_load_dwordx4 {vr(TZ+24,4)}, v{vPA}, {sp(sWS)} sc1
        L_nopart:''')
        n0 = ninstr() - 2
    elif it[0] == 'v': E(it[1])
    else:
        _, tile, a_, b_, dst = it
        for k in (a_, b_):
            if isinstance(k, tuple) and k in order:
                assert can_issue(k, i-1), (k, i)
                issue(k)
        need = [lastop[k] for k in (a_, b_) if isinstance(k, tuple)]
        if need: wait_for(max(need), 2)
        if tile is None: E(f'v_mfma_f32_16x16x32_bf16 {vr(dst,4)}, {reg(a_)}, {reg(b_)}, 0')
        else:
            c_ = vr(ACC+4*tile, 4) if tile in accinit else '0'
            accinit.add(tile)
            E(f'v_mfma_f32_16x16x32_bf16 {vr(ACC+4*tile,4)}, {reg(a_)}, {reg(b_)}, {c_}')
        mcount[0] += 1
        for p in ypend: p[0] -= ninstr() - n0
        n0 = ninstr()
        if ypend and ypend[0][0] <= 0:
            for _ in range(2):
                if ypend[0][1]:
                    kind, txt = ypend[0][1].pop(0)
                    if kind == 'ds': lds(txt)
                    else: E(txt)
            if not ypend[0][1]: ypend.pop(0)
        else:
            prefetch(i, 4 if not expanded[0] else AHEAD if any(k[0] in 'AT' for k in order) else 1)
    for p in ypend: p[0] -= ninstr() - n0
assert not order
for p in ypend:
    if p[0] > 0: E(f's_nop {p[0]-1}')
    n0 = ninstr()
    for kind, txt in p[1]: E(txt)
    for p2 in ypend: p2[0] -= max(p[0], 0) + ninstr() - n0
def isize(x):
    x = x.strip()
    if x.endswith(':'): return 0
    op = x.split(' ')[0]
    if op in ('s_waitcnt', 's_nop', 's_barrier', 's_cbranch_vccz', 's_cbranch_scc1', 'v_min_u32', 'v_and_b32', 'v_mov_b32', 's_mov_b64', 'v_subrev_u32', 'v_cmp_le_u32'): return 4
    return 8
if 'strip' in OPT:
    import re as _re
    pat = _re.compile(OPT['strip'])
    body = out[m_begin:]; del out[m_begin:]
    out += [x for x in body if not pat.search(x)]
NHOP = 0
if ICW:
    body = out[m_begin:]; del out[m_begin:]
    acc = ICW
    for j, x in enumerate(body):
        out.append(x); acc += isize(x)
        nxt_ok = 'v_mfma' in x or acc >= ICW - 8
        if acc >= ICW - 28 and nxt_ok and not x.endswith(':'):
            out.append(f'L_hop{NHOP}:'); out.append(f'    s_cbranch_execz L_hop{NHOP+1}'); NHOP += 1; acc = 4
    out.append(f'L_hop{NHOP}:'); out.append('    s_cbranch_execz L_hopend')
stamp(7)
if 'twice' in OPT: E(f's_waitcnt lgkmcnt(0) vmcnt(0)\nv_add_u32 v{vKX}, 8, v{vKX}\ns_add_u32 s7, s7, 1\ns_cmp_eq_u32 s7, 1\ns_cbranch_scc1 L_twice')
if 'noepi' in OPT: E('s_branch L_cdone')
E(f'''s_cmp_lg_u32 s{sW}, 0
s_cbranch_scc1 L_cdone''')
PL = TZ + 24
E(f'''s_mov_b32 s{sSPIN}, {SPIN_MAX}
L_mb:
ds_read_b128 v[4:7], v8 offset:32
s_waitcnt lgkmcnt(0)
v_cmp_ne_u32 vcc, 0, v7
s_cbranch_vccnz L_mbd''')
spin_check('L_mb')
E(f'''L_mbd:
v_readfirstlane_b32 s{sKEY}, v4
v_readfirstlane_b32 s{sTAG}, v5
v_mov_b32 v20, 0
v_mov_b32 v21, 0
v_mov_b32 v22, 0
v_mov_b32 v23, 0
s_andn2_b32 s{sIDX}, 2047, s{sKEY}
s_lshl_b32 s{sT0}, s{sIDX}, 1
s_add_u32 s{sT0}, s{sT0}, {UB0+UPAD}
v_mov_b32 v11, s{sT0}''')
for k in range(4):
    E(f'ds_read_u16_d16_hi v{20+k}, v11 offset:{k*UCB}')
E(f'''s_lshr_b32 s{sT2}, s{sIDX}, 8
s_lshl_b32 s{sT0}, s{sT2}, 2
s_bfe_u32 s{sT1}, s{sIDX}, 0x20002
s_add_u32 s{sT0}, s{sT0}, s{sT1}
s_mul_i32 s{sT0}, s{sT0}, {YG}
s_and_b32 s{sT1}, s{sIDX}, 0xf0
s_add_u32 s{sT0}, s{sT0}, s{sT1}
s_and_b32 s{sT1}, s{sIDX}, 3
s_lshl_b32 s{sT1}, s{sT1}, 2
s_add_u32 s{sT0}, s{sT0}, s{sT1}
v_mov_b32 v12, s{sT0}
s_add_u32 s{sTH}, s{sT2}, 1
s_bitcmp1_b32 s{sIDX}, 0
s_cselect_b32 s{sT0}, 0, 16
v_lshlrev_b32 v24, s{sT0}, v6
v_and_b32 v24, 0xffff0000, v24
s_and_b32 s{sT0}, s{sKEY}, 0xffff0000
s_xor_b32 s{sT1}, s{sT0}, 0xffff0000
s_xor_b32 s{sT0}, s{sT0}, 0x80000000
s_bitcmp1_b32 s{sKEY}, 31
s_cselect_b32 s{sT0}, s{sT0}, s{sT1}
v_mov_b32 v25, {f32(-L2E)}
v_mul_f32 v25, s{sT0}, v25
v_exp_f32 v25, v25
v_sub_f32 v38, 1.0, v24
v_add_f32 v25, 1.0, v25
v_rcp_f32 v25, v25
v_cvt_pk_bf16_f32 v38, 0, v38
v_cvt_pk_bf16_f32 v25, 0, v25
v_mul_f32 v25, v25, v38''')
wait_flags(sTH, 'f', 8, 4, 0)
for k in range(4):
    E(f'ds_read_b32 v{16+k}, v12 offset:{k*LOB}')
E(f'''s_mov_b32 s{sT0}, 0x0c0c0400
s_mov_b32 s{sT1}, 0x04000c0c
s_mov_b32 s{sSPIN}, {SPIN_MAX}
s_branch L_pp1
L_pp:
global_load_dwordx4 {vr(PL,4)}, v{vPA}, {sp(sWS)} sc1
L_pp1:
s_waitcnt vmcnt(0)
v_perm_b32 v26, v{PL+1}, v{PL}, s{sT0}
v_perm_b32 v27, v{PL+3}, v{PL+2}, s{sT1}
v_or_b32 v26, v26, v27
v_cmp_ne_u32 vcc, s{sTAG}, v26
s_cbranch_vccz L_ppd''')
spin_check('L_pp')
E('L_ppd:')
stamp(12)
E(f'''s_mov_b32 exec_lo, 0
s_mov_b32 exec_hi, 0xff000000
v_mov_b32 v{PL}, 0
v_mov_b32 v{PL+1}, 0
v_mov_b32 v{PL+2}, 0
v_mov_b32 v{PL+3}, 0
s_mov_b64 exec, -1
s_waitcnt lgkmcnt(0)
v_fmac_f32 v20, v16, v24
v_permlane32_swap_b32 v{PL}, v{PL+2}
v_fmac_f32 v21, v17, v24
v_permlane32_swap_b32 v{PL+1}, v{PL+3}
v_add_f32 v{PL}, v{PL}, v{PL+2}
v_add_f32 v{PL+1}, v{PL+1}, v{PL+3}
v_fmac_f32 v22, v18, v24
v_fmac_f32 v23, v19, v24
v_permlane16_swap_b32 v{PL}, v{PL+1}
s_lshl_b32 s{sT0}, s{sIDX}, 10
v_add_f32 v{PL}, v{PL}, v{PL+1}
s_lshl_b32 s{sT1}, s{sI}, 3
s_add_u32 s{sT0}, s{sT0}, s{sT1}''')
for sh in (8, 4, 2, 1):
    E(f'''v_add_f32_dpp v{PL}, v{PL}, v{PL} row_ror:{sh} {DPPF}''')
    if sh != 1: E('s_nop 1')
E(f'''v_cvt_pk_bf16_f32 v{PL}, 0, v{PL}
v_mov_b32 v10, s{sT0}
v_readlane_b32 s{sT0}, v{PL}, 0
v_readlane_b32 s{sT1}, v{PL}, 16
v_readlane_b32 s{sT2}, v{PL}, 32
v_readlane_b32 s{sT3}, v{PL}, 48
v_fmac_f32 v20, s{sT0}, v25
v_fmac_f32 v21, s{sT1}, v25
v_fmac_f32 v22, s{sT2}, v25
v_fmac_f32 v23, s{sT3}, v25
v_cvt_pk_bf16_f32 v16, v20, v21
v_cvt_pk_bf16_f32 v17, v22, v23
s_mov_b64 exec, 1
global_store_dwordx2 v10, v[16:17], {sp(sOUT)}
s_branch L_cdone''')
for ph in ((1, 2, 3) if ST0 == 'pre' else (0, 1, 2, 3)):
    E(f'''L_uc{ph}:
    s_mov_b32 s{sTH}, {ph+FOFF}
    v_add_u32 v12, 16, v8''')
    if ph == 1: stamp(1)
    wait_flags(sTH, f'u{ph}', 12, 4, 0)
    if ph == 1: stamp(2)
    E(f's_branch L_uc{ph}d')
vP, vG, vGF, vYV = 80, 72, 112, 32
def stage(p):
    for k in range(4):
        E(f'v_perm_b32 v{40+k}, v{vX+4*p+2+(k>>1)}, v{vX+4*p+(k>>1)}, s{sP1 if k & 1 else sP0}')
    for k in range(4):
        E(f'ds_write_b32 v64, v{40+k} offset:{k*UCB+1024*p}')
def unpack(p):
    for j in range(2):
        for h in range(2):
            E(f'''v_lshlrev_b32 v{vP+8*p+4*j+2*h}, 16, v{vX+4*p+2*j+h}
            v_and_b32 v{vP+8*p+4*j+2*h+1}, 0xffff0000, v{vX+4*p+2*j+h}''')
def polls():
    E(f'''global_load_dwordx2 v[12:13], v70, {sp(sDBG)} sc1
    global_load_dwordx2 v[48:49], v65, {sp(sWS)} sc1''')
    for p in range(4):
        E(f'global_load_dwordx2 {vr(vG+2*p,2)}, v66, {sp(sWS)} offset:{-4096+2048*p} sc1')
E('L_cio1:')
if ST0 == 'pre':
    E(f's_waitcnt vmcnt({2*NMID})')
    stamp(13)
    stage(0)
E('s_waitcnt lgkmcnt(0)\ns_barrier')
stamp(4)
if ST0 != 'pre':
    E(f's_waitcnt vmcnt({2*NMID})')
    stamp(13)
    stage(0)
    E(f'v_mov_b32 v44, 1\nds_write_b32 v68, v44')
if KPRIO == 'io': E('s_setprio 0')
E(f'''v_lshlrev_b32 v65, 3, v{LANE}
v_add_u32 v65, {WS_KEYS}, v65
v_and_b32 v66, 255, v0
v_lshlrev_b32 v66, 3, v66
v_add_u32 v66, {WS_G+4096}, v66
v_mov_b32 v70, 0''')
assert NMID in (1, 2)
def stagef(p):
    stage(p)
    E(f'v_mov_b32 v44, {p+FOFF}\nds_write_b32 v68, v44')
E(f's_waitcnt vmcnt({2*(NMID-1)})')
stagef(1)
stamp(12)
if NMID == 1: uload(2)
P2FIRST = OPT.get('p2first', '0') == '1'
if P2FIRST:
    unpack(0); unpack(1)
    E('s_waitcnt vmcnt(0)')
    stagef(2)
    polls(); uload(3)
else:
    polls(); uload(3)
    unpack(0); unpack(1)
    E('s_waitcnt vmcnt(8)')
    stagef(2)
stamp(15)
if PRIO == 'io': E('s_setprio 2')
unpack(2)
def pcheck(lbl):
    E(f'''v_readfirstlane_b32 s{sTAG}, v12
    v_cmp_eq_u32 vcc, 1, v13
    v_xor_b32 v49, v49, v12
    v_xor_b32 v{vG+1}, v{vG+1}, v12
    v_xor_b32 v{vG+3}, v{vG+3}, v12
    v_xor_b32 v{vG+5}, v{vG+5}, v12
    v_xor_b32 v{vG+7}, v{vG+7}, v12
    v_or3_b32 v49, v49, v{vG+1}, v{vG+3}
    v_or3_b32 v49, v49, v{vG+5}, v{vG+7}
    v_cmp_eq_u32 {sp(sM0)}, 0, v49
    s_and_b64 vcc, vcc, {sp(sM0)}
    s_cmp_eq_u64 vcc, -1
    s_cbranch_scc1 {lbl}''')
E(f's_mov_b32 s{sS3}, 0\ns_waitcnt vmcnt(2)')
stamp(6)
pcheck('L_ptd')
E(f's_waitcnt vmcnt(0)')
stagef(3)
E(f'''s_mov_b32 s{sS3}, 1
s_mov_b32 s{sSPIN}, {SPIN_MAX}
L_pt:''')
polls()
E('s_waitcnt vmcnt(0)')
pcheck('L_ptd')
spin_check('L_pt')
E('L_ptd:')
stamp(9)
key_reduce(48)
for p in range(4):
    E(f'''v_lshlrev_b32 v{vGF+2*p}, 16, v{vG+2*p}
    v_and_b32 v{vGF+2*p+1}, 0xffff0000, v{vG+2*p}''')
E(f'''s_andn2_b32 s{sIDX}, 2047, s{sKEY}
s_lshr_b32 s{sT0}, s{sIDX}, 1
s_mov_b64 {sp(sEX)}, -1
s_bitset0_b64 {sp(sEX)}, s{sT0}
s_lshr_b32 s{sT2}, s{sIDX}, 9
s_lshl_b32 s{sJ}, s{sT2}, 1
s_and_b32 s{sT1}, s{sIDX}, 1
s_add_u32 s{sJ}, s{sJ}, s{sT1}
s_bfe_u32 s{sT1}, s{sIDX}, 0x20007
s_cmp_eq_u32 s{sT1}, s{sCH}
s_cselect_b32 s{sJ}, s{sJ}, 8
s_cbranch_scc0 L_nomb
s_and_b32 s{sT0}, s{sT0}, 63
v_readlane_b32 s{sT1}, v{vG}, s{sT0}
v_readlane_b32 s{sT3}, v{vG+2}, s{sT0}
v_readlane_b32 s{sT4}, v{vG+4}, s{sT0}
v_readlane_b32 s{sT5}, v{vG+6}, s{sT0}
s_bitcmp1_b32 s{sT2}, 0
s_cselect_b32 s{sT1}, s{sT3}, s{sT1}
s_cselect_b32 s{sT4}, s{sT5}, s{sT4}
s_bitcmp1_b32 s{sT2}, 1
s_cselect_b32 s{sT1}, s{sT4}, s{sT1}
v_mov_b32 v44, s{sKEY}
v_mov_b32 v45, s{sTAG}
v_mov_b32 v46, s{sT1}
v_mov_b32 v47, 1
ds_write_b128 v69, v[44:47] offset:32
L_nomb:
s_lshr_b32 s{sTH}, s{sCH}, 1
s_add_u32 s{sTH}, s{sTH}, 1''')
stamp(7)
for p in range(4):
    wait_flags(sTH, f'e{p}', 69, 48, SLEEP)
    if p == 0: stamp(8)
    if p == 3: stamp(14)
    for k in range(4):
        E(f'ds_read_b64 {vr(vYV+2*k,2)}, v67 offset:{k*LOB+8*YG*p}')
    E(f's_add_u32 s{sTH}, s{sTH}, 2\ns_waitcnt lgkmcnt(0)')
    for j in range(2):
        r = vP + 8*p + 4*j
        for k in range(4):
            E(f'v_fmac_f32 v{r+k}, v{vYV+2*k+j}, v{vGF+2*p+j}')
        E(f'''v_cvt_pk_bf16_f32 v{r}, v{r}, v{r+1}
        v_cvt_pk_bf16_f32 v{r+1}, v{r+2}, v{r+3}
        s_cmp_eq_u32 s{sJ}, {2*p+j}
        s_cselect_b64 exec, {sp(sEX)}, -1
        global_store_dwordx2 v{vXO+p}, {vr(r,2)}, {sp(sOUT)} offset:{1024*j}
        s_mov_b64 exec, -1''')
    if p == 0:
        E(f'''s_cmp_lg_u32 s{sS3}, 0
        s_cbranch_scc1 L_s3d
        s_waitcnt vmcnt(2)''')
        stagef(3)
        E('L_s3d:')
        stamp(5)
        unpack(3)
E('L_cdone:')
stamp(10)
if STAMPS:
    E('s_waitcnt vmcnt(0)')
    stamp(11)
write_stamps()
E('s_endpgm')

A_T = 0
E(f"""L_rg:
s_lshl_b32 s{sT0}, s{sI}, 5
s_lshl_b32 s{sT1}, s{sW}, 2
s_add_u32 s{sT0}, s{sT0}, s{sT1}
s_sub_u32 s{sT0}, 2047, s{sT0}
v_bfe_u32 v6, v{LANE}, 3, 1
v_lshrrev_b32 v5, 5, v{LANE}
v_lshl_add_u32 v5, v6, 1, v5
v_sub_u32 v5, s{sT0}, v5
s_lshl_b32 s{sT1}, s{sW}, 5
v_lshl_add_u32 v6, v6, 4, s{sT1}
v_lshrrev_b32 v7, 4, v{LANE}
v_lshl_add_u32 v6, v7, 2, v6
v_and_b32 v7, 16, v{LANE}
v_cmp_ne_u32 {sp(sM1)}, 0, v7
v_and_b32 v48, 15, v{LANE}
s_lshl_b32 s{sT0}, s{sI}, 7
s_add_u32 s{sT0}, s{sT0}, {WS_G}
v_lshl_add_u32 v49, v48, 3, s{sT0}
s_lshl_b32 s{sT0}, s{sI}, 3
s_add_u32 s{sT0}, s{sT0}, {WS_KEYS}
v_writelane_b32 v49, s{sT0}, 16
v_lshlrev_b32 v48, 4, v48
s_and_b32 s{sT0}, s2, 7
s_mul_i32 s{sT0}, s{sT0}, 7
s_lshr_b32 s{sT0}, s{sT0}, 1
s_lshr_b32 s{sT1}, s{sW}, 1
s_add_u32 s{sT0}, s{sT0}, s{sT1}
s_lshl_b32 s{sT0}, s{sT0}, 7
s_lshr_b32 s{sT1}, s{sSLOT}, 1
s_mul_i32 s{sT1}, s{sT1}, {64*3584}
s_add_u32 s{sT0}, s{sT0}, s{sT1}
v_or_b32 v47, 32, v{LANE}
v_mul_u32_u24 v47, 3584, v47
v_add_u32 v47, s{sT0}, v47
s_bitcmp1_b32 s{sW}, 0
s_cselect_b64 {sp(sT4)}, {sp(sWU)}, {sp(sWG)}
s_waitcnt lgkmcnt(0)
s_add_u32 s{sTAG}, s{sTAG}, {TAGINC}
v_mov_b32 v61, s{sTAG}
s_add_u32 s{sT0}, s{sI}, s{sW}
s_cmp_lg_u32 s{sT0}, 0
s_cbranch_scc1 L_anotag
v_mov_b32 v7, 0
v_mov_b32 v62, s{sTAG}
v_mov_b32 v63, 1
s_mov_b64 exec, 1
s_waitcnt vmcnt(0)
global_store_dwordx2 v7, v[62:63], {sp(sDBG)} sc1
s_mov_b64 exec, -1
s_branch L_rg1
L_anotag:
s_waitcnt vmcnt(2)""")
def dots(rows):
    for k in range(4):
        for r in rows:
            E(f'v_dot2_f32_bf16 v{50+r}, v{vXA+4*r+k}, v{vWRv+k}, {"0" if k == 0 else "v%d" % (50+r)}')
            E(f'v_dot2_f32_bf16 v{54+r}, v{vXA+4*r+k}, v{vGWv+k}, {"0" if k == 0 else "v%d" % (54+r)}')
E('L_rg1:')
dots((0, 1))
E('s_cbranch_scc0 L_rg2\ns_waitcnt vmcnt(0)\nL_rg2:')
stamp(2)
if RW == 'pre': E(f'global_load_dword v46, v47, {sp(sT4)}')
dots((2, 3))
E(f"""v_permlane32_swap_b32 v50, v51
v_permlane32_swap_b32 v54, v55
v_add_f32 v50, v50, v51
v_permlane32_swap_b32 v52, v53
v_add_f32 v54, v54, v55
v_permlane32_swap_b32 v56, v57
v_add_f32 v52, v52, v53
v_add_f32 v56, v56, v57
v_permlane16_swap_b32 v50, v54
s_nop 0
v_permlane16_swap_b32 v52, v56
v_add_f32 v50, v50, v54
v_add_f32 v52, v52, v56
s_nop 0
v_add_f32_dpp v51, v50, v50 row_ror:8 row_mask:0xf bank_mask:0x3
v_add_f32_dpp v53, v52, v52 row_ror:8 row_mask:0xf bank_mask:0xf
s_nop 1
v_mov_b32_dpp v51, v53 quad_perm:[0,1,2,3] row_mask:0xf bank_mask:0xc
s_nop 1
v_add_f32_dpp v51, v51, v51 row_half_mirror {DPPF}
s_nop 1
v_add_f32_dpp v51, v51, v51 quad_perm:[1,0,3,2] {DPPF}
s_nop 1
v_add_f32_dpp v50, v51, v51 quad_perm:[2,3,0,1] {DPPF}
v_cvt_pk_bf16_f32 v50, 0, v50
v_mul_f32 v52, {f32(-L2E)}, v50
v_exp_f32 v52, v52
v_ashrrev_i32 v51, 31, v50
v_add_f32 v52, 1.0, v52
v_rcp_f32 v52, v52
v_or_b32 v51, 0x80000000, v51
v_xor_b32 v50, v50, v51
v_cvt_pk_bf16_f32 v52, v52, 0
v_and_b32 v50, 0xffff0000, v50
v_or_b32 v50, v50, v5
v_cndmask_b32 v50, v50, v52, {sp(sM1)}
s_mov_b32 exec_lo, 0x01010101
s_mov_b32 exec_hi, 0x01010101
ds_write_b32 v6, v50 offset:{A_T}
s_mov_b64 exec, -1
s_waitcnt lgkmcnt(0)
s_barrier""")
stamp(3)
E(f"""s_cmp_lg_u32 s{sW}, 0
s_cbranch_scc1 L_rg3
ds_read_b128 v[52:55], v48 offset:{A_T}
s_waitcnt lgkmcnt(0)
v_max_u32 v52, v52, v54
v_lshl_or_b32 v60, v55, 16, v53
s_nop 0""")
for sh in (8, 4, 2):
    E(f'v_max_u32_dpp v52, v52, v52 row_ror:{sh} {DPPF}\ns_nop 1')
E(f"""v_max_u32_dpp v60, v52, v52 row_ror:1 row_mask:0x2 bank_mask:0xf
s_mov_b64 exec, 0x1ffff
global_store_dwordx2 v49, v[60:61], {sp(sWS)} sc1""")
stamp(4)
E('s_mov_b64 exec, -1\nL_rg3:')
if RW == 'post': E(f's_barrier\nglobal_load_dword v46, v47, {sp(sT4)}\ns_waitcnt vmcnt(0)')
if RW == 'pre': E('s_waitcnt vmcnt(0)')
E('s_branch L_adone')
F_IDX, F_PART = 98304, 98304 + 64
vFG, vFU, vFD, vBT = 64, 80, 96, 112
E(f"""L_ffn:
s_lshr_b32 s{sT2}, s{sSLOT}, 1
s_cmp_ge_u32 s{sT2}, 7
s_cbranch_scc1 L_adone
s_mul_i32 s{sFI}, s{sT0}, 7
s_add_u32 s{sFI}, s{sFI}, s{sT2}
s_lshl_b32 s{sWB}, s{sFI}, 2
s_add_u32 s{sWB}, s{sWB}, s{sW}
s_and_b32 s{sWB}, s{sWB}, 7
v_lshrrev_b32 v8, 2, v{LANE}
v_and_b32 v9, 3, v{LANE}
v_mul_u32_u24 v16, 3584, v8
v_lshl_add_u32 v16, v9, 4, v16
s_mul_i32 s{sT0}, s{sWB}, {64*3584}
s_lshl_b32 s{sT1}, s{sFI}, 6
s_add_u32 s{sT0}, s{sT0}, s{sT1}
v_add_u32 v16, s{sT0}, v16
v_add_u32 v17, {16*3584}, v16
v_add_u32 v18, {32*3584}, v16
v_add_u32 v19, {48*3584}, v16
s_mul_i32 s{sT3}, s{sW}, 12288
s_waitcnt lgkmcnt(0)""")
stamp(1)
def gu(j):
    E(f"""s_add_u32 m0, s{sT3}, {1024*j}
    s_nop 0
    global_load_lds_dwordx4 v{16+j}, {sp(sWG)}
    s_add_u32 m0, s{sT3}, {4096+1024*j}
    s_nop 0
    global_load_lds_dwordx4 v{16+j}, {sp(sWU)}""")
gu(0)
E(f"""v_lshrrev_b32 v20, 3, v{LANE}
v_and_b32 v21, 7, v{LANE}
v_lshlrev_b32 v21, 4, v21
v_lshl_add_u32 v20, v20, 10, v21
s_lshl_b32 s{sT0}, s{sFI}, 15
s_lshl_b32 s{sT1}, s{sW}, 7
s_add_u32 s{sT0}, s{sT0}, s{sT1}
s_add_u32 m0, s{sT3}, 8192
v_add_u32 v20, s{sT0}, v20""")
for j in range(4):
    E(f'global_load_lds_dwordx4 v20, {sp(sWD)}')
    if j < 3: E('s_add_u32 m0, m0, 1024\nv_add_u32 v20, 8192, v20')
if WW: E('s_barrier')
gu(1)
if RW != 'no': E('s_barrier')
stamp(2)
for j in range(2, 4): gu(j)
stamp(5)
E(f"""v_and_b32 v5, 15, v{LANE}
v_lshrrev_b32 v6, 4, v{LANE}
v_bfe_u32 v14, v{LANE}, 2, 2
v_lshlrev_b32 v14, 6, v14
v_lshl_add_u32 v14, v6, 9, v14
v_lshl_add_u32 v14, v9, 3, v14
v_add_u32 v14, s{sT3}, v14
v_lshlrev_b32 v8, 7, v8
v_lshl_add_u32 v8, v9, 3, v8
v_add_u32 v8, s{sT3}, v8
s_lshl_b32 s{sT1}, s{sWB}, 7
v_lshl_add_u32 v10, v6, 4, s{sT1}
s_lshl_b32 s{sT1}, s{sW}, 2
s_add_u32 s{sT1}, s{sT1}, {F_PART}
v_lshl_add_u32 v11, v6, 7, s{sT1}
v_add_u32 v15, 1024, v11
v_lshrrev_b32 v12, 2, v5
v_lshlrev_b32 v13, 9, v12
v_lshl_add_u32 v13, v6, 7, v13
v_lshl_add_u32 v13, v9, 5, v13
v_add_u32 v7, {F_PART}, v13
v_lshl_add_u32 v13, v12, 2, v6
s_lshl_b32 s{sT1}, s{sW}, 14
s_lshl_b32 s{sT2}, s{sFI}, 4
s_add_u32 s{sT1}, s{sT1}, s{sT2}
s_add_u32 s{sT1}, s{sT1}, {WS_PART}
v_lshl_add_u32 v13, v13, 10, s{sT1}
v_lshlrev_b32 v22, 3, v{LANE}
v_add_u32 v22, {WS_KEYS}, v22
v_mov_b32 v23, 0
v_mov_b32 v21, {F_IDX}""")
for r in range(16): E(f'v_mov_b32 v{vBT+r}, 0')
E('s_waitcnt vmcnt(0)')
for s_ in range(2):
    for ct in range(2):
        for h in range(2):
            E(f'ds_read_b64_tr_b16 {vr(vFG+8*s_+4*ct+2*h,2)}, v14 offset:{2048*s_+256*h+32*ct}')
            E(f'ds_read_b64_tr_b16 {vr(vFU+8*s_+4*ct+2*h,2)}, v14 offset:{4096+2048*s_+256*h+32*ct}')
    E('s_waitcnt lgkmcnt(4)')
for t in range(4):
    for hh in range(2):
        E(f'ds_read_b64_tr_b16 {vr(vFD+4*t+2*hh,2)}, v8 offset:{8192+2048*hh+32*t}')
stamp(6)
E(f"""s_cmp_lg_u32 s{sW}, 0
s_cbranch_scc1 L_anopoll
s_mov_b32 s{sSPIN}, {SPIN_MAX}
L_pk:
global_load_dwordx2 v[16:17], v22, {sp(sWS)} sc1
global_load_dwordx2 v[18:19], v23, {sp(sDBG)} sc1
s_waitcnt vmcnt(0)
v_cmp_eq_u32 vcc, v18, v17
v_cmp_eq_u32 {sp(sM0)}, 1, v19
s_and_b64 vcc, vcc, {sp(sM0)}
s_cmp_eq_u64 vcc, -1
s_cbranch_scc1 L_pkd""")
spin_check('L_pk')
E('L_pkd:')
key_reduce(16)
E(f"""v_mov_b32 v16, s{sKEY}
ds_write_b64 v21, v[16:17]
s_cmp_lg_u32 s{sFI}, 0
s_cbranch_scc1 L_anopoll
s_mov_b64 exec, 1
global_store_dword v23, v17, {sp(sWS)} offset:{WS_EPOCH} sc1
s_mov_b64 exec, -1
L_anopoll:
s_waitcnt lgkmcnt(0)
s_barrier""")
stamp(7)
E(f"""ds_read_b64 v[130:131], v21
s_waitcnt lgkmcnt(0)
v_not_b32 v16, v130
v_and_b32 v16, 2047, v16
v_lshl_add_u32 v10, v16, 10, v10
global_load_dwordx4 v[16:19], v10, {sp(sX)}
global_load_dwordx4 v[20:23], v10, {sp(sX)} offset:64
v_mov_b32 v128, v131
v_lshrrev_b32 v129, 8, v131
v_lshrrev_b32 v130, 16, v131
v_lshrrev_b32 v131, 24, v131
s_waitcnt vmcnt(1)""")
for s_ in range(2):
    if s_: E('s_waitcnt vmcnt(0)')
    for mat, fb in ((0, vFG), (1, vFU)):
        for ct in range(2):
            d_ = 24 + 8*mat + 4*ct
            E(f'v_mfma_f32_16x16x32_bf16 {vr(d_,4)}, {vr(fb+8*s_+4*ct,4)}, {vr(16+4*s_,4)}, {"0" if s_ == 0 else vr(d_,4)}')
E("""s_mov_b32 exec_lo, 0x00010001
s_mov_b32 exec_hi, 0x00010001
s_nop 2""")
for mat in range(2):
    for ct in range(2):
        d_ = 24 + 8*mat + 4*ct
        E(f'ds_write2_b32 v{15 if mat else 11}, v{d_}, v{d_+1} offset0:{128*ct} offset1:{128*ct+8}')
        E(f'ds_write2_b32 v{15 if mat else 11}, v{d_+2}, v{d_+3} offset0:{128*ct+16} offset1:{128*ct+24}')
E("""s_mov_b64 exec, -1
s_waitcnt lgkmcnt(0)
s_barrier""")
stamp(8)
E(f"""ds_read_b128 v[16:19], v7
ds_read_b128 v[20:23], v7 offset:16
s_mov_b32 s{sT0}, 0xff
s_waitcnt lgkmcnt(0)
v_pk_add_f32 v[16:17], v[16:17], v[20:21]
v_pk_add_f32 v[18:19], v[18:19], v[22:23]
v_pk_add_f32 v[16:17], v[16:17], v[18:19]
v_add_f32 v16, v16, v17
v_cvt_pk_bf16_f32 v18, 0, v16
v_mul_f32 v16, {f32(-L2E)}, v18
v_exp_f32 v16, v16
v_mov_b32_dpp v19, v18 row_ror:8 {DPPF}
v_add_f32 v16, 1.0, v16
v_rcp_f32 v16, v16
s_nop 0
v_mul_f32 v16, v16, v18
v_cvt_pk_bf16_f32 v16, 0, v16
v_mul_f32 v16, v16, v19
s_nop 1
v_mov_b32_dpp v17, v16 quad_perm:[1,1,3,3] {DPPF}
v_cvt_pk_bf16_f32 v16, v16, v17
s_nop 1""")
def bt(t):
    for jj in range(4):
        E(f'v_mov_b32_dpp v{vBT+4*t+jj}, v16 row_newbcast:{2*jj} row_mask:0xf bank_mask:{hex(1 << t)}')
bt(0)
for t in range(4):
    if t < 3: bt(t+1)
    else: E('s_nop 0')
    E(f'v_mfma_f32_16x16x32_bf16 v[32:35], {vr(vFD+4*t,4)}, {vr(vBT+4*t,4)}, {"0" if t == 0 else "v[32:35]"}')
E("""s_mov_b32 exec_lo, 0x11111111
s_mov_b32 exec_hi, 0x11111111
s_nop 5""")
for t in range(4):
    E(f'v_bfi_b32 v{32+t}, s{sT0}, v{128+t}, v{32+t}')
E(f'global_store_dwordx4 v13, v[32:35], {sp(sWS)} sc1')
stamp(9)
E('L_adone:')
stamp(10)
if STAMPS:
    E('s_waitcnt vmcnt(0)')
    stamp(11)
write_stamps()
E('L_end:')
E('s_endpgm')
out.append(f'''.section .rodata,"a"
.p2align 6
.amdhsa_kernel {KN}_kernel
  .amdhsa_next_free_vgpr {NVGPR}
  .amdhsa_next_free_sgpr 96
  .amdhsa_accum_offset {(NVGPR+3)//4*4}
  .amdhsa_group_segment_fixed_size 0
  .amdhsa_kernarg_size 128
  .amdhsa_user_sgpr_count 2
  .amdhsa_user_sgpr_kernarg_segment_ptr 1
  .amdhsa_system_sgpr_workgroup_id_x 1
.end_amdhsa_kernel''')
print('\n'.join(out).replace('NOPX', str(NOPX)).replace('HOPQ1', f'L_hop{NHOP//4}').replace('HOPQ2', f'L_hop{NHOP//2}').replace('HOPQ3', f'L_hop{3*NHOP//4}'))
```

```python
import sys, struct
from asmlib import KN, STAMP_OFF
OPT = dict(a.split('=') if '=' in a else (a, '1') for a in sys.argv[1:])
STAMPS = 'stamps' in OPT
NTP = ' nt' if OPT.get('ntp', '0') == '1' else ''
NTX = ' nt' if OPT.get('ntx', '0') == '1' else ''
PRIO = OPT.get('prio', 'io')
SLEEP = int(OPT.get('sleep', 1))
UPOS = [int(x) for x in OPT.get('upos', '5,21,40,99').split(',')]
WMODE = OPT.get('wmode', 'warm')
XWARM = OPT.get('xwarm', '1') == '1'
AHEAD = int(OPT.get('ahead', 2))
YG = 320
WW = OPT.get('ww', '0') == '1'
RW = OPT.get('rw', 'post')
ICW = int(OPT.get('icw', 0))
ICWHO = OPT.get('icwho', 'io')

out = []
def E(s):
    for ln in s.strip('\n').split('\n'):
        ln = ln.strip()
        if ln: out.append(('    ' + ln) if not ln.endswith(':') else ln)
def f32(x): return '0x%08x' % struct.unpack('<I', struct.pack('<f', x))[0]
def vr(b, n): return f'v[{b}:{b+n-1}]'
def ninstr(): return sum(1 for x in out if not x.endswith(':'))

WS_EPOCH, WS_KEYS, WS_G, WS_PART = 0, 4096, 8192, 32768
TAGINC = 0x9E3779B1
SPIN_MAX = 1 << 20
ROWB = 528
LOB = 32*ROWB
HI0 = 4*LOB
NHI = 22
HIB = NHI*ROWB
UB0 = HI0 + 4*HIB
UCB, UPAD = 4608, 480
SM0 = UB0 + 4*UCB
SMB = 4096
KX, KY, F3, F4, FLG = 0, 1216, 2432, 2944, 3328
HIX = 16384
BND = SM0 + 4*SMB
LDS_BYTES = BND + 5*1024
ST0 = OPT.get('st0', 'pre')
KPRIO = OPT.get('kprio', 'io')
GEMM1 = OPT.get('gemm1', '0') == '1'
sEX = 6
sX, sLA, sAI, sCR, sCI, sLDT, sDS = 8, 10, 12, 14, 16, 18, 20
sWR, sWG, sWU, sWD, sGW, sOUT, sDBG, sWS = 24, 26, 28, 30, 32, 34, 36, 38
sW, sI, sT0, sT1 = 40, 41, 42, 43
sJ, sP0, sP1, sTH = 44, 45, 46, 47
sTAG, sKEY, sIDX, sSPIN = 48, 49, 50, 51
sM0, sM1 = 52, 54
sT2, sT3, sT4, sT5 = 56, 57, 58, 59
sSLOT, sWB, sFI, sIO = 60, 61, 62, 63
sCH = 61
sS3 = 62
SB = 64
NST = 16
def sp(b): return f's[{b}:{b+1}]'
def stamp(i):
    if STAMPS: E(f'{"s_memtime" if "cyc" in OPT else "s_memrealtime"} s[{SB+2*i}:{SB+2*i+1}]')
def write_stamps():
    if not STAMPS: return
    E(f'''s_waitcnt lgkmcnt(0) vmcnt(0)
    s_mov_b64 exec, 1
    s_lshl_b32 s{sT0}, s2, 3
    s_add_u32 s{sT0}, s{sT0}, s{sW}
    s_lshl_b32 s{sT0}, s{sT0}, 7
    s_add_u32 s{sT0}, s{sT0}, {STAMP_OFF}
    v_mov_b32 v0, s{sT0}''')
    for i in range(NST):
        E(f'''v_mov_b32 v2, s{SB+2*i}
        v_mov_b32 v3, s{SB+2*i+1}
        global_store_dwordx2 v0, v[2:3], {sp(sWS)} offset:{8*i}
        s_nop 1''')
def spin_check(lbl_loop):
    E(f'''s_sub_u32 s{sSPIN}, s{sSPIN}, 1
    s_cbranch_scc0 {lbl_loop}''')
L2E = 1.4426950408889634
L2E_HI = struct.unpack('<f', struct.pack('<I', 0x3FB8AA00))[0]
L2E_LO = L2E - L2E_HI
LANE = 3
DPPF = 'row_mask:0xf bank_mask:0xf'

def hop_call():
    E(f'''s_mov_b64 exec, 0
    s_cmp_eq_u32 s{sCH}, 0
    s_cbranch_scc1 L_hop0
    s_cmp_eq_u32 s{sCH}, 1
    s_cbranch_scc1 HOPQ1
    s_cmp_eq_u32 s{sCH}, 2
    s_cbranch_scc1 HOPQ2
    s_branch HOPQ3
    L_hopend:
    s_mov_b64 exec, -1''')
def key_reduce(vt):
    for sh in (8, 4, 2, 1):
        E(f'''v_max_u32_dpp v{vt}, v{vt}, v{vt} row_ror:{sh} {DPPF}
        s_nop 1''')
    E(f'''v_readlane_b32 s{sKEY}, v{vt}, 0
    v_readlane_b32 s{sT0}, v{vt}, 16
    v_readlane_b32 s{sT1}, v{vt}, 32
    v_readlane_b32 s{sT2}, v{vt}, 48
    s_max_u32 s{sKEY}, s{sKEY}, s{sT0}
    s_max_u32 s{sT1}, s{sT1}, s{sT2}
    s_max_u32 s{sKEY}, s{sKEY}, s{sT1}''')
def wait_flags(sreg, name, vaddr, vt, sleep):
    E(f'''s_mov_b32 s{sSPIN}, {SPIN_MAX}
    L_wf_{name}:
    ds_read_b128 {vr(vt,4)}, v{vaddr}
    s_waitcnt lgkmcnt(0)
    v_min_u32 v{vt}, v{vt}, v{vt+1}
    v_min3_u32 v{vt}, v{vt}, v{vt+2}, v{vt+3}
    v_cmp_le_u32 vcc, s{sreg}, v{vt}
    s_cbranch_vccnz L_wfd_{name}''')
    if sleep: E(f's_sleep {sleep}')
    spin_check(f'L_wf_{name}')
    E(f'L_wfd_{name}:')

hdr = open('cdna_kernels/' + KN + '.s.ref').read().split('; Override launch')[0]
out.append(hdr.rstrip('\n'))
out.append(f'; @launch grid=(256,1,1) block=(512,1,1) lds={LDS_BYTES}')
out.append(f'''.amdgcn_target "amdgcn-amd-amdhsa--gfx950"
.text
.globl {KN}_kernel
.p2align 8
.type {KN}_kernel,@function
{KN}_kernel:''')
stamp(0)
vXA, vWRv, vGWv = 16, 8, 12
vLA, vAI, vCR, vCI, vDT = 4, 5, 6, 7, 8
vX = 16
vXO = 60
AF, TZ, BR, DT, ACC, vBAND = 16, 84, 124, 172, 196, 228
NSLOT = 12
GF, GA = 84, ACC
vKX, vK3, vK4, vCA, vCA2, vCB, vY, vTZ = 248, 249, 250, 251, 252, 253, 254, 255
vA, vB, vFL = 14, 15, 9
NVGPR = 256
E(f'''s_load_dwordx16 s[8:23], s[0:1], 0
s_load_dwordx16 s[24:39], s[0:1], 64
s_cmp_ge_u32 s2, 256
s_cbranch_scc1 L_end
s_getpc_b64 s[4:5]
L_pc:
v_lshrrev_b32 v1, 6, v0
v_and_b32 v{LANE}, 63, v0
v_readfirstlane_b32 s{sW}, v1
s_add_u32 s{sT0}, s2, {int(OPT.get('rot', 0))}
s_and_b32 s{sT0}, s{sT0}, 7
s_lshr_b32 s{sSLOT}, s2, 4
s_lshl_b32 s{sI}, s{sT0}, 4
s_add_u32 s{sI}, s{sI}, s{sSLOT}
s_cmp_gt_u32 s{sW}, 1
s_cbranch_scc1 L_nopf
v_lshlrev_b32 v2, 7, v0
v_min_u32 v2, L_end-L_pc, v2
global_load_dword v2, v2, s[4:5]
L_nopf:
s_bitcmp1_b32 s2, 3
s_cbranch_scc0 L_conv
s_bitcmp1_b32 s2, 4
s_cbranch_scc0 L_ffn
s_lshr_b32 s{sI}, s{sI}, 1
v_lshlrev_b32 v4, 4, v{LANE}
s_lshl_b32 s{sT2}, s{sI}, 12
s_lshl_b32 s{sT1}, s{sW}, 18
s_add_u32 s{sT2}, s{sT2}, s{sT1}
v_add_u32 v5, s{sT2}, v4
s_waitcnt lgkmcnt(0)''')
stamp(1)
E(f'''global_load_dwordx4 {vr(vWRv,4)}, v4, {sp(sWR)}
global_load_dwordx4 {vr(vGWv,4)}, v4, {sp(sGW)}
global_load_dwordx4 {vr(vXA,4)}, v5, {sp(sX)}{NTX}
global_load_dwordx4 {vr(vXA+4,4)}, v5, {sp(sX)} offset:1024{NTX}
global_load_dwordx4 {vr(vXA+8,4)}, v5, {sp(sX)} offset:2048{NTX}
global_load_dwordx4 {vr(vXA+12,4)}, v5, {sp(sX)} offset:3072{NTX}
s_load_dword s{sTAG}, {sp(sWS)}, {WS_EPOCH}
s_branch L_rg''')
E(f'''L_conv:
s_and_b32 s{sCH}, s{sW}, 3
s_lshr_b32 s{sIO}, s{sW}, 2
s_lshl_b32 s{sT2}, s{sI}, 3
s_lshl_b32 s{sT1}, s{sCH}, 1
s_add_u32 s{sT0}, s{sT2}, s{sT1}
v_mov_b32 v10, s{sT0}
s_add_u32 s{sT0}, s{sT0}, s{sIO}
s_lshl_b32 s{sT0}, s{sT0}, 7
v_lshl_add_u32 v1, v{LANE}, 1, s{sT0}
v_mov_b32 v{vLA}, 0
v_mov_b32 v{vAI}, 0
v_mov_b32 v{vCR}, 0
v_mov_b32 v{vCI}, 0
v_mov_b32 v{vDT}, 0
s_waitcnt lgkmcnt(0)''')
stamp(1)
E(f'''global_load_short_d16_hi v{vLA}, v1, {sp(sLA)}{NTP}
global_load_short_d16_hi v{vDT}, v10, {sp(sLDT)}
global_load_short_d16_hi v{vAI}, v1, {sp(sAI)}{NTP}
global_load_short_d16_hi v{vCR}, v1, {sp(sCR)}{NTP}
global_load_short_d16_hi v{vCI}, v1, {sp(sCI)}{NTP}
v_and_b32 v11, 255, v0
v_lshl_add_u32 v{vXO}, v11, 11, s{sT2}
v_add_u32 v{vXO+1}, {512*1024}, v{vXO}
v_add_u32 v{vXO+2}, {1024*1024}, v{vXO}
v_add_u32 v{vXO+3}, {1536*1024}, v{vXO}
s_cmp_ge_u32 s{sW}, 4
s_cbranch_scc1 L_cio0''')
STOR = {0:0,1:1,2:2,3:3, 16:4,17:5,18:6,19:7,20:8,12:9, 15:10, 13:11,14:12,4:13,5:14,6:15,7:16,8:17,9:18,10:19,11:20,21:21}
assert sorted(STOR.values()) == list(range(22))
tab = [0,0,1,2,2,2,3,4,4,5,6,7,8,8,8,8]
hrow = []
for x in range(32):
    g_, r_ = (x >> 2) & 1, 4*(x >> 3) + (x & 3)
    hrow.append(STOR[13 + tab[r_] if g_ else min(r_, 12)])
planes = [sum(((hrow[x] >> b) & 1) << x for x in range(32)) for b in range(5)]
E(f'''s_lshl_b32 s{sT0}, s{sSLOT}, 7
s_lshl_b32 s{sT1}, s{sW}, 5
s_add_u32 s{sT0}, s{sT0}, s{sT1}
v_and_b32 v13, 31, v{LANE}
v_add_u32 v12, s{sT0}, v13
v_lshl_add_u32 v12, v12, 10, s{sT2}
v_mov_b32 v{GA}, 0
s_barrier''')
if XWARM: E(f'global_load_dword v1, v12, {sp(sX)}')
if WW:
    E(f'''s_and_b32 s{sT0}, s2, 7
    s_mul_i32 s{sT0}, s{sT0}, 7
    s_lshr_b32 s{sT0}, s{sT0}, 1
    s_add_u32 s{sT0}, s{sT0}, s{sW}
    s_lshl_b32 s{sT0}, s{sT0}, 7
    s_lshr_b32 s{sT1}, s{sSLOT}, 1
    s_mul_i32 s{sT1}, s{sT1}, {64*3584}
    s_add_u32 s{sT0}, s{sT0}, s{sT1}
    v_max_u32 v12, 16, v{LANE}
    v_mul_u32_u24 v12, 3584, v12
    v_add_u32 v12, s{sT0}, v12
    s_bitcmp1_b32 s{sSLOT}, 0
    s_cselect_b64 {sp(sT4)}, {sp(sWU)}, {sp(sWG)}
    global_load_dword v9, v12, {sp(sT4)}''')
E(f'''s_mov_b64 exec, 1
global_load_short_d16_hi v{GA}, v10, {sp(sDS)}
s_mov_b64 exec, -1''')
for r in range(1, 16): E(f'v_mov_b32 v{GA+r}, 0')
for b_ in range(4, -1, -1):
    E(f's_mov_b32 s{sT0}, {planes[b_]}')
    if b_ == 4: E(f'v_bfe_u32 v{vA}, s{sT0}, v13, 1')
    else: E(f'v_bfe_u32 v12, s{sT0}, v13, 1\nv_lshl_or_b32 v{vA}, v{vA}, 1, v12')
E(f'''v_lshrrev_b32 v12, 5, v{LANE}
s_mul_i32 s{sT0}, s{sW}, {HIB}
s_add_u32 s{sT0}, s{sT0}, {HI0}
s_mul_i32 s{sT1}, s{sW}, {LOB}
v_lshl_add_u32 v10, v12, 4, s{sT0}
v_lshl_add_u32 v11, v12, 4, s{sT1}
s_mov_b32 s{sT2}, {ROWB}
v_mad_u32_u24 v{vA}, v{vA}, s{sT2}, v10
v_mad_u32_u24 v{vB}, v13, s{sT2}, v11
s_lshl_b32 s{sT0}, s{sW}, 12
s_add_u32 s{sT0}, s{sT0}, {SM0}
s_add_u32 s{sT2}, s{sT0}, {2*(543-7)}
v_lshlrev_b32 v10, 4, v{LANE}
v_sub_u32 v{vKX}, s{sT2}, v10
v_and_b32 v10, 1, v{LANE}
v_lshrrev_b32 v11, 1, v{LANE}
v_lshl_add_u32 v11, v11, 2, s{sT0}
v_lshl_add_u32 v{vK3}, v10, 8, v11
v_lshl_add_u32 v{vK4}, v{LANE}, 1, s{sT0}
v_and_b32 v11, 15, v{LANE}
v_and_b32 v12, 48, v{LANE}
v_mul_u32_u24 v13, {KY+2}, v10
v_lshl_add_u32 v13, v11, 1, v13
v_sub_u32 v{vCA}, v12, v13
s_add_u32 s{sT2}, s{sT0}, {KY+2*(544-16)-1024}
v_add_u32 v{vCA}, s{sT2}, v{vCA}
v_add_u32 v{vCA2}, 512, v{vCA}
s_mul_i32 s{sT2}, s{sW}, {UCB}
s_add_u32 s{sT2}, s{sT2}, {UB0}
v_lshl_add_u32 v{vCB}, v11, 5, v12
v_add_u32 v{vCB}, s{sT2}, v{vCB}
v_lshl_add_u32 v{vY}, v11, 4, s{sT1}
v_mad_u32_u24 v{vY}, v12, {YG//16}, v{vY}
s_add_u32 s{sT2}, s{sT0}, {F3+4*13}
v_lshl_add_u32 v{vTZ}, v11, 2, s{sT2}
v_sub_u32 v{vTZ}, v{vTZ}, v12
''')
if ICW and ICWHO == 'm': hop_call()
E(f'''s_waitcnt vmcnt({1 + XWARM + WW})
s_branch L_ckgen
L_cio0:
s_barrier''')
def uload(p):
    E(f'global_load_dwordx2 {vr(vX+4*p,2)}, v{vXO+p}, {sp(sX)}')
    E(f'global_load_dwordx2 {vr(vX+4*p+2,2)}, v{vXO+p}, {sp(sX)} offset:1024')
NUP = sum(1 for x in UPOS if x == 0)
for p in range(NUP): uload(p)
E(f'''v_mov_b32 v32, 0
v_mov_b32 v33, 0
v_mov_b32 v34, 0
v_mov_b32 v35, 0
s_mul_i32 s{sT0}, s{sCH}, {UCB}
s_add_u32 s{sT0}, s{sT0}, {UB0}
v_min_u32 v13, 29, v{LANE}
v_lshl_add_u32 v12, v13, 4, s{sT0}
ds_write_b128 v12, v[32:35]
s_lshl_b32 s{sT0}, s{sCH}, 12
s_add_u32 s{sT0}, s{sT0}, {SM0}
v_lshl_add_u32 v12, v{LANE}, 4, s{sT0}
ds_write_b128 v12, v[32:35]
ds_write_b128 v12, v[32:35] offset:1024
ds_write_b128 v12, v[32:35] offset:2048
ds_write_b128 v12, v[32:35] offset:3072
v_lshlrev_b32 v64, 2, v11
v_add_u32 v64, {UB0+UPAD}, v64
v_bfe_u32 v12, v0, 1, 2
v_bfe_u32 v13, v0, 7, 1
v_lshl_add_u32 v12, v13, 2, v12
v_mul_u32_u24 v67, {YG}, v12
v_bfe_u32 v12, v0, 3, 4
v_lshl_add_u32 v67, v12, 4, v67
v_and_b32 v12, 1, v0
v_lshl_add_u32 v67, v12, 3, v67
s_lshl_b32 s{sT2}, s{sW}, 2
s_add_u32 s{sT2}, s{sT2}, {SM0+FLG}
v_mov_b32 v68, s{sT2}
v_mov_b32 v69, {SM0+FLG}
s_mov_b32 s{sP0}, 0x05040100
s_mov_b32 s{sP1}, 0x07060302
; band fragments (0/1 window matrices): IO wave ch builds window ch, wave 7 also the two-tap mask
s_mov_b32 s{sT1}, {7 << 11}
s_cmp_eq_u32 s{sCH}, 1
s_cselect_b32 s{sT1}, {31 << 6}, s{sT1}
s_cmp_eq_u32 s{sCH}, 2
s_cselect_b32 s{sT1}, {127 << 5}, s{sT1}
s_cmp_eq_u32 s{sCH}, 3
s_cselect_b32 s{sT1}, {511 << 4}, s{sT1}
s_mov_b32 s{sT0}, 0x10001
s_mov_b32 s{sT3}, 0x3f80
s_lshl_b32 s{sT2}, s{sCH}, 10
s_add_u32 s{sT2}, s{sT2}, {BND}
v_lshl_add_u32 v9, v{LANE}, 4, s{sT2}
v_and_b32 v10, 15, v{LANE}
v_lshrrev_b32 v13, 4, v{LANE}
v_lshlrev_b32 v13, 3, v13
L_band:
v_lshlrev_b32 v12, v10, s{sT1}
v_bfe_u32 v12, v12, v13, 8
v_lshl_or_b32 v12, v12, 15, v12
v_lshrrev_b32 v41, 2, v12
v_lshrrev_b32 v42, 4, v12
v_lshrrev_b32 v43, 6, v12
v_and_b32 v40, s{sT0}, v12
v_and_b32 v41, s{sT0}, v41
v_and_b32 v42, s{sT0}, v42
v_and_b32 v43, s{sT0}, v43
v_mul_u32_u24 v40, s{sT3}, v40
v_mul_u32_u24 v41, s{sT3}, v41
v_mul_u32_u24 v42, s{sT3}, v42
v_mul_u32_u24 v43, s{sT3}, v43
ds_write_b128 v9, v[40:43]
s_cmp_eq_u32 s{sT1}, {511 << 4}
s_mov_b32 s{sT1}, {3 << 12}
s_mov_b32 s{sT3}, 0xffff
v_add_u32 v9, 1024, v9
s_cbranch_scc1 L_band
{"s_setprio 1" if KPRIO == 'io' else ""}
s_waitcnt vmcnt({2*NUP})
L_ckgen:''')
stamp(2)
a, b, c, d = 10, 11, 12, 13
E(f'''v_mul_f32 v{a}, {f32(L2E_HI)}, v{vLA}
v_mul_f32 v{b}, {f32(L2E_HI)}, v{vDT}
v_rndne_f32 v{c}, v{a}
v_rndne_f32 v{d}, v{b}
v_sub_f32 v{a}, v{a}, v{c}
v_sub_f32 v{b}, v{b}, v{d}
v_fmac_f32 v{a}, {f32(L2E_LO)}, v{vLA}
v_fmac_f32 v{b}, {f32(L2E_LO)}, v{vDT}
v_exp_f32 v{a}, v{a}
v_exp_f32 v{b}, v{b}
v_cvt_i32_f32 v{c}, v{c}
v_cvt_i32_f32 v{d}, v{d}
v_ldexp_f32 v{a}, v{a}, v{c}
v_ldexp_f32 v{b}, v{b}, v{d}
s_lshl_b32 s{sT1}, s{sIO}, 8
s_mul_i32 s{sT2}, s{sCH}, {LOB}
v_cvt_pk_bf16_f32 v{a}, v{a}, v{b}
s_add_u32 m0, s{sT2}, s{sT1}
v_and_b32 v{vDT}, 0xffff0000, v{a}
v_lshlrev_b32 v{a}, 16, v{a}
s_mul_i32 s{sT2}, s{sCH}, {HIB}
v_mul_f32 v{a}, v{a}, v{vDT}
v_mul_f32 v{vAI}, v{vAI}, v{vDT}
s_add_u32 s{sT1}, s{sT1}, s{sT2}
v_mul_f32 v{vLA}, {f32(-L2E)}, v{a}
v_mul_f32 v{vAI}, {f32(0.15915494309189535)}, v{vAI}
s_add_u32 s{sT1}, s{sT1}, {HIX}
v_mul_f32 v{a}, {f32(8.0)}, v{vLA}
v_mul_f32 v{b}, {f32(8.0)}, v{vAI}
s_cmp_eq_u32 s{sIO}, 0''')
vW1, vW8, vW256 = 36, 38, 40
E(f'''v_exp_f32 v{a}, v{a}
v_fract_f32 v{b}, v{b}
v_exp_f32 v{c}, v{vLA}
v_fract_f32 v{d}, v{vAI}
v_cos_f32 v{vW8}, v{b}
v_sin_f32 v{vW8+1}, v{b}
v_cos_f32 v{vW1}, v{d}
v_sin_f32 v{vW1+1}, v{d}
v_add_f32 v{vDT}, v{vDT}, v{vDT}
v_mov_b32 v35, 0x3f80
v_pk_mul_f32 {vr(vW8,2)}, {vr(vW8,2)}, {vr(a,2)} op_sel:[0,0] op_sel_hi:[1,0]
v_pk_mul_f32 {vr(vW1,2)}, {vr(vW1,2)}, {vr(c,2)} op_sel:[0,0] op_sel_hi:[1,0]
v_pk_mul_f32 {vr(vCR,2)}, {vr(vCR,2)}, {vr(vDT,2)} op_sel:[0,0] op_sel_hi:[1,0]
ds_write_addtid_b32 v35 offset:0''')
tmpc = [0]
pendw = []
nextp = [NUP]
def flushw():
    while pendw: E(pendw.pop(0))
def cmul(D, X, W):
    E(f'v_pk_mul_f32 {vr(D,2)}, {vr(X,2)}, {vr(W,2)} op_sel:[0,0] op_sel_hi:[0,1]')
    flushw()
    E(f'v_pk_fma_f32 {vr(D,2)}, {vr(X,2)}, {vr(W,2)}, {vr(D,2)} op_sel:[1,1,0] op_sel_hi:[1,0,1] neg_lo:[1,0,0]')
def put(X, off, neg):
    t = 32 + (tmpc[0] & 3)
    E(f'v_cvt_pk_bf16_f32 v{t}, v{X}, {"-" if neg else ""}v{X+1}')
    pendw.append(f'ds_write_addtid_b32 v{t} offset:{off}')
    tmpc[0] += 1
    while nextp[0] < 4 and UPOS[nextp[0]] == tmpc[0]:
        E(f's_cbranch_scc1 L_mid{nextp[0]}')
        uload(nextp[0])
        E(f'L_mid{nextp[0]}:')
        nextp[0] += 1
put(vW8, ROWB, False)
P0, P1 = 46, 48
cur = vW8
for i in range(2, 32):
    nxt = P0 if cur != P0 else P1
    cmul(nxt, cur, vW8)
    put(nxt, i*ROWB, False)
    cur = nxt
cmul(vW256, cur, vW8)
E(f's_mov_b32 m0, s{sT1}')
hoff = lambda row: HI0 - HIX + STOR[row]*ROWB
H = [50, 52, 54, 56, 58]
put(vCR, hoff(0), True)
cur = vCR
keep = {0: vCR}
for e in range(1, 9):
    nxt = H[e//2] if e % 2 == 0 else P0
    cmul(nxt, cur, vW1)
    put(nxt, hoff(e), True)
    cur = nxt
    if e % 2 == 0: keep[e] = nxt
for e, row in ((0, 13), (2, 14), (6, 16)):
    cmul(P0, keep[e], vW256)
    put(P0, hoff(row), True)
cur = keep[4]
for row in (15, 9, 18):
    nxt = P0 if cur != P0 else P1
    cmul(nxt, cur, vW256); put(nxt, hoff(row), True); cur = nxt
cur = keep[8]
for row in (17, 10, 19, 11, 20, 12, 21):
    nxt = P0 if cur != P0 else P1
    cmul(nxt, cur, vW256); put(nxt, hoff(row), True); cur = nxt
flushw()
NMID = nextp[0] - 1
stamp(3)
E(f's_cbranch_scc0 L_cio1')
if STAMPS:
    for i_ in (5, 6, 8, 9, 14, 15): E(f's_mov_b64 s[{SB+2*i_}:{SB+2*i_+1}], 0')
m_begin = len(out)
def gread(s):
    r = GF + 8*(s % 8)
    E(f'ds_read_b128 {vr(r,4)}, v{vA} offset:{32*s}')
    E(f'ds_read_b128 {vr(r+4,4)}, v{vB} offset:{32*s}')
fill = [f's_lshl_b32 s{sT2}, s{sW}, 2', f's_add_u32 s{sT2}, s{sT2}, {SM0+FLG}', f'v_mov_b32 v{vFL}, s{sT2}', f'v_mov_b32 v8, {SM0+FLG}',
        f'v_lshlrev_b32 v10, 4, v{LANE}', f'v_add_u32 v10, {BND}, v10']
def dofill(n):
    while n > 0 and fill:
        x = fill.pop(0); E(x)
        if x.startswith('v_'): n -= 1
BPOS = int(OPT.get('bpos', 5))
def gemm_all(extra):
    q = []
    def rd(s_): gread(s_); q.append(s_)
    GD = int(OPT.get('gd', 3))
    for s_ in range(GD): rd(s_)
    dofill(99)
    nxt = GD; nx = 0
    for s_ in range(16):
        E(f's_waitcnt lgkmcnt({2*(len(q) - 1 - q.index(s_)) + nx})')
        r = GF + 8*(s_ % 8)
        E(f'v_mfma_f32_32x32x16_bf16 {vr(GA,16)}, {vr(r,4)}, {vr(r+4,4)}, {vr(GA,16)}')
        if s_ == BPOS:
            stamp(13); E('s_barrier'); stamp(4)
        while nxt < 16 and nxt - 8 <= s_ and (nxt < 8 or s_ >= BPOS) and nxt - s_ <= GD:
            rd(nxt); nxt += 1
        if s_ == 15 - GD: nx = extra()
E(f'''s_waitcnt vmcnt(0) lgkmcnt(1)
s_mov_b64 exec, 1
v_add_f32 v{GA}, -1.0, v{GA}
s_mov_b64 exec, -1''')

def aread(q):
    base, off = (vCA, (1024-64*q)//4) if q >= 9 else (vCA2, (512-64*q)//4)
    return [f'ds_read2_b32 {vr(AF+4*q,2)}, v{base} offset0:{off} offset1:{off+1}',
            f'ds_read2_b32 {vr(AF+4*q+2,2)}, v{base} offset0:{off+2} offset1:{off+3}']
def tzread(i):
    if i < 6: off = (i//3)*64 + 16*(i % 3)
    else: off = (F4-F3)//4 + 16*(i-6)
    return [f'ds_read2_b32 {vr(TZ+4*i,2)}, v{vTZ} offset0:{off+3} offset1:{off+2}',
            f'ds_read2_b32 {vr(TZ+4*i+2,2)}, v{vTZ} offset0:{off+1} offset1:{off}']
def boff(k):
    kind, tp, q = k
    return UPAD + 512*tp - 32 - (16 if kind == 'Z' else 64*q)
band = lambda i: vr(vBAND+4*i, 4)
stream = []
def mk(tile, a_, b_, dst=None): stream.append(('m', tile, a_, b_, dst))
def parts(tp):
    G0 = ('B', tp, 0) if tp == 0 else ('G', tp, 0); Z = ('Z', tp, 0); B0 = ('B', tp, 0)
    gen = []; cv = []
    if tp <= 5:
        gen += [(8, Z, 0), (12, Z, 1)]
        if tp <= 3: gen += [(20, Z, 3)]
        gen += [(0, G0, 0), (4, G0, 1)]
        if tp <= 3: gen += [(16, G0, 2)]
        for base in ((8, 0, 16) if tp <= 3 else (8, 0)):
            for jj in range(4): cv.append(f'v_cvt_pk_bf16_f32 v{DT+base+jj}, v{DT+base+jj}, v{DT+base+4+jj}')
    own = [(tp, ('A', q), ('B', tp, q)) for q in range(8)]
    nxt = [(tp+1, ('A', q+8), ('B', tp, q)) for q in range(8)] if tp < 7 else []
    lead = []
    if tp <= 5: lead.append((tp+2, ('A', 16), G0))
    if tp <= 3: lead.append((tp+4, band(4), G0))
    far = []
    if tp <= 5:
        for dl in range(3):
            if tp + 2 + dl <= 7:
                far.append((tp+2+dl, vr(DT+8, 4), ('T', 3+dl)))
                far.append((tp+2+dl, vr(DT, 4), ('T', dl)))
    if tp <= 3:
        for dl in range(4):
            if tp + 4 + dl <= 7: far.append((tp+4+dl, vr(DT+16, 4), ('T', 6+dl)))
    return gen, cv, own, nxt, lead, far
PT = [parts(tp) for tp in range(8)]
def with_cv(seq, cv, start, per=1):
    for i, t_ in enumerate(seq):
        mk(*t_)
        if i >= start:
            for _ in range(per):
                if cv: stream.append(('v', cv.pop(0)))
    assert not cv
gen, cv = PT[0][0], PT[0][1]
for dof, k, bi in gen[:3]: mk(None, k, band(bi), DT+dof)
stream.append(('expand',))
for dof, k, bi in gen[3:]:
    mk(None, k, band(bi), DT+dof)
    stream.append(('x2',))
seq = []
if OPT.get('t0', '0') == '1':
    for q in range(8): seq += [PT[0][2][q], PT[1][2][q]]
    with_cv(seq[:15], [], 0)
    stream.append(('mark', 0))
    seq2 = seq[15:] + [(1, ('A', q+8), ('C', 0, q)) for q in range(8)]
    with_cv(seq2, cv[:8], 1)
    stream.append(('mark', 1))
    with_cv([(2, ('A', q+8), ('C', 1, q)) for q in range(8)] + [(t_, a_, ('C', 0, 0)) for t_, a_, b_ in PT[0][4]], cv[8:], 0)
    del cv[:]
else:
    for q in range(8):
        seq += [PT[0][2][q], PT[1][2][q], PT[0][3][q], PT[1][3][q]]
    with_cv(seq[:30], cv, 8)
    stream.append(('mark', 0))
    with_cv(seq[30:31], [], 0)
    stream.append(('mark', 1))
    with_cv(seq[31:] + PT[0][4], [], 0)
for tp in range(2, 8):
    src = tp - 2
    if src >= 1:
        for dof, k, bi in PT[src][0]: mk(None, k, band(bi), DT+dof)
    seq = PT[src][4] if src >= 1 else []
    for q in range(8):
        if tp < 7: seq = seq + [PT[tp][3][q]]
        seq = seq + [PT[tp][2][q]]
    if tp == 7: with_cv(seq, PT[src][1], 5, 2); stream.append(('v', 's_nop 0'))
    else: with_cv(seq, PT[src][1], 5)
    far = PT[src][5]
    with_cv(far[:2], [], 0)
    stream.append(('mark', tp))
    with_cv(far[2:], [], 0)
    if tp == 7: stream.append(('part',))
order = []
first, last = {}, {}
for i, it in enumerate(stream):
    if it[0] == 'm':
        for k in (it[2], it[3]):
            if isinstance(k, tuple):
                if k not in first: first[k] = i; order.append(k)
                last[k] = i
slot, free_after = {}, {}
slotfree = {(s_+6) % NSLOT: -1 for s_ in range(NSLOT)}
for k in order:
    if k[0] in 'BZGC':
        s_ = min(slotfree, key=lambda z: slotfree[z])
        slot[k] = s_; free_after[k] = slotfree[s_]; assert free_after[k] < first[k]
        del slotfree[s_]; slotfree[s_] = last[k]
def reg(k):
    if not isinstance(k, tuple): return k
    if k[0] == 'A': return vr(AF+4*k[1], 4)
    if k[0] == 'T': return vr(TZ+4*k[1], 4)
    return vr(BR+4*slot[k], 4)
issued = []; done_upto = [0]; lastop = {}; itime = []; mcount = [0]
OLD = int(OPT.get('old', 6))
expanded = [False]
checked = {0} if ST0 == 'pre' else set()
FOFF = 0 if ST0 == 'pre' else 1
flagread = {}
def wait_for(idx, slack=0):
    if idx < done_upto[0]: return
    idx = max(idx, min(idx + slack, len(issued) - 5))
    n = len(issued) - 1 - idx
    assert n <= 15
    E(f's_waitcnt lgkmcnt({n})')
    done_upto[0] = idx + 1
def lds(txt, key=None):
    if len(issued) - done_upto[0] >= 15: wait_for(done_upto[0] + 3)
    E(txt); issued.append(key); itime.append(mcount[0])
    if key is not None: lastop[key] = len(issued) - 1
def can_issue(k, i):
    if k[0] in 'AT': return expanded[0]
    return free_after[k] <= i
def issue(k):
    order.remove(k)
    if k[0] == 'A':
        for x in aread(k[1]): lds(x, k)
    elif k[0] == 'T':
        for x in tzread(k[1]): lds(x, k)
    else:
        ph = k[1]//2
        if ph not in checked:
            if ph not in flagread:
                lds(f'ds_read_b128 v[4:7], v8 offset:16', ('F', ph)); flagread[ph] = 1
            wait_for(lastop[('F', ph)])
            E(f'''v_min_u32 v4, v4, v5
            v_min3_u32 v4, v4, v6, v7
            v_cmp_le_u32 vcc, {ph+FOFF}, v4
            s_cbranch_vccz L_uc{ph}
            L_uc{ph}d:''')
            checked.add(ph)
        lds(f'ds_read_b128 {reg(k)}, v{vCB} offset:{boff(k)}', k)
LOOK = int(OPT.get('look', 14))
def prefetch(i, n):
    n0 = len(issued)
    un = [k for k in order if k[0] in 'BZGC' and k[1]//2 not in checked]
    if un and un[0][1]//2 not in flagread and first[un[0]] <= i + LOOK + 8:
        lds(f'ds_read_b128 v[4:7], v8 offset:16', ('F', un[0][1]//2)); flagread[un[0][1]//2] = 1
    while len(issued) - n0 < n:
        if len(issued) - done_upto[0] >= 13:
            old = [j for j in range(done_upto[0], len(issued)) if itime[j] <= mcount[0] - OLD]
            if len(old) < 3 or not order: break
            wait_for(old[-1])
        cand = [k for k in order[:(6 if expanded[0] else 24)] if can_issue(k, i) and not (k[0] in 'BZGC' and k[1]//2 not in checked and first[k] > i + LOOK)]
        if not cand: break
        issue(cand[0])
D = lambda r: f'v{GA+r}'
def expand():
    global NOPX
    NOPX = max(0, 11 - (ninstr() - gemm_end - ('mid' in OPT)))
    t = AF + 48
    E(f'''s_nop NOPX
    v_cvt_pk_bf16_f32 v{t}, {D(7)}, {D(6)}
    v_cvt_pk_bf16_f32 v{t+1}, {D(5)}, {D(4)}
    v_cvt_pk_bf16_f32 v{t+2}, {D(3)}, {D(2)}
    v_cvt_pk_bf16_f32 v{t+3}, {D(1)}, {D(0)}''')
    lds(f'ds_write_b128 v{vKX}, {vr(t,4)} offset:{KX}')
    E(f'''v_cvt_pk_bf16_f32 v{t+4}, {D(8)}, {D(7)}
    v_cvt_pk_bf16_f32 v{t+5}, {D(6)}, {D(5)}
    v_cvt_pk_bf16_f32 v{t+6}, {D(4)}, {D(3)}
    v_cvt_pk_bf16_f32 v{t+7}, {D(2)}, {D(1)}''')
    lds(f'ds_write_b128 v{vKX}, {vr(t+4,4)} offset:{KY}')
    E(f'''v_cvt_pk_bf16_f32 v{t+10}, {D(0)}, 0
    s_mov_b64 exec, 1''')
    lds(f'ds_write_b32 v{vKX}, v{t+10} offset:{KY+16}')
    E('s_mov_b64 exec, -1')
    for k in [k_ for k_ in order if k_[0] == 'A'][:4]: issue(k)
    if 'mid' in OPT: stamp(5)
def x2(n):
    t = AF + 48
    if n == 0:
        E(f'''v_cvt_pk_bf16_f32 v{t+8}, 0, {D(8)}
        v_cvt_pk_bf16_f32 v{t+9}, {D(8)}, {D(8)}
        v_subrev_u32 v{vKX}, 8, v{vKX}
        s_mov_b32 exec_lo, 0
        s_mov_b32 exec_hi, 0x80000000''')
        lds(f'ds_write_b64 v{vKX}, {vr(t+8,2)} offset:{KX}')
        lds(f'ds_write_b32 v{vKX}, v{t+9} offset:{KY+4}')
        E('s_mov_b64 exec, -1')
    elif n == 1:
        E(f'''v_cvt_pk_bf16_f32 v{t+13}, {D(10)}, {D(10)}
        v_cvt_pk_bf16_f32 v{t+11}, {D(9)}, {D(10)}
        v_cvt_pk_bf16_f32 v{t+12}, {D(11)}, {D(12)}
        v_readlane_b32 s{sT2}, v{t+13}, 63''')
        lds(f'ds_write_b32 v{vK3}, v{t+11} offset:{F3+64}')
        lds(f'ds_write_b16 v{vK4}, v{t+12} offset:{F4+64}')
        lds(f'ds_write_b16_d16_hi v{vK4}, v{t+12} offset:{F4+64+128}')
        expanded[0] = True
    else:
        for jj in range(4): E(f'v_and_b32 v{vBAND+16+jj}, s{sT2}, v{vBAND+16+jj}')
        expanded[0] = True
x2n = [0]
vPA = 10
accinit = set()
ypend = []
def first_b():
    for bi in (0, 1, 3, 2, 4): lds(f'ds_read_b128 {band(bi)}, v10 offset:{1024*bi}', ('W', bi))
    if ST0 == 'pre':
        for k in [k for k in order if k[0] in 'BZGC'][:2]: issue(k)
    else:
        lds(f'ds_read_b128 v[4:7], v8 offset:16', ('F', 0)); flagread[0] = 1
    return len(issued)
gemm_all(first_b)
assert not fill, fill
gemm_end = ninstr()
if 'mid' in OPT: stamp(8)
for i, it in enumerate(stream):
    n0 = ninstr()
    if it[0] == 'mark':
        tp = it[1]
        if 'mid' in OPT and tp in (1, 2, 3, 5): stamp({1: 6, 2: 9, 3: 14, 5: 15}[tp])
        ypend.append([8, [('ds', f'ds_write_b128 v{vY}, {vr(ACC+4*tp,4)} offset:{4*YG*tp}'), ('v', f'v_mov_b32 v13, {tp+1}'), ('ds', f'ds_write_b32 v{vFL}, v13')]])
        continue
    if it[0] == 'expand': expand()
    elif it[0] == 'x2': x2(x2n[0]); x2n[0] += 1
    elif it[0] == 'part':
        E(f'''s_cmp_lg_u32 s{sW}, 0
        s_cbranch_scc1 L_nopart
        s_setprio 3
        s_lshl_b32 s{sT2}, s{sI}, 10
        s_add_u32 s{sT2}, s{sT2}, {WS_PART}
        v_min_u32 v{vPA}, 55, v{LANE}
        v_lshl_add_u32 v{vPA}, v{vPA}, 4, s{sT2}
        global_load_dwordx4 {vr(TZ+24,4)}, v{vPA}, {sp(sWS)} sc1
        L_nopart:''')
        n0 = ninstr() - 2
    elif it[0] == 'v': E(it[1])
    else:
        _, tile, a_, b_, dst = it
        for k in (a_, b_):
            if isinstance(k, tuple) and k in order:
                assert can_issue(k, i-1), (k, i)
                issue(k)
        need = [lastop[k] for k in (a_, b_) if isinstance(k, tuple)]
        if need: wait_for(max(need), 2)
        if tile is None: E(f'v_mfma_f32_16x16x32_bf16 {vr(dst,4)}, {reg(a_)}, {reg(b_)}, 0')
        else:
            c_ = vr(ACC+4*tile, 4) if tile in accinit else '0'
            accinit.add(tile)
            E(f'v_mfma_f32_16x16x32_bf16 {vr(ACC+4*tile,4)}, {reg(a_)}, {reg(b_)}, {c_}')
        mcount[0] += 1
        for p in ypend: p[0] -= ninstr() - n0
        n0 = ninstr()
        if ypend and ypend[0][0] <= 0:
            for _ in range(2):
                if ypend[0][1]:
                    kind, txt = ypend[0][1].pop(0)
                    if kind == 'ds': lds(txt)
                    else: E(txt)
            if not ypend[0][1]: ypend.pop(0)
        else:
            prefetch(i, 4 if not expanded[0] else AHEAD if any(k[0] in 'AT' for k in order) else 1)
    for p in ypend: p[0] -= ninstr() - n0
assert not order
for p in ypend:
    if p[0] > 0: E(f's_nop {p[0]-1}')
    n0 = ninstr()
    for kind, txt in p[1]: E(txt)
    for p2 in ypend: p2[0] -= max(p[0], 0) + ninstr() - n0
def isize(x):
    x = x.strip()
    if x.endswith(':'): return 0
    op = x.split(' ')[0]
    if op in ('s_waitcnt', 's_nop', 's_barrier', 's_cbranch_vccz', 's_cbranch_scc1', 'v_min_u32', 'v_and_b32', 'v_mov_b32', 's_mov_b64', 'v_subrev_u32', 'v_cmp_le_u32'): return 4
    return 8
if 'strip' in OPT:
    import re as _re
    pat = _re.compile(OPT['strip'])
    body = out[m_begin:]; del out[m_begin:]
    out += [x for x in body if not pat.search(x)]
NHOP = 0
if ICW:
    body = out[m_begin:]; del out[m_begin:]
    acc = ICW
    for j, x in enumerate(body):
        out.append(x); acc += isize(x)
        nxt_ok = 'v_mfma' in x or acc >= ICW - 8
        if acc >= ICW - 28 and nxt_ok and not x.endswith(':'):
            out.append(f'L_hop{NHOP}:'); out.append(f'    s_cbranch_execz L_hop{NHOP+1}'); NHOP += 1; acc = 4
    out.append(f'L_hop{NHOP}:'); out.append('    s_cbranch_execz L_hopend')
stamp(7)
if 'twice' in OPT: E(f's_waitcnt lgkmcnt(0) vmcnt(0)\nv_add_u32 v{vKX}, 8, v{vKX}\ns_add_u32 s7, s7, 1\ns_cmp_eq_u32 s7, 1\ns_cbranch_scc1 L_twice')
if 'noepi' in OPT or 'nofin' in OPT: E('s_branch L_cdone')
E(f'''s_cmp_lg_u32 s{sW}, 0
s_cbranch_scc1 L_cdone''')
PL = TZ + 24
E(f'''s_mov_b32 s{sSPIN}, {SPIN_MAX}
L_mb:
ds_read_b128 v[4:7], v8 offset:32
s_waitcnt lgkmcnt(0)
v_cmp_ne_u32 vcc, 0, v7
s_cbranch_vccnz L_mbd''')
spin_check('L_mb')
E(f'''L_mbd:
v_readfirstlane_b32 s{sKEY}, v4
v_readfirstlane_b32 s{sTAG}, v5
v_mov_b32 v20, 0
v_mov_b32 v21, 0
v_mov_b32 v22, 0
v_mov_b32 v23, 0
s_andn2_b32 s{sIDX}, 2047, s{sKEY}
s_lshl_b32 s{sT0}, s{sIDX}, 1
s_add_u32 s{sT0}, s{sT0}, {UB0+UPAD}
v_mov_b32 v11, s{sT0}''')
for k in range(4):
    E(f'ds_read_u16_d16_hi v{20+k}, v11 offset:{k*UCB}')
E(f'''s_lshr_b32 s{sT2}, s{sIDX}, 8
s_lshl_b32 s{sT0}, s{sT2}, 2
s_bfe_u32 s{sT1}, s{sIDX}, 0x20002
s_add_u32 s{sT0}, s{sT0}, s{sT1}
s_mul_i32 s{sT0}, s{sT0}, {YG}
s_and_b32 s{sT1}, s{sIDX}, 0xf0
s_add_u32 s{sT0}, s{sT0}, s{sT1}
s_and_b32 s{sT1}, s{sIDX}, 3
s_lshl_b32 s{sT1}, s{sT1}, 2
s_add_u32 s{sT0}, s{sT0}, s{sT1}
v_mov_b32 v12, s{sT0}
s_add_u32 s{sTH}, s{sT2}, 1
s_bitcmp1_b32 s{sIDX}, 0
s_cselect_b32 s{sT0}, 0, 16
v_lshlrev_b32 v24, s{sT0}, v6
v_and_b32 v24, 0xffff0000, v24
s_and_b32 s{sT0}, s{sKEY}, 0xffff0000
s_xor_b32 s{sT1}, s{sT0}, 0xffff0000
s_xor_b32 s{sT0}, s{sT0}, 0x80000000
s_bitcmp1_b32 s{sKEY}, 31
s_cselect_b32 s{sT0}, s{sT0}, s{sT1}
v_mov_b32 v25, {f32(-L2E)}
v_mul_f32 v25, s{sT0}, v25
v_exp_f32 v25, v25
v_sub_f32 v38, 1.0, v24
v_add_f32 v25, 1.0, v25
v_rcp_f32 v25, v25
v_cvt_pk_bf16_f32 v38, 0, v38
v_cvt_pk_bf16_f32 v25, 0, v25
v_mul_f32 v25, v25, v38''')
wait_flags(sTH, 'f', 8, 4, 0)
for k in range(4):
    E(f'ds_read_b32 v{16+k}, v12 offset:{k*LOB}')
E(f'''s_mov_b32 s{sT0}, 0x0c0c0400
s_mov_b32 s{sT1}, 0x04000c0c
s_mov_b32 s{sSPIN}, {SPIN_MAX}
s_branch L_pp1
L_pp:
global_load_dwordx4 {vr(PL,4)}, v{vPA}, {sp(sWS)} sc1
L_pp1:
s_waitcnt vmcnt(0)
v_perm_b32 v26, v{PL+1}, v{PL}, s{sT0}
v_perm_b32 v27, v{PL+3}, v{PL+2}, s{sT1}
v_or_b32 v26, v26, v27
v_cmp_ne_u32 vcc, s{sTAG}, v26
s_cbranch_vccz L_ppd''')
spin_check('L_pp')
E('L_ppd:')
stamp(12)
E(f'''s_mov_b32 exec_lo, 0
s_mov_b32 exec_hi, 0xff000000
v_mov_b32 v{PL}, 0
v_mov_b32 v{PL+1}, 0
v_mov_b32 v{PL+2}, 0
v_mov_b32 v{PL+3}, 0
s_mov_b64 exec, -1
s_waitcnt lgkmcnt(0)
v_fmac_f32 v20, v16, v24
v_permlane32_swap_b32 v{PL}, v{PL+2}
v_fmac_f32 v21, v17, v24
v_permlane32_swap_b32 v{PL+1}, v{PL+3}
v_add_f32 v{PL}, v{PL}, v{PL+2}
v_add_f32 v{PL+1}, v{PL+1}, v{PL+3}
v_fmac_f32 v22, v18, v24
v_fmac_f32 v23, v19, v24
v_permlane16_swap_b32 v{PL}, v{PL+1}
s_lshl_b32 s{sT0}, s{sIDX}, 10
v_add_f32 v{PL}, v{PL}, v{PL+1}
s_lshl_b32 s{sT1}, s{sI}, 3
s_add_u32 s{sT0}, s{sT0}, s{sT1}''')
for sh in (8, 4, 2, 1):
    E(f'''v_add_f32_dpp v{PL}, v{PL}, v{PL} row_ror:{sh} {DPPF}''')
    if sh != 1: E('s_nop 1')
E(f'''v_cvt_pk_bf16_f32 v{PL}, 0, v{PL}
v_mov_b32 v10, s{sT0}
v_readlane_b32 s{sT0}, v{PL}, 0
v_readlane_b32 s{sT1}, v{PL}, 16
v_readlane_b32 s{sT2}, v{PL}, 32
v_readlane_b32 s{sT3}, v{PL}, 48
v_fmac_f32 v20, s{sT0}, v25
v_fmac_f32 v21, s{sT1}, v25
v_fmac_f32 v22, s{sT2}, v25
v_fmac_f32 v23, s{sT3}, v25
v_cvt_pk_bf16_f32 v16, v20, v21
v_cvt_pk_bf16_f32 v17, v22, v23
s_mov_b64 exec, 1
global_store_dwordx2 v10, v[16:17], {sp(sOUT)}
s_branch L_cdone''')
for ph in ((1, 2, 3) if ST0 == 'pre' else (0, 1, 2, 3)):
    E(f'''L_uc{ph}:
    s_mov_b32 s{sTH}, {ph+FOFF}
    v_add_u32 v12, 16, v8''')
    if 'mid' not in OPT: stamp({1: 5, 2: 8, 3: 14}[ph])
    wait_flags(sTH, f'u{ph}', 12, 4, 0)
    if 'mid' not in OPT: stamp({1: 6, 2: 9, 3: 15}[ph])
    E(f's_branch L_uc{ph}d')
vP, vG, vGF, vYV = 80, 72, 112, 32
def stage(p):
    for k in range(4):
        E(f'v_perm_b32 v{40+k}, v{vX+4*p+2+(k>>1)}, v{vX+4*p+(k>>1)}, s{sP1 if k & 1 else sP0}')
    for k in range(4):
        E(f'ds_write_b32 v64, v{40+k} offset:{k*UCB+1024*p}')
def unpack(p):
    for j in range(2):
        for h in range(2):
            E(f'''v_lshlrev_b32 v{vP+8*p+4*j+2*h}, 16, v{vX+4*p+2*j+h}
            v_and_b32 v{vP+8*p+4*j+2*h+1}, 0xffff0000, v{vX+4*p+2*j+h}''')
def pollA():
    E(f'''global_load_dwordx2 v[12:13], v70, {sp(sDBG)} sc1
    global_load_dwordx2 {vr(vG,2)}, v66, {sp(sWS)} offset:-4096 sc1''')
def pollB():
    E(f'global_load_dwordx2 v[52:53], v65, {sp(sWS)} sc1')
    for p in range(1, 4):
        E(f'global_load_dwordx2 {vr(vG+2*p,2)}, v66, {sp(sWS)} offset:{-4096+2048*p} sc1')
def epi(p, masked):
    wait_flags(sTH, f'e{p}', 69, 48, SLEEP)
    if p == 0: stamp(8)
    if p == 3: stamp(14)
    for k in range(4):
        E(f'ds_read_b64 {vr(vYV+2*k,2)}, v67 offset:{k*LOB+8*YG*p}')
    E(f's_add_u32 s{sTH}, s{sTH}, 2\ns_waitcnt lgkmcnt(0)')
    for j in range(2):
        r = vP + 8*p + 4*j
        for k in range(4):
            E(f'v_fmac_f32 v{r+k}, v{vYV+2*k+j}, v{vGF+2*p+j}')
        E(f'''v_cvt_pk_bf16_f32 v{r}, v{r}, v{r+1}
        v_cvt_pk_bf16_f32 v{r+1}, v{r+2}, v{r+3}''')
        if masked: E(f's_cmp_eq_u32 s{sJ}, {2*p+j}\ns_cselect_b64 exec, {sp(sEX)}, -1')
        E(f'global_store_dwordx2 v{vXO+p}, {vr(r,2)}, {sp(sOUT)} offset:{1024*j}')
        if masked: E('s_mov_b64 exec, -1')
def gun(p):
    E(f'''v_lshlrev_b32 v{vGF+2*p}, 16, v{vG+2*p}
    v_and_b32 v{vGF+2*p+1}, 0xffff0000, v{vG+2*p}''')
E('L_cio1:')
if ST0 == 'pre':
    E(f's_waitcnt vmcnt({2*NMID})')
    stamp(13)
    stage(0)
E('s_waitcnt lgkmcnt(0)\ns_barrier')
stamp(4)
if ST0 != 'pre':
    E(f's_waitcnt vmcnt({2*NMID})')
    stamp(13)
    stage(0)
    E(f'v_mov_b32 v44, 1\nds_write_b32 v68, v44')
if KPRIO == 'io': E('s_setprio 0')
E(f'''v_lshlrev_b32 v65, 3, v{LANE}
v_add_u32 v65, {WS_KEYS}, v65
v_and_b32 v66, 255, v0
v_lshlrev_b32 v66, 3, v66
v_add_u32 v66, {WS_G+4096}, v66
v_mov_b32 v70, 0''')
assert NMID in (1, 2)
U3E = OPT.get('u3e', '0') == '1'
def stagef(p):
    stage(p)
    E(f'v_mov_b32 v44, {p+FOFF}\nds_write_b32 v68, v44')
if U3E: pollA(); uload(3)
E(f's_waitcnt vmcnt({2*(NMID-1) + 4*U3E})')
stagef(1)
stamp(12)
if not U3E:
    pollA()
    if NMID == 1: uload(2)
    uload(3)
unpack(0); unpack(1)
E(f'''s_lshr_b32 s{sTH}, s{sCH}, 1
s_add_u32 s{sTH}, s{sTH}, 1
s_waitcnt vmcnt({2*NMID})''')
stagef(2)
stamp(15)
E('s_waitcnt vmcnt(2)')
if PRIO == 'io': E('s_setprio 2')
E(f'''s_mov_b32 s{sS3}, 0
v_cmp_eq_u32 vcc, 1, v13
v_cmp_eq_u32 {sp(sM0)}, v12, v{vG+1}
s_and_b64 vcc, vcc, {sp(sM0)}
s_cmp_eq_u64 vcc, -1
s_cbranch_scc1 L_pad
s_waitcnt vmcnt(0)''')
stagef(3)
E(f'''s_mov_b32 s{sS3}, 1
s_mov_b32 s{sSPIN}, {SPIN_MAX}
L_pa:''')
pollA()
E(f'''s_waitcnt vmcnt(0)
v_cmp_eq_u32 vcc, 1, v13
v_cmp_eq_u32 {sp(sM0)}, v12, v{vG+1}
s_and_b64 vcc, vcc, {sp(sM0)}
s_cmp_eq_u64 vcc, -1
s_cbranch_scc1 L_pad''')
spin_check('L_pa')
E('L_pad:')
stamp(6)
pollB()
gun(0)
E(f'v_readfirstlane_b32 s{sTAG}, v12')
epi(0, False)
E(f'''s_cmp_lg_u32 s{sS3}, 0
s_cbranch_scc1 L_s3d
s_waitcnt vmcnt(6)''')
stagef(3)
E('L_s3d:')
stamp(5)
unpack(2); unpack(3)
E(f'''s_mov_b32 s{sSPIN}, {SPIN_MAX}
s_waitcnt vmcnt(2)
s_branch L_pb1
L_pb:''')
pollB()
E(f'''s_waitcnt vmcnt(0)
L_pb1:
v_cmp_eq_u32 vcc, s{sTAG}, v53
v_cmp_eq_u32 {sp(sM0)}, s{sTAG}, v{vG+3}
v_cmp_eq_u32 {sp(sM1)}, s{sTAG}, v{vG+5}
s_and_b64 vcc, vcc, {sp(sM0)}
v_cmp_eq_u32 {sp(sM0)}, s{sTAG}, v{vG+7}
s_and_b64 vcc, vcc, {sp(sM1)}
s_and_b64 vcc, vcc, {sp(sM0)}
s_cmp_eq_u64 vcc, -1
s_cbranch_scc1 L_pbd''')
spin_check('L_pb')
E('L_pbd:')
stamp(9)
key_reduce(52)
for p in range(1, 4): gun(p)
E(f'''s_andn2_b32 s{sIDX}, 2047, s{sKEY}
s_lshr_b32 s{sT0}, s{sIDX}, 1
s_mov_b64 {sp(sEX)}, -1
s_bitset0_b64 {sp(sEX)}, s{sT0}
s_lshr_b32 s{sT2}, s{sIDX}, 9
s_lshl_b32 s{sJ}, s{sT2}, 1
s_and_b32 s{sT1}, s{sIDX}, 1
s_add_u32 s{sJ}, s{sJ}, s{sT1}
s_bfe_u32 s{sT1}, s{sIDX}, 0x20007
s_cmp_eq_u32 s{sT1}, s{sCH}
s_cselect_b32 s{sJ}, s{sJ}, 8
s_cbranch_scc0 L_nomb
s_and_b32 s{sT0}, s{sT0}, 63
v_readlane_b32 s{sT1}, v{vG}, s{sT0}
v_readlane_b32 s{sT3}, v{vG+2}, s{sT0}
v_readlane_b32 s{sT4}, v{vG+4}, s{sT0}
v_readlane_b32 s{sT5}, v{vG+6}, s{sT0}
s_bitcmp1_b32 s{sT2}, 0
s_cselect_b32 s{sT1}, s{sT3}, s{sT1}
s_cselect_b32 s{sT4}, s{sT5}, s{sT4}
s_bitcmp1_b32 s{sT2}, 1
s_cselect_b32 s{sT1}, s{sT4}, s{sT1}
v_mov_b32 v44, s{sKEY}
v_mov_b32 v45, s{sTAG}
v_mov_b32 v46, s{sT1}
v_mov_b32 v47, 1
s_cmp_lg_u32 s{sT2}, 0
s_cbranch_scc1 L_mb1
s_waitcnt vmcnt(0)
L_mb1:
ds_write_b128 v69, v[44:47] offset:32
L_nomb:''')
stamp(7)
for p in range(1, 4): epi(p, True)
E('L_cdone:')
stamp(10)
if STAMPS:
    E('s_waitcnt vmcnt(0)')
    stamp(11)
write_stamps()
E('s_endpgm')

A_T = 0
E(f"""L_rg:
s_lshl_b32 s{sT0}, s{sI}, 2
s_lshl_b32 s{sT1}, s{sW}, 8
s_add_u32 s{sT0}, s{sT0}, s{sT1}
s_lshl_b32 s{sT1}, s{sT0}, 2
s_add_u32 s{sT1}, s{sT1}, {WS_G}
v_mov_b32 v49, s{sT1}
s_sub_u32 s{sT0}, 2047, s{sT0}
v_bfe_u32 v6, v{LANE}, 3, 1
v_lshrrev_b32 v5, 5, v{LANE}
v_lshl_add_u32 v5, v6, 1, v5
s_lshl_b32 s{sT1}, s{sW}, 4
v_lshl_add_u32 v6, v5, 2, s{sT1}
v_sub_u32 v5, s{sT0}, v5
v_and_b32 v48, 15, v{LANE}
v_lshlrev_b32 v48, 3, v48
s_lshl_b32 s{sT0}, s{sI}, 3
s_add_u32 s{sT0}, s{sT0}, {WS_KEYS}
v_mov_b32 v45, s{sT0}
s_lshl_b32 s{sT0}, s{sI}, 3
s_add_u32 s{sT0}, s{sT0}, s{sW}
s_mul_i32 s{sT0}, s{sT0}, {28*128}
v_min_u32 v47, 27, v{LANE}
v_lshl_add_u32 v47, v47, 7, s{sT0}
s_waitcnt lgkmcnt(0)
s_add_u32 s{sTAG}, s{sTAG}, {TAGINC}
v_mov_b32 v61, s{sTAG}
v_mov_b32 v41, s{sTAG}
v_mov_b32 v43, s{sTAG}
s_add_u32 s{sT0}, s{sI}, s{sW}
s_cmp_lg_u32 s{sT0}, 0
s_cbranch_scc1 L_anotag
v_mov_b32 v7, 0
v_mov_b32 v62, s{sTAG}
v_mov_b32 v63, 1
s_mov_b64 exec, 1
s_waitcnt vmcnt(0)
global_store_dwordx2 v7, v[62:63], {sp(sDBG)} sc1
s_mov_b64 exec, -1
s_branch L_rg1
L_anotag:
s_waitcnt vmcnt(2)""")
def dots(rows):
    for k in range(4):
        for r in rows:
            E(f'v_dot2_f32_bf16 v{50+r}, v{vXA+4*r+k}, v{vWRv+k}, {"0" if k == 0 else "v%d" % (50+r)}')
            E(f'v_dot2_f32_bf16 v{54+r}, v{vXA+4*r+k}, v{vGWv+k}, {"0" if k == 0 else "v%d" % (54+r)}')
E('L_rg1:')
dots((0, 1))
E('s_cbranch_scc0 L_rg2\ns_waitcnt vmcnt(0)\nL_rg2:')
stamp(2)
if RW == 'pre': E(f'global_load_dword v46, v47, {sp(sWD)}')
dots((2, 3))
E(f"""v_permlane32_swap_b32 v50, v51
v_permlane32_swap_b32 v54, v55
v_add_f32 v50, v50, v51
v_permlane32_swap_b32 v52, v53
v_add_f32 v54, v54, v55
v_permlane32_swap_b32 v56, v57
v_add_f32 v52, v52, v53
v_add_f32 v56, v56, v57
v_permlane16_swap_b32 v50, v54
s_nop 0
v_permlane16_swap_b32 v52, v56
v_add_f32 v50, v50, v54
v_add_f32 v52, v52, v56
s_nop 0
v_add_f32_dpp v51, v50, v50 row_ror:8 row_mask:0xf bank_mask:0x3
v_add_f32_dpp v53, v52, v52 row_ror:8 row_mask:0xf bank_mask:0xf
s_nop 1
v_mov_b32_dpp v51, v53 quad_perm:[0,1,2,3] row_mask:0xf bank_mask:0xc
s_nop 1
v_add_f32_dpp v51, v51, v51 row_half_mirror {DPPF}
s_nop 1
v_add_f32_dpp v51, v51, v51 quad_perm:[1,0,3,2] {DPPF}
s_nop 1
v_add_f32_dpp v50, v51, v51 quad_perm:[2,3,0,1] {DPPF}
v_cvt_pk_bf16_f32 v50, 0, v50
v_mul_f32 v52, {f32(-L2E)}, v50
v_exp_f32 v52, v52
v_ashrrev_i32 v51, 31, v50
v_add_f32 v52, 1.0, v52
v_rcp_f32 v52, v52
v_or_b32 v51, 0x80000000, v51
v_xor_b32 v50, v50, v51
v_mov_b32 v53, v52
v_and_b32 v50, 0xffff0000, v50
v_or_b32 v50, v50, v5
v_permlane32_swap_b32 v52, v53
s_mov_b32 exec_lo, 0x00000101
s_mov_b32 exec_hi, 0x00000101
ds_write_b32 v6, v50 offset:{A_T}
s_mov_b64 exec, -1
v_cvt_pk_bf16_f32 v40, v52, v53
s_nop 1
v_mov_b32_dpp v42, v40 row_ror:8 {DPPF}
s_mov_b64 exec, 0x10000
global_store_dwordx4 v49, v[40:43], {sp(sWS)} sc1
s_mov_b64 exec, -1""")
stamp(5)
E("""s_waitcnt lgkmcnt(0)
s_barrier""")
stamp(3)
E(f"""s_cmp_lg_u32 s{sW}, 0
s_cbranch_scc1 L_rg3
ds_read_b64 v[52:53], v48 offset:{A_T}
s_waitcnt lgkmcnt(0)
v_max_u32 v60, v52, v53
s_nop 1""")
for sh in (8, 4, 2, 1):
    E(f'v_max_u32_dpp v60, v60, v60 row_ror:{sh} {DPPF}')
    if sh != 1: E('s_nop 1')
E(f"""s_mov_b64 exec, 1
global_store_dwordx2 v45, v[60:61], {sp(sWS)} sc1""")
stamp(4)
E('s_mov_b64 exec, -1\nL_rg3:')
if RW == 'post': E(f's_barrier\nglobal_load_dword v46, v47, {sp(sWD)}\ns_waitcnt vmcnt(0)')
if RW == 'pre': E('s_waitcnt vmcnt(0)')
E('s_branch L_adone')
F_IDX, F_PART = 98304, 98304 + 64
vFG, vFU, vFD, vBT = 64, 80, 96, 112
FLEAD = int(OPT.get('flead', 0))
OPP = OPT.get('opp', '1') == '1'
DLATE = OPT.get('dlate', '2') != '0'
D2 = OPT.get('dlate', '2') == '2'
FBAR = OPT.get('fbar', '1') == '1'
EPOLL = OPT.get('epoll', '0') == '1'
E(f"""L_ffn:
; slice fi = 7*xcd + k; the eighth workgroup stands in for the line partner that lives on another die (first half only)
s_lshr_b32 s{sT2}, s{sSLOT}, 1
s_mul_i32 s{sFI}, s{sT0}, 7
s_bitcmp1_b32 s{sT0}, 0
s_cselect_b32 s{sT1}, -1, 7
s_cmp_eq_u32 s{sT2}, 7
s_cselect_b32 s{sT2}, s{sT1}, s{sT2}
s_add_u32 s{sFI}, s{sFI}, s{sT2}
v_lshrrev_b32 v8, 2, v{LANE}
v_and_b32 v9, 3, v{LANE}
v_mul_u32_u24 v16, 3584, v8
v_lshl_add_u32 v16, v9, 4, v16
s_mul_i32 s{sT0}, s{sW}, {64*3584}
s_lshl_b32 s{sT1}, s{sFI}, 6
s_add_u32 s{sT0}, s{sT0}, s{sT1}
s_mul_i32 s{sT3}, s{sW}, 12288
s_and_b32 s{sT1}, s{sFI}, {1 if OPP else 0}
s_mul_i32 s{sT2}, s{sT1}, {32*3584}
s_lshl_b32 s{sT1}, s{sT1}, 11
s_add_u32 s{sT4}, s{sT3}, s{sT1}
s_xor_b32 s{sT5}, s{sT4}, 2048
s_add_u32 s{sT1}, s{sT0}, s{sT2}
s_sub_u32 s{sT0}, s{sT0}, s{sT2}
s_add_u32 s{sT0}, s{sT0}, {32*3584}
v_add_u32 v18, s{sT0}, v16
v_add_u32 v16, s{sT1}, v16
v_add_u32 v17, {16*3584}, v16
v_add_u32 v19, {16*3584}, v18
s_waitcnt lgkmcnt(0)""")
stamp(1)
def gu(j):
    sb = sT4 if j < 2 else sT5
    E(f"""s_add_u32 m0, s{sb}, {1024*(j & 1)}
    s_nop 0
    global_load_lds_dwordx4 v{16+j}, {sp(sWG)}
    s_add_u32 m0, s{sb}, {4096+1024*(j & 1)}
    s_nop 0
    global_load_lds_dwordx4 v{16+j}, {sp(sWU)}""")
FTHR = OPT.get('fthr', '0')
if FTHR == '2': E(f'v_mov_b32 v4, 0\nglobal_load_dword v4, v4, {sp(sWG)}\ns_waitcnt vmcnt(0)')
if FTHR == '3': E(f'v_mov_b32 v4, 0\nglobal_load_dword v4, v4, {sp(sWG)}\ns_waitcnt vmcnt(0)\nv_mov_b32 v4, 0\nglobal_load_dword v4, v4, {sp(sWU)}\ns_waitcnt vmcnt(0)')
if FTHR == '4':
    E(f'''s_cmp_lg_u32 s{sW}, 0
    s_cbranch_scc1 L_ftd
    v_mov_b32 v4, 0
    s_mov_b32 s{sSPIN}, {SPIN_MAX}
    L_ft:
    global_load_dwordx2 v[6:7], v4, {sp(sDBG)} sc1
    s_waitcnt vmcnt(0)
    v_cmp_eq_u32 vcc, 1, v7
    s_cbranch_vccnz L_ftd''')
    spin_check('L_ft')
    E('L_ftd:\ns_barrier')
stamp(3)
gu(0)
if FTHR == '1': E('s_waitcnt vmcnt(0)\ns_barrier')
gu(1)
E(f"""s_cmp_ge_u32 s{sSLOT}, 14
s_cbranch_scc1 L_adone
v_lshrrev_b32 v44, 3, v{LANE}
v_and_b32 v21, 7, v{LANE}
v_lshlrev_b32 v21, 4, v21
v_lshl_add_u32 v44, v44, 10, v21
s_lshl_b32 s{sT0}, s{sFI}, 15
s_lshl_b32 s{sT1}, s{sW}, 7
s_add_u32 s{sT0}, s{sT0}, s{sT1}
v_add_u32 v44, s{sT0}, v44
v_lshlrev_b32 v22, 3, v{LANE}
v_add_u32 v22, {WS_KEYS}, v22
v_mov_b32 v23, 0""")
def down():
    E(f's_add_u32 m0, s{sT3}, 8192\ns_nop 0')
    for j in range(4):
        E(f'global_load_lds_dwordx4 v44, {sp(sWD)}')
        if j < 3: E('s_add_u32 m0, m0, 1024\nv_add_u32 v44, 8192, v44')
if RW == 'no' and not DLATE: down()
if FBAR: E('s_barrier')
stamp(2)
gu(2); gu(3)
if RW != 'no' and not DLATE:
    E('s_barrier')
    down()
if EPOLL: E(f"""s_cmp_lg_u32 s{sW}, {FLEAD}
s_cbranch_scc1 L_fnp
global_load_dwordx2 v[16:17], v22, {sp(sWS)} sc1
global_load_dwordx2 v[18:19], v23, {sp(sDBG)} sc1
L_fnp:""")
stamp(5)
E(f"""v_and_b32 v5, 15, v{LANE}
v_lshrrev_b32 v6, 4, v{LANE}
v_bfe_u32 v14, v{LANE}, 2, 2
v_lshlrev_b32 v14, 6, v14
v_lshl_add_u32 v14, v6, 9, v14
v_lshl_add_u32 v14, v9, 3, v14
v_add_u32 v14, s{sT3}, v14
v_lshlrev_b32 v8, 7, v8
v_lshl_add_u32 v8, v9, 3, v8
v_add_u32 v8, s{sT3}, v8
s_lshl_b32 s{sT1}, s{sW}, 7
v_lshl_add_u32 v10, v6, 4, s{sT1}
v_lshrrev_b32 v12, 2, v5
v_lshlrev_b32 v13, 6, v12
v_lshl_add_u32 v13, v6, 4, v13
s_lshl_b32 s{sT1}, s{sW}, 8
s_add_u32 s{sT1}, s{sT1}, {F_PART}
v_add_u32 v11, s{sT1}, v13
v_lshl_add_u32 v13, v9, 2, v13
v_add_u32 v7, {F_PART}, v13
v_lshl_add_u32 v13, v12, 2, v6
s_lshl_b32 s{sT1}, s{sW}, 14
s_lshl_b32 s{sT2}, s{sFI}, 4
s_add_u32 s{sT1}, s{sT1}, s{sT2}
s_add_u32 s{sT1}, s{sT1}, {WS_PART}
v_lshl_add_u32 v13, v13, 10, s{sT1}
v_mov_b32 v21, {F_IDX}""")
for r in range(16): E(f'v_mov_b32 v{vBT+r}, 0')
E('s_waitcnt vmcnt(0)')
if D2: down()
for s_ in range(2):
    for ct in range(2):
        for h in range(2):
            E(f'ds_read_b64_tr_b16 {vr(vFG+8*s_+4*ct+2*h,2)}, v14 offset:{2048*s_+256*h+32*ct}')
            E(f'ds_read_b64_tr_b16 {vr(vFU+8*s_+4*ct+2*h,2)}, v14 offset:{4096+2048*s_+256*h+32*ct}')
    E('s_waitcnt lgkmcnt(4)')
def dtr():
    for t in range(4):
        for hh in range(2):
            E(f'ds_read_b64_tr_b16 {vr(vFD+4*t+2*hh,2)}, v8 offset:{8192+2048*hh+32*t}')
if not DLATE: dtr()
stamp(6)
E(f"""s_cmp_lg_u32 s{sW}, {FLEAD}
s_cbranch_scc1 L_anopoll
s_mov_b32 s{sSPIN}, {SPIN_MAX}
{'s_branch L_pk1' if EPOLL else ''}
L_pk:
global_load_dwordx2 v[16:17], v22, {sp(sWS)} sc1
global_load_dwordx2 v[18:19], v23, {sp(sDBG)} sc1
s_waitcnt vmcnt(0)
L_pk1:
v_cmp_eq_u32 vcc, v18, v17
v_cmp_eq_u32 {sp(sM0)}, 1, v19
s_and_b64 vcc, vcc, {sp(sM0)}
s_cmp_eq_u64 vcc, -1
s_cbranch_scc1 L_pkd""")
spin_check('L_pk')
E('L_pkd:')
key_reduce(16)
E(f"""v_mov_b32 v16, s{sKEY}
ds_write_b64 v21, v[16:17]
s_cmp_lg_u32 s{sFI}, 0
s_cbranch_scc1 L_anopoll
s_mov_b64 exec, 1
global_store_dword v23, v17, {sp(sWS)} offset:{WS_EPOCH} sc1
s_mov_b64 exec, -1
L_anopoll:
s_waitcnt lgkmcnt(0)
s_barrier""")
stamp(7)
E(f"""ds_read_b64 v[130:131], v21
s_waitcnt lgkmcnt(0)
v_not_b32 v16, v130
v_and_b32 v16, 2047, v16
v_lshl_add_u32 v10, v16, 10, v10
global_load_dwordx4 v[16:19], v10, {sp(sX)}
global_load_dwordx4 v[20:23], v10, {sp(sX)} offset:64
v_mov_b32 v128, v131
v_lshrrev_b32 v129, 8, v131
v_lshrrev_b32 v130, 16, v131
v_lshrrev_b32 v131, 24, v131""")
if DLATE and not D2: down()
stamp(12)
if D2:
    E('s_waitcnt vmcnt(2)')
    dtr()
E(f's_waitcnt vmcnt({4 if DLATE and not D2 else 0})')
stamp(13)
for q in range(4):
    fb = (vFU if q >> 1 else vFG) + 4*(q & 1)
    for s_ in range(2):
        E(f'v_mfma_f32_16x16x32_bf16 {vr(24+4*q,4)}, {vr(fb+8*s_,4)}, {vr(16+4*s_,4)}, {"0" if s_ == 0 else vr(24+4*q,4)}')
E('s_nop 3')
for q in range(1, 4):
    for r in range(4):
        E(f'v_mov_b32_dpp v{24+r}, v{24+4*q+r} quad_perm:[0,1,2,3] row_mask:0xf bank_mask:{hex(1 << q)}')
E("""s_mov_b32 exec_lo, 0x11111111
s_mov_b32 exec_hi, 0x11111111
ds_write_b128 v11, v[24:27]
s_mov_b64 exec, -1
s_waitcnt lgkmcnt(0)""")
stamp(14)
E('s_barrier')
stamp(8)
E(f"""ds_read2st64_b32 v[16:17], v7 offset0:0 offset1:1
ds_read2st64_b32 v[18:19], v7 offset0:2 offset1:3
ds_read2st64_b32 v[20:21], v7 offset0:4 offset1:5
ds_read2st64_b32 v[22:23], v7 offset0:6 offset1:7
s_mov_b32 s{sT0}, 0xff
s_waitcnt lgkmcnt(2)
v_pk_add_f32 v[16:17], v[16:17], v[18:19]
s_waitcnt lgkmcnt(0)
v_pk_add_f32 v[20:21], v[20:21], v[22:23]
v_pk_add_f32 v[16:17], v[16:17], v[20:21]
v_add_f32 v16, v16, v17""")
if DLATE and not D2:
    E('s_waitcnt vmcnt(0)')
    dtr()
E(f"""v_cvt_pk_bf16_f32 v18, 0, v16
v_mul_f32 v16, {f32(-L2E)}, v18
v_exp_f32 v16, v16
v_mov_b32_dpp v19, v18 row_ror:8 {DPPF}
v_add_f32 v16, 1.0, v16
v_rcp_f32 v16, v16
s_nop 0
v_mul_f32 v16, v16, v18
v_cvt_pk_bf16_f32 v16, 0, v16
v_mul_f32 v16, v16, v19
s_nop 1
v_mov_b32_dpp v17, v16 quad_perm:[1,1,3,3] {DPPF}
v_cvt_pk_bf16_f32 v16, v16, v17
s_nop 1""")
def bt(t):
    for jj in range(4):
        E(f'v_mov_b32_dpp v{vBT+4*t+jj}, v16 row_newbcast:{2*jj} row_mask:0xf bank_mask:{hex(1 << t)}')
bt(0)
if DLATE: E('s_waitcnt lgkmcnt(0)')
for t in range(4):
    if t < 3: bt(t+1)
    else: E('s_nop 0')
    E(f'v_mfma_f32_16x16x32_bf16 v[32:35], {vr(vFD+4*t,4)}, {vr(vBT+4*t,4)}, {"0" if t == 0 else "v[32:35]"}')
E("""s_mov_b32 exec_lo, 0x11111111
s_mov_b32 exec_hi, 0x11111111
s_nop 5""")
for t in range(4):
    E(f'v_bfi_b32 v{32+t}, s{sT0}, v{128+t}, v{32+t}')
E(f'global_store_dwordx4 v13, v[32:35], {sp(sWS)} sc1')
stamp(9)
if 'fwb' in OPT:
    E(f'''s_add_u32 s{sT0}, s{sSLOT}, s{sW}
    s_cmp_lg_u32 s{sT0}, 0
    s_cbranch_scc1 L_adone
    {"s_waitcnt vmcnt(0)" if OPT['fwb'] == '2' else ""}
    buffer_wbl2 sc1''')
E('L_adone:')
stamp(10)
if STAMPS:
    E('s_waitcnt vmcnt(0)')
    stamp(11)
write_stamps()
E('L_end:')
E('s_endpgm')
out.append(f'''.section .rodata,"a"
.p2align 6
.amdhsa_kernel {KN}_kernel
  .amdhsa_next_free_vgpr {NVGPR}
  .amdhsa_next_free_sgpr 96
  .amdhsa_accum_offset {(NVGPR+3)//4*4}
  .amdhsa_group_segment_fixed_size 0
  .amdhsa_kernarg_size 128
  .amdhsa_user_sgpr_count 2
  .amdhsa_user_sgpr_kernarg_segment_ptr 1
  .amdhsa_system_sgpr_workgroup_id_x 1
.end_amdhsa_kernel''')
print('\n'.join(out).replace('NOPX', str(NOPX)).replace('HOPQ1', f'L_hop{NHOP//4}').replace('HOPQ2', f'L_hop{NHOP//2}').replace('HOPQ3', f'L_hop{3*NHOP//4}'))
```

```python
import sys, struct
from asmlib import KN, STAMP_OFF
OPT = dict(a.split('=') if '=' in a else (a, '1') for a in sys.argv[1:])
STAMPS = 'stamps' in OPT
NTP = ' nt' if OPT.get('ntp', '0') == '1' else ''
NTX = ' nt' if OPT.get('ntx', '0') == '1' else ''
PRIO = OPT.get('prio', 'io')
SLEEP = int(OPT.get('sleep', 1))
UPOS = [int(x) for x in OPT.get('upos', '5,21,40,99').split(',')]
WMODE = OPT.get('wmode', 'warm')
XWARM = OPT.get('xwarm', '1') == '1'
AHEAD = int(OPT.get('ahead', 2))
YG = 320
CL = int(OPT.get('cl', 0))
BEARLY = False
WW = OPT.get('ww', '0') == '1'
RW = OPT.get('rw', 'post')
ICW = int(OPT.get('icw', 0))
ICWHO = OPT.get('icwho', 'io')

out = []
def E(s):
    for ln in s.strip('\n').split('\n'):
        ln = ln.strip()
        if ln: out.append(('    ' + ln) if not ln.endswith(':') else ln)
def f32(x): return '0x%08x' % struct.unpack('<I', struct.pack('<f', x))[0]
def vr(b, n): return f'v[{b}:{b+n-1}]'
def ninstr(): return sum(1 for x in out if not x.endswith(':'))

WS_EPOCH, WS_KEYS, WS_G, WS_PART = 0, 4096, 8192, 32768
TAGINC = 0x9E3779B1
SPIN_MAX = 1 << 20
ROWB = 528
LOB = 32*ROWB
HI0 = 4*LOB
NHI = 22
HIB = NHI*ROWB
UB0 = HI0 + 4*HIB
UCB, UPAD = 4608, 480
SM0 = UB0 + 4*UCB
SMB = 4096
KX, KY, F3, F4, FLG = 0, 1216, 2432, 2944, 3328
HIX = 16384
BND = SM0 + 4*SMB
LDS_BYTES = BND + 4*1024
ST0 = OPT.get('st0', 'pre')
KPRIO = OPT.get('kprio', 'io')
GEMM1 = OPT.get('gemm1', '0') == '1'
sEX = 6
sX, sLA, sAI, sCR, sCI, sLDT, sDS = 8, 10, 12, 14, 16, 18, 20
sWR, sWG, sWU, sWD, sGW, sOUT, sDBG, sWS = 24, 26, 28, 30, 32, 34, 36, 38
sW, sI, sT0, sT1 = 40, 41, 42, 43
sJ, sP0, sP1, sTH = 44, 45, 46, 47
sTAG, sKEY, sIDX, sSPIN = 48, 49, 50, 51
sM0, sM1 = 52, 54
sT2, sT3, sT4, sT5 = 56, 57, 58, 59
sSLOT, sWB, sFI, sIO = 60, 61, 62, 63
sCH = 61
sS3 = 62
SB = 64
NST = 16
def sp(b): return f's[{b}:{b+1}]'
def stamp(i):
    if STAMPS: E(f'{"s_memtime" if "cyc" in OPT else "s_memrealtime"} s[{SB+2*i}:{SB+2*i+1}]')
def write_stamps():
    if not STAMPS: return
    E(f'''s_waitcnt lgkmcnt(0) vmcnt(0)
    s_mov_b64 exec, 1
    s_lshl_b32 s{sT0}, s2, 3
    s_add_u32 s{sT0}, s{sT0}, s{sW}
    s_lshl_b32 s{sT0}, s{sT0}, 7
    s_add_u32 s{sT0}, s{sT0}, {STAMP_OFF}
    v_mov_b32 v0, s{sT0}''')
    for i in range(NST):
        E(f'''v_mov_b32 v2, s{SB+2*i}
        v_mov_b32 v3, s{SB+2*i+1}
        global_store_dwordx2 v0, v[2:3], {sp(sWS)} offset:{8*i}
        s_nop 1''')
def spin_check(lbl_loop):
    E(f'''s_sub_u32 s{sSPIN}, s{sSPIN}, 1
    s_cbranch_scc0 {lbl_loop}''')
L2E = 1.4426950408889634
L2E_HI = struct.unpack('<f', struct.pack('<I', 0x3FB8AA00))[0]
L2E_LO = L2E - L2E_HI
LANE = 3
DPPF = 'row_mask:0xf bank_mask:0xf'

def hop_call():
    E(f'''s_mov_b64 exec, 0
    s_cmp_eq_u32 s{sCH}, 0
    s_cbranch_scc1 L_hop0
    s_cmp_eq_u32 s{sCH}, 1
    s_cbranch_scc1 HOPQ1
    s_cmp_eq_u32 s{sCH}, 2
    s_cbranch_scc1 HOPQ2
    s_branch HOPQ3
    L_hopend:
    s_mov_b64 exec, -1''')
def key_reduce(vt):
    for sh in (8, 4, 2, 1):
        E(f'''v_max_u32_dpp v{vt}, v{vt}, v{vt} row_ror:{sh} {DPPF}
        s_nop 1''')
    E(f'''v_readlane_b32 s{sKEY}, v{vt}, 0
    v_readlane_b32 s{sT0}, v{vt}, 16
    v_readlane_b32 s{sT1}, v{vt}, 32
    v_readlane_b32 s{sT2}, v{vt}, 48
    s_max_u32 s{sKEY}, s{sKEY}, s{sT0}
    s_max_u32 s{sT1}, s{sT1}, s{sT2}
    s_max_u32 s{sKEY}, s{sKEY}, s{sT1}''')
def wait_flags(sreg, name, vaddr, vt, sleep):
    E(f'''s_mov_b32 s{sSPIN}, {SPIN_MAX}
    L_wf_{name}:
    ds_read_b128 {vr(vt,4)}, v{vaddr}
    s_waitcnt lgkmcnt(0)
    v_min_u32 v{vt}, v{vt}, v{vt+1}
    v_min3_u32 v{vt}, v{vt}, v{vt+2}, v{vt+3}
    v_cmp_le_u32 vcc, s{sreg}, v{vt}
    s_cbranch_vccnz L_wfd_{name}''')
    if sleep: E(f's_sleep {sleep}')
    spin_check(f'L_wf_{name}')
    E(f'L_wfd_{name}:')

hdr = open('cdna_kernels/' + KN + '.s.ref').read().split('; Override launch')[0]
out.append(hdr.rstrip('\n'))
out.append(f'; @launch grid=(256,1,1) block=(512,1,1) lds={LDS_BYTES}')
out.append(f'''.amdgcn_target "amdgcn-amd-amdhsa--gfx950"
.text
.globl {KN}_kernel
.p2align 8
.type {KN}_kernel,@function
{KN}_kernel:''')
stamp(0)
vXA, vWRv, vGWv = 16, 8, 12
vLA, vAI, vCR, vCI, vDT = 4, 5, 6, 7, 8
vX = 16
vXO = 60
AF, TZ, BR, DT, ACC, vBAND = 16, 84, 124, 172, 196, 228
NSLOT = 12
GF, GA = 84, ACC
vKX, vK3, vK4, vCA, vCA2, vCB, vY, vTZ = 248, 249, 250, 251, 252, 253, 254, 255
vA, vB, vFL = 14, 15, 9
NVGPR = 256
E(f'''s_load_dwordx16 s[8:23], s[0:1], 0
s_load_dwordx16 s[24:39], s[0:1], 64
s_cmp_ge_u32 s2, 256
s_cbranch_scc1 L_end
s_getpc_b64 s[4:5]
L_pc:
v_lshrrev_b32 v1, 6, v0
v_and_b32 v{LANE}, 63, v0
v_readfirstlane_b32 s{sW}, v1
s_add_u32 s{sT0}, s2, {int(OPT.get('rot', 2))}
s_and_b32 s{sT0}, s{sT0}, 7
s_lshr_b32 s{sSLOT}, s2, 4
s_lshl_b32 s{sI}, s{sT0}, 4
s_add_u32 s{sI}, s{sI}, s{sSLOT}
s_cmp_gt_u32 s{sW}, 1
s_cbranch_scc1 L_nopf
v_lshlrev_b32 v2, 7, v0
v_min_u32 v2, L_end-L_pc, v2
global_load_dword v2, v2, s[4:5]
L_nopf:
s_bitcmp1_b32 s2, 3
s_cbranch_scc0 L_conv
s_bitcmp1_b32 s2, 4
s_cbranch_scc0 L_ffn
s_lshr_b32 s{sI}, s{sI}, 1
v_lshlrev_b32 v4, 4, v{LANE}
s_lshl_b32 s{sT2}, s{sI}, 12
s_lshl_b32 s{sT1}, s{sW}, 18
s_add_u32 s{sT2}, s{sT2}, s{sT1}
v_add_u32 v5, s{sT2}, v4
s_waitcnt lgkmcnt(0)''')
stamp(1)
E(f'''global_load_dwordx4 {vr(vWRv,4)}, v4, {sp(sWR)}
global_load_dwordx4 {vr(vGWv,4)}, v4, {sp(sGW)}
global_load_dwordx4 {vr(vXA,4)}, v5, {sp(sX)}{NTX}
global_load_dwordx4 {vr(vXA+4,4)}, v5, {sp(sX)} offset:1024{NTX}
global_load_dwordx4 {vr(vXA+8,4)}, v5, {sp(sX)} offset:2048{NTX}
global_load_dwordx4 {vr(vXA+12,4)}, v5, {sp(sX)} offset:3072{NTX}
s_load_dword s{sTAG}, {sp(sWS)}, {WS_EPOCH}
s_branch L_rg''')
E(f'''L_conv:
s_and_b32 s{sCH}, s{sW}, 3
s_lshr_b32 s{sIO}, s{sW}, 2
s_lshl_b32 s{sT2}, s{sI}, 3
s_lshl_b32 s{sT1}, s{sCH}, 1
s_add_u32 s{sT0}, s{sT2}, s{sT1}
v_mov_b32 v10, s{sT0}
s_add_u32 s{sT0}, s{sT0}, s{sIO}
s_lshl_b32 s{sT0}, s{sT0}, 7
v_lshl_add_u32 v1, v{LANE}, 1, s{sT0}
v_mov_b32 v{vLA}, 0
v_mov_b32 v{vAI}, 0
v_mov_b32 v{vCR}, 0
v_mov_b32 v{vCI}, 0
v_mov_b32 v{vDT}, 0''')
if 'early' in OPT: stamp(13)
E('s_waitcnt lgkmcnt(0)')
stamp(1)
E(f'''global_load_short_d16_hi v{vLA}, v1, {sp(sLA)}{NTP}
global_load_short_d16_hi v{vDT}, v10, {sp(sLDT)}
global_load_short_d16_hi v{vAI}, v1, {sp(sAI)}{NTP}
global_load_short_d16_hi v{vCR}, v1, {sp(sCR)}{NTP}
global_load_short_d16_hi v{vCI}, v1, {sp(sCI)}{NTP}''')
if 'early' in OPT: stamp(12)
E(f'''v_and_b32 v11, 255, v0
v_lshl_add_u32 v{vXO}, v11, 11, s{sT2}
v_add_u32 v{vXO+1}, {512*1024}, v{vXO}
v_add_u32 v{vXO+2}, {1024*1024}, v{vXO}
v_add_u32 v{vXO+3}, {1536*1024}, v{vXO}
s_barrier
s_cmp_ge_u32 s{sW}, 4
s_cbranch_scc1 L_cio0''')
STOR = {0:0,1:1,2:2,3:3, 16:4,17:5,18:6,19:7,20:8,12:9, 15:10, 13:11,14:12,4:13,5:14,6:15,7:16,8:17,9:18,10:19,11:20,21:21}
assert sorted(STOR.values()) == list(range(22))
tab = [0,0,1,2,2,2,3,4,4,5,6,7,8,8,8,8]
hrow = []
for x in range(32):
    g_, r_ = (x >> 2) & 1, 4*(x >> 3) + (x & 3)
    hrow.append(STOR[13 + tab[r_] if g_ else min(r_, 12)])
planes = [sum(((hrow[x] >> b) & 1) << x for x in range(32)) for b in range(5)]
E(f'''s_lshl_b32 s{sT0}, s{sSLOT}, 7
s_lshl_b32 s{sT1}, s{sW}, 5
s_add_u32 s{sT0}, s{sT0}, s{sT1}
v_and_b32 v13, 31, v{LANE}
v_add_u32 v12, s{sT0}, v13
v_lshl_add_u32 v12, v12, 10, s{sT2}
v_mov_b32 v{GA}, 0''')

if 'early' in OPT: stamp(5)
if XWARM: E(f'global_load_dword v1, v12, {sp(sX)}')
if WW:
    E(f'''s_and_b32 s{sT0}, s2, 7
    s_mul_i32 s{sT0}, s{sT0}, 7
    s_lshr_b32 s{sT0}, s{sT0}, 1
    s_add_u32 s{sT0}, s{sT0}, s{sW}
    s_lshl_b32 s{sT0}, s{sT0}, 7
    s_lshr_b32 s{sT1}, s{sSLOT}, 1
    s_mul_i32 s{sT1}, s{sT1}, {64*3584}
    s_add_u32 s{sT0}, s{sT0}, s{sT1}
    v_max_u32 v12, 16, v{LANE}
    v_mul_u32_u24 v12, 3584, v12
    v_add_u32 v12, s{sT0}, v12
    s_bitcmp1_b32 s{sSLOT}, 0
    s_cselect_b64 {sp(sT4)}, {sp(sWU)}, {sp(sWG)}
    global_load_dword v9, v12, {sp(sT4)}''')
E(f'''s_mov_b64 exec, 1
global_load_short_d16_hi v{GA}, v10, {sp(sDS)}
s_mov_b64 exec, -1''')
for r in range(1, 16): E(f'v_mov_b32 v{GA+r}, 0')
for b_ in range(4, -1, -1):
    E(f's_mov_b32 s{sT0}, {planes[b_]}')
    if b_ == 4: E(f'v_bfe_u32 v{vA}, s{sT0}, v13, 1')
    else: E(f'v_bfe_u32 v12, s{sT0}, v13, 1\nv_lshl_or_b32 v{vA}, v{vA}, 1, v12')
E(f'''v_lshrrev_b32 v12, 5, v{LANE}
s_mul_i32 s{sT0}, s{sW}, {HIB}
s_add_u32 s{sT0}, s{sT0}, {HI0}
s_mul_i32 s{sT1}, s{sW}, {LOB}
v_lshl_add_u32 v10, v12, 4, s{sT0}
v_lshl_add_u32 v11, v12, 4, s{sT1}
s_mov_b32 s{sT2}, {ROWB}
v_mad_u32_u24 v{vA}, v{vA}, s{sT2}, v10
v_mad_u32_u24 v{vB}, v13, s{sT2}, v11
s_lshl_b32 s{sT0}, s{sW}, 12
s_add_u32 s{sT0}, s{sT0}, {SM0}
s_add_u32 s{sT2}, s{sT0}, {2*(543-7)}
v_lshlrev_b32 v10, 4, v{LANE}
v_sub_u32 v{vKX}, s{sT2}, v10
v_and_b32 v10, 1, v{LANE}
v_lshrrev_b32 v11, 1, v{LANE}
v_lshl_add_u32 v11, v11, 2, s{sT0}
v_lshl_add_u32 v{vK3}, v10, 8, v11
v_lshl_add_u32 v{vK4}, v{LANE}, 1, s{sT0}
v_and_b32 v11, 15, v{LANE}
v_and_b32 v12, 48, v{LANE}
v_mul_u32_u24 v13, {KY+2}, v10
v_lshl_add_u32 v13, v11, 1, v13
v_sub_u32 v{vCA}, v12, v13
s_add_u32 s{sT2}, s{sT0}, {KY+2*(544-16)-1024}
v_add_u32 v{vCA}, s{sT2}, v{vCA}
v_add_u32 v{vCA2}, 512, v{vCA}
s_mul_i32 s{sT2}, s{sW}, {UCB}
s_add_u32 s{sT2}, s{sT2}, {UB0}
v_lshl_add_u32 v{vCB}, v11, 5, v12
v_add_u32 v{vCB}, s{sT2}, v{vCB}
v_lshl_add_u32 v{vY}, v11, 4, s{sT1}
v_mad_u32_u24 v{vY}, v12, {YG//16}, v{vY}
s_add_u32 s{sT2}, s{sT0}, {F3+4*13}
v_lshl_add_u32 v{vTZ}, v11, 2, s{sT2}
v_sub_u32 v{vTZ}, v{vTZ}, v12
''')
r = vBAND + 16
E(f'''v_lshrrev_b32 v13, 1, v12
s_mov_b32 s{sT1}, {3 << 12}
v_lshlrev_b32 v{r}, v11, s{sT1}
v_bfe_u32 v{r}, v{r}, v13, 8
v_lshl_or_b32 v{r}, v{r}, 15, v{r}
v_lshrrev_b32 v{r+1}, 2, v{r}
v_lshrrev_b32 v{r+2}, 4, v{r}
v_lshrrev_b32 v{r+3}, 6, v{r}
s_mov_b32 s{sT1}, 0x10001
v_and_b32 v{r}, s{sT1}, v{r}
v_and_b32 v{r+1}, s{sT1}, v{r+1}
v_and_b32 v{r+2}, s{sT1}, v{r+2}
v_and_b32 v{r+3}, s{sT1}, v{r+3}''')
if 'early' in OPT: stamp(6)
E(f'''s_waitcnt vmcnt({1 + XWARM + WW + CL})''')
if 'early' in OPT: stamp(8)
E(f'''s_branch L_ckgen
L_cio0:''')

if 'early' in OPT: stamp(5)
def uload(p):
    E(f'global_load_dwordx2 {vr(vX+4*p,2)}, v{vXO+p}, {sp(sX)}')
    E(f'global_load_dwordx2 {vr(vX+4*p+2,2)}, v{vXO+p}, {sp(sX)} offset:1024')
NUP = sum(1 for x in UPOS if x == 0)
for p in range(NUP): uload(p)
E(f'''v_mov_b32 v32, 0
v_mov_b32 v33, 0
v_mov_b32 v34, 0
v_mov_b32 v35, 0
s_mul_i32 s{sT0}, s{sCH}, {UCB}
s_add_u32 s{sT0}, s{sT0}, {UB0}
v_min_u32 v13, 29, v{LANE}
v_lshl_add_u32 v12, v13, 4, s{sT0}
ds_write_b128 v12, v[32:35]
s_lshl_b32 s{sT0}, s{sCH}, 12
s_add_u32 s{sT0}, s{sT0}, {SM0}
v_lshl_add_u32 v12, v{LANE}, 4, s{sT0}
ds_write_b128 v12, v[32:35]
ds_write_b128 v12, v[32:35] offset:1024
ds_write_b128 v12, v[32:35] offset:2048
ds_write_b128 v12, v[32:35] offset:3072
; IO addresses: v64 U write, v65 keys, v66 g granules, v67 y read, v68 own flag, v69 M flags, v70 zero
v_lshlrev_b32 v64, 2, v11
v_add_u32 v64, {UB0+UPAD}, v64
s_mov_b32 s{sP0}, 0x05040100
s_mov_b32 s{sP1}, 0x07060302
; band fragments (0/1 window matrices): IO wave ch builds window ch, wave 7 also the two-tap mask
s_mov_b32 s{sT1}, {7 << 11}
s_cmp_eq_u32 s{sCH}, 1
s_cselect_b32 s{sT1}, {31 << 6}, s{sT1}
s_cmp_eq_u32 s{sCH}, 2
s_cselect_b32 s{sT1}, {127 << 5}, s{sT1}
s_cmp_eq_u32 s{sCH}, 3
s_cselect_b32 s{sT1}, {511 << 4}, s{sT1}
s_mov_b32 s{sT0}, 0x10001
s_mov_b32 s{sT3}, 0x3f80
s_lshl_b32 s{sT2}, s{sCH}, 10
s_add_u32 s{sT2}, s{sT2}, {BND}
v_lshl_add_u32 v9, v{LANE}, 4, s{sT2}
v_and_b32 v10, 15, v{LANE}
v_lshrrev_b32 v13, 4, v{LANE}
v_lshlrev_b32 v13, 3, v13
v_lshlrev_b32 v12, v10, s{sT1}
v_bfe_u32 v12, v12, v13, 8
v_lshl_or_b32 v12, v12, 15, v12
v_lshrrev_b32 v41, 2, v12
v_lshrrev_b32 v42, 4, v12
v_lshrrev_b32 v43, 6, v12
v_and_b32 v40, s{sT0}, v12
v_and_b32 v41, s{sT0}, v41
v_and_b32 v42, s{sT0}, v42
v_and_b32 v43, s{sT0}, v43
v_mul_u32_u24 v40, s{sT3}, v40
v_mul_u32_u24 v41, s{sT3}, v41
v_mul_u32_u24 v42, s{sT3}, v42
v_mul_u32_u24 v43, s{sT3}, v43
ds_write_b128 v9, v[40:43]
{"s_setprio 1" if KPRIO == 'io' else ""}
''')
if 'early' in OPT: stamp(6)
E(f'''s_waitcnt vmcnt({2*NUP + CL})''')
if 'early' in OPT: stamp(8)
E('L_ckgen:')
stamp(2)
a, b, c, d = 10, 11, 12, 13
E(f'''v_mul_f32 v{a}, {f32(L2E_HI)}, v{vLA}
v_mul_f32 v{b}, {f32(L2E_HI)}, v{vDT}
v_rndne_f32 v{c}, v{a}
v_rndne_f32 v{d}, v{b}
v_sub_f32 v{a}, v{a}, v{c}
v_sub_f32 v{b}, v{b}, v{d}
v_fmac_f32 v{a}, {f32(L2E_LO)}, v{vLA}
v_fmac_f32 v{b}, {f32(L2E_LO)}, v{vDT}
v_exp_f32 v{a}, v{a}
v_exp_f32 v{b}, v{b}
v_cvt_i32_f32 v{c}, v{c}
v_cvt_i32_f32 v{d}, v{d}
v_ldexp_f32 v{a}, v{a}, v{c}
v_ldexp_f32 v{b}, v{b}, v{d}
s_lshl_b32 s{sT1}, s{sIO}, 8
s_mul_i32 s{sT2}, s{sCH}, {LOB}
v_cvt_pk_bf16_f32 v{a}, v{a}, v{b}
s_add_u32 m0, s{sT2}, s{sT1}
v_and_b32 v{vDT}, 0xffff0000, v{a}
v_lshlrev_b32 v{a}, 16, v{a}
s_mul_i32 s{sT2}, s{sCH}, {HIB}
{"s_waitcnt vmcnt(2)" if CL == 3 else ""}
v_mul_f32 v{a}, v{a}, v{vDT}
v_mul_f32 v{vAI}, v{vAI}, v{vDT}
s_add_u32 s{sT1}, s{sT1}, s{sT2}
v_mul_f32 v{vLA}, {f32(-L2E)}, v{a}
v_mul_f32 v{vAI}, {f32(0.15915494309189535)}, v{vAI}
s_add_u32 s{sT1}, s{sT1}, {HIX}
v_mul_f32 v{a}, {f32(8.0)}, v{vLA}
v_mul_f32 v{b}, {f32(8.0)}, v{vAI}
s_cmp_eq_u32 s{sIO}, 0''')
vW1, vW8, vW256 = 36, 38, 40
E(f'''v_exp_f32 v{a}, v{a}
v_fract_f32 v{b}, v{b}
v_exp_f32 v{c}, v{vLA}
v_fract_f32 v{d}, v{vAI}
v_cos_f32 v{vW8}, v{b}
v_sin_f32 v{vW8+1}, v{b}
v_cos_f32 v{vW1}, v{d}
v_sin_f32 v{vW1+1}, v{d}
v_add_f32 v{vDT}, v{vDT}, v{vDT}
v_mov_b32 v35, 0x3f80
v_pk_mul_f32 {vr(vW8,2)}, {vr(vW8,2)}, {vr(a,2)} op_sel:[0,0] op_sel_hi:[1,0]
v_pk_mul_f32 {vr(vW1,2)}, {vr(vW1,2)}, {vr(c,2)} op_sel:[0,0] op_sel_hi:[1,0]
ds_write_addtid_b32 v35 offset:0''')
if 'early' in OPT: stamp(9)
tmpc = [0]
pendw = []
nextp = [NUP]
def flushw():
    while pendw: E(pendw.pop(0))
def cmul(D, X, W):
    E(f'v_pk_mul_f32 {vr(D,2)}, {vr(X,2)}, {vr(W,2)} op_sel:[0,0] op_sel_hi:[0,1]')
    flushw()
    E(f'v_pk_fma_f32 {vr(D,2)}, {vr(X,2)}, {vr(W,2)}, {vr(D,2)} op_sel:[1,1,0] op_sel_hi:[1,0,1] neg_lo:[1,0,0]')
def put(X, off, neg):
    t = 32 + (tmpc[0] & 3)
    E(f'v_cvt_pk_bf16_f32 v{t}, v{X}, {"-" if neg else ""}v{X+1}')
    pendw.append(f'ds_write_addtid_b32 v{t} offset:{off}')
    tmpc[0] += 1
    if tmpc[0] == int(OPT.get('kdrop', 99)): E('s_setprio 0')
    if tmpc[0] == UPOS[0]:
        if CL: E('s_cbranch_scc1 L_cw1\ns_waitcnt vmcnt(0)\nL_cw1:\ns_waitcnt vmcnt(2)')
        E(f'v_pk_mul_f32 {vr(vCR,2)}, {vr(vCR,2)}, {vr(vDT,2)} op_sel:[0,0] op_sel_hi:[1,0]')
    while nextp[0] < 4 and UPOS[nextp[0]] == tmpc[0]:
        E(f's_cbranch_scc1 L_mid{nextp[0]}')
        uload(nextp[0])
        E(f'L_mid{nextp[0]}:')
        nextp[0] += 1
put(vW8, ROWB, False)
P0, P1 = 46, 48
cur = vW8
for i in range(2, 32):
    nxt = P0 if cur != P0 else P1
    cmul(nxt, cur, vW8)
    put(nxt, i*ROWB, False)
    cur = nxt
cmul(vW256, cur, vW8)
E(f's_mov_b32 m0, s{sT1}')
hoff = lambda row: HI0 - HIX + STOR[row]*ROWB
H = [50, 52, 54, 56, 58]
put(vCR, hoff(0), True)
cur = vCR
keep = {0: vCR}
for e in range(1, 9):
    nxt = H[e//2] if e % 2 == 0 else P0
    cmul(nxt, cur, vW1)
    put(nxt, hoff(e), True)
    cur = nxt
    if e % 2 == 0: keep[e] = nxt
for e, row in ((0, 13), (2, 14), (6, 16)):
    cmul(P0, keep[e], vW256)
    put(P0, hoff(row), True)
cur = keep[4]
for row in (15, 9, 18):
    nxt = P0 if cur != P0 else P1
    cmul(nxt, cur, vW256); put(nxt, hoff(row), True); cur = nxt
cur = keep[8]
for row in (17, 10, 19, 11, 20, 12, 21):
    nxt = P0 if cur != P0 else P1
    cmul(nxt, cur, vW256); put(nxt, hoff(row), True); cur = nxt
flushw()
NMID = nextp[0] - 1
stamp(3)
if 'early' in OPT: E('s_branch L_cdone')
E(f's_cbranch_scc0 L_cio1')
if STAMPS:
    for i_ in (5, 6, 8, 9, 14, 15): E(f's_mov_b64 s[{SB+2*i_}:{SB+2*i_+1}], 0')
m_begin = len(out)
def gread(s):
    r = GF + 8*(s % 8)
    E(f'ds_read_b128 {vr(r,4)}, v{vA} offset:{32*s}')
    E(f'ds_read_b128 {vr(r+4,4)}, v{vB} offset:{32*s}')
fill = [f's_lshl_b32 s{sT2}, s{sW}, 2', f's_add_u32 s{sT2}, s{sT2}, {SM0+FLG}', f'v_mov_b32 v{vFL}, s{sT2}', f'v_mov_b32 v8, {SM0+FLG}',
        f'v_lshlrev_b32 v10, 4, v{LANE}', f'v_add_u32 v10, {BND}, v10']
def dofill(n):
    while n > 0 and fill:
        x = fill.pop(0); E(x)
        if x.startswith('v_'): n -= 1
BPOS = int(OPT.get('bpos', 5))
def gemm_all(extra):
    q = []
    def rd(s_): gread(s_); q.append(s_)
    GD = int(OPT.get('gd', 3))
    for s_ in range(GD): rd(s_)
    dofill(99)
    nxt = GD; nx = 0
    for s_ in range(16):
        E(f's_waitcnt lgkmcnt({2*(len(q) - 1 - q.index(s_)) + nx})')
        r = GF + 8*(s_ % 8)
        E(f'v_mfma_f32_32x32x16_bf16 {vr(GA,16)}, {vr(r,4)}, {vr(r+4,4)}, {vr(GA,16)}')
        if s_ == BPOS:
            stamp(13); E('s_barrier'); stamp(4)
        while nxt < 16 and nxt - 8 <= s_ and (nxt < 8 or s_ >= BPOS) and nxt - s_ <= GD:
            rd(nxt); nxt += 1
        if s_ == 15 - GD: nx = extra()
E(f'''s_waitcnt vmcnt(0) lgkmcnt(1)
s_mov_b64 exec, 1
v_add_f32 v{GA}, -1.0, v{GA}
s_mov_b64 exec, -1''')

def aread(q):
    base, off = (vCA, (1024-64*q)//4) if q >= 9 else (vCA2, (512-64*q)//4)
    return [f'ds_read2_b32 {vr(AF+4*q,2)}, v{base} offset0:{off} offset1:{off+1}',
            f'ds_read2_b32 {vr(AF+4*q+2,2)}, v{base} offset0:{off+2} offset1:{off+3}']
def tzread(i):
    if i < 6: off = (i//3)*64 + 16*(i % 3)
    else: off = (F4-F3)//4 + 16*(i-6)
    return [f'ds_read2_b32 {vr(TZ+4*i,2)}, v{vTZ} offset0:{off+3} offset1:{off+2}',
            f'ds_read2_b32 {vr(TZ+4*i+2,2)}, v{vTZ} offset0:{off+1} offset1:{off}']
def boff(k):
    kind, tp, q = k
    return UPAD + 512*tp - 32 - (16 if kind == 'Z' else 64*q)
band = lambda i: vr(vBAND+4*i, 4)
stream = []
def mk(tile, a_, b_, dst=None): stream.append(('m', tile, a_, b_, dst))
def parts(tp):
    G0 = ('B', tp, 0) if tp == 0 else ('G', tp, 0); Z = ('Z', tp, 0); B0 = ('B', tp, 0)
    gen = []; cv = []
    if tp <= 5:
        gen += [(8, Z, 0), (12, Z, 1)]
        if tp <= 3: gen += [(20, Z, 3)]
        gen += [(0, G0, 0), (4, G0, 1)]
        if tp <= 3: gen += [(16, G0, 2)]
        for base in ((8, 0, 16) if tp <= 3 else (8, 0)):
            for jj in range(4): cv.append(f'v_cvt_pk_bf16_f32 v{DT+base+jj}, v{DT+base+jj}, v{DT+base+4+jj}')
    own = [(tp, ('A', q), ('B', tp, q)) for q in range(8)]
    nxt = [(tp+1, ('A', q+8), ('B', tp, q)) for q in range(8)] if tp < 7 else []
    lead = []
    if tp <= 5: lead.append((tp+2, ('A', 16), G0))
    if tp <= 3: lead.append((tp+4, band(4), G0))
    far = []
    if tp <= 5:
        for dl in range(3):
            if tp + 2 + dl <= 7:
                far.append((tp+2+dl, vr(DT+8, 4), ('T', 3+dl)))
                far.append((tp+2+dl, vr(DT, 4), ('T', dl)))
    if tp <= 3:
        for dl in range(4):
            if tp + 4 + dl <= 7: far.append((tp+4+dl, vr(DT+16, 4), ('T', 6+dl)))
    return gen, cv, own, nxt, lead, far
PT = [parts(tp) for tp in range(8)]
def with_cv(seq, cv, start, per=1):
    for i, t_ in enumerate(seq):
        mk(*t_)
        if i >= start:
            for _ in range(per):
                if cv: stream.append(('v', cv.pop(0)))
    assert not cv
gen, cv = PT[0][0], PT[0][1]
gm = [(None, k, band(bi), DT+dof) for dof, k, bi in gen]
D = lambda r: f'v{GA+r}'
x2v = [f'v_cvt_pk_bf16_f32 v11, {D(10)}, 0', f'v_cvt_pk_bf16_f32 v14, 0, {D(8)}', f'v_cvt_pk_bf16_f32 v15, {D(8)}, {D(8)}',
       f'v_readlane_b32 s{sT2}, v11, 63', f'v_cvt_pk_bf16_f32 v1, {D(9)}, {D(10)}', f'v_cvt_pk_bf16_f32 v2, {D(11)}, {D(12)}',
       f'v_subrev_u32 v{vKX}, 8, v{vKX}']
mk4 = [f'v_mul_u32_u24 v{vBAND+16+jj}, s{sT2}, v{vBAND+16+jj}' for jj in range(4)]
NG0 = int(OPT.get('ng0', 3))
with_cv(gm[:NG0], [], 0)
stream.append(('expand',))
with_cv(gm[NG0:], x2v, 0, 7 if NG0 > 4 else 4 if NG0 > 3 else 3)
stream.append(('x2ok',))
if OPT.get('t0', '0') == '1':
    with_cv(PT[0][2], mk4, 2)
    stream.append(('mark', 0))
    seq = []
    for q in range(8): seq += [PT[1][2][q], PT[0][3][q], PT[1][3][q]]
    with_cv(seq[:23], cv, 0)
    stream.append(('mark', 1))
    with_cv(seq[23:] + [(t_, a_, ('C', 0, 0)) for t_, a_, b_ in PT[0][4]], [], 0)
else:
    seq = []
    for q in range(8):
        seq += [PT[0][2][q], PT[1][2][q], PT[0][3][q], PT[1][3][q]]
    with_cv(seq[:30], mk4 + cv, 4)
    del cv[:]
    stream.append(('mark', 0))
    with_cv(seq[30:31], [], 0)
    stream.append(('mark', 1))
    with_cv(seq[31:] + PT[0][4], [], 0)
for tp in range(2, 8):
    src = tp - 2
    if src >= 1:
        for dof, k, bi in PT[src][0]: mk(None, k, band(bi), DT+dof)
    seq = PT[src][4] if src >= 1 else []
    ownf = tp == 7 or str(tp) in OPT.get('ownf', '')
    for q in range(8):
        if not ownf: seq = seq + [PT[tp][3][q]]
        seq = seq + [PT[tp][2][q]]
    cvs = PT[src][1]
    if ownf: with_cv(seq, cvs[:8], len(seq) - 4, 2); stream.append(('v', 's_nop 0'))
    else: with_cv(seq, cvs, 5)
    far = PT[src][5]
    with_cv(far[:2], [], 0)
    stream.append(('mark', tp))
    if ownf: with_cv(PT[tp][3], cvs[8:], 0)
    with_cv(far[2:], [], 0)
    if tp == 7: stream.append(('part',))
order = []
first, last = {}, {}
for i, it in enumerate(stream):
    if it[0] == 'm':
        for k in (it[2], it[3]):
            if isinstance(k, tuple):
                if k not in first: first[k] = i; order.append(k)
                last[k] = i
slot, free_after = {}, {}
slotfree = {(s_+6) % NSLOT: -1 for s_ in range(NSLOT)}
for k in order:
    if k[0] in 'BZGC':
        s_ = min(slotfree, key=lambda z: slotfree[z])
        slot[k] = s_; free_after[k] = slotfree[s_]; assert free_after[k] < first[k]
        del slotfree[s_]; slotfree[s_] = last[k]
def reg(k):
    if not isinstance(k, tuple): return k
    if k[0] == 'A': return vr(AF+4*k[1], 4)
    if k[0] == 'T': return vr(TZ+4*k[1], 4)
    return vr(BR+4*slot[k], 4)
issued = []; done_upto = [0]; lastop = {}; fin = []
checked = {0}; FOFF = 0
T_ = [0]; TL = [0]
LAT = int(OPT.get('lat', 110)); BACK = int(OPT.get('back', 20)); LOOK = int(OPT.get('look', 14))
state = {'exp': False, 'x2': False}
ops = []
def addop(key, txt, cost, pre='', post=''): ops.append(dict(key=key, txt=txt, cost=cost, pre=pre, post=post))
seenW = False
for k in order:
    if (k == ('A', 16) or k[0] == 'T') and not seenW:
        seenW = True
        addop(('X', 0), f'ds_write_b64 v{vKX}, v[14:15] offset:{KX}', 24, 's_mov_b32 exec_lo, 0\ns_mov_b32 exec_hi, 0x80000000', 's_mov_b64 exec, -1')
        addop(('X', 1), f'ds_write_b32 v{vKX}, v15 offset:{KY+4}', 16, 's_mov_b32 exec_lo, 0\ns_mov_b32 exec_hi, 0x80000000', 's_mov_b64 exec, -1')
        addop(('X', 2), f'ds_write_b32 v{vK3}, v1 offset:{F3+64}', 16)
        addop(('X', 3), f'ds_write_b16 v{vK4}, v2 offset:{F4+64}', 16)
        addop(('X', 4), f'ds_write_b16_d16_hi v{vK4}, v2 offset:{F4+64+128}', 16)
        for n_ in range(5): first[('X', n_)] = first[k]
    if k[0] == 'A':
        for x in aread(k[1]): addop(k, x, 16)
    elif k[0] == 'T':
        for x in tzread(k[1]): addop(k, x, 16)
    else: addop(k, f'ds_read_b128 {reg(k)}, v{vCB} offset:{boff(k)}', 16)
def wait_for(idx):
    if idx < done_upto[0]: return
    T_[0] = max(T_[0], fin[idx])
    while idx + 1 < len(issued) and fin[idx+1] + 16 <= T_[0]: idx += 1
    n = len(issued) - 1 - idx
    assert n <= 15
    E(f's_waitcnt lgkmcnt({n})')
    done_upto[0] = idx + 1
def lds(txt, key=None, cost=16):
    if len(issued) - done_upto[0] >= 15: wait_for(done_upto[0])
    E(txt); issued.append(key)
    TL[0] = max(TL[0], T_[0]) + cost
    fin.append(TL[0] + LAT)
    T_[0] = max(T_[0] + 4, TL[0] - 64)
    if key is not None: lastop[key] = len(issued) - 1
def ready(o, i, pos):
    k = o['key']
    if k[0] == 'X': return state['x2']
    if k == ('A', 16) or k[0] == 'T': return not any(p['key'][0] == 'X' for p in ops)
    if k[0] == 'A': return state['exp']
    if free_after[k] > i: return False
    return k[1]//2 in checked or first[k] <= i + LOOK
def doop(o):
    ops.remove(o)
    k = o['key']
    if k[0] in 'BZGC' and k[1]//2 not in checked:
        ph = k[1]//2
        if ('F', ph) not in lastop: lds('ds_read_b128 v[4:7], v8 offset:16', ('F', ph), 8)
        wait_for(lastop[('F', ph)])
        E(f'''v_min_u32 v4, v4, v5
        v_min3_u32 v4, v4, v6, v7
        v_cmp_le_u32 vcc, {ph+FOFF}, v4
        s_cbranch_vccz L_uc{ph}
        L_uc{ph}d:''')
        T_[0] += 24
        checked.add(ph)
    if len(issued) - done_upto[0] >= 15: wait_for(done_upto[0])
    if o['pre']: E(o['pre'])
    lds(o['txt'], k, o['cost'])
    if o['post']: E(o['post'])
def feed(i, until, maxn=99):
    un = [o['key'] for o in ops if o['key'][0] in 'BZGC' and o['key'][1]//2 not in checked]
    if un and ('F', un[0][1]//2) not in lastop and first[un[0]] <= i + LOOK + 10:
        lds('ds_read_b128 v[4:7], v8 offset:16', ('F', un[0][1]//2), 8); maxn -= 1
    while maxn > 0 and TL[0] - until < BACK:
        if len(issued) - done_upto[0] >= 14:
            if fin[done_upto[0] + 2] > T_[0]: break
            wait_for(done_upto[0])
        cand = [o for n_, o in enumerate(ops[:40]) if ready(o, i, n_)]
        if not cand: break
        doop(cand[0]); maxn -= 1
def expand():
    global NOPX
    NOPX = max(0, 11 - (ninstr() - gemm_end - ('mid' in OPT)))
    t = TZ
    E(f'''s_nop NOPX
    v_cvt_pk_bf16_f32 v{t}, {D(7)}, {D(6)}
    v_cvt_pk_bf16_f32 v{t+1}, {D(5)}, {D(4)}
    v_cvt_pk_bf16_f32 v{t+2}, {D(3)}, {D(2)}
    v_cvt_pk_bf16_f32 v{t+3}, {D(1)}, {D(0)}''')
    T_[0] = max(T_[0], 80) + 20
    lds(f'ds_write_b128 v{vKX}, {vr(t,4)} offset:{KX}', None, 52)
    E(f'''v_cvt_pk_bf16_f32 v{t+4}, {D(8)}, {D(7)}
    v_cvt_pk_bf16_f32 v{t+5}, {D(6)}, {D(5)}
    v_cvt_pk_bf16_f32 v{t+6}, {D(4)}, {D(3)}
    v_cvt_pk_bf16_f32 v{t+7}, {D(2)}, {D(1)}
    v_cvt_pk_bf16_f32 v{t+10}, {D(0)}, 0''')
    T_[0] += 24
    lds(f'ds_write_b128 v{vKX}, {vr(t+4,4)} offset:{KY}', None, 52)
    E('s_mov_b64 exec, 1')
    lds(f'ds_write_b32 v{vKX}, v{t+10} offset:{KY+16}', None, 16)
    E('s_mov_b64 exec, -1')
    state['exp'] = True
    for o in [o_ for o_ in ops if o_['key'][0] == 'A'][:4]: doop(o)
    if 'mid' in OPT: stamp(5)
vPA = 10
accinit = set()
ypend = []
NPRE = int(OPT.get('npre', 3))
def first_b():
    T_[0] = -32*GD_; TL[0] = -32
    if not BEARLY:
        for bi in (0, 1, 3, 2): lds(f'ds_read_b128 {band(bi)}, v10 offset:{1024*bi}', ('W', bi))
    for o in [o_ for o_ in ops if o_['key'][0] in 'BZGC'][:NPRE]: doop(o)
    T_[0] = max(T_[0], 0)
    return len(issued)
GD_ = int(OPT.get('gd', 3))
gemm_all(first_b)
assert not fill, fill
gemm_end = ninstr()
if 'mid' in OPT: stamp(8)
TM = [32]
for i, it in enumerate(stream):
    n0 = ninstr()
    if it[0] == 'mark':
        tp = it[1]
        if 'mid' in OPT and tp in (1, 2, 3, 5): stamp({1: 6, 2: 9, 3: 14, 5: 15}[tp])
        if 'sim' in OPT: sys.stderr.write(f'T{tp} at {TM[0]}\n')
        ypend.append([8, ([('ds', f'ds_write_b128 v{vY}, {vr(ACC+4*tp,4)} offset:{4*YG*tp}', 52), ('v', f'v_mov_b32 v13, {tp+1}', 0)] if OPT.get('ysp', '0') == '0' else
             [('ds', f'ds_write_b64 v{vY}, {vr(ACC+4*tp,2)} offset:{4*YG*tp}', 24), ('v', f'v_mov_b32 v13, {tp+1}', 0), ('ds', f'ds_write_b64 v{vY}, {vr(ACC+4*tp+2,2)} offset:{4*YG*tp+8}', 24), ('v', 's_nop 0', 0)]) + [('ds', f'ds_write_b32 v{vFL}, v13', 16)]])
        continue
    if it[0] == 'expand': expand()
    elif it[0] == 'x2ok': state['x2'] = True
    elif it[0] == 'part':
        E(f'''s_cmp_lg_u32 s{sW}, 0
        s_cbranch_scc1 L_nopart
        s_setprio 3
        s_lshl_b32 s{sT2}, s{sI}, 10
        s_add_u32 s{sT2}, s{sT2}, {WS_PART}
        v_min_u32 v{vPA}, 55, v{LANE}
        v_lshl_add_u32 v{vPA}, v{vPA}, 4, s{sT2}
        global_load_dwordx4 {vr(TZ+24,4)}, v{vPA}, {sp(sWS)} sc1
        L_nopart:''')
        n0 = ninstr() - 2
    elif it[0] == 'v':
        E(it[1]); T_[0] = max(T_[0], TM[0] - 8) + 4
    else:
        _, tile, a_, b_, dst = it
        keys = [k for k in (a_, b_) if isinstance(k, tuple)]
        for k in keys:
            while any(o['key'] == k for o in ops):
                o = [o for n_, o in enumerate(ops) if ready(o, i-1, n_)][0]
                doop(o)
        need = [lastop[k] for k in keys]
        if need and max(need) >= done_upto[0]:
            if fin[max(need)] > max(T_[0], TM[0]): feed(i-1, fin[max(need)] - LAT + 48)
            wait_for(max(need))
        if tile is None: E(f'v_mfma_f32_16x16x32_bf16 {vr(dst,4)}, {reg(a_)}, {reg(b_)}, 0')
        else:
            c_ = vr(ACC+4*tile, 4) if tile in accinit else '0'
            accinit.add(tile)
            E(f'v_mfma_f32_16x16x32_bf16 {vr(ACC+4*tile,4)}, {reg(a_)}, {reg(b_)}, {c_}')
        T_[0] = max(T_[0], TM[0]); TM[0] = T_[0] + 16; T_[0] += 4
        for p in ypend: p[0] -= ninstr() - n0
        n0 = ninstr()
        if ypend and ypend[0][0] <= 0:
            for _ in range(2):
                if ypend[0][1]:
                    kind, txt, cost = ypend[0][1].pop(0)
                    if kind == 'ds': lds(txt, None, cost)
                    else: E(txt)
            if not ypend[0][1]: ypend.pop(0)
        else:
            feed(i, T_[0], 2)
    for p in ypend: p[0] -= ninstr() - n0
order = ops
assert not order
for p in ypend:
    if p[0] > 0: E(f's_nop {p[0]-1}')
    n0 = ninstr()
    for kind, txt, cost in p[1]: E(txt)
    for p2 in ypend: p2[0] -= max(p[0], 0) + ninstr() - n0
def isize(x):
    x = x.strip()
    if x.endswith(':'): return 0
    op = x.split(' ')[0]
    if op in ('s_waitcnt', 's_nop', 's_barrier', 's_cbranch_vccz', 's_cbranch_scc1', 'v_min_u32', 'v_and_b32', 'v_mov_b32', 's_mov_b64', 'v_subrev_u32', 'v_cmp_le_u32'): return 4
    return 8
if 'strip' in OPT:
    import re as _re
    pat = _re.compile(OPT['strip'])
    body = out[m_begin:]; del out[m_begin:]
    out += [x for x in body if not pat.search(x)]
NHOP = 0
if ICW:
    body = out[m_begin:]; del out[m_begin:]
    acc = ICW
    for j, x in enumerate(body):
        out.append(x); acc += isize(x)
        nxt_ok = 'v_mfma' in x or acc >= ICW - 8
        if acc >= ICW - 28 and nxt_ok and not x.endswith(':'):
            out.append(f'L_hop{NHOP}:'); out.append(f'    s_cbranch_execz L_hop{NHOP+1}'); NHOP += 1; acc = 4
    out.append(f'L_hop{NHOP}:'); out.append('    s_cbranch_execz L_hopend')
stamp(7)
if 'twice' in OPT: E(f's_waitcnt lgkmcnt(0) vmcnt(0)\nv_add_u32 v{vKX}, 8, v{vKX}\ns_add_u32 s7, s7, 1\ns_cmp_eq_u32 s7, 1\ns_cbranch_scc1 L_twice')
if 'noepi' in OPT or 'nofin' in OPT: E('s_branch L_cdone')
E(f'''s_cmp_lg_u32 s{sW}, 0
s_cbranch_scc1 L_cdone''')
PL = TZ + 24
E(f'''s_mov_b32 s{sSPIN}, {SPIN_MAX}
L_mb:
ds_read_b128 v[4:7], v8 offset:32
s_waitcnt lgkmcnt(0)
v_cmp_ne_u32 vcc, 0, v7
s_cbranch_vccnz L_mbd''')
spin_check('L_mb')
E(f'''L_mbd:
v_readfirstlane_b32 s{sKEY}, v4
v_readfirstlane_b32 s{sTAG}, v5
v_mov_b32 v20, 0
v_mov_b32 v21, 0
v_mov_b32 v22, 0
v_mov_b32 v23, 0
s_andn2_b32 s{sIDX}, 2047, s{sKEY}
s_lshl_b32 s{sT0}, s{sIDX}, 1
s_add_u32 s{sT0}, s{sT0}, {UB0+UPAD}
v_mov_b32 v11, s{sT0}''')
for k in range(4):
    E(f'ds_read_u16_d16_hi v{20+k}, v11 offset:{k*UCB}')
E(f'''s_lshr_b32 s{sT2}, s{sIDX}, 8
s_lshl_b32 s{sT0}, s{sT2}, 2
s_bfe_u32 s{sT1}, s{sIDX}, 0x20002
s_add_u32 s{sT0}, s{sT0}, s{sT1}
s_mul_i32 s{sT0}, s{sT0}, {YG}
s_and_b32 s{sT1}, s{sIDX}, 0xf0
s_add_u32 s{sT0}, s{sT0}, s{sT1}
s_and_b32 s{sT1}, s{sIDX}, 3
s_lshl_b32 s{sT1}, s{sT1}, 2
s_add_u32 s{sT0}, s{sT0}, s{sT1}
v_mov_b32 v12, s{sT0}
s_add_u32 s{sTH}, s{sT2}, 1
s_bitcmp1_b32 s{sIDX}, 0
s_cselect_b32 s{sT0}, 0, 16
v_lshlrev_b32 v24, s{sT0}, v6
v_and_b32 v24, 0xffff0000, v24
s_and_b32 s{sT0}, s{sKEY}, 0xffff0000
s_xor_b32 s{sT1}, s{sT0}, 0xffff0000
s_xor_b32 s{sT0}, s{sT0}, 0x80000000
s_bitcmp1_b32 s{sKEY}, 31
s_cselect_b32 s{sT0}, s{sT0}, s{sT1}
v_mov_b32 v25, {f32(-L2E)}
v_mul_f32 v25, s{sT0}, v25
v_exp_f32 v25, v25
v_sub_f32 v38, 1.0, v24
v_add_f32 v25, 1.0, v25
v_rcp_f32 v25, v25
v_cvt_pk_bf16_f32 v38, 0, v38
v_cvt_pk_bf16_f32 v25, 0, v25
v_mul_f32 v25, v25, v38''')
wait_flags(sTH, 'f', 8, 4, 0)
for k in range(4):
    E(f'ds_read_b32 v{16+k}, v12 offset:{k*LOB}')
E(f'''s_mov_b32 s{sT0}, 0x0c0c0400
s_mov_b32 s{sT1}, 0x04000c0c
s_mov_b32 s{sSPIN}, {SPIN_MAX}
s_branch L_pp1
L_pp:
global_load_dwordx4 {vr(PL,4)}, v{vPA}, {sp(sWS)} sc1
L_pp1:
s_waitcnt vmcnt(0)
v_perm_b32 v26, v{PL+1}, v{PL}, s{sT0}
v_perm_b32 v27, v{PL+3}, v{PL+2}, s{sT1}
v_or_b32 v26, v26, v27
v_cmp_ne_u32 vcc, s{sTAG}, v26
s_cbranch_vccz L_ppd''')
spin_check('L_pp')
E('L_ppd:')
stamp(12)
E(f'''s_mov_b32 exec_lo, 0
s_mov_b32 exec_hi, 0xff000000
v_mov_b32 v{PL}, 0
v_mov_b32 v{PL+1}, 0
v_mov_b32 v{PL+2}, 0
v_mov_b32 v{PL+3}, 0
s_mov_b64 exec, -1
s_waitcnt lgkmcnt(0)
v_fmac_f32 v20, v16, v24
v_permlane32_swap_b32 v{PL}, v{PL+2}
v_fmac_f32 v21, v17, v24
v_permlane32_swap_b32 v{PL+1}, v{PL+3}
v_add_f32 v{PL}, v{PL}, v{PL+2}
v_add_f32 v{PL+1}, v{PL+1}, v{PL+3}
v_fmac_f32 v22, v18, v24
v_fmac_f32 v23, v19, v24
v_permlane16_swap_b32 v{PL}, v{PL+1}
s_lshl_b32 s{sT0}, s{sIDX}, 10
v_add_f32 v{PL}, v{PL}, v{PL+1}
s_lshl_b32 s{sT1}, s{sI}, 3
s_add_u32 s{sT0}, s{sT0}, s{sT1}''')
for sh in (8, 4, 2, 1):
    E(f'''v_add_f32_dpp v{PL}, v{PL}, v{PL} row_ror:{sh} {DPPF}''')
    if sh != 1: E('s_nop 1')
E(f'''v_cvt_pk_bf16_f32 v{PL}, 0, v{PL}
v_mov_b32 v10, s{sT0}
v_readlane_b32 s{sT0}, v{PL}, 0
v_readlane_b32 s{sT1}, v{PL}, 16
v_readlane_b32 s{sT2}, v{PL}, 32
v_readlane_b32 s{sT3}, v{PL}, 48
v_fmac_f32 v20, s{sT0}, v25
v_fmac_f32 v21, s{sT1}, v25
v_fmac_f32 v22, s{sT2}, v25
v_fmac_f32 v23, s{sT3}, v25
v_cvt_pk_bf16_f32 v16, v20, v21
v_cvt_pk_bf16_f32 v17, v22, v23
s_mov_b64 exec, 1
global_store_dwordx2 v10, v[16:17], {sp(sOUT)}
s_branch L_cdone''')
for ph in ((1, 2, 3) if ST0 == 'pre' else (0, 1, 2, 3)):
    E(f'''L_uc{ph}:
    s_mov_b32 s{sTH}, {ph+FOFF}
    v_add_u32 v12, 16, v8''')
    if 'mid' not in OPT: stamp({1: 5, 2: 8, 3: 14}[ph])
    wait_flags(sTH, f'u{ph}', 12, 4, 0)
    if 'mid' not in OPT: stamp({1: 6, 2: 9, 3: 15}[ph])
    E(f's_branch L_uc{ph}d')
vP, vG, vGF, vYV = 80, 72, 112, 32
def stage(p):
    for k in range(4):
        E(f'v_perm_b32 v{40+k}, v{vX+4*p+2+(k>>1)}, v{vX+4*p+(k>>1)}, s{sP1 if k & 1 else sP0}')
    for k in range(4):
        E(f'ds_write_b32 v64, v{40+k} offset:{k*UCB+1024*p}')
def unpack(p):
    for j in range(2):
        for h in range(2):
            E(f'''v_lshlrev_b32 v{vP+8*p+4*j+2*h}, 16, v{vX+4*p+2*j+h}
            v_and_b32 v{vP+8*p+4*j+2*h+1}, 0xffff0000, v{vX+4*p+2*j+h}''')
def pollA():
    E(f'''global_load_dwordx2 v[12:13], v70, {sp(sDBG)} sc1
    global_load_dwordx2 {vr(vG,2)}, v66, {sp(sWS)} offset:-4096 sc1''')
def pollB():
    E(f'global_load_dwordx2 v[52:53], v65, {sp(sWS)} sc1')
    for p in range(1, 4):
        E(f'global_load_dwordx2 {vr(vG+2*p,2)}, v66, {sp(sWS)} offset:{-4096+2048*p} sc1')
def epi(p, masked):
    wait_flags(sTH, f'e{p}', 69, 48, SLEEP if p < 3 else int(OPT.get('sl3', SLEEP)))
    if p == 0: stamp(8)
    if p == 3: stamp(14)
    for k in range(4):
        E(f'ds_read_b64 {vr(vYV+2*k,2)}, v67 offset:{k*LOB+8*YG*p}')
    E(f's_add_u32 s{sTH}, s{sTH}, 2\ns_waitcnt lgkmcnt(0)')
    for j in range(2):
        r = vP + 8*p + 4*j
        for k in range(4):
            E(f'v_fmac_f32 v{r+k}, v{vYV+2*k+j}, v{vGF+2*p+j}')
        E(f'''v_cvt_pk_bf16_f32 v{r}, v{r}, v{r+1}
        v_cvt_pk_bf16_f32 v{r+1}, v{r+2}, v{r+3}''')
        if masked: E(f's_cmp_eq_u32 s{sJ}, {2*p+j}\ns_cselect_b64 exec, {sp(sEX)}, -1')
        E(f'global_store_dwordx2 v{vXO+p}, {vr(r,2)}, {sp(sOUT)} offset:{1024*j}')
        if masked: E('s_mov_b64 exec, -1')
def gun(p):
    E(f'''v_lshlrev_b32 v{vGF+2*p}, 16, v{vG+2*p}
    v_and_b32 v{vGF+2*p+1}, 0xffff0000, v{vG+2*p}''')
E('L_cio1:')
if ST0 == 'pre':
    E(f's_waitcnt vmcnt({2*NMID})')
    stamp(13)
    stage(0)
E('s_waitcnt lgkmcnt(0)\ns_barrier')
stamp(4)
if ST0 != 'pre':
    E(f's_waitcnt vmcnt({2*NMID})')
    stamp(13)
    stage(0)
    E(f'v_mov_b32 v44, 1\nds_write_b32 v68, v44')
if KPRIO == 'io': E('s_setprio 0')
E(f'''v_lshlrev_b32 v65, 3, v{LANE}
v_add_u32 v65, {WS_KEYS}, v65
v_and_b32 v66, 255, v0
v_lshlrev_b32 v66, 3, v66
v_add_u32 v66, {WS_G+4096}, v66
v_mov_b32 v70, 0
v_bfe_u32 v12, v0, 1, 2
v_bfe_u32 v13, v0, 7, 1
v_lshl_add_u32 v12, v13, 2, v12
v_mul_u32_u24 v67, {YG}, v12
v_bfe_u32 v12, v0, 3, 4
v_lshl_add_u32 v67, v12, 4, v67
v_and_b32 v12, 1, v0
v_lshl_add_u32 v67, v12, 3, v67
s_lshl_b32 s{sT2}, s{sW}, 2
s_add_u32 s{sT2}, s{sT2}, {SM0+FLG}
v_mov_b32 v68, s{sT2}
v_mov_b32 v69, {SM0+FLG}
''')
assert NMID in (1, 2)
U3E = OPT.get('u3e', '0') == '1'
def stagef(p):
    stage(p)
    E(f'v_mov_b32 v44, {p+FOFF}\nds_write_b32 v68, v44')
if U3E: pollA(); uload(3)
E(f's_waitcnt vmcnt({2*(NMID-1) + 4*U3E})')
stagef(1)
stamp(12)
if not U3E:
    pollA()
    if NMID == 1: uload(2)
    uload(3)
unpack(0); unpack(1)
E(f'''s_lshr_b32 s{sTH}, s{sCH}, 1
s_add_u32 s{sTH}, s{sTH}, 1
s_waitcnt vmcnt({2*NMID})''')
LST = OPT.get('lst', '0') == '1'
if not LST: stagef(2)
stamp(15)
E('s_waitcnt vmcnt(2)')
if PRIO == 'io': E('s_setprio 2')
E(f'''s_mov_b32 s{sS3}, 0
v_cmp_eq_u32 vcc, 1, v13
v_cmp_eq_u32 {sp(sM0)}, v12, v{vG+1}
s_and_b64 vcc, vcc, {sp(sM0)}
s_cmp_eq_u64 vcc, -1
s_cbranch_scc1 L_pad
s_waitcnt vmcnt(0)''')
if LST: stage(2)
stagef(3)
E(f'''s_mov_b32 s{sS3}, 1
s_mov_b32 s{sSPIN}, {SPIN_MAX}
L_pa:''')
pollA()
E(f'''s_waitcnt vmcnt(0)
v_cmp_eq_u32 vcc, 1, v13
v_cmp_eq_u32 {sp(sM0)}, v12, v{vG+1}
s_and_b64 vcc, vcc, {sp(sM0)}
s_cmp_eq_u64 vcc, -1
s_cbranch_scc1 L_pad''')
spin_check('L_pa')
E('L_pad:')
stamp(6)
pollB()
gun(0)
E(f'v_readfirstlane_b32 s{sTAG}, v12')
epi(0, False)
E(f'''s_cmp_lg_u32 s{sS3}, 0
s_cbranch_scc1 L_s3d''')
if LST: stagef(2)
E('s_waitcnt vmcnt(6)')
stagef(3)
E('L_s3d:')
stamp(5)
unpack(2); unpack(3)
E(f'''s_mov_b32 s{sSPIN}, {SPIN_MAX}
s_waitcnt vmcnt(2)
s_branch L_pb1
L_pb:''')
pollB()
E(f'''s_waitcnt vmcnt(0)
L_pb1:
v_cmp_eq_u32 vcc, s{sTAG}, v53
v_cmp_eq_u32 {sp(sM0)}, s{sTAG}, v{vG+3}
v_cmp_eq_u32 {sp(sM1)}, s{sTAG}, v{vG+5}
s_and_b64 vcc, vcc, {sp(sM0)}
v_cmp_eq_u32 {sp(sM0)}, s{sTAG}, v{vG+7}
s_and_b64 vcc, vcc, {sp(sM1)}
s_and_b64 vcc, vcc, {sp(sM0)}
s_cmp_eq_u64 vcc, -1
s_cbranch_scc1 L_pbd''')
spin_check('L_pb')
E('L_pbd:')
stamp(9)
key_reduce(52)
for p in range(1, 4): gun(p)
E(f'''s_andn2_b32 s{sIDX}, 2047, s{sKEY}
s_lshr_b32 s{sT0}, s{sIDX}, 1
s_mov_b64 {sp(sEX)}, -1
s_bitset0_b64 {sp(sEX)}, s{sT0}
s_lshr_b32 s{sT2}, s{sIDX}, 9
s_lshl_b32 s{sJ}, s{sT2}, 1
s_and_b32 s{sT1}, s{sIDX}, 1
s_add_u32 s{sJ}, s{sJ}, s{sT1}
s_bfe_u32 s{sT1}, s{sIDX}, 0x20007
s_cmp_eq_u32 s{sT1}, s{sCH}
s_cselect_b32 s{sJ}, s{sJ}, 8
s_cbranch_scc0 L_nomb
s_and_b32 s{sT0}, s{sT0}, 63
v_readlane_b32 s{sT1}, v{vG}, s{sT0}
v_readlane_b32 s{sT3}, v{vG+2}, s{sT0}
v_readlane_b32 s{sT4}, v{vG+4}, s{sT0}
v_readlane_b32 s{sT5}, v{vG+6}, s{sT0}
s_bitcmp1_b32 s{sT2}, 0
s_cselect_b32 s{sT1}, s{sT3}, s{sT1}
s_cselect_b32 s{sT4}, s{sT5}, s{sT4}
s_bitcmp1_b32 s{sT2}, 1
s_cselect_b32 s{sT1}, s{sT4}, s{sT1}
v_mov_b32 v44, s{sKEY}
v_mov_b32 v45, s{sTAG}
v_mov_b32 v46, s{sT1}
v_mov_b32 v47, 1
s_cmp_lg_u32 s{sT2}, 0
s_cbranch_scc1 L_mb1
s_waitcnt vmcnt(0)
L_mb1:
ds_write_b128 v69, v[44:47] offset:32
L_nomb:''')
stamp(7)
for p in range(1, 4): epi(p, True)
E('L_cdone:')
stamp(10)
if STAMPS:
    E('s_waitcnt vmcnt(0)')
    stamp(11)
write_stamps()
E('s_endpgm')

A_T = 0
E(f"""L_rg:
s_lshl_b32 s{sT0}, s{sI}, 2
s_lshl_b32 s{sT1}, s{sW}, 8
s_add_u32 s{sT0}, s{sT0}, s{sT1}
s_lshl_b32 s{sT1}, s{sT0}, 2
s_add_u32 s{sT1}, s{sT1}, {WS_G}
v_mov_b32 v49, s{sT1}
s_sub_u32 s{sT0}, 2047, s{sT0}
v_bfe_u32 v6, v{LANE}, 3, 1
v_lshrrev_b32 v5, 5, v{LANE}
v_lshl_add_u32 v5, v6, 1, v5
s_lshl_b32 s{sT1}, s{sW}, 4
v_lshl_add_u32 v6, v5, 2, s{sT1}
v_sub_u32 v5, s{sT0}, v5
v_and_b32 v48, 15, v{LANE}
v_lshlrev_b32 v48, 3, v48
s_lshl_b32 s{sT0}, s{sI}, 3
s_add_u32 s{sT0}, s{sT0}, {WS_KEYS}
v_mov_b32 v45, s{sT0}
s_cmp_ge_u32 s{sI}, 32
s_cselect_b32 s{sT1}, 8, 0
s_sub_u32 s{sT0}, s{sI}, s{sT1}
s_lshl_b32 s{sT0}, s{sT0}, 3
s_add_u32 s{sT0}, s{sT0}, s{sW}
s_lshl_b32 s{sT0}, s{sT0}, 12
v_and_b32 v47, 31, v{LANE}
v_lshl_add_u32 v47, v47, 7, s{sT0}
s_waitcnt lgkmcnt(0)
s_add_u32 s{sTAG}, s{sTAG}, {TAGINC}
v_mov_b32 v61, s{sTAG}
v_mov_b32 v41, s{sTAG}
v_mov_b32 v43, s{sTAG}
s_add_u32 s{sT0}, s{sI}, s{sW}
s_cmp_lg_u32 s{sT0}, 0
s_cbranch_scc1 L_anotag
v_mov_b32 v7, 0
v_mov_b32 v62, s{sTAG}
v_mov_b32 v63, 1
s_mov_b64 exec, 1
s_waitcnt vmcnt(0)
global_store_dwordx2 v7, v[62:63], {sp(sDBG)} sc1
s_mov_b64 exec, -1
s_branch L_rg1
L_anotag:
s_waitcnt vmcnt(2)""")
def dots(rows):
    for k in range(4):
        for r in rows:
            E(f'v_dot2_f32_bf16 v{50+r}, v{vXA+4*r+k}, v{vWRv+k}, {"0" if k == 0 else "v%d" % (50+r)}')
            E(f'v_dot2_f32_bf16 v{54+r}, v{vXA+4*r+k}, v{vGWv+k}, {"0" if k == 0 else "v%d" % (54+r)}')
E('L_rg1:')
dots((0, 1))
E('s_cbranch_scc0 L_rg2\ns_waitcnt vmcnt(0)\nL_rg2:')
stamp(2)
if RW == 'pre': E(f'global_load_dword v46, v47, {sp(sWD)}')
dots((2, 3))
E(f"""v_permlane32_swap_b32 v50, v51
v_permlane32_swap_b32 v54, v55
v_add_f32 v50, v50, v51
v_permlane32_swap_b32 v52, v53
v_add_f32 v54, v54, v55
v_permlane32_swap_b32 v56, v57
v_add_f32 v52, v52, v53
v_add_f32 v56, v56, v57
v_permlane16_swap_b32 v50, v54
s_nop 0
v_permlane16_swap_b32 v52, v56
v_add_f32 v50, v50, v54
v_add_f32 v52, v52, v56
s_nop 0
v_add_f32_dpp v51, v50, v50 row_ror:8 row_mask:0xf bank_mask:0x3
v_add_f32_dpp v53, v52, v52 row_ror:8 row_mask:0xf bank_mask:0xf
s_nop 1
v_mov_b32_dpp v51, v53 quad_perm:[0,1,2,3] row_mask:0xf bank_mask:0xc
s_nop 1
v_add_f32_dpp v51, v51, v51 row_half_mirror {DPPF}
s_nop 1
v_add_f32_dpp v51, v51, v51 quad_perm:[1,0,3,2] {DPPF}
s_nop 1
v_add_f32_dpp v50, v51, v51 quad_perm:[2,3,0,1] {DPPF}
v_cvt_pk_bf16_f32 v50, 0, v50
v_mul_f32 v52, {f32(-L2E)}, v50
v_exp_f32 v52, v52
v_ashrrev_i32 v51, 31, v50
v_add_f32 v52, 1.0, v52
v_rcp_f32 v52, v52
v_or_b32 v51, 0x80000000, v51
v_xor_b32 v50, v50, v51
v_mov_b32 v53, v52
v_and_b32 v50, 0xffff0000, v50
v_or_b32 v50, v50, v5
v_permlane32_swap_b32 v52, v53
s_mov_b32 exec_lo, 0x00000101
s_mov_b32 exec_hi, 0x00000101
ds_write_b32 v6, v50 offset:{A_T}
s_mov_b64 exec, -1
v_cvt_pk_bf16_f32 v40, v52, v53
s_nop 1
v_mov_b32_dpp v42, v40 row_ror:8 {DPPF}
s_mov_b64 exec, 0x10000
global_store_dwordx4 v49, v[40:43], {sp(sWS)} sc1
s_mov_b64 exec, -1""")
stamp(5)
E("""s_waitcnt lgkmcnt(0)
s_barrier""")
stamp(3)
E(f"""s_cmp_lg_u32 s{sW}, 0
s_cbranch_scc1 L_rg3
ds_read_b64 v[52:53], v48 offset:{A_T}
s_waitcnt lgkmcnt(0)
v_max_u32 v60, v52, v53
s_nop 1""")
for sh in (8, 4, 2, 1):
    E(f'v_max_u32_dpp v60, v60, v60 row_ror:{sh} {DPPF}')
    if sh != 1: E('s_nop 1')
E(f"""s_mov_b64 exec, 1
global_store_dwordx2 v45, v[60:61], {sp(sWS)} sc1""")
stamp(4)
E('s_mov_b64 exec, -1\nL_rg3:')
if RW == 'post': E(f's_lshr_b32 s{sT0}, s{sI}, 3\ns_cmp_eq_u32 s{sT0}, 3\ns_cbranch_scc1 L_adone\ns_barrier\nglobal_load_dword v46, v47, {sp(sWD)}\ns_waitcnt vmcnt(0)')
if RW == 'pre': E('s_waitcnt vmcnt(0)')
E('s_branch L_adone')
F_IDX, F_PART = 98304, 98304 + 64
vFG, vFU, vFD, vBT = 64, 80, 96, 112
FLEAD = int(OPT.get('flead', 0))
OPP = OPT.get('opp', '1') == '1'
DLATE = OPT.get('dlate', '2') != '0'
D2 = OPT.get('dlate', '2') == '2'
FBAR = OPT.get('fbar', '1') == '1'
EPOLL = OPT.get('epoll', '0') == '1'
E(f"""L_ffn:
s_cmp_eq_u32 s{sT0}, 3
s_cbranch_scc1 L_adone
s_lshr_b32 s{sFI}, s{sI}, 1
s_cmp_gt_u32 s{sT0}, 3
s_cselect_b32 s{sT1}, 8, 0
s_sub_u32 s{sFI}, s{sFI}, s{sT1}
v_lshrrev_b32 v8, 2, v{LANE}
v_and_b32 v9, 3, v{LANE}
v_mul_u32_u24 v16, 3584, v8
v_lshl_add_u32 v16, v9, 4, v16
s_mul_i32 s{sT0}, s{sW}, {64*3584}
s_lshl_b32 s{sT1}, s{sFI}, 6
s_add_u32 s{sT0}, s{sT0}, s{sT1}
s_mul_i32 s{sT3}, s{sW}, 12288
s_and_b32 s{sT1}, s{sFI}, {1 if OPP else 0}
s_mul_i32 s{sT2}, s{sT1}, {32*3584}
s_lshl_b32 s{sT1}, s{sT1}, 11
s_add_u32 s{sT4}, s{sT3}, s{sT1}
s_xor_b32 s{sT5}, s{sT4}, 2048
s_add_u32 s{sT1}, s{sT0}, s{sT2}
s_sub_u32 s{sT0}, s{sT0}, s{sT2}
s_add_u32 s{sT0}, s{sT0}, {32*3584}
v_add_u32 v18, s{sT0}, v16
v_add_u32 v16, s{sT1}, v16
v_add_u32 v17, {16*3584}, v16
v_add_u32 v19, {16*3584}, v18
s_waitcnt lgkmcnt(0)""")
stamp(1)
def gu(j):
    sb = sT4 if j < 2 else sT5
    E(f"""s_add_u32 m0, s{sb}, {1024*(j & 1)}
    s_nop 0
    global_load_lds_dwordx4 v{16+j}, {sp(sWG)}
    s_add_u32 m0, s{sb}, {4096+1024*(j & 1)}
    s_nop 0
    global_load_lds_dwordx4 v{16+j}, {sp(sWU)}""")
FTHR = OPT.get('fthr', '3')
if FTHR == '2': E(f'v_mov_b32 v4, 0\nglobal_load_dword v4, v4, {sp(sWG)}\ns_waitcnt vmcnt(0)')
if FTHR == '3': E(f'v_mov_b32 v4, 0\nglobal_load_dword v4, v4, {sp(sWG)}\ns_waitcnt vmcnt(0)\nv_mov_b32 v4, 0\nglobal_load_dword v4, v4, {sp(sWU)}\ns_waitcnt vmcnt(0)')
if FTHR == '4':
    E(f'''s_cmp_lg_u32 s{sW}, 0
    s_cbranch_scc1 L_ftd
    v_mov_b32 v4, 0
    s_mov_b32 s{sSPIN}, {SPIN_MAX}
    L_ft:
    global_load_dwordx2 v[6:7], v4, {sp(sDBG)} sc1
    s_waitcnt vmcnt(0)
    v_cmp_eq_u32 vcc, 1, v7
    s_cbranch_vccnz L_ftd''')
    spin_check('L_ft')
    E('L_ftd:\ns_barrier')
stamp(3)
gu(0)
if FTHR == '1': E('s_waitcnt vmcnt(0)\ns_barrier')
gu(1)
E(f"""v_lshrrev_b32 v44, 3, v{LANE}
v_and_b32 v21, 7, v{LANE}
v_lshlrev_b32 v21, 4, v21
v_lshl_add_u32 v44, v44, 10, v21
s_lshl_b32 s{sT0}, s{sFI}, 15
s_lshl_b32 s{sT1}, s{sW}, 7
s_add_u32 s{sT0}, s{sT0}, s{sT1}
v_add_u32 v44, s{sT0}, v44
v_lshlrev_b32 v22, 3, v{LANE}
v_add_u32 v22, {WS_KEYS}, v22
v_mov_b32 v23, 0""")
def down():
    E(f's_add_u32 m0, s{sT3}, 8192\ns_nop 0')
    for j in range(4):
        E(f'global_load_lds_dwordx4 v44, {sp(sWD)}')
        if j < 3: E('s_add_u32 m0, m0, 1024\nv_add_u32 v44, 8192, v44')
if RW == 'no' and not DLATE: down()
if FBAR: E('s_barrier')
stamp(2)
gu(2); gu(3)
if RW != 'no' and not DLATE:
    E('s_barrier')
    down()
if EPOLL: E(f"""s_cmp_lg_u32 s{sW}, {FLEAD}
s_cbranch_scc1 L_fnp
global_load_dwordx2 v[16:17], v22, {sp(sWS)} sc1
global_load_dwordx2 v[18:19], v23, {sp(sDBG)} sc1
L_fnp:""")
stamp(5)
E(f"""v_and_b32 v5, 15, v{LANE}
v_lshrrev_b32 v6, 4, v{LANE}
v_bfe_u32 v14, v{LANE}, 2, 2
v_lshlrev_b32 v14, 6, v14
v_lshl_add_u32 v14, v6, 9, v14
v_lshl_add_u32 v14, v9, 3, v14
v_add_u32 v14, s{sT3}, v14
v_lshlrev_b32 v8, 7, v8
v_lshl_add_u32 v8, v9, 3, v8
v_add_u32 v8, s{sT3}, v8
s_lshl_b32 s{sT1}, s{sW}, 7
v_lshl_add_u32 v10, v6, 4, s{sT1}
v_lshrrev_b32 v12, 2, v5
v_lshlrev_b32 v13, 6, v12
v_lshl_add_u32 v13, v6, 4, v13
s_lshl_b32 s{sT1}, s{sW}, 8
s_add_u32 s{sT1}, s{sT1}, {F_PART}
v_add_u32 v11, s{sT1}, v13
v_lshl_add_u32 v13, v9, 2, v13
v_add_u32 v7, {F_PART}, v13
v_lshl_add_u32 v13, v12, 2, v6
s_lshl_b32 s{sT1}, s{sW}, 14
s_lshl_b32 s{sT2}, s{sFI}, 4
s_add_u32 s{sT1}, s{sT1}, s{sT2}
s_add_u32 s{sT1}, s{sT1}, {WS_PART}
v_lshl_add_u32 v13, v13, 10, s{sT1}
v_mov_b32 v21, {F_IDX}""")
for r in range(16): E(f'v_mov_b32 v{vBT+r}, 0')
E('s_waitcnt vmcnt(0)')
if D2: down()
for s_ in range(2):
    for ct in range(2):
        for h in range(2):
            E(f'ds_read_b64_tr_b16 {vr(vFG+8*s_+4*ct+2*h,2)}, v14 offset:{2048*s_+256*h+32*ct}')
            E(f'ds_read_b64_tr_b16 {vr(vFU+8*s_+4*ct+2*h,2)}, v14 offset:{4096+2048*s_+256*h+32*ct}')
    E('s_waitcnt lgkmcnt(4)')
def dtr():
    for t in range(4):
        for hh in range(2):
            E(f'ds_read_b64_tr_b16 {vr(vFD+4*t+2*hh,2)}, v8 offset:{8192+2048*hh+32*t}')
if not DLATE: dtr()
stamp(6)
E(f"""s_cmp_lg_u32 s{sW}, {FLEAD}
s_cbranch_scc1 L_anopoll
s_mov_b32 s{sSPIN}, {SPIN_MAX}
{'s_branch L_pk1' if EPOLL else ''}
L_pk:
global_load_dwordx2 v[16:17], v22, {sp(sWS)} sc1
global_load_dwordx2 v[18:19], v23, {sp(sDBG)} sc1
s_waitcnt vmcnt(0)
L_pk1:
v_cmp_eq_u32 vcc, v18, v17
v_cmp_eq_u32 {sp(sM0)}, 1, v19
s_and_b64 vcc, vcc, {sp(sM0)}
s_cmp_eq_u64 vcc, -1
s_cbranch_scc1 L_pkd""")
spin_check('L_pk')
E('L_pkd:')
key_reduce(16)
E(f"""v_mov_b32 v16, s{sKEY}
ds_write_b64 v21, v[16:17]
s_cmp_lg_u32 s{sFI}, 0
s_cbranch_scc1 L_anopoll
s_mov_b64 exec, 1
global_store_dword v23, v17, {sp(sWS)} offset:{WS_EPOCH} sc1
s_mov_b64 exec, -1
L_anopoll:
s_waitcnt lgkmcnt(0)
s_barrier""")
stamp(7)
E(f"""ds_read_b64 v[130:131], v21
s_waitcnt lgkmcnt(0)
v_not_b32 v16, v130
v_and_b32 v16, 2047, v16
v_lshl_add_u32 v10, v16, 10, v10
global_load_dwordx4 v[16:19], v10, {sp(sX)}
global_load_dwordx4 v[20:23], v10, {sp(sX)} offset:64
v_mov_b32 v128, v131
v_lshrrev_b32 v129, 8, v131
v_lshrrev_b32 v130, 16, v131
v_lshrrev_b32 v131, 24, v131""")
if DLATE and not D2: down()
stamp(12)
if D2:
    E('s_waitcnt vmcnt(2)')
    dtr()
E(f's_waitcnt vmcnt({4 if DLATE and not D2 else 0})')
stamp(13)
for q in range(4):
    fb = (vFU if q >> 1 else vFG) + 4*(q & 1)
    for s_ in range(2):
        E(f'v_mfma_f32_16x16x32_bf16 {vr(24+4*q,4)}, {vr(fb+8*s_,4)}, {vr(16+4*s_,4)}, {"0" if s_ == 0 else vr(24+4*q,4)}')
E('s_nop 3')
for q in range(1, 4):
    for r in range(4):
        E(f'v_mov_b32_dpp v{24+r}, v{24+4*q+r} quad_perm:[0,1,2,3] row_mask:0xf bank_mask:{hex(1 << q)}')
E("""s_mov_b32 exec_lo, 0x11111111
s_mov_b32 exec_hi, 0x11111111
ds_write_b128 v11, v[24:27]
s_mov_b64 exec, -1
s_waitcnt lgkmcnt(0)""")
stamp(14)
E('s_barrier')
stamp(8)
E(f"""ds_read2st64_b32 v[16:17], v7 offset0:0 offset1:1
ds_read2st64_b32 v[18:19], v7 offset0:2 offset1:3
ds_read2st64_b32 v[20:21], v7 offset0:4 offset1:5
ds_read2st64_b32 v[22:23], v7 offset0:6 offset1:7
s_mov_b32 s{sT0}, 0xff
s_waitcnt lgkmcnt(2)
v_pk_add_f32 v[16:17], v[16:17], v[18:19]
s_waitcnt lgkmcnt(0)
v_pk_add_f32 v[20:21], v[20:21], v[22:23]
v_pk_add_f32 v[16:17], v[16:17], v[20:21]
v_add_f32 v16, v16, v17""")
if DLATE and not D2:
    E('s_waitcnt vmcnt(0)')
    dtr()
E(f"""v_cvt_pk_bf16_f32 v18, 0, v16
v_mul_f32 v16, {f32(-L2E)}, v18
v_exp_f32 v16, v16
v_mov_b32_dpp v19, v18 row_ror:8 {DPPF}
v_add_f32 v16, 1.0, v16
v_rcp_f32 v16, v16
s_nop 0
v_mul_f32 v16, v16, v18
v_cvt_pk_bf16_f32 v16, 0, v16
v_mul_f32 v16, v16, v19
s_nop 1
v_mov_b32_dpp v17, v16 quad_perm:[1,1,3,3] {DPPF}
v_cvt_pk_bf16_f32 v16, v16, v17
s_nop 1""")
def bt(t):
    for jj in range(4):
        E(f'v_mov_b32_dpp v{vBT+4*t+jj}, v16 row_newbcast:{2*jj} row_mask:0xf bank_mask:{hex(1 << t)}')
bt(0)
if DLATE: E('s_waitcnt lgkmcnt(0)')
for t in range(4):
    if t < 3: bt(t+1)
    else: E('s_nop 0')
    E(f'v_mfma_f32_16x16x32_bf16 v[32:35], {vr(vFD+4*t,4)}, {vr(vBT+4*t,4)}, {"0" if t == 0 else "v[32:35]"}')
E("""s_mov_b32 exec_lo, 0x11111111
s_mov_b32 exec_hi, 0x11111111
s_nop 5""")
for t in range(4):
    E(f'v_bfi_b32 v{32+t}, s{sT0}, v{128+t}, v{32+t}')
E(f'global_store_dwordx4 v13, v[32:35], {sp(sWS)} sc1')
stamp(9)
if 'fwb' in OPT:
    E(f'''s_add_u32 s{sT0}, s{sSLOT}, s{sW}
    s_cmp_lg_u32 s{sT0}, 0
    s_cbranch_scc1 L_adone
    {"s_waitcnt vmcnt(0)" if OPT['fwb'] == '2' else ""}
    buffer_wbl2 sc1''')
E('L_adone:')
stamp(10)
if STAMPS:
    E('s_waitcnt vmcnt(0)')
    stamp(11)
write_stamps()
E('L_end:')
E('s_endpgm')
out.append(f'''.section .rodata,"a"
.p2align 6
.amdhsa_kernel {KN}_kernel
  .amdhsa_next_free_vgpr {NVGPR}
  .amdhsa_next_free_sgpr 96
  .amdhsa_accum_offset {(NVGPR+3)//4*4}
  .amdhsa_group_segment_fixed_size 0
  .amdhsa_kernarg_size 128
  .amdhsa_user_sgpr_count 2
  .amdhsa_user_sgpr_kernarg_segment_ptr 1
  .amdhsa_system_sgpr_workgroup_id_x 1
.end_amdhsa_kernel''')
print('\n'.join(out).replace('NOPX', str(NOPX)).replace('HOPQ1', f'L_hop{NHOP//4}').replace('HOPQ2', f'L_hop{NHOP//2}').replace('HOPQ3', f'L_hop{3*NHOP//4}'))
```

```python
import sys, struct
from asmlib import KN, STAMP_OFF
OPT = dict(a.split('=') if '=' in a else (a, '1') for a in sys.argv[1:])
STAMPS = 'stamps' in OPT
NTP = ' nt' if OPT.get('ntp', '0') == '1' else ''
NTX = ' nt' if OPT.get('ntx', '0') == '1' else ''
PRIO = OPT.get('prio', 'io')
SLEEP = int(OPT.get('sleep', 1))
UPOS = [int(x) for x in OPT.get('upos', '5,21,40,99').split(',')]
WMODE = OPT.get('wmode', 'warm')
XWARM = OPT.get('xwarm', '1') == '1'
AHEAD = int(OPT.get('ahead', 2))
YG = 320
NTW = ' nt' if OPT.get('ntw', '0') == '1' else ''
NTD = ' nt' if OPT.get('ntd', '0') == '1' else ''
CL = int(OPT.get('cl', 0))
BEARLY = False
WWM = OPT.get('ww', '0')
RS = OPT.get('rs', '2')
WW = WWM != '0'
RW = OPT.get('rw', 'post')
ICW = int(OPT.get('icw', 0))
ICWHO = OPT.get('icwho', 'io')

out = []
def E(s):
    for ln in s.strip('\n').split('\n'):
        ln = ln.strip()
        if ln: out.append(('    ' + ln) if not ln.endswith(':') else ln)
def f32(x): return '0x%08x' % struct.unpack('<I', struct.pack('<f', x))[0]
def vr(b, n): return f'v[{b}:{b+n-1}]'
def ninstr(): return sum(1 for x in out if not x.endswith(':'))

WS_EPOCH, WS_KEYS, WS_G, WS_PART = 0, 4096, 8192, 32768
TAGINC = 0x9E3779B1
SPIN_MAX = 1 << 20
ROWB = 528
LOB = 32*ROWB
HI0 = 4*LOB
NHI = 22
HIB = NHI*ROWB
UB0 = HI0 + 4*HIB
UCB, UPAD = 4608, 480
SM0 = UB0 + 4*UCB
SMB = 4096
KX, KY, F3, F4, FLG = 0, 1216, 2432, 2944, 3328
HIX = 16384
BND = SM0 + 4*SMB
LDS_BYTES = BND + 4*1024
ST0 = OPT.get('st0', 'pre')
KPRIO = OPT.get('kprio', 'io')
GEMM1 = OPT.get('gemm1', '0') == '1'
sEX = 6
sX, sLA, sAI, sCR, sCI, sLDT, sDS = 8, 10, 12, 14, 16, 18, 20
sWR, sWG, sWU, sWD, sGW, sOUT, sDBG, sWS = 24, 26, 28, 30, 32, 34, 36, 38
sW, sI, sT0, sT1 = 40, 41, 42, 43
sJ, sP0, sP1, sTH = 44, 45, 46, 47
sTAG, sKEY, sIDX, sSPIN = 48, 49, 50, 51
sM0, sM1 = 52, 54
sT2, sT3, sT4, sT5 = 56, 57, 58, 59
sSLOT, sWB, sFI, sIO = 60, 61, 62, 63
sCH = 61
sS3 = 62
SB = 64
NST = 16
def sp(b): return f's[{b}:{b+1}]'
def stamp(i):
    if STAMPS: E(f'{"s_memtime" if "cyc" in OPT else "s_memrealtime"} s[{SB+2*i}:{SB+2*i+1}]')
def write_stamps():
    if not STAMPS: return
    E(f'''s_waitcnt lgkmcnt(0) vmcnt(0)
    s_mov_b64 exec, 1
    s_lshl_b32 s{sT0}, s2, 3
    s_add_u32 s{sT0}, s{sT0}, s{sW}
    s_lshl_b32 s{sT0}, s{sT0}, 7
    s_add_u32 s{sT0}, s{sT0}, {STAMP_OFF}
    v_mov_b32 v0, s{sT0}''')
    for i in range(NST):
        E(f'''v_mov_b32 v2, s{SB+2*i}
        v_mov_b32 v3, s{SB+2*i+1}
        global_store_dwordx2 v0, v[2:3], {sp(sWS)} offset:{8*i}
        s_nop 1''')
def spin_check(lbl_loop):
    E(f'''s_sub_u32 s{sSPIN}, s{sSPIN}, 1
    s_cbranch_scc0 {lbl_loop}''')
L2E = 1.4426950408889634
L2E_HI = struct.unpack('<f', struct.pack('<I', 0x3FB8AA00))[0]
L2E_LO = L2E - L2E_HI
LANE = 3
DPPF = 'row_mask:0xf bank_mask:0xf'

def hop_call():
    E(f'''s_mov_b64 exec, 0
    s_cmp_eq_u32 s{sCH}, 0
    s_cbranch_scc1 L_hop0
    s_cmp_eq_u32 s{sCH}, 1
    s_cbranch_scc1 HOPQ1
    s_cmp_eq_u32 s{sCH}, 2
    s_cbranch_scc1 HOPQ2
    s_branch HOPQ3
    L_hopend:
    s_mov_b64 exec, -1''')
import re as _re2
def isz(x):
    x = x.strip()
    if x.endswith(':') or x.startswith(';'): return 0
    op = x.split(' ')[0]
    if op.startswith(('ds_', 'global_', 'v_mfma', 'v_pk_', 'v_cvt_pk', 'v_perm', 'v_bfi', 'v_readlane', 'v_lshl_', 'v_min3', 'v_or3', 's_mem', 'v_bfe', 'v_mad')) or 'dpp' in op: return 8
    if _re2.search(r'0x[0-9a-f]{3,}|, [0-9]{3,}', x) or (op.startswith('v_cmp') and 's[' in x): return 8
    return 4
SUBS = {}
def islands(name, begin, step=64):
    body = out[begin:]; del out[begin:]
    n = 0; acc = step
    for x in body:
        if acc + isz(x) > step - 4:
            out.append(f'L_{name}{n}:'); out.append(f'    s_cbranch_execz L_{name}{n+1}'); n += 1; acc = 4
        out.append(x); acc += isz(x)
    endi = len(out) - 1
    while not (out[endi].startswith(f'    s_cbranch_execz L_{name}{n}')): endi -= 1
    out[endi] = f'    s_cbranch_execz L_{name}end'
    SUBS[name] = n
def hop(name, sreg, ways):
    E('s_mov_b64 exec, 0')
    for k in range(ways - 1):
        E(f's_cmp_eq_u32 s{sreg}, {k}\ns_cbranch_scc1 @{name}@{k}@{ways}@')
    E(f's_branch @{name}@{ways-1}@{ways}@\nL_{name}end:\ns_mov_b64 exec, -1')
def key_reduce(vt):
    for sh in (8, 4, 2, 1):
        E(f'''v_max_u32_dpp v{vt}, v{vt}, v{vt} row_ror:{sh} {DPPF}
        s_nop 1''')
    E(f'''v_readlane_b32 s{sKEY}, v{vt}, 0
    v_readlane_b32 s{sT0}, v{vt}, 16
    v_readlane_b32 s{sT1}, v{vt}, 32
    v_readlane_b32 s{sT2}, v{vt}, 48
    s_max_u32 s{sKEY}, s{sKEY}, s{sT0}
    s_max_u32 s{sT1}, s{sT1}, s{sT2}
    s_max_u32 s{sKEY}, s{sKEY}, s{sT1}''')
def wait_flags(sreg, name, vaddr, vt, sleep):
    E(f'''s_mov_b32 s{sSPIN}, {SPIN_MAX}
    L_wf_{name}:
    ds_read_b128 {vr(vt,4)}, v{vaddr}
    s_waitcnt lgkmcnt(0)
    v_min_u32 v{vt}, v{vt}, v{vt+1}
    v_min3_u32 v{vt}, v{vt}, v{vt+2}, v{vt+3}
    v_cmp_le_u32 vcc, s{sreg}, v{vt}
    s_cbranch_vccnz L_wfd_{name}''')
    if sleep: E(f's_sleep {sleep}')
    spin_check(f'L_wf_{name}')
    E(f'L_wfd_{name}:')

hdr = open('cdna_kernels/' + KN + '.s.ref').read().split('; Override launch')[0]
out.append(hdr.rstrip('\n'))
out.append(f'; @launch grid=(256,1,1) block=(512,1,1) lds={LDS_BYTES}')
out.append(f'''.amdgcn_target "amdgcn-amd-amdhsa--gfx950"
.text
.globl {KN}_kernel
.p2align 8
.type {KN}_kernel,@function
{KN}_kernel:''')
stamp(0)
vXA, vWRv, vGWv = 16, 8, 12
vLA, vAI, vCR, vCI, vDT = 4, 5, 6, 7, 8
vX = 16
vXO = 60
AF, TZ, BR, DT, ACC, vBAND = 16, 84, 124, 172, 196, 228
NSLOT = 12
GF, GA = 84, ACC
vKX, vK3, vK4, vCA, vCA2, vCB, vY, vTZ = 248, 249, 250, 251, 252, 253, 254, 255
vA, vB, vFL = 14, 15, 9
NVGPR = 256
E(f'''s_load_dwordx16 s[8:23], s[0:1], 0
s_load_dwordx16 s[24:39], s[0:1], 64
s_cmp_ge_u32 s2, 256
s_cbranch_scc1 L_end
s_getpc_b64 s[4:5]
L_pc:
v_lshrrev_b32 v1, 6, v0
v_and_b32 v{LANE}, 63, v0
v_readfirstlane_b32 s{sW}, v1
s_add_u32 s{sT0}, s2, {int(OPT.get('rot', 2))}
s_and_b32 s{sT0}, s{sT0}, 7
s_lshr_b32 s{sSLOT}, s2, 4
s_lshl_b32 s{sI}, s{sT0}, 4
s_add_u32 s{sI}, s{sI}, s{sSLOT}
s_cmp_gt_u32 s{sW}, 1
s_cbranch_scc1 L_nopf
v_lshlrev_b32 v2, 7, v0
v_min_u32 v2, L_end-L_pc, v2
global_load_dword v2, v2, s[4:5]
L_nopf:
s_bitcmp1_b32 s2, 3
s_cbranch_scc0 L_conv
s_bitcmp1_b32 s2, 4
s_cbranch_scc0 L_ffn
s_lshr_b32 s{sI}, s{sI}, 1
v_lshlrev_b32 v4, 4, v{LANE}
s_lshl_b32 s{sT2}, s{sI}, 12
s_lshl_b32 s{sT1}, s{sW}, 18
s_add_u32 s{sT2}, s{sT2}, s{sT1}
v_add_u32 v5, s{sT2}, v4
s_waitcnt lgkmcnt(0)''')
stamp(1)
E(f'''global_load_dwordx4 {vr(vWRv,4)}, v4, {sp(sWR)}
global_load_dwordx4 {vr(vGWv,4)}, v4, {sp(sGW)}
global_load_dwordx4 {vr(vXA,4)}, v5, {sp(sX)}{NTX}
global_load_dwordx4 {vr(vXA+4,4)}, v5, {sp(sX)} offset:1024{NTX}
global_load_dwordx4 {vr(vXA+8,4)}, v5, {sp(sX)} offset:2048{NTX}
global_load_dwordx4 {vr(vXA+12,4)}, v5, {sp(sX)} offset:3072{NTX}
s_load_dword s{sTAG}, {sp(sWS)}, {WS_EPOCH}
s_branch L_rg''')
E(f'''L_conv:
s_and_b32 s{sCH}, s{sW}, 3
s_lshr_b32 s{sIO}, s{sW}, 2
s_lshl_b32 s{sT2}, s{sI}, 3
s_lshl_b32 s{sT1}, s{sCH}, 1
s_add_u32 s{sT0}, s{sT2}, s{sT1}
v_mov_b32 v10, s{sT0}
s_add_u32 s{sT0}, s{sT0}, s{sIO}
s_lshl_b32 s{sT0}, s{sT0}, 7
v_lshl_add_u32 v1, v{LANE}, 1, s{sT0}
v_mov_b32 v{vLA}, 0
v_mov_b32 v{vAI}, 0
v_mov_b32 v{vCR}, 0
v_mov_b32 v{vCI}, 0
v_mov_b32 v{vDT}, 0''')
if 'early' in OPT: stamp(13)
E('s_waitcnt lgkmcnt(0)')
stamp(1)
E(f'''global_load_short_d16_hi v{vLA}, v1, {sp(sLA)}{NTP}
global_load_short_d16_hi v{vDT}, v10, {sp(sLDT)}
global_load_short_d16_hi v{vAI}, v1, {sp(sAI)}{NTP}
global_load_short_d16_hi v{vCR}, v1, {sp(sCR)}{NTP}
global_load_short_d16_hi v{vCI}, v1, {sp(sCI)}{NTP}''')
if 'early' in OPT: stamp(12)
E(f'''v_and_b32 v11, 255, v0
v_lshl_add_u32 v{vXO}, v11, 11, s{sT2}
v_add_u32 v{vXO+1}, {512*1024}, v{vXO}
v_add_u32 v{vXO+2}, {1024*1024}, v{vXO}
v_add_u32 v{vXO+3}, {1536*1024}, v{vXO}
s_barrier
s_cmp_ge_u32 s{sW}, 4
s_cbranch_scc1 L_cio0''')
STOR = {0:0,1:1,2:2,3:3, 16:4,17:5,18:6,19:7,20:8,12:9, 15:10, 13:11,14:12,4:13,5:14,6:15,7:16,8:17,9:18,10:19,11:20,21:21}
assert sorted(STOR.values()) == list(range(22))
tab = [0,0,1,2,2,2,3,4,4,5,6,7,8,8,8,8]
hrow = []
for x in range(32):
    g_, r_ = (x >> 2) & 1, 4*(x >> 3) + (x & 3)
    hrow.append(STOR[13 + tab[r_] if g_ else min(r_, 12)])
planes = [sum(((hrow[x] >> b) & 1) << x for x in range(32)) for b in range(5)]
E(f'''s_lshl_b32 s{sT0}, s{sSLOT}, 7
s_lshl_b32 s{sT1}, s{sW}, 5
s_add_u32 s{sT0}, s{sT0}, s{sT1}
v_and_b32 v13, 31, v{LANE}
v_add_u32 v12, s{sT0}, v13
v_lshl_add_u32 v12, v12, 10, s{sT2}
v_mov_b32 v{GA}, 0''')

if 'early' in OPT: stamp(5)
if XWARM: E(f'global_load_dword v1, v12, {sp(sX)}')
if WW:
    E(f'''s_lshr_b32 s{sT0}, s{sI}, 4
    s_cmp_gt_u32 s{sT0}, 3
    s_cselect_b32 s{sT1}, 1, 0
    s_sub_u32 s{sT0}, s{sT0}, s{sT1}
    s_lshl_b32 s{sT0}, s{sT0}, 9
    s_lshl_b32 s{sT1}, s{sSLOT}, 1
    s_lshr_b32 s{sT3}, s{sW}, 1
    s_add_u32 s{sT1}, s{sT1}, s{sT3}
    s_mul_i32 s{sT1}, s{sT1}, {16*3584}
    s_add_u32 s{sT0}, s{sT0}, s{sT1}
    v_and_b32 v12, 15, v{LANE}
    v_mul_u32_u24 v12, 3584, v12''')
    if WWM == '2':
        E(f'''s_bitcmp1_b32 s{sW}, 1
        s_cselect_b32 s{sT1}, 48, 0
        v_and_b32 v9, s{sT1}, v{LANE}
        v_xor_b32 v9, 48, v9
        v_lshl_add_u32 v12, v9, 3, v12''')
    else: E(f's_add_u32 s{sT0}, s{sT0}, 384')
    E(f'''v_add_u32 v12, s{sT0}, v12
    s_bitcmp1_b32 s{sW}, 0
    s_cselect_b64 {sp(sT4)}, {sp(sWU)}, {sp(sWG)}
    global_load_dword v9, v12, {sp(sT4)}''')
E(f'''s_mov_b64 exec, 1
global_load_short_d16_hi v{GA}, v10, {sp(sDS)}
s_mov_b64 exec, -1''')
for r in range(1, 16): E(f'v_mov_b32 v{GA+r}, 0')
for b_ in range(4, -1, -1):
    E(f's_mov_b32 s{sT0}, {planes[b_]}')
    if b_ == 4: E(f'v_bfe_u32 v{vA}, s{sT0}, v13, 1')
    else: E(f'v_bfe_u32 v12, s{sT0}, v13, 1\nv_lshl_or_b32 v{vA}, v{vA}, 1, v12')
E(f'''v_lshrrev_b32 v12, 5, v{LANE}
s_mul_i32 s{sT0}, s{sW}, {HIB}
s_add_u32 s{sT0}, s{sT0}, {HI0}
s_mul_i32 s{sT1}, s{sW}, {LOB}
v_lshl_add_u32 v10, v12, 4, s{sT0}
v_lshl_add_u32 v11, v12, 4, s{sT1}
s_mov_b32 s{sT2}, {ROWB}
v_mad_u32_u24 v{vA}, v{vA}, s{sT2}, v10
v_mad_u32_u24 v{vB}, v13, s{sT2}, v11
s_lshl_b32 s{sT0}, s{sW}, 12
s_add_u32 s{sT0}, s{sT0}, {SM0}
s_add_u32 s{sT2}, s{sT0}, {2*(543-7)}
v_lshlrev_b32 v10, 4, v{LANE}
v_sub_u32 v{vKX}, s{sT2}, v10
v_and_b32 v10, 1, v{LANE}
v_lshrrev_b32 v11, 1, v{LANE}
v_lshl_add_u32 v11, v11, 2, s{sT0}
v_lshl_add_u32 v{vK3}, v10, 8, v11
v_lshl_add_u32 v{vK4}, v{LANE}, 1, s{sT0}
v_and_b32 v11, 15, v{LANE}
v_and_b32 v12, 48, v{LANE}
v_mul_u32_u24 v13, {KY+2}, v10
v_lshl_add_u32 v13, v11, 1, v13
v_sub_u32 v{vCA}, v12, v13
s_add_u32 s{sT2}, s{sT0}, {KY+2*(544-16)-1024}
v_add_u32 v{vCA}, s{sT2}, v{vCA}
v_add_u32 v{vCA2}, 512, v{vCA}
s_mul_i32 s{sT2}, s{sW}, {UCB}
s_add_u32 s{sT2}, s{sT2}, {UB0}
v_lshl_add_u32 v{vCB}, v11, 5, v12
v_add_u32 v{vCB}, s{sT2}, v{vCB}
v_lshl_add_u32 v{vY}, v11, 4, s{sT1}
v_mad_u32_u24 v{vY}, v12, {YG//16}, v{vY}
s_add_u32 s{sT2}, s{sT0}, {F3+4*13}
v_lshl_add_u32 v{vTZ}, v11, 2, s{sT2}
v_sub_u32 v{vTZ}, v{vTZ}, v12
''')
r = vBAND + 16
E(f'''v_lshrrev_b32 v13, 1, v12
s_mov_b32 s{sT1}, {3 << 12}
v_lshlrev_b32 v{r}, v11, s{sT1}
v_bfe_u32 v{r}, v{r}, v13, 8
v_lshl_or_b32 v{r}, v{r}, 15, v{r}
v_lshrrev_b32 v{r+1}, 2, v{r}
v_lshrrev_b32 v{r+2}, 4, v{r}
v_lshrrev_b32 v{r+3}, 6, v{r}
s_mov_b32 s{sT1}, 0x10001
v_and_b32 v{r}, s{sT1}, v{r}
v_and_b32 v{r+1}, s{sT1}, v{r+1}
v_and_b32 v{r+2}, s{sT1}, v{r+2}
v_and_b32 v{r+3}, s{sT1}, v{r+3}''')
if 'early' in OPT: stamp(6)
E(f'''s_waitcnt vmcnt({1 + XWARM + WW + CL})''')
if 'early' in OPT: stamp(8)
E(f'''s_branch L_ckgen
L_cio0:''')

if 'early' in OPT: stamp(5)
def uload(p):
    E(f'global_load_dwordx2 {vr(vX+4*p,2)}, v{vXO+p}, {sp(sX)}')
    E(f'global_load_dwordx2 {vr(vX+4*p+2,2)}, v{vXO+p}, {sp(sX)} offset:1024')
NUP = sum(1 for x in UPOS if x == 0)
for p in range(NUP): uload(p)
E(f'''v_mov_b32 v32, 0
v_mov_b32 v33, 0
v_mov_b32 v34, 0
v_mov_b32 v35, 0
s_mul_i32 s{sT0}, s{sCH}, {UCB}
s_add_u32 s{sT0}, s{sT0}, {UB0}
v_min_u32 v13, 29, v{LANE}
v_lshl_add_u32 v12, v13, 4, s{sT0}
ds_write_b128 v12, v[32:35]
s_lshl_b32 s{sT0}, s{sCH}, 12
s_add_u32 s{sT0}, s{sT0}, {SM0}
v_lshl_add_u32 v12, v{LANE}, 4, s{sT0}
ds_write_b128 v12, v[32:35]
ds_write_b128 v12, v[32:35] offset:1024
ds_write_b128 v12, v[32:35] offset:2048
ds_write_b128 v12, v[32:35] offset:3072
; IO addresses: v64 U write, v65 keys, v66 g granules, v67 y read, v68 own flag, v69 M flags, v70 zero
v_lshlrev_b32 v64, 2, v11
v_add_u32 v64, {UB0+UPAD}, v64
s_mov_b32 s{sP0}, 0x05040100
s_mov_b32 s{sP1}, 0x07060302
; band fragments (0/1 window matrices): IO wave ch builds window ch, wave 7 also the two-tap mask
s_mov_b32 s{sT1}, {7 << 11}
s_cmp_eq_u32 s{sCH}, 1
s_cselect_b32 s{sT1}, {31 << 6}, s{sT1}
s_cmp_eq_u32 s{sCH}, 2
s_cselect_b32 s{sT1}, {127 << 5}, s{sT1}
s_cmp_eq_u32 s{sCH}, 3
s_cselect_b32 s{sT1}, {511 << 4}, s{sT1}
s_mov_b32 s{sT0}, 0x10001
s_mov_b32 s{sT3}, 0x3f80
s_lshl_b32 s{sT2}, s{sCH}, 10
s_add_u32 s{sT2}, s{sT2}, {BND}
v_lshl_add_u32 v9, v{LANE}, 4, s{sT2}
v_and_b32 v10, 15, v{LANE}
v_lshrrev_b32 v13, 4, v{LANE}
v_lshlrev_b32 v13, 3, v13
v_lshlrev_b32 v12, v10, s{sT1}
v_bfe_u32 v12, v12, v13, 8
v_lshl_or_b32 v12, v12, 15, v12
v_lshrrev_b32 v41, 2, v12
v_lshrrev_b32 v42, 4, v12
v_lshrrev_b32 v43, 6, v12
v_and_b32 v40, s{sT0}, v12
v_and_b32 v41, s{sT0}, v41
v_and_b32 v42, s{sT0}, v42
v_and_b32 v43, s{sT0}, v43
v_mul_u32_u24 v40, s{sT3}, v40
v_mul_u32_u24 v41, s{sT3}, v41
v_mul_u32_u24 v42, s{sT3}, v42
v_mul_u32_u24 v43, s{sT3}, v43
ds_write_b128 v9, v[40:43]
{"s_setprio 1" if KPRIO == 'io' else ""}
''')
if 'early' in OPT: stamp(6)
E(f'''s_waitcnt vmcnt({2*NUP + CL})''')
if 'early' in OPT: stamp(8)
E('L_ckgen:')
stamp(2)
a, b, c, d = 10, 11, 12, 13
E(f'''v_mul_f32 v{a}, {f32(L2E_HI)}, v{vLA}
v_mul_f32 v{b}, {f32(L2E_HI)}, v{vDT}
v_rndne_f32 v{c}, v{a}
v_rndne_f32 v{d}, v{b}
v_sub_f32 v{a}, v{a}, v{c}
v_sub_f32 v{b}, v{b}, v{d}
v_fmac_f32 v{a}, {f32(L2E_LO)}, v{vLA}
v_fmac_f32 v{b}, {f32(L2E_LO)}, v{vDT}
v_exp_f32 v{a}, v{a}
v_exp_f32 v{b}, v{b}
v_cvt_i32_f32 v{c}, v{c}
v_cvt_i32_f32 v{d}, v{d}
v_ldexp_f32 v{a}, v{a}, v{c}
v_ldexp_f32 v{b}, v{b}, v{d}
s_lshl_b32 s{sT1}, s{sIO}, 8
s_mul_i32 s{sT2}, s{sCH}, {LOB}
v_cvt_pk_bf16_f32 v{a}, v{a}, v{b}
s_add_u32 m0, s{sT2}, s{sT1}
v_and_b32 v{vDT}, 0xffff0000, v{a}
v_lshlrev_b32 v{a}, 16, v{a}
s_mul_i32 s{sT2}, s{sCH}, {HIB}
{"s_waitcnt vmcnt(2)" if CL == 3 else ""}
v_mul_f32 v{a}, v{a}, v{vDT}
v_mul_f32 v{vAI}, v{vAI}, v{vDT}
s_add_u32 s{sT1}, s{sT1}, s{sT2}
v_mul_f32 v{vLA}, {f32(-L2E)}, v{a}
v_mul_f32 v{vAI}, {f32(0.15915494309189535)}, v{vAI}
s_add_u32 s{sT1}, s{sT1}, {HIX}
v_mul_f32 v{a}, {f32(8.0)}, v{vLA}
v_mul_f32 v{b}, {f32(8.0)}, v{vAI}
s_cmp_eq_u32 s{sIO}, 0''')
vW1, vW8, vW256 = 36, 38, 40
E(f'''v_exp_f32 v{a}, v{a}
v_fract_f32 v{b}, v{b}
v_exp_f32 v{c}, v{vLA}
v_fract_f32 v{d}, v{vAI}
v_cos_f32 v{vW8}, v{b}
v_sin_f32 v{vW8+1}, v{b}
v_cos_f32 v{vW1}, v{d}
v_sin_f32 v{vW1+1}, v{d}
v_add_f32 v{vDT}, v{vDT}, v{vDT}
v_mov_b32 v35, 0x3f80
v_pk_mul_f32 {vr(vW8,2)}, {vr(vW8,2)}, {vr(a,2)} op_sel:[0,0] op_sel_hi:[1,0]
v_pk_mul_f32 {vr(vW1,2)}, {vr(vW1,2)}, {vr(c,2)} op_sel:[0,0] op_sel_hi:[1,0]
ds_write_addtid_b32 v35 offset:0''')
if 'early' in OPT: stamp(9)
tmpc = [0]
pendw = []
nextp = [NUP]
def flushw():
    while pendw: E(pendw.pop(0))
def cmul(D, X, W):
    E(f'v_pk_mul_f32 {vr(D,2)}, {vr(X,2)}, {vr(W,2)} op_sel:[0,0] op_sel_hi:[0,1]')
    flushw()
    E(f'v_pk_fma_f32 {vr(D,2)}, {vr(X,2)}, {vr(W,2)}, {vr(D,2)} op_sel:[1,1,0] op_sel_hi:[1,0,1] neg_lo:[1,0,0]')
def put(X, off, neg):
    t = 32 + (tmpc[0] & 3)
    E(f'v_cvt_pk_bf16_f32 v{t}, v{X}, {"-" if neg else ""}v{X+1}')
    pendw.append(f'ds_write_addtid_b32 v{t} offset:{off}')
    tmpc[0] += 1
    if tmpc[0] == int(OPT.get('kdrop', 99)): E('s_setprio 0')
    if tmpc[0] == UPOS[0]:
        if CL: E('s_cbranch_scc1 L_cw1\ns_waitcnt vmcnt(0)\nL_cw1:\ns_waitcnt vmcnt(2)')
        E(f'v_pk_mul_f32 {vr(vCR,2)}, {vr(vCR,2)}, {vr(vDT,2)} op_sel:[0,0] op_sel_hi:[1,0]')
    while nextp[0] < 4 and UPOS[nextp[0]] == tmpc[0]:
        E(f's_cbranch_scc1 L_mid{nextp[0]}')
        uload(nextp[0])
        E(f'L_mid{nextp[0]}:')
        nextp[0] += 1
put(vW8, ROWB, False)
P0, P1 = 46, 48
cur = vW8
for i in range(2, 32):
    nxt = P0 if cur != P0 else P1
    cmul(nxt, cur, vW8)
    put(nxt, i*ROWB, False)
    cur = nxt
cmul(vW256, cur, vW8)
E(f's_mov_b32 m0, s{sT1}')
hoff = lambda row: HI0 - HIX + STOR[row]*ROWB
H = [50, 52, 54, 56, 58]
put(vCR, hoff(0), True)
cur = vCR
keep = {0: vCR}
for e in range(1, 9):
    nxt = H[e//2] if e % 2 == 0 else P0
    cmul(nxt, cur, vW1)
    put(nxt, hoff(e), True)
    cur = nxt
    if e % 2 == 0: keep[e] = nxt
for e, row in ((0, 13), (2, 14), (6, 16)):
    cmul(P0, keep[e], vW256)
    put(P0, hoff(row), True)
cur = keep[4]
for row in (15, 9, 18):
    nxt = P0 if cur != P0 else P1
    cmul(nxt, cur, vW256); put(nxt, hoff(row), True); cur = nxt
cur = keep[8]
for row in (17, 10, 19, 11, 20, 12, 21):
    nxt = P0 if cur != P0 else P1
    cmul(nxt, cur, vW256); put(nxt, hoff(row), True); cur = nxt
flushw()
NMID = nextp[0] - 1
stamp(3)
if 'early' in OPT: E('s_branch L_cdone')
E(f's_cbranch_scc0 L_cio1')
if STAMPS:
    for i_ in (5, 6, 8, 9, 14, 15): E(f's_mov_b64 s[{SB+2*i_}:{SB+2*i_+1}], 0')
m_begin = len(out)
def gread(s):
    r = GF + 8*(s % 8)
    E(f'ds_read_b128 {vr(r,4)}, v{vA} offset:{32*s}')
    E(f'ds_read_b128 {vr(r+4,4)}, v{vB} offset:{32*s}')
fill = [f's_lshl_b32 s{sT2}, s{sW}, 2', f's_add_u32 s{sT2}, s{sT2}, {SM0+FLG}', f'v_mov_b32 v{vFL}, s{sT2}', f'v_mov_b32 v8, {SM0+FLG}',
        f'v_lshlrev_b32 v10, 4, v{LANE}', f'v_add_u32 v10, {BND}, v10']
def dofill(n):
    while n > 0 and fill:
        x = fill.pop(0); E(x)
        if x.startswith('v_'): n -= 1
BPOS = int(OPT.get('bpos', 5))
def gemm_all(extra):
    q = []
    def rd(s_): gread(s_); q.append(s_)
    GD = int(OPT.get('gd', 3))
    for s_ in range(GD): rd(s_)
    dofill(99)
    nxt = GD; nx = 0
    for s_ in range(16):
        E(f's_waitcnt lgkmcnt({2*(len(q) - 1 - q.index(s_)) + nx})')
        r = GF + 8*(s_ % 8)
        E(f'v_mfma_f32_32x32x16_bf16 {vr(GA,16)}, {vr(r,4)}, {vr(r+4,4)}, {vr(GA,16)}')
        if s_ == BPOS:
            stamp(13); E('s_barrier'); stamp(4)
        while nxt < 16 and nxt - 8 <= s_ and (nxt < 8 or s_ >= BPOS) and nxt - s_ <= GD:
            rd(nxt); nxt += 1
        if s_ == 15 - GD: nx = extra()
E(f'''s_waitcnt vmcnt(0) lgkmcnt(1)
s_mov_b64 exec, 1
v_add_f32 v{GA}, -1.0, v{GA}
s_mov_b64 exec, -1''')

def aread(q):
    base, off = (vCA, (1024-64*q)//4) if q >= 9 else (vCA2, (512-64*q)//4)
    return [f'ds_read2_b32 {vr(AF+4*q,2)}, v{base} offset0:{off} offset1:{off+1}',
            f'ds_read2_b32 {vr(AF+4*q+2,2)}, v{base} offset0:{off+2} offset1:{off+3}']
def tzread(i):
    if i < 6: off = (i//3)*64 + 16*(i % 3)
    else: off = (F4-F3)//4 + 16*(i-6)
    return [f'ds_read2_b32 {vr(TZ+4*i,2)}, v{vTZ} offset0:{off+3} offset1:{off+2}',
            f'ds_read2_b32 {vr(TZ+4*i+2,2)}, v{vTZ} offset0:{off+1} offset1:{off}']
def boff(k):
    kind, tp, q = k
    return UPAD + 512*tp - 32 - (16 if kind == 'Z' else 64*q)
band = lambda i: vr(vBAND+4*i, 4)
stream = []
def mk(tile, a_, b_, dst=None): stream.append(('m', tile, a_, b_, dst))
def parts(tp):
    G0 = ('B', tp, 0) if tp == 0 else ('G', tp, 0); Z = ('Z', tp, 0); B0 = ('B', tp, 0)
    gen = []; cv = []
    if tp <= 5:
        gen += [(8, Z, 0), (12, Z, 1)]
        if tp <= 3: gen += [(20, Z, 3)]
        gen += [(0, G0, 0), (4, G0, 1)]
        if tp <= 3: gen += [(16, G0, 2)]
        for base in ((8, 0, 16) if tp <= 3 else (8, 0)):
            for jj in range(4): cv.append(f'v_cvt_pk_bf16_f32 v{DT+base+jj}, v{DT+base+jj}, v{DT+base+4+jj}')
    own = [(tp, ('A', q), ('B', tp, q)) for q in range(8)]
    nxt = [(tp+1, ('A', q+8), ('B', tp, q)) for q in range(8)] if tp < 7 else []
    lead = []
    if tp <= 5: lead.append((tp+2, ('A', 16), G0))
    if tp <= 3: lead.append((tp+4, band(4), G0))
    far = []
    if tp <= 5:
        for dl in range(3):
            if tp + 2 + dl <= 7:
                far.append((tp+2+dl, vr(DT+8, 4), ('T', 3+dl)))
                far.append((tp+2+dl, vr(DT, 4), ('T', dl)))
    if tp <= 3:
        for dl in range(4):
            if tp + 4 + dl <= 7: far.append((tp+4+dl, vr(DT+16, 4), ('T', 6+dl)))
    return gen, cv, own, nxt, lead, far
PT = [parts(tp) for tp in range(8)]
def with_cv(seq, cv, start, per=1):
    for i, t_ in enumerate(seq):
        mk(*t_)
        if i >= start:
            for _ in range(per):
                if cv: stream.append(('v', cv.pop(0)))
    assert not cv
gen, cv = PT[0][0], PT[0][1]
gm = [(None, k, band(bi), DT+dof) for dof, k, bi in gen]
D = lambda r: f'v{GA+r}'
x2v = [f'v_cvt_pk_bf16_f32 v11, {D(10)}, 0', f'v_cvt_pk_bf16_f32 v14, 0, {D(8)}', f'v_cvt_pk_bf16_f32 v15, {D(8)}, {D(8)}',
       f'v_readlane_b32 s{sT2}, v11, 63', f'v_cvt_pk_bf16_f32 v1, {D(9)}, {D(10)}', f'v_cvt_pk_bf16_f32 v2, {D(11)}, {D(12)}',
       f'v_subrev_u32 v{vKX}, 8, v{vKX}']
mk4 = [f'v_mul_u32_u24 v{vBAND+16+jj}, s{sT2}, v{vBAND+16+jj}' for jj in range(4)]
NG0 = int(OPT.get('ng0', 3))
with_cv(gm[:NG0], [], 0)
stream.append(('expand',))
with_cv(gm[NG0:], x2v, 0, 7 if NG0 > 4 else 4 if NG0 > 3 else 3)
stream.append(('x2ok',))
if OPT.get('t0', '0') == '1':
    with_cv(PT[0][2], mk4, 2)
    stream.append(('mark', 0))
    seq = []
    for q in range(8): seq += [PT[1][2][q], PT[0][3][q], PT[1][3][q]]
    with_cv(seq[:23], cv, 0)
    stream.append(('mark', 1))
    with_cv(seq[23:] + [(t_, a_, ('C', 0, 0)) for t_, a_, b_ in PT[0][4]], [], 0)
else:
    seq = []
    for q in range(8):
        seq += [PT[0][2][q], PT[1][2][q], PT[0][3][q], PT[1][3][q]]
    with_cv(seq[:30], mk4 + cv, 4)
    del cv[:]
    stream.append(('mark', 0))
    with_cv(seq[30:31], [], 0)
    stream.append(('mark', 1))
    with_cv(seq[31:] + PT[0][4], [], 0)
for tp in range(2, 8):
    src = tp - 2
    if src >= 1:
        for dof, k, bi in PT[src][0]: mk(None, k, band(bi), DT+dof)
    seq = PT[src][4] if src >= 1 else []
    ownf = tp == 7 or str(tp) in OPT.get('ownf', '6')
    for q in range(8):
        if not ownf: seq = seq + [PT[tp][3][q]]
        seq = seq + [PT[tp][2][q]]
    cvs = PT[src][1]
    if ownf: with_cv(seq, cvs[:8], len(seq) - 4, 2); stream.append(('v', 's_nop 0'))
    else: with_cv(seq, cvs, 5)
    far = PT[src][5]
    with_cv(far[:2], [], 0)
    stream.append(('mark', tp))
    if ownf: with_cv(PT[tp][3], cvs[8:], 0)
    with_cv(far[2:], [], 0)
    if tp == 7: stream.append(('part',))
order = []
first, last = {}, {}
for i, it in enumerate(stream):
    if it[0] == 'm':
        for k in (it[2], it[3]):
            if isinstance(k, tuple):
                if k not in first: first[k] = i; order.append(k)
                last[k] = i
slot, free_after = {}, {}
slotfree = {(s_+6) % NSLOT: -1 for s_ in range(NSLOT)}
for k in order:
    if k[0] in 'BZGC':
        s_ = min(slotfree, key=lambda z: slotfree[z])
        slot[k] = s_; free_after[k] = slotfree[s_]; assert free_after[k] < first[k]
        del slotfree[s_]; slotfree[s_] = last[k]
def reg(k):
    if not isinstance(k, tuple): return k
    if k[0] == 'A': return vr(AF+4*k[1], 4)
    if k[0] == 'T': return vr(TZ+4*k[1], 4)
    return vr(BR+4*slot[k], 4)
issued = []; done_upto = [0]; lastop = {}; fin = []
checked = {0}; FOFF = 0
T_ = [0]; TL = [0]
LAT = int(OPT.get('lat', 110)); BACK = int(OPT.get('back', 20)); LOOK = int(OPT.get('look', 14))
state = {'exp': False, 'x2': False}
ops = []
def addop(key, txt, cost, pre='', post=''): ops.append(dict(key=key, txt=txt, cost=cost, pre=pre, post=post))
seenW = False
for k in order:
    if (k == ('A', 16) or k[0] == 'T') and not seenW:
        seenW = True
        addop(('X', 0), f'ds_write_b64 v{vKX}, v[14:15] offset:{KX}', 24, 's_mov_b32 exec_lo, 0\ns_mov_b32 exec_hi, 0x80000000', 's_mov_b64 exec, -1')
        addop(('X', 1), f'ds_write_b32 v{vKX}, v15 offset:{KY+4}', 16, 's_mov_b32 exec_lo, 0\ns_mov_b32 exec_hi, 0x80000000', 's_mov_b64 exec, -1')
        addop(('X', 2), f'ds_write_b32 v{vK3}, v1 offset:{F3+64}', 16)
        addop(('X', 3), f'ds_write_b16 v{vK4}, v2 offset:{F4+64}', 16)
        addop(('X', 4), f'ds_write_b16_d16_hi v{vK4}, v2 offset:{F4+64+128}', 16)
        for n_ in range(5): first[('X', n_)] = first[k]
    if k[0] == 'A':
        for x in aread(k[1]): addop(k, x, 16)
    elif k[0] == 'T':
        for x in tzread(k[1]): addop(k, x, 16)
    else: addop(k, f'ds_read_b128 {reg(k)}, v{vCB} offset:{boff(k)}', 16)
def wait_for(idx):
    if idx < done_upto[0]: return
    T_[0] = max(T_[0], fin[idx])
    while idx + 1 < len(issued) and fin[idx+1] + 16 <= T_[0]: idx += 1
    n = len(issued) - 1 - idx
    assert n <= 15
    E(f's_waitcnt lgkmcnt({n})')
    done_upto[0] = idx + 1
def lds(txt, key=None, cost=16):
    if len(issued) - done_upto[0] >= 15: wait_for(done_upto[0])
    E(txt); issued.append(key)
    TL[0] = max(TL[0], T_[0]) + cost
    fin.append(TL[0] + LAT)
    T_[0] = max(T_[0] + 4, TL[0] - 64)
    if key is not None: lastop[key] = len(issued) - 1
def ready(o, i, pos):
    k = o['key']
    if k[0] == 'X': return state['x2']
    if k == ('A', 16) or k[0] == 'T': return not any(p['key'][0] == 'X' for p in ops)
    if k[0] == 'A': return state['exp']
    if free_after[k] > i: return False
    return k[1]//2 in checked or first[k] <= i + LOOK
def doop(o):
    ops.remove(o)
    k = o['key']
    if k[0] in 'BZGC' and k[1]//2 not in checked:
        ph = k[1]//2
        if ('F', ph) not in lastop: lds('ds_read_b128 v[4:7], v8 offset:16', ('F', ph), 8)
        wait_for(lastop[('F', ph)])
        E(f'''v_min_u32 v4, v4, v5
        v_min3_u32 v4, v4, v6, v7
        v_cmp_le_u32 vcc, {ph+FOFF}, v4
        s_cbranch_vccz L_uc{ph}
        L_uc{ph}d:''')
        T_[0] += 24
        checked.add(ph)
    if len(issued) - done_upto[0] >= 15: wait_for(done_upto[0])
    if o['pre']: E(o['pre'])
    lds(o['txt'], k, o['cost'])
    if o['post']: E(o['post'])
def feed(i, until, maxn=99):
    un = [o['key'] for o in ops if o['key'][0] in 'BZGC' and o['key'][1]//2 not in checked]
    if un and ('F', un[0][1]//2) not in lastop and first[un[0]] <= i + LOOK + 10:
        lds('ds_read_b128 v[4:7], v8 offset:16', ('F', un[0][1]//2), 8); maxn -= 1
    while maxn > 0 and TL[0] - until < BACK:
        if len(issued) - done_upto[0] >= 14:
            if fin[done_upto[0] + 2] > T_[0]: break
            wait_for(done_upto[0])
        cand = [o for n_, o in enumerate(ops[:40]) if ready(o, i, n_)]
        if not cand: break
        doop(cand[0]); maxn -= 1
def expand():
    global NOPX
    NOPX = max(0, 11 - (ninstr() - gemm_end - ('mid' in OPT)))
    t = TZ
    E(f'''s_nop NOPX
    v_cvt_pk_bf16_f32 v{t}, {D(7)}, {D(6)}
    v_cvt_pk_bf16_f32 v{t+1}, {D(5)}, {D(4)}
    v_cvt_pk_bf16_f32 v{t+2}, {D(3)}, {D(2)}
    v_cvt_pk_bf16_f32 v{t+3}, {D(1)}, {D(0)}''')
    T_[0] = max(T_[0], 80) + 20
    lds(f'ds_write_b128 v{vKX}, {vr(t,4)} offset:{KX}', None, 52)
    E(f'''v_cvt_pk_bf16_f32 v{t+4}, {D(8)}, {D(7)}
    v_cvt_pk_bf16_f32 v{t+5}, {D(6)}, {D(5)}
    v_cvt_pk_bf16_f32 v{t+6}, {D(4)}, {D(3)}
    v_cvt_pk_bf16_f32 v{t+7}, {D(2)}, {D(1)}
    v_cvt_pk_bf16_f32 v{t+10}, {D(0)}, 0''')
    T_[0] += 24
    lds(f'ds_write_b128 v{vKX}, {vr(t+4,4)} offset:{KY}', None, 52)
    E('s_mov_b64 exec, 1')
    lds(f'ds_write_b32 v{vKX}, v{t+10} offset:{KY+16}', None, 16)
    E('s_mov_b64 exec, -1')
    state['exp'] = True
    for o in [o_ for o_ in ops if o_['key'][0] == 'A'][:4]: doop(o)
    if 'mid' in OPT: stamp(5)
vPA = 10
accinit = set()
ypend = []
NPRE = int(OPT.get('npre', 3))
def first_b():
    T_[0] = -32*GD_; TL[0] = -32
    if not BEARLY:
        for bi in (0, 1, 3, 2): lds(f'ds_read_b128 {band(bi)}, v10 offset:{1024*bi}', ('W', bi))
    for o in [o_ for o_ in ops if o_['key'][0] in 'BZGC'][:NPRE]: doop(o)
    T_[0] = max(T_[0], 0)
    return len(issued)
GD_ = int(OPT.get('gd', 3))
gemm_all(first_b)
assert not fill, fill
gemm_end = ninstr()
if 'mid' in OPT: stamp(8)
TM = [32]
for i, it in enumerate(stream):
    n0 = ninstr()
    if it[0] == 'mark':
        tp = it[1]
        if 'mid' in OPT and tp in (1, 2, 3, 5): stamp({1: 6, 2: 9, 3: 14, 5: 15}[tp])
        if 'sim' in OPT: sys.stderr.write(f'T{tp} at {TM[0]}\n')
        ypend.append([8, ([('ds', f'ds_write_b128 v{vY}, {vr(ACC+4*tp,4)} offset:{4*YG*tp}', 52), ('v', f'v_mov_b32 v13, {tp+1}', 0)] if OPT.get('ysp', '0') == '0' else
             [('ds', f'ds_write_b64 v{vY}, {vr(ACC+4*tp,2)} offset:{4*YG*tp}', 24), ('v', f'v_mov_b32 v13, {tp+1}', 0), ('ds', f'ds_write_b64 v{vY}, {vr(ACC+4*tp+2,2)} offset:{4*YG*tp+8}', 24), ('v', 's_nop 0', 0)]) + [('ds', f'ds_write_b32 v{vFL}, v13', 16)]])
        continue
    if it[0] == 'expand': expand()
    elif it[0] == 'x2ok': state['x2'] = True
    elif it[0] == 'part':
        E(f'''s_cmp_lg_u32 s{sW}, 0
        s_cbranch_scc1 L_nopart
        s_setprio 3
        s_lshl_b32 s{sT2}, s{sI}, 10
        s_add_u32 s{sT2}, s{sT2}, {WS_PART}
        v_min_u32 v{vPA}, 55, v{LANE}
        v_lshl_add_u32 v{vPA}, v{vPA}, 4, s{sT2}
        global_load_dwordx4 {vr(TZ+24,4)}, v{vPA}, {sp(sWS)} sc1
        L_nopart:''')
        n0 = ninstr() - 2
    elif it[0] == 'v':
        E(it[1]); T_[0] = max(T_[0], TM[0] - 8) + 4
    else:
        _, tile, a_, b_, dst = it
        keys = [k for k in (a_, b_) if isinstance(k, tuple)]
        for k in keys:
            while any(o['key'] == k for o in ops):
                o = [o for n_, o in enumerate(ops) if ready(o, i-1, n_)][0]
                doop(o)
        need = [lastop[k] for k in keys]
        if need and max(need) >= done_upto[0]:
            if fin[max(need)] > max(T_[0], TM[0]): feed(i-1, fin[max(need)] - LAT + 48)
            wait_for(max(need))
        if tile is None: E(f'v_mfma_f32_16x16x32_bf16 {vr(dst,4)}, {reg(a_)}, {reg(b_)}, 0')
        else:
            c_ = vr(ACC+4*tile, 4) if tile in accinit else '0'
            accinit.add(tile)
            E(f'v_mfma_f32_16x16x32_bf16 {vr(ACC+4*tile,4)}, {reg(a_)}, {reg(b_)}, {c_}')
        T_[0] = max(T_[0], TM[0]); TM[0] = T_[0] + 16; T_[0] += 4
        for p in ypend: p[0] -= ninstr() - n0
        n0 = ninstr()
        if ypend and ypend[0][0] <= 0:
            for _ in range(2):
                if ypend[0][1]:
                    kind, txt, cost = ypend[0][1].pop(0)
                    if kind == 'ds': lds(txt, None, cost)
                    else: E(txt)
            if not ypend[0][1]: ypend.pop(0)
        else:
            feed(i, T_[0], 2)
    for p in ypend: p[0] -= ninstr() - n0
order = ops
assert not order
for p in ypend:
    if p[0] > 0: E(f's_nop {p[0]-1}')
    n0 = ninstr()
    for kind, txt, cost in p[1]: E(txt)
    for p2 in ypend: p2[0] -= max(p[0], 0) + ninstr() - n0
def isize(x):
    x = x.strip()
    if x.endswith(':'): return 0
    op = x.split(' ')[0]
    if op in ('s_waitcnt', 's_nop', 's_barrier', 's_cbranch_vccz', 's_cbranch_scc1', 'v_min_u32', 'v_and_b32', 'v_mov_b32', 's_mov_b64', 'v_subrev_u32', 'v_cmp_le_u32'): return 4
    return 8
if 'strip' in OPT:
    import re as _re
    pat = _re.compile(OPT['strip'])
    body = out[m_begin:]; del out[m_begin:]
    out += [x for x in body if not pat.search(x)]
NHOP = 0
if ICW:
    body = out[m_begin:]; del out[m_begin:]
    acc = ICW
    for j, x in enumerate(body):
        out.append(x); acc += isize(x)
        nxt_ok = 'v_mfma' in x or acc >= ICW - 8
        if acc >= ICW - 28 and nxt_ok and not x.endswith(':'):
            out.append(f'L_hop{NHOP}:'); out.append(f'    s_cbranch_execz L_hop{NHOP+1}'); NHOP += 1; acc = 4
    out.append(f'L_hop{NHOP}:'); out.append('    s_cbranch_execz L_hopend')
stamp(7)
if 'twice' in OPT: E(f's_waitcnt lgkmcnt(0) vmcnt(0)\nv_add_u32 v{vKX}, 8, v{vKX}\ns_add_u32 s7, s7, 1\ns_cmp_eq_u32 s7, 1\ns_cbranch_scc1 L_twice')
if 'noepi' in OPT or 'nofin' in OPT: E('s_branch L_cdone')
E(f'''s_cmp_lg_u32 s{sW}, 0
s_cbranch_scc1 L_cdone''')
HM = OPT.get('hm', '0') == '1'
fr_begin = len(out)
PL = TZ + 24
E(f'''s_mov_b32 s{sSPIN}, {SPIN_MAX}
L_mb:
ds_read_b128 v[4:7], v8 offset:32
s_waitcnt lgkmcnt(0)
v_cmp_ne_u32 vcc, 0, v7
s_cbranch_vccnz L_mbd''')
spin_check('L_mb')
E(f'''L_mbd:
v_readfirstlane_b32 s{sKEY}, v4
v_readfirstlane_b32 s{sTAG}, v5
v_mov_b32 v20, 0
v_mov_b32 v21, 0
v_mov_b32 v22, 0
v_mov_b32 v23, 0
s_andn2_b32 s{sIDX}, 2047, s{sKEY}
s_lshl_b32 s{sT0}, s{sIDX}, 1
s_add_u32 s{sT0}, s{sT0}, {UB0+UPAD}
v_mov_b32 v11, s{sT0}''')
for k in range(4):
    E(f'ds_read_u16_d16_hi v{20+k}, v11 offset:{k*UCB}')
E(f'''s_lshr_b32 s{sT2}, s{sIDX}, 8
s_lshl_b32 s{sT0}, s{sT2}, 2
s_bfe_u32 s{sT1}, s{sIDX}, 0x20002
s_add_u32 s{sT0}, s{sT0}, s{sT1}
s_mul_i32 s{sT0}, s{sT0}, {YG}
s_and_b32 s{sT1}, s{sIDX}, 0xf0
s_add_u32 s{sT0}, s{sT0}, s{sT1}
s_and_b32 s{sT1}, s{sIDX}, 3
s_lshl_b32 s{sT1}, s{sT1}, 2
s_add_u32 s{sT0}, s{sT0}, s{sT1}
v_mov_b32 v12, s{sT0}
s_add_u32 s{sTH}, s{sT2}, 1
s_bitcmp1_b32 s{sIDX}, 0
s_cselect_b32 s{sT0}, 0, 16
v_lshlrev_b32 v24, s{sT0}, v6
v_and_b32 v24, 0xffff0000, v24
s_and_b32 s{sT0}, s{sKEY}, 0xffff0000
s_xor_b32 s{sT1}, s{sT0}, 0xffff0000
s_xor_b32 s{sT0}, s{sT0}, 0x80000000
s_bitcmp1_b32 s{sKEY}, 31
s_cselect_b32 s{sT0}, s{sT0}, s{sT1}
v_mov_b32 v25, {f32(-L2E)}
v_mul_f32 v25, s{sT0}, v25
v_exp_f32 v25, v25
v_sub_f32 v38, 1.0, v24
v_add_f32 v25, 1.0, v25
v_rcp_f32 v25, v25
v_cvt_pk_bf16_f32 v38, 0, v38
v_cvt_pk_bf16_f32 v25, 0, v25
v_mul_f32 v25, v25, v38''')
wait_flags(sTH, 'f', 8, 4, 0)
for k in range(4):
    E(f'ds_read_b32 v{16+k}, v12 offset:{k*LOB}')
E(f'''s_mov_b32 s{sT0}, 0x0c0c0400
s_mov_b32 s{sT1}, 0x04000c0c
s_mov_b32 s{sSPIN}, {SPIN_MAX}
s_branch L_pp1
L_pp:
global_load_dwordx4 {vr(PL,4)}, v{vPA}, {sp(sWS)} sc1
L_pp1:
s_waitcnt vmcnt(0)
v_perm_b32 v26, v{PL+1}, v{PL}, s{sT0}
v_perm_b32 v27, v{PL+3}, v{PL+2}, s{sT1}
v_or_b32 v26, v26, v27
v_cmp_ne_u32 vcc, s{sTAG}, v26
s_cbranch_vccz L_ppd''')
spin_check('L_pp')
E('L_ppd:')
stamp(12)
E(f'''s_mov_b32 exec_lo, 0
s_mov_b32 exec_hi, 0xff000000
v_mov_b32 v{PL}, 0
v_mov_b32 v{PL+1}, 0
v_mov_b32 v{PL+2}, 0
v_mov_b32 v{PL+3}, 0
s_mov_b64 exec, -1
s_waitcnt lgkmcnt(0)
v_fmac_f32 v20, v16, v24
v_permlane32_swap_b32 v{PL}, v{PL+2}
v_fmac_f32 v21, v17, v24
v_permlane32_swap_b32 v{PL+1}, v{PL+3}
v_add_f32 v{PL}, v{PL}, v{PL+2}
v_add_f32 v{PL+1}, v{PL+1}, v{PL+3}
v_fmac_f32 v22, v18, v24
v_fmac_f32 v23, v19, v24
v_permlane16_swap_b32 v{PL}, v{PL+1}
s_lshl_b32 s{sT0}, s{sIDX}, 10
v_add_f32 v{PL}, v{PL}, v{PL+1}
s_lshl_b32 s{sT1}, s{sI}, 3
s_add_u32 s{sT0}, s{sT0}, s{sT1}''')
for sh in (8, 4, 2, 1):
    E(f'''v_add_f32_dpp v{PL}, v{PL}, v{PL} row_ror:{sh} {DPPF}''')
    if sh != 1: E('s_nop 1')
E(f'''v_cvt_pk_bf16_f32 v{PL}, 0, v{PL}
v_mov_b32 v10, s{sT0}
v_readlane_b32 s{sT0}, v{PL}, 0
v_readlane_b32 s{sT1}, v{PL}, 16
v_readlane_b32 s{sT2}, v{PL}, 32
v_readlane_b32 s{sT3}, v{PL}, 48
v_fmac_f32 v20, s{sT0}, v25
v_fmac_f32 v21, s{sT1}, v25
v_fmac_f32 v22, s{sT2}, v25
v_fmac_f32 v23, s{sT3}, v25
v_cvt_pk_bf16_f32 v16, v20, v21
v_cvt_pk_bf16_f32 v17, v22, v23
s_mov_b64 exec, 1
global_store_dwordx2 v10, v[16:17], {sp(sOUT)}
s_branch L_cdone''')
if HM: islands('hm', fr_begin)
for ph in ((1, 2, 3) if ST0 == 'pre' else (0, 1, 2, 3)):
    E(f'''L_uc{ph}:
    s_mov_b32 s{sTH}, {ph+FOFF}
    v_add_u32 v12, 16, v8''')
    if 'mid' not in OPT: stamp({1: 5, 2: 8, 3: 14}[ph])
    wait_flags(sTH, f'u{ph}', 12, 4, 0)
    if 'mid' not in OPT: stamp({1: 6, 2: 9, 3: 15}[ph])
    E(f's_branch L_uc{ph}d')
vP, vG, vGF, vYV = 80, 72, 112, 32
def stage(p):
    for k in range(4):
        E(f'v_perm_b32 v{40+k}, v{vX+4*p+2+(k>>1)}, v{vX+4*p+(k>>1)}, s{sP1 if k & 1 else sP0}')
    for k in range(4):
        E(f'ds_write_b32 v64, v{40+k} offset:{k*UCB+1024*p}')
def unpack(p):
    for j in range(2):
        for h in range(2):
            E(f'''v_lshlrev_b32 v{vP+8*p+4*j+2*h}, 16, v{vX+4*p+2*j+h}
            v_and_b32 v{vP+8*p+4*j+2*h+1}, 0xffff0000, v{vX+4*p+2*j+h}''')
def pollA():
    E(f'''global_load_dwordx2 v[12:13], v70, {sp(sDBG)} sc1
    global_load_dwordx2 {vr(vG,2)}, v66, {sp(sWS)} offset:-4096 sc1''')
def pollB():
    E(f'global_load_dwordx2 v[52:53], v65, {sp(sWS)} sc1')
    for p in range(1, 4):
        E(f'global_load_dwordx2 {vr(vG+2*p,2)}, v66, {sp(sWS)} offset:{-4096+2048*p} sc1')
def epi(p, masked):
    wait_flags(sTH, f'e{p}', 69, 48, SLEEP if p < 3 else int(OPT.get('sl3', 0)))
    if p == 0: stamp(8)
    if p == 3: stamp(14)
    for k in range(4):
        E(f'ds_read_b64 {vr(vYV+2*k,2)}, v67 offset:{k*LOB+8*YG*p}')
    E(f's_add_u32 s{sTH}, s{sTH}, 2\ns_waitcnt lgkmcnt(0)')
    for j in range(2):
        r = vP + 8*p + 4*j
        for k in range(4):
            E(f'v_fmac_f32 v{r+k}, v{vYV+2*k+j}, v{vGF+2*p+j}')
        E(f'''v_cvt_pk_bf16_f32 v{r}, v{r}, v{r+1}
        v_cvt_pk_bf16_f32 v{r+1}, v{r+2}, v{r+3}''')
        if masked: E(f's_cmp_eq_u32 s{sJ}, {2*p+j}\ns_cselect_b64 exec, {sp(sEX)}, -1')
        E(f'global_store_dwordx2 v{vXO+p}, {vr(r,2)}, {sp(sOUT)} offset:{1024*j}')
        if masked: E('s_mov_b64 exec, -1')
def gun(p):
    E(f'''v_lshlrev_b32 v{vGF+2*p}, 16, v{vG+2*p}
    v_and_b32 v{vGF+2*p+1}, 0xffff0000, v{vG+2*p}''')
E('L_cio1:')
if ST0 == 'pre':
    E(f's_waitcnt vmcnt({2*NMID})')
    stamp(13)
    stage(0)
E('s_waitcnt lgkmcnt(0)\ns_barrier')
stamp(4)
if ST0 != 'pre':
    E(f's_waitcnt vmcnt({2*NMID})')
    stamp(13)
    stage(0)
    E(f'v_mov_b32 v44, 1\nds_write_b32 v68, v44')
if KPRIO == 'io': E('s_setprio 0')
E(f'''v_lshlrev_b32 v65, 3, v{LANE}
v_add_u32 v65, {WS_KEYS}, v65
v_and_b32 v66, 255, v0
v_lshlrev_b32 v66, 3, v66
v_add_u32 v66, {WS_G+4096}, v66
v_mov_b32 v70, 0
v_bfe_u32 v12, v0, 1, 2
v_bfe_u32 v13, v0, 7, 1
v_lshl_add_u32 v12, v13, 2, v12
v_mul_u32_u24 v67, {YG}, v12
v_bfe_u32 v12, v0, 3, 4
v_lshl_add_u32 v67, v12, 4, v67
v_and_b32 v12, 1, v0
v_lshl_add_u32 v67, v12, 3, v67
s_lshl_b32 s{sT2}, s{sW}, 2
s_add_u32 s{sT2}, s{sT2}, {SM0+FLG}
v_mov_b32 v68, s{sT2}
v_mov_b32 v69, {SM0+FLG}
''')
assert NMID in (1, 2)
U3E = OPT.get('u3e', '0') == '1'
def stagef(p):
    stage(p)
    E(f'v_mov_b32 v44, {p+FOFF}\nds_write_b32 v68, v44')
if U3E: pollA(); uload(3)
E(f's_waitcnt vmcnt({2*(NMID-1) + 4*U3E})')
stagef(1)
stamp(12)
if not U3E:
    pollA()
    if NMID == 1: uload(2)
    uload(3)
unpack(0); unpack(1)
E(f'''s_lshr_b32 s{sTH}, s{sCH}, 1
s_add_u32 s{sTH}, s{sTH}, 1
s_waitcnt vmcnt({2*NMID})''')
LST = OPT.get('lst', '0') == '1'
if not LST: stagef(2)
stamp(15)
E('s_waitcnt vmcnt(2)')
if PRIO == 'io': E('s_setprio 2')
E(f'''s_mov_b32 s{sS3}, 0
v_cmp_eq_u32 vcc, 1, v13
v_cmp_eq_u32 {sp(sM0)}, v12, v{vG+1}
s_and_b64 vcc, vcc, {sp(sM0)}
s_cmp_eq_u64 vcc, -1
s_cbranch_scc1 L_pad
s_waitcnt vmcnt(0)''')
if LST: stage(2)
stagef(3)
E(f'''s_mov_b32 s{sS3}, 1
s_mov_b32 s{sSPIN}, {SPIN_MAX}
L_pa:''')
pollA()
E(f'''s_waitcnt vmcnt(0)
v_cmp_eq_u32 vcc, 1, v13
v_cmp_eq_u32 {sp(sM0)}, v12, v{vG+1}
s_and_b64 vcc, vcc, {sp(sM0)}
s_cmp_eq_u64 vcc, -1
s_cbranch_scc1 L_pad''')
spin_check('L_pa')
E('L_pad:')
stamp(6)
pollB()
gun(0)
E(f'v_readfirstlane_b32 s{sTAG}, v12')
epi(0, False)
E(f'''s_cmp_lg_u32 s{sS3}, 0
s_cbranch_scc1 L_s3d''')
if LST: stagef(2)
E('s_waitcnt vmcnt(6)')
stagef(3)
E('L_s3d:')
stamp(5)
unpack(2); unpack(3)
E(f'''s_mov_b32 s{sSPIN}, {SPIN_MAX}
s_waitcnt vmcnt(2)
s_branch L_pb1
L_pb:''')
pollB()
E(f'''s_waitcnt vmcnt(0)
L_pb1:
v_cmp_eq_u32 vcc, s{sTAG}, v53
v_cmp_eq_u32 {sp(sM0)}, s{sTAG}, v{vG+3}
v_cmp_eq_u32 {sp(sM1)}, s{sTAG}, v{vG+5}
s_and_b64 vcc, vcc, {sp(sM0)}
v_cmp_eq_u32 {sp(sM0)}, s{sTAG}, v{vG+7}
s_and_b64 vcc, vcc, {sp(sM1)}
s_and_b64 vcc, vcc, {sp(sM0)}
s_cmp_eq_u64 vcc, -1
s_cbranch_scc1 L_pbd''')
spin_check('L_pb')
E('L_pbd:')
stamp(9)
key_reduce(52)
for p in range(1, 4): gun(p)
E(f'''s_andn2_b32 s{sIDX}, 2047, s{sKEY}
s_lshr_b32 s{sT0}, s{sIDX}, 1
s_mov_b64 {sp(sEX)}, -1
s_bitset0_b64 {sp(sEX)}, s{sT0}
s_lshr_b32 s{sT2}, s{sIDX}, 9
s_lshl_b32 s{sJ}, s{sT2}, 1
s_and_b32 s{sT1}, s{sIDX}, 1
s_add_u32 s{sJ}, s{sJ}, s{sT1}
s_bfe_u32 s{sT1}, s{sIDX}, 0x20007
s_cmp_eq_u32 s{sT1}, s{sCH}
s_cselect_b32 s{sJ}, s{sJ}, 8
s_cbranch_scc0 L_nomb
s_and_b32 s{sT0}, s{sT0}, 63
v_readlane_b32 s{sT1}, v{vG}, s{sT0}
v_readlane_b32 s{sT3}, v{vG+2}, s{sT0}
v_readlane_b32 s{sT4}, v{vG+4}, s{sT0}
v_readlane_b32 s{sT5}, v{vG+6}, s{sT0}
s_bitcmp1_b32 s{sT2}, 0
s_cselect_b32 s{sT1}, s{sT3}, s{sT1}
s_cselect_b32 s{sT4}, s{sT5}, s{sT4}
s_bitcmp1_b32 s{sT2}, 1
s_cselect_b32 s{sT1}, s{sT4}, s{sT1}
v_mov_b32 v44, s{sKEY}
v_mov_b32 v45, s{sTAG}
v_mov_b32 v46, s{sT1}
v_mov_b32 v47, 1
; a routed row of the first phase was stored like any other: its store must be complete before the final one is allowed
s_cmp_lg_u32 s{sT2}, 0
s_cbranch_scc1 L_mb1
s_waitcnt vmcnt(0)
L_mb1:
ds_write_b128 v69, v[44:47] offset:32
L_nomb:''')
stamp(7)
HE = OPT.get('he', '0') == '1'
epi(1, True)
if HM: hop('hm', sCH, 4)
if HE: hop('he', sCH, 4)
e_begin = len(out)
epi(2, True); epi(3, True)
if HE: islands('he', e_begin)
E('L_cdone:')
stamp(10)
if STAMPS:
    E('s_waitcnt vmcnt(0)')
    stamp(11)
write_stamps()
E('s_endpgm')

A_T = 0
E(f"""L_rg:
s_lshl_b32 s{sT0}, s{sI}, 2
s_lshl_b32 s{sT1}, s{sW}, 8
s_add_u32 s{sT0}, s{sT0}, s{sT1}
s_lshl_b32 s{sT1}, s{sT0}, 2
s_add_u32 s{sT1}, s{sT1}, {WS_G}
v_mov_b32 v49, s{sT1}
s_sub_u32 s{sT0}, 2047, s{sT0}
v_bfe_u32 v6, v{LANE}, 3, 1
v_lshrrev_b32 v5, 5, v{LANE}
v_lshl_add_u32 v5, v6, 1, v5
s_lshl_b32 s{sT1}, s{sW}, 4
v_lshl_add_u32 v6, v5, 2, s{sT1}
v_sub_u32 v5, s{sT0}, v5
v_and_b32 v48, 15, v{LANE}
v_lshlrev_b32 v48, 3, v48
s_lshl_b32 s{sT0}, s{sI}, 3
s_add_u32 s{sT0}, s{sT0}, {WS_KEYS}
v_mov_b32 v45, s{sT0}
s_cmp_ge_u32 s{sI}, 32
s_cselect_b32 s{sT1}, 8, 0
s_sub_u32 s{sT0}, s{sI}, s{sT1}
s_lshl_b32 s{sT0}, s{sT0}, 3
s_add_u32 s{sT0}, s{sT0}, s{sW}
s_lshl_b32 s{sT0}, s{sT0}, 12
v_and_b32 v47, 31, v{LANE}
v_lshl_add_u32 v47, v47, 7, s{sT0}
s_lshr_b32 s{sT1}, s{sT0}, 18
s_lshl_b32 s{sT1}, s{sT1}, 9
s_bfe_u32 s{sT0}, s{sT0}, 0x5000d
s_mul_i32 s{sT0}, s{sT0}, {16*3584}
s_add_u32 s{sT0}, s{sT0}, s{sT1}
s_add_u32 s{sT0}, s{sT0}, 384
v_and_b32 v39, 15, v{LANE}
v_mul_u32_u24 v39, 3584, v39
v_add_u32 v39, s{sT0}, v39
s_bitcmp1_b32 s{sW}, 0
s_cselect_b64 {sp(sT4)}, {sp(sWU)}, {sp(sWG)}
{"global_load_dword v38, v39, " + sp(sT4) if RS == '1' else ""}
s_waitcnt lgkmcnt(0)
s_add_u32 s{sTAG}, s{sTAG}, {TAGINC}
v_mov_b32 v61, s{sTAG}
v_mov_b32 v41, s{sTAG}
v_mov_b32 v43, s{sTAG}
s_add_u32 s{sT0}, s{sI}, s{sW}
s_cmp_lg_u32 s{sT0}, 0
s_cbranch_scc1 L_anotag
v_mov_b32 v7, 0
v_mov_b32 v62, s{sTAG}
v_mov_b32 v63, 1
s_mov_b64 exec, 1
s_waitcnt vmcnt(0)
global_store_dwordx2 v7, v[62:63], {sp(sDBG)} sc1
s_mov_b64 exec, -1
s_branch L_rg1
L_anotag:
s_waitcnt vmcnt({2 + (RS == '1')})""")
def dots(rows):
    for k in range(4):
        for r in rows:
            E(f'v_dot2_f32_bf16 v{50+r}, v{vXA+4*r+k}, v{vWRv+k}, {"0" if k == 0 else "v%d" % (50+r)}')
            E(f'v_dot2_f32_bf16 v{54+r}, v{vXA+4*r+k}, v{vGWv+k}, {"0" if k == 0 else "v%d" % (54+r)}')
E('L_rg1:')
dots((0, 1))
E(f's_cbranch_scc0 L_rg2\ns_waitcnt vmcnt({int(RS == "1")})\nL_rg2:')
if RS == '2': E(f'global_load_dword v38, v39, {sp(sT4)}')
stamp(2)
if RW == 'pre': E(f'global_load_dword v46, v47, {sp(sWD)}')
dots((2, 3))
E(f"""v_permlane32_swap_b32 v50, v51
v_permlane32_swap_b32 v54, v55
v_add_f32 v50, v50, v51
v_permlane32_swap_b32 v52, v53
v_add_f32 v54, v54, v55
v_permlane32_swap_b32 v56, v57
v_add_f32 v52, v52, v53
v_add_f32 v56, v56, v57
v_permlane16_swap_b32 v50, v54
s_nop 0
v_permlane16_swap_b32 v52, v56
v_add_f32 v50, v50, v54
v_add_f32 v52, v52, v56
s_nop 0
v_add_f32_dpp v51, v50, v50 row_ror:8 row_mask:0xf bank_mask:0x3
v_add_f32_dpp v53, v52, v52 row_ror:8 row_mask:0xf bank_mask:0xf
s_nop 1
v_mov_b32_dpp v51, v53 quad_perm:[0,1,2,3] row_mask:0xf bank_mask:0xc
s_nop 1
v_add_f32_dpp v51, v51, v51 row_half_mirror {DPPF}
s_nop 1
v_add_f32_dpp v51, v51, v51 quad_perm:[1,0,3,2] {DPPF}
s_nop 1
v_add_f32_dpp v50, v51, v51 quad_perm:[2,3,0,1] {DPPF}
v_cvt_pk_bf16_f32 v50, 0, v50
v_mul_f32 v52, {f32(-L2E)}, v50
v_exp_f32 v52, v52
v_ashrrev_i32 v51, 31, v50
v_add_f32 v52, 1.0, v52
v_rcp_f32 v52, v52
v_or_b32 v51, 0x80000000, v51
v_xor_b32 v50, v50, v51
v_mov_b32 v53, v52
v_and_b32 v50, 0xffff0000, v50
v_or_b32 v50, v50, v5
v_permlane32_swap_b32 v52, v53
s_mov_b32 exec_lo, 0x00000101
s_mov_b32 exec_hi, 0x00000101
ds_write_b32 v6, v50 offset:{A_T}
s_mov_b64 exec, -1
v_cvt_pk_bf16_f32 v40, v52, v53
s_nop 1
v_mov_b32_dpp v42, v40 row_ror:8 {DPPF}
s_mov_b64 exec, 0x10000
global_store_dwordx4 v49, v[40:43], {sp(sWS)} sc1
s_mov_b64 exec, -1""")
stamp(5)
E("""s_waitcnt lgkmcnt(0)
s_barrier""")
stamp(3)
E(f"""s_cmp_lg_u32 s{sW}, 0
s_cbranch_scc1 L_rg3
ds_read_b64 v[52:53], v48 offset:{A_T}
s_waitcnt lgkmcnt(0)
v_max_u32 v60, v52, v53
s_nop 1""")
for sh in (8, 4, 2, 1):
    E(f'v_max_u32_dpp v60, v60, v60 row_ror:{sh} {DPPF}')
    if sh != 1: E('s_nop 1')
E(f"""s_mov_b64 exec, 1
global_store_dwordx2 v45, v[60:61], {sp(sWS)} sc1""")
stamp(4)
E('s_mov_b64 exec, -1\nL_rg3:')
if RW == 'post': E(f's_lshr_b32 s{sT0}, s{sI}, 3\ns_cmp_eq_u32 s{sT0}, 3\ns_cbranch_scc1 L_adone\ns_barrier\n{"global_load_dword v38, v39, " + sp(sT4) if RS == "3" else ""}\nglobal_load_dword v46, v47, {sp(sWD)}\ns_waitcnt vmcnt(0)')
if RW == 'pre': E('s_waitcnt vmcnt(0)')
E('s_branch L_adone')
F_IDX, F_PART, F_X = 98304, 98304 + 64, 98304 + 64 + 2048
XL = OPT.get('xl', '1') == '1'
LD = OPT.get('ld', '1') == '1'
vFG, vFU, vFD, vBT = 64, 80, 96, 112
FLEAD = int(OPT.get('flead', 0))
OPP = OPT.get('opp', '1') == '1'
DLATE = OPT.get('dlate', '2') != '0'
D2 = OPT.get('dlate', '2') == '2'
FBAR = OPT.get('fbar', '1') == '1'
EPOLL = OPT.get('epoll', '0') == '1'
E(f"""L_ffn:
; slices live on seven of the eight column groups (group 3 has the slowest output path): fi = 8*g' + k
s_cmp_eq_u32 s{sT0}, 3
s_cbranch_scc1 L_adone
s_lshr_b32 s{sFI}, s{sI}, 1
s_cmp_gt_u32 s{sT0}, 3
s_cselect_b32 s{sT1}, 8, 0
s_sub_u32 s{sFI}, s{sFI}, s{sT1}
v_lshrrev_b32 v8, 2, v{LANE}
v_and_b32 v9, 3, v{LANE}
v_mul_u32_u24 v16, 3584, v8
v_lshl_add_u32 v16, v9, 4, v16
s_mul_i32 s{sT0}, s{sW}, {64*3584}
s_lshl_b32 s{sT1}, s{sFI}, 6
s_add_u32 s{sT0}, s{sT0}, s{sT1}
s_mul_i32 s{sT3}, s{sW}, 12288
s_and_b32 s{sT1}, s{sFI}, {1 if OPP else 0}
s_mul_i32 s{sT2}, s{sT1}, {32*3584}
s_lshl_b32 s{sT1}, s{sT1}, 11
s_add_u32 s{sT4}, s{sT3}, s{sT1}
s_xor_b32 s{sT5}, s{sT4}, 2048
s_add_u32 s{sT1}, s{sT0}, s{sT2}
s_sub_u32 s{sT0}, s{sT0}, s{sT2}
s_add_u32 s{sT0}, s{sT0}, {32*3584}
v_add_u32 v18, s{sT0}, v16
v_add_u32 v16, s{sT1}, v16
v_add_u32 v17, {16*3584}, v16
v_add_u32 v19, {16*3584}, v18
s_waitcnt lgkmcnt(0)""")
stamp(1)
def gu(j):
    sb = sT4 if j < 2 else sT5
    E(f"""s_add_u32 m0, s{sb}, {1024*(j & 1)}
    s_nop 0
    global_load_lds_dwordx4 v{16+j}, {sp(sWG)}{NTW}
    s_add_u32 m0, s{sb}, {4096+1024*(j & 1)}
    s_nop 0
    global_load_lds_dwordx4 v{16+j}, {sp(sWU)}{NTW}""")
FTHR = OPT.get('fthr', '0')
if FTHR == '2': E(f'v_mov_b32 v4, 0\nglobal_load_dword v4, v4, {sp(sWG)}\ns_waitcnt vmcnt(0)')
if FTHR == '3': E(f'v_mov_b32 v4, 0\nglobal_load_dword v4, v4, {sp(sWG)}\ns_waitcnt vmcnt(0)\nv_mov_b32 v4, 0\nglobal_load_dword v4, v4, {sp(sWU)}\ns_waitcnt vmcnt(0)')
if FTHR == '4':
    E(f'''s_cmp_lg_u32 s{sW}, 0
    s_cbranch_scc1 L_ftd
    v_mov_b32 v4, 0
    s_mov_b32 s{sSPIN}, {SPIN_MAX}
    L_ft:
    global_load_dwordx2 v[6:7], v4, {sp(sDBG)} sc1
    s_waitcnt vmcnt(0)
    v_cmp_eq_u32 vcc, 1, v7
    s_cbranch_vccnz L_ftd''')
    spin_check('L_ft')
    E('L_ftd:\ns_barrier')
stamp(3)
gu(0)
if FTHR == '1': E('s_waitcnt vmcnt(0)\ns_barrier')
gu(1)
E(f"""v_lshrrev_b32 v44, 3, v{LANE}
v_and_b32 v21, 7, v{LANE}
v_lshlrev_b32 v21, 4, v21
v_lshl_add_u32 v44, v44, 10, v21
s_lshl_b32 s{sT0}, s{sFI}, 15
s_lshl_b32 s{sT1}, s{sW}, 7
s_add_u32 s{sT0}, s{sT0}, s{sT1}
v_add_u32 v44, s{sT0}, v44
v_lshlrev_b32 v22, 3, v{LANE}
v_add_u32 v22, {WS_KEYS}, v22
v_mov_b32 v23, 0""")
def down():
    E(f's_add_u32 m0, s{sT3}, 8192\ns_nop 0')
    for j in range(4):
        E(f'global_load_lds_dwordx4 v44, {sp(sWD)}{NTD}')
        if j < 3: E('s_add_u32 m0, m0, 1024\nv_add_u32 v44, 8192, v44')
if RW == 'no' and not DLATE: down()
if FBAR: E('s_barrier')
stamp(2)
gu(2); gu(3)
if RW != 'no' and not DLATE:
    E('s_barrier')
    down()
if EPOLL: E(f"""s_cmp_lg_u32 s{sW}, {FLEAD}
s_cbranch_scc1 L_fnp
global_load_dwordx2 v[16:17], v22, {sp(sWS)} sc1
global_load_dwordx2 v[18:19], v23, {sp(sDBG)} sc1
L_fnp:""")
stamp(5)
E(f"""v_and_b32 v5, 15, v{LANE}
v_lshrrev_b32 v6, 4, v{LANE}
v_bfe_u32 v14, v{LANE}, 2, 2
v_lshlrev_b32 v14, 6, v14
v_lshl_add_u32 v14, v6, 9, v14
v_lshl_add_u32 v14, v9, 3, v14
v_add_u32 v14, s{sT3}, v14
v_lshlrev_b32 v8, 7, v8
v_lshl_add_u32 v8, v9, 3, v8
v_add_u32 v8, s{sT3}, v8
s_lshl_b32 s{sT1}, s{sW}, 7
{'s_add_u32 s%d, s%d, %d' % (sT1, sT1, F_X) if XL else ''}
v_lshl_add_u32 v10, v6, 4, s{sT1}
v_lshrrev_b32 v12, 2, v5
v_lshlrev_b32 v13, 6, v12
v_lshl_add_u32 v13, v6, 4, v13
s_lshl_b32 s{sT1}, s{sW}, 8
s_add_u32 s{sT1}, s{sT1}, {F_PART}
v_add_u32 v11, s{sT1}, v13
v_lshl_add_u32 v13, v9, 2, v13
v_add_u32 v7, {F_PART}, v13
v_lshl_add_u32 v13, v12, 2, v6
s_lshl_b32 s{sT1}, s{sW}, 14
s_lshl_b32 s{sT2}, s{sFI}, 4
s_add_u32 s{sT1}, s{sT1}, s{sT2}
s_add_u32 s{sT1}, s{sT1}, {WS_PART}
v_lshl_add_u32 v13, v13, 10, s{sT1}
v_mov_b32 v21, {F_IDX}""")
for r in range(16): E(f'v_mov_b32 v{vBT+r}, 0')
HF = OPT.get('hf', '0') == '1'
if HF: hop('hf', sW, 8)
f_begin = len(out)
E('s_waitcnt vmcnt(0)')
if D2 and XL and LD:
    E(f's_cmp_eq_u32 s{sW}, {FLEAD}\ns_cbranch_scc1 L_fnd')
    down()
    E('L_fnd:')
elif D2: down()
for s_ in range(2):
    for ct in range(2):
        for h in range(2):
            E(f'ds_read_b64_tr_b16 {vr(vFG+8*s_+4*ct+2*h,2)}, v14 offset:{2048*s_+256*h+32*ct}')
            E(f'ds_read_b64_tr_b16 {vr(vFU+8*s_+4*ct+2*h,2)}, v14 offset:{4096+2048*s_+256*h+32*ct}')
    E('s_waitcnt lgkmcnt(4)')
def dtr():
    for t in range(4):
        for hh in range(2):
            E(f'ds_read_b64_tr_b16 {vr(vFD+4*t+2*hh,2)}, v8 offset:{8192+2048*hh+32*t}')
if not DLATE: dtr()
stamp(6)
E(f"""s_cmp_lg_u32 s{sW}, {FLEAD}
s_cbranch_scc1 L_anopoll
s_mov_b32 s{sSPIN}, {SPIN_MAX}
{'s_branch L_pk1' if EPOLL else ''}
L_pk:
global_load_dwordx2 v[16:17], v22, {sp(sWS)} sc1
global_load_dwordx2 v[18:19], v23, {sp(sDBG)} sc1
s_waitcnt vmcnt(0)
L_pk1:
v_cmp_eq_u32 vcc, v18, v17
v_cmp_eq_u32 {sp(sM0)}, 1, v19
s_and_b64 vcc, vcc, {sp(sM0)}
s_cmp_eq_u64 vcc, -1
s_cbranch_scc1 L_pkd""")
spin_check('L_pk')
E('L_pkd:')
key_reduce(16)
if XL:
    E(f"""s_andn2_b32 s{sIDX}, 2047, s{sKEY}
    s_lshl_b32 s{sT0}, s{sIDX}, 10
    s_mov_b32 m0, {F_X}
    v_lshl_add_u32 v45, v{LANE}, 4, s{sT0}
    global_load_lds_dwordx4 v45, {sp(sX)}""")
    if LD: down()
E(f"""v_mov_b32 v16, s{sKEY}
ds_write_b64 v21, v[16:17]
{('s_waitcnt vmcnt(4)' if LD else 's_waitcnt vmcnt(0)') if XL else ''}
L_anopoll:
s_waitcnt lgkmcnt(0)
s_barrier""")
stamp(7)
if XL:
    E(f"""ds_read_b128 v[16:19], v10
    ds_read_b128 v[40:43], v10 offset:64
    ds_read_b32 v128, v21 offset:4
    s_waitcnt lgkmcnt(1)""")
    stamp(13)
else:
    E(f"""ds_read_b64 v[130:131], v21
s_waitcnt lgkmcnt(0)
v_not_b32 v16, v130
v_and_b32 v16, 2047, v16
v_lshl_add_u32 v10, v16, 10, v10
global_load_dwordx4 v[16:19], v10, {sp(sX)}
global_load_dwordx4 v[20:23], v10, {sp(sX)} offset:64
v_mov_b32 v128, v131
v_lshrrev_b32 v129, 8, v131
v_lshrrev_b32 v130, 16, v131
v_lshrrev_b32 v131, 24, v131""")
    if DLATE and not D2: down()
    stamp(12)
    if D2:
        E('s_waitcnt vmcnt(2)')
        dtr()
    E(f's_waitcnt vmcnt({4 if DLATE and not D2 else 0})')
    stamp(13)
for q in range(4):
    fb = (vFU if q >> 1 else vFG) + 4*(q & 1)
    for s_ in range(2):
        E(f'v_mfma_f32_16x16x32_bf16 {vr(24+4*q,4)}, {vr(fb+8*s_,4)}, {vr(40 if XL and s_ else 16+4*s_,4)}, {"0" if s_ == 0 else vr(24+4*q,4)}')
if XL: E('s_waitcnt lgkmcnt(0)\nv_lshrrev_b32 v129, 8, v128\nv_lshrrev_b32 v130, 16, v128\nv_lshrrev_b32 v131, 24, v128')
else: E('s_nop 3')
for q in range(1, 4):
    for r in range(4):
        E(f'v_mov_b32_dpp v{24+r}, v{24+4*q+r} quad_perm:[0,1,2,3] row_mask:0xf bank_mask:{hex(1 << q)}')
E("""s_mov_b32 exec_lo, 0x11111111
s_mov_b32 exec_hi, 0x11111111
ds_write_b128 v11, v[24:27]
s_mov_b64 exec, -1""")
DPL = OPT.get('dpl', '1')
if XL and DPL == '0':
    E('s_waitcnt vmcnt(0)')
    dtr()
    E('s_waitcnt lgkmcnt(8)')
else: E('s_waitcnt lgkmcnt(0)')
stamp(14)
E('s_barrier')
stamp(8)
E(f"""ds_read2st64_b32 v[16:17], v7 offset0:0 offset1:1
ds_read2st64_b32 v[18:19], v7 offset0:2 offset1:3
ds_read2st64_b32 v[20:21], v7 offset0:4 offset1:5
ds_read2st64_b32 v[22:23], v7 offset0:6 offset1:7
s_mov_b32 s{sT0}, 0xff
s_waitcnt lgkmcnt(2)
v_pk_add_f32 v[16:17], v[16:17], v[18:19]
s_waitcnt lgkmcnt(0)
v_pk_add_f32 v[20:21], v[20:21], v[22:23]
v_pk_add_f32 v[16:17], v[16:17], v[20:21]
v_add_f32 v16, v16, v17""")
if (DLATE and not D2) or (XL and DPL == '1'):
    E('s_waitcnt vmcnt(0)')
    dtr()
E(f"""v_cvt_pk_bf16_f32 v18, 0, v16
v_mul_f32 v16, {f32(-L2E)}, v18
v_exp_f32 v16, v16
v_mov_b32_dpp v19, v18 row_ror:8 {DPPF}
v_add_f32 v16, 1.0, v16
v_rcp_f32 v16, v16
s_nop 0
v_mul_f32 v16, v16, v18
v_cvt_pk_bf16_f32 v16, 0, v16
v_mul_f32 v16, v16, v19""")
if XL and DPL == '2':
    E('s_waitcnt vmcnt(0)')
    dtr()
E(f"""s_nop 1
v_mov_b32_dpp v17, v16 quad_perm:[1,1,3,3] {DPPF}
v_cvt_pk_bf16_f32 v16, v16, v17
s_nop 1""")
def bt(t):
    for jj in range(4):
        E(f'v_mov_b32_dpp v{vBT+4*t+jj}, v16 row_newbcast:{2*jj} row_mask:0xf bank_mask:{hex(1 << t)}')
bt(0)
if DLATE: E('s_waitcnt lgkmcnt(0)')
for t in range(4):
    if t < 3: bt(t+1)
    else: E('s_nop 0')
    E(f'v_mfma_f32_16x16x32_bf16 v[32:35], {vr(vFD+4*t,4)}, {vr(vBT+4*t,4)}, {"0" if t == 0 else "v[32:35]"}')
E("""s_mov_b32 exec_lo, 0x11111111
s_mov_b32 exec_hi, 0x11111111
s_nop 5""")
for t in range(4):
    E(f'v_bfi_b32 v{32+t}, s{sT0}, v{128+t}, v{32+t}')
E(f'global_store_dwordx4 v13, v[32:35], {sp(sWS)} sc1')
stamp(9)
E(f'''s_add_u32 s{sT0}, s{sFI}, s{sW}
s_cmp_lg_u32 s{sT0}, 0
s_cbranch_scc1 L_adone
s_mov_b64 exec, 1
v_mov_b32 v23, 0
global_store_dword v23, v128, {sp(sWS)} offset:{WS_EPOCH} sc1''')
if 'fwb' in OPT:
    E(f'''s_add_u32 s{sT0}, s{sSLOT}, s{sW}
    s_cmp_lg_u32 s{sT0}, 0
    s_cbranch_scc1 L_adone
    {"s_waitcnt vmcnt(0)" if OPT['fwb'] == '2' else ""}
    buffer_wbl2 sc1''')
if HF: islands('hf', f_begin)
E('L_adone:')
stamp(10)
if STAMPS:
    E('s_waitcnt vmcnt(0)')
    stamp(11)
write_stamps()
E('L_end:')
E('s_endpgm')
out.append(f'''.section .rodata,"a"
.p2align 6
.amdhsa_kernel {KN}_kernel
  .amdhsa_next_free_vgpr {NVGPR}
  .amdhsa_next_free_sgpr 96
  .amdhsa_accum_offset {(NVGPR+3)//4*4}
  .amdhsa_group_segment_fixed_size 0
  .amdhsa_kernarg_size 128
  .amdhsa_user_sgpr_count 2
  .amdhsa_user_sgpr_kernarg_segment_ptr 1
  .amdhsa_system_sgpr_workgroup_id_x 1
.end_amdhsa_kernel''')
txt = _re2.sub(r'@(\w+)@(\d+)@(\d+)@', lambda m: f'L_{m.group(1)}{int(m.group(2))*SUBS[m.group(1)]//int(m.group(3))}', '\n'.join(out))
print(txt.replace('NOPX', str(NOPX)).replace('HOPQ1', f'L_hop{NHOP//4}').replace('HOPQ2', f'L_hop{NHOP//2}').replace('HOPQ3', f'L_hop{3*NHOP//4}'))
```

```python
import sys, struct
from asmlib import KN, STAMP_OFF
OPT = dict(a.split('=') if '=' in a else (a, '1') for a in sys.argv[1:])
STAMPS = 'stamps' in OPT
NTP = ' nt' if OPT.get('ntp', '0') == '1' else ''
NTX = ' nt' if OPT.get('ntx', '0') == '1' else ''
PRIO = OPT.get('prio', 'io')
SLEEP = int(OPT.get('sleep', 1))
UPOS = [int(x) for x in OPT.get('upos', '5,21,40,99').split(',')]
WMODE = OPT.get('wmode', 'warm')
XWARM = OPT.get('xwarm', '1') == '1'
AHEAD = int(OPT.get('ahead', 2))
YG = 320
TW = OPT.get('tw', 'cfr')
NTW = ' nt' if OPT.get('ntw', '0') == '1' else ''
NTD = ' nt' if OPT.get('ntd', '0') == '1' else ''
CL = int(OPT.get('cl', 0))
BEARLY = False
WWM = OPT.get('ww', '0')
RS = OPT.get('rs', '2')
WW = WWM != '0'
RW = OPT.get('rw', 'post')
ICW = int(OPT.get('icw', 0))
ICWHO = OPT.get('icwho', 'io')

out = []
def E(s):
    for ln in s.strip('\n').split('\n'):
        ln = ln.strip()
        if ln: out.append(('    ' + ln) if not ln.endswith(':') else ln)
def f32(x): return '0x%08x' % struct.unpack('<I', struct.pack('<f', x))[0]
def vr(b, n): return f'v[{b}:{b+n-1}]'
def ninstr(): return sum(1 for x in out if not x.endswith(':'))

WS_EPOCH, WS_KEYS, WS_G, WS_PART = 0, 4096, 8192, 32768
TAGINC = 0x9E3779B1
SPIN_MAX = 1 << 20
ROWB = 528
LOB = 32*ROWB
HI0 = 4*LOB
NHI = 22
HIB = NHI*ROWB
UB0 = HI0 + 4*HIB
UCB, UPAD = 4608, 480
SM0 = UB0 + 4*UCB
SMB = 4096
KX, KY, F3, F4, FLG = 0, 1216, 2432, 2944, 3328
HIX = 16384
BND = SM0 + 4*SMB
LDS_BYTES = BND + 4*1024
ST0 = OPT.get('st0', 'pre')
KPRIO = OPT.get('kprio', 'io')
GEMM1 = OPT.get('gemm1', '0') == '1'
sEX = 6
sX, sLA, sAI, sCR, sCI, sLDT, sDS = 8, 10, 12, 14, 16, 18, 20
sWR, sWG, sWU, sWD, sGW, sOUT, sDBG, sWS = 24, 26, 28, 30, 32, 34, 36, 38
sW, sI, sT0, sT1 = 40, 41, 42, 43
sJ, sP0, sP1, sTH = 44, 45, 46, 47
sTAG, sKEY, sIDX, sSPIN = 48, 49, 50, 51
sM0, sM1 = 52, 54
sT2, sT3, sT4, sT5 = 56, 57, 58, 59
sSLOT, sWB, sFI, sIO = 60, 61, 62, 63
sCH = 61
sS3 = 62
SB = 64
NST = 16
def sp(b): return f's[{b}:{b+1}]'
def stamp(i):
    if STAMPS: E(f'{"s_memtime" if "cyc" in OPT else "s_memrealtime"} s[{SB+2*i}:{SB+2*i+1}]')
def write_stamps():
    if not STAMPS: return
    E(f'''s_waitcnt lgkmcnt(0) vmcnt(0)
    s_mov_b64 exec, 1
    s_lshl_b32 s{sT0}, s2, 3
    s_add_u32 s{sT0}, s{sT0}, s{sW}
    s_lshl_b32 s{sT0}, s{sT0}, 7
    s_add_u32 s{sT0}, s{sT0}, {STAMP_OFF}
    v_mov_b32 v0, s{sT0}''')
    for i in range(NST):
        E(f'''v_mov_b32 v2, s{SB+2*i}
        v_mov_b32 v3, s{SB+2*i+1}
        global_store_dwordx2 v0, v[2:3], {sp(sWS)} offset:{8*i}
        s_nop 1''')
def spin_check(lbl_loop):
    E(f'''s_sub_u32 s{sSPIN}, s{sSPIN}, 1
    s_cbranch_scc0 {lbl_loop}''')
L2E = 1.4426950408889634
L2E_HI = struct.unpack('<f', struct.pack('<I', 0x3FB8AA00))[0]
L2E_LO = L2E - L2E_HI
LANE = 3
DPPF = 'row_mask:0xf bank_mask:0xf'

def hop_call():
    E(f'''s_mov_b64 exec, 0
    s_cmp_eq_u32 s{sCH}, 0
    s_cbranch_scc1 L_hop0
    s_cmp_eq_u32 s{sCH}, 1
    s_cbranch_scc1 HOPQ1
    s_cmp_eq_u32 s{sCH}, 2
    s_cbranch_scc1 HOPQ2
    s_branch HOPQ3
    L_hopend:
    s_mov_b64 exec, -1''')
import re as _re2
def isz(x):
    x = x.strip()
    if x.endswith(':') or x.startswith(';'): return 0
    op = x.split(' ')[0]
    if op.startswith(('ds_', 'global_', 'v_mfma', 'v_pk_', 'v_cvt_pk', 'v_perm', 'v_bfi', 'v_readlane', 'v_lshl_', 'v_min3', 'v_or3', 's_mem', 'v_bfe', 'v_mad')) or 'dpp' in op: return 8
    if _re2.search(r'0x[0-9a-f]{3,}|, [0-9]{3,}', x) or (op.startswith('v_cmp') and 's[' in x): return 8
    return 4
SUBS = {}
def islands(name, begin, step=64):
    body = out[begin:]; del out[begin:]
    n = 0; acc = step
    for x in body:
        if acc + isz(x) > step - 4:
            out.append(f'L_{name}{n}:'); out.append(f'    s_cbranch_execz L_{name}{n+1}'); n += 1; acc = 4
        out.append(x); acc += isz(x)
    endi = len(out) - 1
    while not (out[endi].startswith(f'    s_cbranch_execz L_{name}{n}')): endi -= 1
    out[endi] = f'    s_cbranch_execz L_{name}end'
    SUBS[name] = n
def hop(name, sreg, ways):
    E('s_mov_b64 exec, 0')
    for k in range(ways - 1):
        E(f's_cmp_eq_u32 s{sreg}, {k}\ns_cbranch_scc1 @{name}@{k}@{ways}@')
    E(f's_branch @{name}@{ways-1}@{ways}@\nL_{name}end:\ns_mov_b64 exec, -1')
def key_reduce(vt):
    for sh in (8, 4, 2, 1):
        E(f'''v_max_u32_dpp v{vt}, v{vt}, v{vt} row_ror:{sh} {DPPF}
        s_nop 1''')
    E(f'''v_readlane_b32 s{sKEY}, v{vt}, 0
    v_readlane_b32 s{sT0}, v{vt}, 16
    v_readlane_b32 s{sT1}, v{vt}, 32
    v_readlane_b32 s{sT2}, v{vt}, 48
    s_max_u32 s{sKEY}, s{sKEY}, s{sT0}
    s_max_u32 s{sT1}, s{sT1}, s{sT2}
    s_max_u32 s{sKEY}, s{sKEY}, s{sT1}''')
def wait_flags(sreg, name, vaddr, vt, sleep):
    E(f'''s_mov_b32 s{sSPIN}, {SPIN_MAX}
    L_wf_{name}:
    ds_read_b128 {vr(vt,4)}, v{vaddr}
    s_waitcnt lgkmcnt(0)
    v_min_u32 v{vt}, v{vt}, v{vt+1}
    v_min3_u32 v{vt}, v{vt}, v{vt+2}, v{vt+3}
    v_cmp_le_u32 vcc, s{sreg}, v{vt}
    s_cbranch_vccnz L_wfd_{name}''')
    if sleep: E(f's_sleep {sleep}')
    spin_check(f'L_wf_{name}')
    E(f'L_wfd_{name}:')

hdr = open('cdna_kernels/' + KN + '.s.ref').read().split('; Override launch')[0]
out.append(hdr.rstrip('\n'))
out.append(f'; @launch grid=(256,1,1) block=(512,1,1) lds={LDS_BYTES}')
out.append(f'''.amdgcn_target "amdgcn-amd-amdhsa--gfx950"
.text
.globl {KN}_kernel
.p2align 8
.type {KN}_kernel,@function
{KN}_kernel:''')
stamp(0)
vXA, vWRv, vGWv = 16, 8, 12
vLA, vAI, vCR, vCI, vDT = 4, 5, 6, 7, 8
vX = 16
vXO = 60
AF, TZ, BR, DT, ACC, vBAND = 16, 84, 124, 172, 196, 228
NSLOT = 12
GF, GA = 84, ACC
vKX, vK3, vK4, vCA, vCA2, vCB, vY, vTZ = 248, 249, 250, 251, 252, 253, 254, 255
vA, vB, vFL = 14, 15, 9
NVGPR = 256
E(f'''s_load_dwordx16 s[8:23], s[0:1], 0
s_load_dwordx16 s[24:39], s[0:1], 64
s_cmp_ge_u32 s2, 256
s_cbranch_scc1 L_end
s_getpc_b64 s[4:5]
L_pc:
v_lshrrev_b32 v1, 6, v0
v_and_b32 v{LANE}, 63, v0
v_readfirstlane_b32 s{sW}, v1
s_add_u32 s{sT0}, s2, {int(OPT.get('rot', 2))}
s_and_b32 s{sT0}, s{sT0}, 7
s_lshr_b32 s{sSLOT}, s2, 4
s_lshl_b32 s{sI}, s{sT0}, 4
s_add_u32 s{sI}, s{sI}, s{sSLOT}
s_cmp_gt_u32 s{sW}, 1
s_cbranch_scc1 L_nopf
v_lshlrev_b32 v2, 7, v0
v_min_u32 v2, L_end-L_pc, v2
global_load_dword v2, v2, s[4:5]
L_nopf:
s_bitcmp1_b32 s2, 3
s_cbranch_scc0 L_conv
s_bitcmp1_b32 s2, 4
s_cbranch_scc0 L_ffn
s_lshr_b32 s{sI}, s{sI}, 1
v_lshlrev_b32 v4, 4, v{LANE}
s_lshl_b32 s{sT2}, s{sI}, 12
s_lshl_b32 s{sT1}, s{sW}, 18
s_add_u32 s{sT2}, s{sT2}, s{sT1}
v_add_u32 v5, s{sT2}, v4
s_waitcnt lgkmcnt(0)''')
stamp(1)
E(f'''global_load_dwordx4 {vr(vWRv,4)}, v4, {sp(sWR)}
global_load_dwordx4 {vr(vGWv,4)}, v4, {sp(sGW)}
global_load_dwordx4 {vr(vXA,4)}, v5, {sp(sX)}{NTX}
global_load_dwordx4 {vr(vXA+4,4)}, v5, {sp(sX)} offset:1024{NTX}
global_load_dwordx4 {vr(vXA+8,4)}, v5, {sp(sX)} offset:2048{NTX}
global_load_dwordx4 {vr(vXA+12,4)}, v5, {sp(sX)} offset:3072{NTX}
s_load_dword s{sTAG}, {sp(sWS)}, {WS_EPOCH}
s_branch L_rg''')
E(f'''L_conv:
s_and_b32 s{sCH}, s{sW}, 3
s_lshr_b32 s{sIO}, s{sW}, 2
s_lshl_b32 s{sT2}, s{sI}, 3
s_lshl_b32 s{sT1}, s{sCH}, 1
s_add_u32 s{sT0}, s{sT2}, s{sT1}
v_mov_b32 v10, s{sT0}
s_add_u32 s{sT0}, s{sT0}, s{sIO}
s_lshl_b32 s{sT0}, s{sT0}, 7
v_lshl_add_u32 v1, v{LANE}, 1, s{sT0}
v_mov_b32 v{vLA}, 0
v_mov_b32 v{vAI}, 0
v_mov_b32 v{vCR}, 0
v_mov_b32 v{vCI}, 0
v_mov_b32 v{vDT}, 0''')
if 'early' in OPT: stamp(13)
E('s_waitcnt lgkmcnt(0)')
stamp(1)
E(f'''global_load_short_d16_hi v{vLA}, v1, {sp(sLA)}{NTP}
global_load_short_d16_hi v{vDT}, v10, {sp(sLDT)}
global_load_short_d16_hi v{vAI}, v1, {sp(sAI)}{NTP}
global_load_short_d16_hi v{vCR}, v1, {sp(sCR)}{NTP}
global_load_short_d16_hi v{vCI}, v1, {sp(sCI)}{NTP}''')
if 'early' in OPT: stamp(12)
E(f'''v_and_b32 v11, 255, v0
v_lshl_add_u32 v{vXO}, v11, 11, s{sT2}
v_add_u32 v{vXO+1}, {512*1024}, v{vXO}
v_add_u32 v{vXO+2}, {1024*1024}, v{vXO}
v_add_u32 v{vXO+3}, {1536*1024}, v{vXO}
s_barrier
s_cmp_ge_u32 s{sW}, 4
s_cbranch_scc1 L_cio0''')
STOR = {0:0,1:1,2:2,3:3, 16:4,17:5,18:6,19:7,20:8,12:9, 15:10, 13:11,14:12,4:13,5:14,6:15,7:16,8:17,9:18,10:19,11:20,21:21}
assert sorted(STOR.values()) == list(range(22))
tab = [0,0,1,2,2,2,3,4,4,5,6,7,8,8,8,8]
hrow = []
for x in range(32):
    g_, r_ = (x >> 2) & 1, 4*(x >> 3) + (x & 3)
    hrow.append(STOR[13 + tab[r_] if g_ else min(r_, 12)])
planes = [sum(((hrow[x] >> b) & 1) << x for x in range(32)) for b in range(5)]
E(f'''s_lshl_b32 s{sT0}, s{sSLOT}, 7
s_lshl_b32 s{sT1}, s{sW}, 5
s_add_u32 s{sT0}, s{sT0}, s{sT1}
v_and_b32 v13, 31, v{LANE}
v_add_u32 v12, s{sT0}, v13
v_lshl_add_u32 v12, v12, 10, s{sT2}
v_mov_b32 v{GA}, 0''')

if 'early' in OPT: stamp(5)
if XWARM: E(f'global_load_dword v1, v12, {sp(sX)}')
if WW:
    E(f'''s_lshr_b32 s{sT0}, s{sI}, 4
    s_cmp_gt_u32 s{sT0}, 3
    s_cselect_b32 s{sT1}, 1, 0
    s_sub_u32 s{sT0}, s{sT0}, s{sT1}
    s_lshl_b32 s{sT0}, s{sT0}, 9
    s_lshl_b32 s{sT1}, s{sSLOT}, 1
    s_lshr_b32 s{sT3}, s{sW}, 1
    s_add_u32 s{sT1}, s{sT1}, s{sT3}
    s_mul_i32 s{sT1}, s{sT1}, {16*3584}
    s_add_u32 s{sT0}, s{sT0}, s{sT1}
    v_and_b32 v12, 15, v{LANE}
    v_mul_u32_u24 v12, 3584, v12''')
    if WWM == '2':
        E(f'''s_bitcmp1_b32 s{sW}, 1
        s_cselect_b32 s{sT1}, 48, 0
        v_and_b32 v9, s{sT1}, v{LANE}
        v_xor_b32 v9, 48, v9
        v_lshl_add_u32 v12, v9, 3, v12''')
    else: E(f's_add_u32 s{sT0}, s{sT0}, 384')
    E(f'''v_add_u32 v12, s{sT0}, v12
    s_bitcmp1_b32 s{sW}, 0
    s_cselect_b64 {sp(sT4)}, {sp(sWU)}, {sp(sWG)}
    global_load_dword v9, v12, {sp(sT4)}''')
E(f'''s_mov_b64 exec, 1
global_load_short_d16_hi v{GA}, v10, {sp(sDS)}
s_mov_b64 exec, -1''')
for r in range(1, 16): E(f'v_mov_b32 v{GA+r}, 0')
for b_ in range(4, -1, -1):
    E(f's_mov_b32 s{sT0}, {planes[b_]}')
    if b_ == 4: E(f'v_bfe_u32 v{vA}, s{sT0}, v13, 1')
    else: E(f'v_bfe_u32 v12, s{sT0}, v13, 1\nv_lshl_or_b32 v{vA}, v{vA}, 1, v12')
E(f'''v_lshrrev_b32 v12, 5, v{LANE}
s_mul_i32 s{sT0}, s{sW}, {HIB}
s_add_u32 s{sT0}, s{sT0}, {HI0}
s_mul_i32 s{sT1}, s{sW}, {LOB}
v_lshl_add_u32 v10, v12, 4, s{sT0}
v_lshl_add_u32 v11, v12, 4, s{sT1}
s_mov_b32 s{sT2}, {ROWB}
v_mad_u32_u24 v{vA}, v{vA}, s{sT2}, v10
v_mad_u32_u24 v{vB}, v13, s{sT2}, v11
s_lshl_b32 s{sT0}, s{sW}, 12
s_add_u32 s{sT0}, s{sT0}, {SM0}
s_add_u32 s{sT2}, s{sT0}, {2*(543-7)}
v_lshlrev_b32 v10, 4, v{LANE}
v_sub_u32 v{vKX}, s{sT2}, v10
v_and_b32 v10, 1, v{LANE}
v_lshrrev_b32 v11, 1, v{LANE}
v_lshl_add_u32 v11, v11, 2, s{sT0}
v_lshl_add_u32 v{vK3}, v10, 8, v11
v_lshl_add_u32 v{vK4}, v{LANE}, 1, s{sT0}
v_and_b32 v11, 15, v{LANE}
v_and_b32 v12, 48, v{LANE}
v_mul_u32_u24 v13, {KY+2}, v10
v_lshl_add_u32 v13, v11, 1, v13
v_sub_u32 v{vCA}, v12, v13
s_add_u32 s{sT2}, s{sT0}, {KY+2*(544-16)-1024}
v_add_u32 v{vCA}, s{sT2}, v{vCA}
v_add_u32 v{vCA2}, 512, v{vCA}
s_mul_i32 s{sT2}, s{sW}, {UCB}
s_add_u32 s{sT2}, s{sT2}, {UB0}
v_lshl_add_u32 v{vCB}, v11, 5, v12
v_add_u32 v{vCB}, s{sT2}, v{vCB}
v_lshl_add_u32 v{vY}, v11, 4, s{sT1}
v_mad_u32_u24 v{vY}, v12, {YG//16}, v{vY}
s_add_u32 s{sT2}, s{sT0}, {F3+4*13}
v_lshl_add_u32 v{vTZ}, v11, 2, s{sT2}
v_sub_u32 v{vTZ}, v{vTZ}, v12
''')
r = vBAND + 16
E(f'''v_lshrrev_b32 v13, 1, v12
s_mov_b32 s{sT1}, {3 << 12}
v_lshlrev_b32 v{r}, v11, s{sT1}
v_bfe_u32 v{r}, v{r}, v13, 8
v_lshl_or_b32 v{r}, v{r}, 15, v{r}
v_lshrrev_b32 v{r+1}, 2, v{r}
v_lshrrev_b32 v{r+2}, 4, v{r}
v_lshrrev_b32 v{r+3}, 6, v{r}
s_mov_b32 s{sT1}, 0x10001
v_and_b32 v{r}, s{sT1}, v{r}
v_and_b32 v{r+1}, s{sT1}, v{r+1}
v_and_b32 v{r+2}, s{sT1}, v{r+2}
v_and_b32 v{r+3}, s{sT1}, v{r+3}''')
if 'early' in OPT: stamp(6)
E(f'''s_waitcnt vmcnt({1 + XWARM + WW + CL})''')
if 'early' in OPT: stamp(8)
E(f'''s_branch L_ckgen
L_cio0:''')

if 'early' in OPT: stamp(5)
def uload(p):
    E(f'global_load_dwordx2 {vr(vX+4*p,2)}, v{vXO+p}, {sp(sX)}')
    E(f'global_load_dwordx2 {vr(vX+4*p+2,2)}, v{vXO+p}, {sp(sX)} offset:1024')
NUP = sum(1 for x in UPOS if x == 0)
for p in range(NUP): uload(p)
TC = 0
if 'c' in TW:
    TC = 1
    E(f'''s_cmp_eq_u32 s{sCH}, 1
    s_cselect_b64 {sp(sT4)}, {sp(sWS)}, {sp(sOUT)}
    s_cmp_eq_u32 s{sCH}, 2
    s_cselect_b64 {sp(sT4)}, {sp(sDBG)}, {sp(sT4)}
    s_cmp_eq_u32 s{sCH}, 3
    s_cselect_b32 s{sT0}, {2048*1024-128}, 128
    v_mov_b32 v12, s{sT0}
    global_load_dword v71, v12, {sp(sT4)}''')
E(f'''v_mov_b32 v32, 0
v_mov_b32 v33, 0
v_mov_b32 v34, 0
v_mov_b32 v35, 0
s_mul_i32 s{sT0}, s{sCH}, {UCB}
s_add_u32 s{sT0}, s{sT0}, {UB0}
v_min_u32 v13, 29, v{LANE}
v_lshl_add_u32 v12, v13, 4, s{sT0}
ds_write_b128 v12, v[32:35]
s_lshl_b32 s{sT0}, s{sCH}, 12
s_add_u32 s{sT0}, s{sT0}, {SM0}
v_lshl_add_u32 v12, v{LANE}, 4, s{sT0}
ds_write_b128 v12, v[32:35]
ds_write_b128 v12, v[32:35] offset:1024
ds_write_b128 v12, v[32:35] offset:2048
ds_write_b128 v12, v[32:35] offset:3072
; IO addresses: v64 U write, v65 keys, v66 g granules, v67 y read, v68 own flag, v69 M flags, v70 zero
v_lshlrev_b32 v64, 2, v11
v_add_u32 v64, {UB0+UPAD}, v64
s_mov_b32 s{sP0}, 0x05040100
s_mov_b32 s{sP1}, 0x07060302
; band fragments (0/1 window matrices): IO wave ch builds window ch, wave 7 also the two-tap mask
s_mov_b32 s{sT1}, {7 << 11}
s_cmp_eq_u32 s{sCH}, 1
s_cselect_b32 s{sT1}, {31 << 6}, s{sT1}
s_cmp_eq_u32 s{sCH}, 2
s_cselect_b32 s{sT1}, {127 << 5}, s{sT1}
s_cmp_eq_u32 s{sCH}, 3
s_cselect_b32 s{sT1}, {511 << 4}, s{sT1}
s_mov_b32 s{sT0}, 0x10001
s_mov_b32 s{sT3}, 0x3f80
s_lshl_b32 s{sT2}, s{sCH}, 10
s_add_u32 s{sT2}, s{sT2}, {BND}
v_lshl_add_u32 v9, v{LANE}, 4, s{sT2}
v_and_b32 v10, 15, v{LANE}
v_lshrrev_b32 v13, 4, v{LANE}
v_lshlrev_b32 v13, 3, v13
v_lshlrev_b32 v12, v10, s{sT1}
v_bfe_u32 v12, v12, v13, 8
v_lshl_or_b32 v12, v12, 15, v12
v_lshrrev_b32 v41, 2, v12
v_lshrrev_b32 v42, 4, v12
v_lshrrev_b32 v43, 6, v12
v_and_b32 v40, s{sT0}, v12
v_and_b32 v41, s{sT0}, v41
v_and_b32 v42, s{sT0}, v42
v_and_b32 v43, s{sT0}, v43
v_mul_u32_u24 v40, s{sT3}, v40
v_mul_u32_u24 v41, s{sT3}, v41
v_mul_u32_u24 v42, s{sT3}, v42
v_mul_u32_u24 v43, s{sT3}, v43
ds_write_b128 v9, v[40:43]
{"s_setprio 1" if KPRIO == 'io' else ""}
''')
if 'early' in OPT: stamp(6)
E(f'''s_waitcnt vmcnt({2*NUP + CL + TC})''')
if 'early' in OPT: stamp(8)
E('L_ckgen:')
stamp(2)
a, b, c, d = 10, 11, 12, 13
E(f'''v_mul_f32 v{a}, {f32(L2E_HI)}, v{vLA}
v_mul_f32 v{b}, {f32(L2E_HI)}, v{vDT}
v_rndne_f32 v{c}, v{a}
v_rndne_f32 v{d}, v{b}
v_sub_f32 v{a}, v{a}, v{c}
v_sub_f32 v{b}, v{b}, v{d}
v_fmac_f32 v{a}, {f32(L2E_LO)}, v{vLA}
v_fmac_f32 v{b}, {f32(L2E_LO)}, v{vDT}
v_exp_f32 v{a}, v{a}
v_exp_f32 v{b}, v{b}
v_cvt_i32_f32 v{c}, v{c}
v_cvt_i32_f32 v{d}, v{d}
v_ldexp_f32 v{a}, v{a}, v{c}
v_ldexp_f32 v{b}, v{b}, v{d}
s_lshl_b32 s{sT1}, s{sIO}, 8
s_mul_i32 s{sT2}, s{sCH}, {LOB}
v_cvt_pk_bf16_f32 v{a}, v{a}, v{b}
s_add_u32 m0, s{sT2}, s{sT1}
v_and_b32 v{vDT}, 0xffff0000, v{a}
v_lshlrev_b32 v{a}, 16, v{a}
s_mul_i32 s{sT2}, s{sCH}, {HIB}
{"s_waitcnt vmcnt(2)" if CL == 3 else ""}
v_mul_f32 v{a}, v{a}, v{vDT}
v_mul_f32 v{vAI}, v{vAI}, v{vDT}
s_add_u32 s{sT1}, s{sT1}, s{sT2}
v_mul_f32 v{vLA}, {f32(-L2E)}, v{a}
v_mul_f32 v{vAI}, {f32(0.15915494309189535)}, v{vAI}
s_add_u32 s{sT1}, s{sT1}, {HIX}
v_mul_f32 v{a}, {f32(8.0)}, v{vLA}
v_mul_f32 v{b}, {f32(8.0)}, v{vAI}
s_cmp_eq_u32 s{sIO}, 0''')
vW1, vW8, vW256 = 36, 38, 40
E(f'''v_exp_f32 v{a}, v{a}
v_fract_f32 v{b}, v{b}
v_exp_f32 v{c}, v{vLA}
v_fract_f32 v{d}, v{vAI}
v_cos_f32 v{vW8}, v{b}
v_sin_f32 v{vW8+1}, v{b}
v_cos_f32 v{vW1}, v{d}
v_sin_f32 v{vW1+1}, v{d}
v_add_f32 v{vDT}, v{vDT}, v{vDT}
v_mov_b32 v35, 0x3f80
v_pk_mul_f32 {vr(vW8,2)}, {vr(vW8,2)}, {vr(a,2)} op_sel:[0,0] op_sel_hi:[1,0]
v_pk_mul_f32 {vr(vW1,2)}, {vr(vW1,2)}, {vr(c,2)} op_sel:[0,0] op_sel_hi:[1,0]
ds_write_addtid_b32 v35 offset:0''')
if 'early' in OPT: stamp(9)
tmpc = [0]
pendw = []
nextp = [NUP]
def flushw():
    while pendw: E(pendw.pop(0))
def cmul(D, X, W):
    E(f'v_pk_mul_f32 {vr(D,2)}, {vr(X,2)}, {vr(W,2)} op_sel:[0,0] op_sel_hi:[0,1]')
    flushw()
    E(f'v_pk_fma_f32 {vr(D,2)}, {vr(X,2)}, {vr(W,2)}, {vr(D,2)} op_sel:[1,1,0] op_sel_hi:[1,0,1] neg_lo:[1,0,0]')
def put(X, off, neg):
    t = 32 + (tmpc[0] & 3)
    E(f'v_cvt_pk_bf16_f32 v{t}, v{X}, {"-" if neg else ""}v{X+1}')
    pendw.append(f'ds_write_addtid_b32 v{t} offset:{off}')
    tmpc[0] += 1
    if tmpc[0] == int(OPT.get('kdrop', 99)): E('s_setprio 0')
    if tmpc[0] == UPOS[0]:
        if CL: E('s_cbranch_scc1 L_cw1\ns_waitcnt vmcnt(0)\nL_cw1:\ns_waitcnt vmcnt(2)')
        E(f'v_pk_mul_f32 {vr(vCR,2)}, {vr(vCR,2)}, {vr(vDT,2)} op_sel:[0,0] op_sel_hi:[1,0]')
    while nextp[0] < 4 and UPOS[nextp[0]] == tmpc[0]:
        E(f's_cbranch_scc1 L_mid{nextp[0]}')
        uload(nextp[0])
        E(f'L_mid{nextp[0]}:')
        nextp[0] += 1
put(vW8, ROWB, False)
P0, P1 = 46, 48
cur = vW8
for i in range(2, 32):
    nxt = P0 if cur != P0 else P1
    cmul(nxt, cur, vW8)
    put(nxt, i*ROWB, False)
    cur = nxt
cmul(vW256, cur, vW8)
E(f's_mov_b32 m0, s{sT1}')
hoff = lambda row: HI0 - HIX + STOR[row]*ROWB
H = [50, 52, 54, 56, 58]
put(vCR, hoff(0), True)
cur = vCR
keep = {0: vCR}
for e in range(1, 9):
    nxt = H[e//2] if e % 2 == 0 else P0
    cmul(nxt, cur, vW1)
    put(nxt, hoff(e), True)
    cur = nxt
    if e % 2 == 0: keep[e] = nxt
for e, row in ((0, 13), (2, 14), (6, 16)):
    cmul(P0, keep[e], vW256)
    put(P0, hoff(row), True)
cur = keep[4]
for row in (15, 9, 18):
    nxt = P0 if cur != P0 else P1
    cmul(nxt, cur, vW256); put(nxt, hoff(row), True); cur = nxt
cur = keep[8]
for row in (17, 10, 19, 11, 20, 12, 21):
    nxt = P0 if cur != P0 else P1
    cmul(nxt, cur, vW256); put(nxt, hoff(row), True); cur = nxt
flushw()
NMID = nextp[0] - 1
stamp(3)
if 'early' in OPT: E('s_branch L_cdone')
E(f's_cbranch_scc0 L_cio1')
if STAMPS:
    for i_ in (5, 6, 8, 9, 14, 15): E(f's_mov_b64 s[{SB+2*i_}:{SB+2*i_+1}], 0')
m_begin = len(out)
def gread(s):
    r = GF + 8*(s % 8)
    E(f'ds_read_b128 {vr(r,4)}, v{vA} offset:{32*s}')
    E(f'ds_read_b128 {vr(r+4,4)}, v{vB} offset:{32*s}')
fill = [f's_lshl_b32 s{sT2}, s{sW}, 2', f's_add_u32 s{sT2}, s{sT2}, {SM0+FLG}', f'v_mov_b32 v{vFL}, s{sT2}', f'v_mov_b32 v8, {SM0+FLG}',
        f'v_lshlrev_b32 v10, 4, v{LANE}', f'v_add_u32 v10, {BND}, v10']
def dofill(n):
    while n > 0 and fill:
        x = fill.pop(0); E(x)
        if x.startswith('v_'): n -= 1
BPOS = int(OPT.get('bpos', 5))
def gemm_all(extra):
    q = []
    def rd(s_): gread(s_); q.append(s_)
    GD = int(OPT.get('gd', 3))
    for s_ in range(GD): rd(s_)
    dofill(99)
    nxt = GD; nx = 0
    for s_ in range(16):
        E(f's_waitcnt lgkmcnt({2*(len(q) - 1 - q.index(s_)) + nx})')
        r = GF + 8*(s_ % 8)
        E(f'v_mfma_f32_32x32x16_bf16 {vr(GA,16)}, {vr(r,4)}, {vr(r+4,4)}, {vr(GA,16)}')
        if s_ == BPOS:
            stamp(13); E('s_barrier'); stamp(4)
        while nxt < 16 and nxt - 8 <= s_ and (nxt < 8 or s_ >= BPOS) and nxt - s_ <= GD:
            rd(nxt); nxt += 1
        if s_ == 15 - GD: nx = extra()
E(f'''s_waitcnt vmcnt(0) lgkmcnt(1)
s_mov_b64 exec, 1
v_add_f32 v{GA}, -1.0, v{GA}
s_mov_b64 exec, -1''')

def aread(q):
    base, off = (vCA, (1024-64*q)//4) if q >= 9 else (vCA2, (512-64*q)//4)
    return [f'ds_read2_b32 {vr(AF+4*q,2)}, v{base} offset0:{off} offset1:{off+1}',
            f'ds_read2_b32 {vr(AF+4*q+2,2)}, v{base} offset0:{off+2} offset1:{off+3}']
def tzread(i):
    if i < 6: off = (i//3)*64 + 16*(i % 3)
    else: off = (F4-F3)//4 + 16*(i-6)
    return [f'ds_read2_b32 {vr(TZ+4*i,2)}, v{vTZ} offset0:{off+3} offset1:{off+2}',
            f'ds_read2_b32 {vr(TZ+4*i+2,2)}, v{vTZ} offset0:{off+1} offset1:{off}']
def boff(k):
    kind, tp, q = k
    return UPAD + 512*tp - 32 - (16 if kind == 'Z' else 64*q)
band = lambda i: vr(vBAND+4*i, 4)
stream = []
def mk(tile, a_, b_, dst=None): stream.append(('m', tile, a_, b_, dst))
def parts(tp):
    G0 = ('B', tp, 0) if tp == 0 else ('G', tp, 0); Z = ('Z', tp, 0); B0 = ('B', tp, 0)
    gen = []; cv = []
    if tp <= 5:
        gen += [(8, Z, 0), (12, Z, 1)]
        if tp <= 3: gen += [(20, Z, 3)]
        gen += [(0, G0, 0), (4, G0, 1)]
        if tp <= 3: gen += [(16, G0, 2)]
        for base in ((8, 0, 16) if tp <= 3 else (8, 0)):
            for jj in range(4): cv.append(f'v_cvt_pk_bf16_f32 v{DT+base+jj}, v{DT+base+jj}, v{DT+base+4+jj}')
    own = [(tp, ('A', q), ('B', tp, q)) for q in range(8)]
    nxt = [(tp+1, ('A', q+8), ('B', tp, q)) for q in range(8)] if tp < 7 else []
    lead = []
    if tp <= 5: lead.append((tp+2, ('A', 16), G0))
    if tp <= 3: lead.append((tp+4, band(4), G0))
    far = []
    if tp <= 5:
        for dl in range(3):
            if tp + 2 + dl <= 7:
                far.append((tp+2+dl, vr(DT+8, 4), ('T', 3+dl)))
                far.append((tp+2+dl, vr(DT, 4), ('T', dl)))
    if tp <= 3:
        for dl in range(4):
            if tp + 4 + dl <= 7: far.append((tp+4+dl, vr(DT+16, 4), ('T', 6+dl)))
    return gen, cv, own, nxt, lead, far
PT = [parts(tp) for tp in range(8)]
def with_cv(seq, cv, start, per=1):
    for i, t_ in enumerate(seq):
        mk(*t_)
        if i >= start:
            for _ in range(per):
                if cv: stream.append(('v', cv.pop(0)))
    assert not cv
gen, cv = PT[0][0], PT[0][1]
gm = [(None, k, band(bi), DT+dof) for dof, k, bi in gen]
D = lambda r: f'v{GA+r}'
x2v = [f'v_cvt_pk_bf16_f32 v11, {D(10)}, 0', f'v_cvt_pk_bf16_f32 v14, 0, {D(8)}', f'v_cvt_pk_bf16_f32 v15, {D(8)}, {D(8)}',
       f'v_readlane_b32 s{sT2}, v11, 63', f'v_cvt_pk_bf16_f32 v1, {D(9)}, {D(10)}', f'v_cvt_pk_bf16_f32 v2, {D(11)}, {D(12)}',
       f'v_subrev_u32 v{vKX}, 8, v{vKX}']
mk4 = [f'v_mul_u32_u24 v{vBAND+16+jj}, s{sT2}, v{vBAND+16+jj}' for jj in range(4)]
NG0 = int(OPT.get('ng0', 3))
with_cv(gm[:NG0], [], 0)
stream.append(('expand',))
with_cv(gm[NG0:], x2v, 0, 7 if NG0 > 4 else 4 if NG0 > 3 else 3)
stream.append(('x2ok',))
if OPT.get('t0', '0') == '1':
    with_cv(PT[0][2], mk4, 2)
    stream.append(('mark', 0))
    seq = []
    for q in range(8): seq += [PT[1][2][q], PT[0][3][q], PT[1][3][q]]
    with_cv(seq[:23], cv, 0)
    stream.append(('mark', 1))
    with_cv(seq[23:] + [(t_, a_, ('C', 0, 0)) for t_, a_, b_ in PT[0][4]], [], 0)
else:
    seq = []
    for q in range(8):
        seq += [PT[0][2][q], PT[1][2][q], PT[0][3][q], PT[1][3][q]]
    with_cv(seq[:30], mk4 + cv, 4)
    del cv[:]
    stream.append(('mark', 0))
    with_cv(seq[30:31], [], 0)
    stream.append(('mark', 1))
    with_cv(seq[31:] + PT[0][4], [], 0)
for tp in range(2, 8):
    src = tp - 2
    if src >= 1:
        for dof, k, bi in PT[src][0]: mk(None, k, band(bi), DT+dof)
    seq = PT[src][4] if src >= 1 else []
    ownf = tp == 7 or str(tp) in OPT.get('ownf', '6')
    for q in range(8):
        if not ownf: seq = seq + [PT[tp][3][q]]
        seq = seq + [PT[tp][2][q]]
    cvs = PT[src][1]
    if ownf: with_cv(seq, cvs[:8], len(seq) - 4, 2); stream.append(('v', 's_nop 0'))
    else: with_cv(seq, cvs, 5)
    far = PT[src][5]
    with_cv(far[:2], [], 0)
    stream.append(('mark', tp))
    if ownf: with_cv(PT[tp][3], cvs[8:], 0)
    with_cv(far[2:], [], 0)
    if tp == 7: stream.append(('part',))
order = []
first, last = {}, {}
for i, it in enumerate(stream):
    if it[0] == 'm':
        for k in (it[2], it[3]):
            if isinstance(k, tuple):
                if k not in first: first[k] = i; order.append(k)
                last[k] = i
slot, free_after = {}, {}
slotfree = {(s_+6) % NSLOT: -1 for s_ in range(NSLOT)}
for k in order:
    if k[0] in 'BZGC':
        s_ = min(slotfree, key=lambda z: slotfree[z])
        slot[k] = s_; free_after[k] = slotfree[s_]; assert free_after[k] < first[k]
        del slotfree[s_]; slotfree[s_] = last[k]
def reg(k):
    if not isinstance(k, tuple): return k
    if k[0] == 'A': return vr(AF+4*k[1], 4)
    if k[0] == 'T': return vr(TZ+4*k[1], 4)
    return vr(BR+4*slot[k], 4)
issued = []; done_upto = [0]; lastop = {}; fin = []
checked = {0}; FOFF = 0
T_ = [0]; TL = [0]
LAT = int(OPT.get('lat', 110)); BACK = int(OPT.get('back', 20)); LOOK = int(OPT.get('look', 14))
state = {'exp': False, 'x2': False}
ops = []
def addop(key, txt, cost, pre='', post=''): ops.append(dict(key=key, txt=txt, cost=cost, pre=pre, post=post))
seenW = False
for k in order:
    if (k == ('A', 16) or k[0] == 'T') and not seenW:
        seenW = True
        addop(('X', 0), f'ds_write_b64 v{vKX}, v[14:15] offset:{KX}', 24, 's_mov_b32 exec_lo, 0\ns_mov_b32 exec_hi, 0x80000000', 's_mov_b64 exec, -1')
        addop(('X', 1), f'ds_write_b32 v{vKX}, v15 offset:{KY+4}', 16, 's_mov_b32 exec_lo, 0\ns_mov_b32 exec_hi, 0x80000000', 's_mov_b64 exec, -1')
        addop(('X', 2), f'ds_write_b32 v{vK3}, v1 offset:{F3+64}', 16)
        addop(('X', 3), f'ds_write_b16 v{vK4}, v2 offset:{F4+64}', 16)
        addop(('X', 4), f'ds_write_b16_d16_hi v{vK4}, v2 offset:{F4+64+128}', 16)
        for n_ in range(5): first[('X', n_)] = first[k]
    if k[0] == 'A':
        for x in aread(k[1]): addop(k, x, 16)
    elif k[0] == 'T':
        for x in tzread(k[1]): addop(k, x, 16)
    else: addop(k, f'ds_read_b128 {reg(k)}, v{vCB} offset:{boff(k)}', 16)
def wait_for(idx):
    if idx < done_upto[0]: return
    T_[0] = max(T_[0], fin[idx])
    while idx + 1 < len(issued) and fin[idx+1] + 16 <= T_[0]: idx += 1
    n = len(issued) - 1 - idx
    assert n <= 15
    E(f's_waitcnt lgkmcnt({n})')
    done_upto[0] = idx + 1
def lds(txt, key=None, cost=16):
    if len(issued) - done_upto[0] >= 15: wait_for(done_upto[0])
    E(txt); issued.append(key)
    TL[0] = max(TL[0], T_[0]) + cost
    fin.append(TL[0] + LAT)
    T_[0] = max(T_[0] + 4, TL[0] - 64)
    if key is not None: lastop[key] = len(issued) - 1
def ready(o, i, pos):
    k = o['key']
    if k[0] == 'X': return state['x2']
    if k == ('A', 16) or k[0] == 'T': return not any(p['key'][0] == 'X' for p in ops)
    if k[0] == 'A': return state['exp']
    if free_after[k] > i: return False
    return k[1]//2 in checked or first[k] <= i + LOOK
def doop(o):
    ops.remove(o)
    k = o['key']
    if k[0] in 'BZGC' and k[1]//2 not in checked:
        ph = k[1]//2
        if ('F', ph) not in lastop: lds('ds_read_b128 v[4:7], v8 offset:16', ('F', ph), 8)
        wait_for(lastop[('F', ph)])
        E(f'''v_min_u32 v4, v4, v5
        v_min3_u32 v4, v4, v6, v7
        v_cmp_le_u32 vcc, {ph+FOFF}, v4
        s_cbranch_vccz L_uc{ph}
        L_uc{ph}d:''')
        T_[0] += 24
        checked.add(ph)
    if len(issued) - done_upto[0] >= 15: wait_for(done_upto[0])
    if o['pre']: E(o['pre'])
    lds(o['txt'], k, o['cost'])
    if o['post']: E(o['post'])
def feed(i, until, maxn=99):
    un = [o['key'] for o in ops if o['key'][0] in 'BZGC' and o['key'][1]//2 not in checked]
    if un and ('F', un[0][1]//2) not in lastop and first[un[0]] <= i + LOOK + 10:
        lds('ds_read_b128 v[4:7], v8 offset:16', ('F', un[0][1]//2), 8); maxn -= 1
    while maxn > 0 and TL[0] - until < BACK:
        if len(issued) - done_upto[0] >= 14:
            if fin[done_upto[0] + 2] > T_[0]: break
            wait_for(done_upto[0])
        cand = [o for n_, o in enumerate(ops[:40]) if ready(o, i, n_)]
        if not cand: break
        doop(cand[0]); maxn -= 1
def expand():
    global NOPX
    NOPX = max(0, 11 - (ninstr() - gemm_end - ('mid' in OPT)))
    t = TZ
    E(f'''s_nop NOPX
    v_cvt_pk_bf16_f32 v{t}, {D(7)}, {D(6)}
    v_cvt_pk_bf16_f32 v{t+1}, {D(5)}, {D(4)}
    v_cvt_pk_bf16_f32 v{t+2}, {D(3)}, {D(2)}
    v_cvt_pk_bf16_f32 v{t+3}, {D(1)}, {D(0)}''')
    T_[0] = max(T_[0], 80) + 20
    lds(f'ds_write_b128 v{vKX}, {vr(t,4)} offset:{KX}', None, 52)
    E(f'''v_cvt_pk_bf16_f32 v{t+4}, {D(8)}, {D(7)}
    v_cvt_pk_bf16_f32 v{t+5}, {D(6)}, {D(5)}
    v_cvt_pk_bf16_f32 v{t+6}, {D(4)}, {D(3)}
    v_cvt_pk_bf16_f32 v{t+7}, {D(2)}, {D(1)}
    v_cvt_pk_bf16_f32 v{t+10}, {D(0)}, 0''')
    T_[0] += 24
    lds(f'ds_write_b128 v{vKX}, {vr(t+4,4)} offset:{KY}', None, 52)
    E('s_mov_b64 exec, 1')
    lds(f'ds_write_b32 v{vKX}, v{t+10} offset:{KY+16}', None, 16)
    E('s_mov_b64 exec, -1')
    state['exp'] = True
    for o in [o_ for o_ in ops if o_['key'][0] == 'A'][:4]: doop(o)
    if 'mid' in OPT: stamp(5)
vPA = 10
accinit = set()
ypend = []
NPRE = int(OPT.get('npre', 3))
def first_b():
    T_[0] = -32*GD_; TL[0] = -32
    if not BEARLY:
        for bi in (0, 1, 3, 2): lds(f'ds_read_b128 {band(bi)}, v10 offset:{1024*bi}', ('W', bi))
    for o in [o_ for o_ in ops if o_['key'][0] in 'BZGC'][:NPRE]: doop(o)
    T_[0] = max(T_[0], 0)
    return len(issued)
GD_ = int(OPT.get('gd', 3))
gemm_all(first_b)
assert not fill, fill
gemm_end = ninstr()
if 'mid' in OPT: stamp(8)
TM = [32]
for i, it in enumerate(stream):
    n0 = ninstr()
    if it[0] == 'mark':
        tp = it[1]
        if 'mid' in OPT and tp in (1, 2, 3, 5): stamp({1: 6, 2: 9, 3: 14, 5: 15}[tp])
        if 'sim' in OPT: sys.stderr.write(f'T{tp} at {TM[0]}\n')
        ypend.append([8, ([('ds', f'ds_write_b128 v{vY}, {vr(ACC+4*tp,4)} offset:{4*YG*tp}', 52), ('v', f'v_mov_b32 v13, {tp+1}', 0)] if OPT.get('ysp', '0') == '0' else
             [('ds', f'ds_write_b64 v{vY}, {vr(ACC+4*tp,2)} offset:{4*YG*tp}', 24), ('v', f'v_mov_b32 v13, {tp+1}', 0), ('ds', f'ds_write_b64 v{vY}, {vr(ACC+4*tp+2,2)} offset:{4*YG*tp+8}', 24), ('v', 's_nop 0', 0)]) + [('ds', f'ds_write_b32 v{vFL}, v13', 16)]])
        continue
    if it[0] == 'expand': expand()
    elif it[0] == 'x2ok': state['x2'] = True
    elif it[0] == 'part':
        E(f'''s_cmp_lg_u32 s{sW}, 0
        s_cbranch_scc1 L_nopart
        s_setprio 3
        s_lshl_b32 s{sT2}, s{sI}, 10
        s_add_u32 s{sT2}, s{sT2}, {WS_PART}
        v_min_u32 v{vPA}, 55, v{LANE}
        v_lshl_add_u32 v{vPA}, v{vPA}, 4, s{sT2}
        global_load_dwordx4 {vr(TZ+24,4)}, v{vPA}, {sp(sWS)} sc1
        L_nopart:''')
        n0 = ninstr() - 2
    elif it[0] == 'v':
        E(it[1]); T_[0] = max(T_[0], TM[0] - 8) + 4
    else:
        _, tile, a_, b_, dst = it
        keys = [k for k in (a_, b_) if isinstance(k, tuple)]
        for k in keys:
            while any(o['key'] == k for o in ops):
                o = [o for n_, o in enumerate(ops) if ready(o, i-1, n_)][0]
                doop(o)
        need = [lastop[k] for k in keys]
        if need and max(need) >= done_upto[0]:
            if fin[max(need)] > max(T_[0], TM[0]): feed(i-1, fin[max(need)] - LAT + 48)
            wait_for(max(need))
        if tile is None: E(f'v_mfma_f32_16x16x32_bf16 {vr(dst,4)}, {reg(a_)}, {reg(b_)}, 0')
        else:
            c_ = vr(ACC+4*tile, 4) if tile in accinit else '0'
            accinit.add(tile)
            E(f'v_mfma_f32_16x16x32_bf16 {vr(ACC+4*tile,4)}, {reg(a_)}, {reg(b_)}, {c_}')
        T_[0] = max(T_[0], TM[0]); TM[0] = T_[0] + 16; T_[0] += 4
        for p in ypend: p[0] -= ninstr() - n0
        n0 = ninstr()
        if ypend and ypend[0][0] <= 0:
            for _ in range(2):
                if ypend[0][1]:
                    kind, txt, cost = ypend[0][1].pop(0)
                    if kind == 'ds': lds(txt, None, cost)
                    else: E(txt)
            if not ypend[0][1]: ypend.pop(0)
        else:
            feed(i, T_[0], 2)
    for p in ypend: p[0] -= ninstr() - n0
order = ops
assert not order
for p in ypend:
    if p[0] > 0: E(f's_nop {p[0]-1}')
    n0 = ninstr()
    for kind, txt, cost in p[1]: E(txt)
    for p2 in ypend: p2[0] -= max(p[0], 0) + ninstr() - n0
def isize(x):
    x = x.strip()
    if x.endswith(':'): return 0
    op = x.split(' ')[0]
    if op in ('s_waitcnt', 's_nop', 's_barrier', 's_cbranch_vccz', 's_cbranch_scc1', 'v_min_u32', 'v_and_b32', 'v_mov_b32', 's_mov_b64', 'v_subrev_u32', 'v_cmp_le_u32'): return 4
    return 8
if 'strip' in OPT:
    import re as _re
    pat = _re.compile(OPT['strip'])
    body = out[m_begin:]; del out[m_begin:]
    out += [x for x in body if not pat.search(x)]
NHOP = 0
if ICW:
    body = out[m_begin:]; del out[m_begin:]
    acc = ICW
    for j, x in enumerate(body):
        out.append(x); acc += isize(x)
        nxt_ok = 'v_mfma' in x or acc >= ICW - 8
        if acc >= ICW - 28 and nxt_ok and not x.endswith(':'):
            out.append(f'L_hop{NHOP}:'); out.append(f'    s_cbranch_execz L_hop{NHOP+1}'); NHOP += 1; acc = 4
    out.append(f'L_hop{NHOP}:'); out.append('    s_cbranch_execz L_hopend')
stamp(7)
if 'twice' in OPT: E(f's_waitcnt lgkmcnt(0) vmcnt(0)\nv_add_u32 v{vKX}, 8, v{vKX}\ns_add_u32 s7, s7, 1\ns_cmp_eq_u32 s7, 1\ns_cbranch_scc1 L_twice')
if 'noepi' in OPT or 'nofin' in OPT: E('s_branch L_cdone')
E(f'''s_cmp_lg_u32 s{sW}, 0
s_cbranch_scc1 L_cdone''')
HM = OPT.get('hm', '0') == '1'
fr_begin = len(out)
PL = TZ + 24
E(f'''s_mov_b32 s{sSPIN}, {SPIN_MAX}
L_mb:
ds_read_b128 v[4:7], v8 offset:32
s_waitcnt lgkmcnt(0)
v_cmp_ne_u32 vcc, 0, v7
s_cbranch_vccnz L_mbd''')
spin_check('L_mb')
E(f'''L_mbd:
v_readfirstlane_b32 s{sKEY}, v4
v_readfirstlane_b32 s{sTAG}, v5
v_mov_b32 v20, 0
v_mov_b32 v21, 0
v_mov_b32 v22, 0
v_mov_b32 v23, 0
s_andn2_b32 s{sIDX}, 2047, s{sKEY}
s_lshl_b32 s{sT0}, s{sIDX}, 1
s_add_u32 s{sT0}, s{sT0}, {UB0+UPAD}
v_mov_b32 v11, s{sT0}''')
for k in range(4):
    E(f'ds_read_u16_d16_hi v{20+k}, v11 offset:{k*UCB}')
E(f'''s_lshr_b32 s{sT2}, s{sIDX}, 8
s_lshl_b32 s{sT0}, s{sT2}, 2
s_bfe_u32 s{sT1}, s{sIDX}, 0x20002
s_add_u32 s{sT0}, s{sT0}, s{sT1}
s_mul_i32 s{sT0}, s{sT0}, {YG}
s_and_b32 s{sT1}, s{sIDX}, 0xf0
s_add_u32 s{sT0}, s{sT0}, s{sT1}
s_and_b32 s{sT1}, s{sIDX}, 3
s_lshl_b32 s{sT1}, s{sT1}, 2
s_add_u32 s{sT0}, s{sT0}, s{sT1}
v_mov_b32 v12, s{sT0}
s_add_u32 s{sTH}, s{sT2}, 1
s_bitcmp1_b32 s{sIDX}, 0
s_cselect_b32 s{sT0}, 0, 16
v_lshlrev_b32 v24, s{sT0}, v6
v_and_b32 v24, 0xffff0000, v24
s_and_b32 s{sT0}, s{sKEY}, 0xffff0000
s_xor_b32 s{sT1}, s{sT0}, 0xffff0000
s_xor_b32 s{sT0}, s{sT0}, 0x80000000
s_bitcmp1_b32 s{sKEY}, 31
s_cselect_b32 s{sT0}, s{sT0}, s{sT1}
v_mov_b32 v25, {f32(-L2E)}
v_mul_f32 v25, s{sT0}, v25
v_exp_f32 v25, v25
v_sub_f32 v38, 1.0, v24
v_add_f32 v25, 1.0, v25
v_rcp_f32 v25, v25
v_cvt_pk_bf16_f32 v38, 0, v38
v_cvt_pk_bf16_f32 v25, 0, v25
v_mul_f32 v25, v25, v38''')
wait_flags(sTH, 'f', 8, 4, 0)
for k in range(4):
    E(f'ds_read_b32 v{16+k}, v12 offset:{k*LOB}')
E(f'''s_mov_b32 s{sT0}, 0x0c0c0400
s_mov_b32 s{sT1}, 0x04000c0c
s_mov_b32 s{sSPIN}, {SPIN_MAX}
s_branch L_pp1
L_pp:
global_load_dwordx4 {vr(PL,4)}, v{vPA}, {sp(sWS)} sc1
L_pp1:
s_waitcnt vmcnt(0)
v_perm_b32 v26, v{PL+1}, v{PL}, s{sT0}
v_perm_b32 v27, v{PL+3}, v{PL+2}, s{sT1}
v_or_b32 v26, v26, v27
v_cmp_ne_u32 vcc, s{sTAG}, v26
s_cbranch_vccz L_ppd''')
spin_check('L_pp')
E('L_ppd:')
stamp(12)
E(f'''s_mov_b32 exec_lo, 0
s_mov_b32 exec_hi, 0xff000000
v_mov_b32 v{PL}, 0
v_mov_b32 v{PL+1}, 0
v_mov_b32 v{PL+2}, 0
v_mov_b32 v{PL+3}, 0
s_mov_b64 exec, -1
s_waitcnt lgkmcnt(0)
v_fmac_f32 v20, v16, v24
v_permlane32_swap_b32 v{PL}, v{PL+2}
v_fmac_f32 v21, v17, v24
v_permlane32_swap_b32 v{PL+1}, v{PL+3}
v_add_f32 v{PL}, v{PL}, v{PL+2}
v_add_f32 v{PL+1}, v{PL+1}, v{PL+3}
v_fmac_f32 v22, v18, v24
v_fmac_f32 v23, v19, v24
v_permlane16_swap_b32 v{PL}, v{PL+1}
s_lshl_b32 s{sT0}, s{sIDX}, 10
v_add_f32 v{PL}, v{PL}, v{PL+1}
s_lshl_b32 s{sT1}, s{sI}, 3
s_add_u32 s{sT0}, s{sT0}, s{sT1}''')
for sh in (8, 4, 2, 1):
    E(f'''v_add_f32_dpp v{PL}, v{PL}, v{PL} row_ror:{sh} {DPPF}''')
    if sh != 1: E('s_nop 1')
E(f'''v_cvt_pk_bf16_f32 v{PL}, 0, v{PL}
v_mov_b32 v10, s{sT0}
v_readlane_b32 s{sT0}, v{PL}, 0
v_readlane_b32 s{sT1}, v{PL}, 16
v_readlane_b32 s{sT2}, v{PL}, 32
v_readlane_b32 s{sT3}, v{PL}, 48
v_fmac_f32 v20, s{sT0}, v25
v_fmac_f32 v21, s{sT1}, v25
v_fmac_f32 v22, s{sT2}, v25
v_fmac_f32 v23, s{sT3}, v25
v_cvt_pk_bf16_f32 v16, v20, v21
v_cvt_pk_bf16_f32 v17, v22, v23
s_mov_b64 exec, 1
global_store_dwordx2 v10, v[16:17], {sp(sOUT)}
s_branch L_cdone''')
if HM: islands('hm', fr_begin)
for ph in ((1, 2, 3) if ST0 == 'pre' else (0, 1, 2, 3)):
    E(f'''L_uc{ph}:
    s_mov_b32 s{sTH}, {ph+FOFF}
    v_add_u32 v12, 16, v8''')
    if 'mid' not in OPT: stamp({1: 5, 2: 8, 3: 14}[ph])
    wait_flags(sTH, f'u{ph}', 12, 4, 0)
    if 'mid' not in OPT: stamp({1: 6, 2: 9, 3: 15}[ph])
    E(f's_branch L_uc{ph}d')
vP, vG, vGF, vYV = 80, 72, 112, 32
def stage(p):
    for k in range(4):
        E(f'v_perm_b32 v{40+k}, v{vX+4*p+2+(k>>1)}, v{vX+4*p+(k>>1)}, s{sP1 if k & 1 else sP0}')
    for k in range(4):
        E(f'ds_write_b32 v64, v{40+k} offset:{k*UCB+1024*p}')
def unpack(p):
    for j in range(2):
        for h in range(2):
            E(f'''v_lshlrev_b32 v{vP+8*p+4*j+2*h}, 16, v{vX+4*p+2*j+h}
            v_and_b32 v{vP+8*p+4*j+2*h+1}, 0xffff0000, v{vX+4*p+2*j+h}''')
def pollA():
    E(f'''global_load_dwordx2 v[12:13], v70, {sp(sDBG)} sc1
    global_load_dwordx2 {vr(vG,2)}, v66, {sp(sWS)} offset:-4096 sc1''')
def pollB():
    E(f'global_load_dwordx2 v[52:53], v65, {sp(sWS)} sc1')
    for p in range(1, 4):
        E(f'global_load_dwordx2 {vr(vG+2*p,2)}, v66, {sp(sWS)} offset:{-4096+2048*p} sc1')
def epi(p, masked):
    wait_flags(sTH, f'e{p}', 69, 48, SLEEP if p < 3 else int(OPT.get('sl3', 0)))
    if p == 0: stamp(8)
    if p == 3: stamp(14)
    for k in range(4):
        E(f'ds_read_b64 {vr(vYV+2*k,2)}, v67 offset:{k*LOB+8*YG*p}')
    E(f's_add_u32 s{sTH}, s{sTH}, 2\ns_waitcnt lgkmcnt(0)')
    for j in range(2):
        r = vP + 8*p + 4*j
        for k in range(4):
            E(f'v_fmac_f32 v{r+k}, v{vYV+2*k+j}, v{vGF+2*p+j}')
        E(f'''v_cvt_pk_bf16_f32 v{r}, v{r}, v{r+1}
        v_cvt_pk_bf16_f32 v{r+1}, v{r+2}, v{r+3}''')
        if masked: E(f's_cmp_eq_u32 s{sJ}, {2*p+j}\ns_cselect_b64 exec, {sp(sEX)}, -1')
        E(f'global_store_dwordx2 v{vXO+p}, {vr(r,2)}, {sp(sOUT)} offset:{1024*j}')
        if masked: E('s_mov_b64 exec, -1')
def gun(p):
    E(f'''v_lshlrev_b32 v{vGF+2*p}, 16, v{vG+2*p}
    v_and_b32 v{vGF+2*p+1}, 0xffff0000, v{vG+2*p}''')
E('L_cio1:')
if ST0 == 'pre':
    E(f's_waitcnt vmcnt({2*NMID})')
    stamp(13)
    stage(0)
E('s_waitcnt lgkmcnt(0)\ns_barrier')
stamp(4)
if ST0 != 'pre':
    E(f's_waitcnt vmcnt({2*NMID})')
    stamp(13)
    stage(0)
    E(f'v_mov_b32 v44, 1\nds_write_b32 v68, v44')
if KPRIO == 'io': E('s_setprio 0')
E(f'''v_lshlrev_b32 v65, 3, v{LANE}
v_add_u32 v65, {WS_KEYS}, v65
v_and_b32 v66, 255, v0
v_lshlrev_b32 v66, 3, v66
v_add_u32 v66, {WS_G+4096}, v66
v_mov_b32 v70, 0
v_bfe_u32 v12, v0, 1, 2
v_bfe_u32 v13, v0, 7, 1
v_lshl_add_u32 v12, v13, 2, v12
v_mul_u32_u24 v67, {YG}, v12
v_bfe_u32 v12, v0, 3, 4
v_lshl_add_u32 v67, v12, 4, v67
v_and_b32 v12, 1, v0
v_lshl_add_u32 v67, v12, 3, v67
s_lshl_b32 s{sT2}, s{sW}, 2
s_add_u32 s{sT2}, s{sT2}, {SM0+FLG}
v_mov_b32 v68, s{sT2}
v_mov_b32 v69, {SM0+FLG}
''')
assert NMID in (1, 2)
U3E = OPT.get('u3e', '0') == '1'
def stagef(p):
    stage(p)
    E(f'v_mov_b32 v44, {p+FOFF}\nds_write_b32 v68, v44')
if U3E: pollA(); uload(3)
E(f's_waitcnt vmcnt({2*(NMID-1) + 4*U3E})')
stagef(1)
stamp(12)
if not U3E:
    pollA()
    if NMID == 1: uload(2)
    uload(3)
unpack(0); unpack(1)
E(f'''s_lshr_b32 s{sTH}, s{sCH}, 1
s_add_u32 s{sTH}, s{sTH}, 1
s_waitcnt vmcnt({2*NMID})''')
LST = OPT.get('lst', '0') == '1'
if not LST: stagef(2)
stamp(15)
E('s_waitcnt vmcnt(2)')
if PRIO == 'io': E('s_setprio 2')
E(f'''s_mov_b32 s{sS3}, 0
v_cmp_eq_u32 vcc, 1, v13
v_cmp_eq_u32 {sp(sM0)}, v12, v{vG+1}
s_and_b64 vcc, vcc, {sp(sM0)}
s_cmp_eq_u64 vcc, -1
s_cbranch_scc1 L_pad
s_waitcnt vmcnt(0)''')
if LST: stage(2)
stagef(3)
E(f'''s_mov_b32 s{sS3}, 1
s_mov_b32 s{sSPIN}, {SPIN_MAX}
L_pa:''')
pollA()
E(f'''s_waitcnt vmcnt(0)
v_cmp_eq_u32 vcc, 1, v13
v_cmp_eq_u32 {sp(sM0)}, v12, v{vG+1}
s_and_b64 vcc, vcc, {sp(sM0)}
s_cmp_eq_u64 vcc, -1
s_cbranch_scc1 L_pad''')
spin_check('L_pa')
E('L_pad:')
stamp(6)
pollB()
gun(0)
E(f'v_readfirstlane_b32 s{sTAG}, v12')
epi(0, False)
E(f'''s_cmp_lg_u32 s{sS3}, 0
s_cbranch_scc1 L_s3d''')
if LST: stagef(2)
E('s_waitcnt vmcnt(6)')
stagef(3)
E('L_s3d:')
stamp(5)
unpack(2); unpack(3)
E(f'''s_mov_b32 s{sSPIN}, {SPIN_MAX}
s_waitcnt vmcnt(2)
s_branch L_pb1
L_pb:''')
pollB()
E(f'''s_waitcnt vmcnt(0)
L_pb1:
v_cmp_eq_u32 vcc, s{sTAG}, v53
v_cmp_eq_u32 {sp(sM0)}, s{sTAG}, v{vG+3}
v_cmp_eq_u32 {sp(sM1)}, s{sTAG}, v{vG+5}
s_and_b64 vcc, vcc, {sp(sM0)}
v_cmp_eq_u32 {sp(sM0)}, s{sTAG}, v{vG+7}
s_and_b64 vcc, vcc, {sp(sM1)}
s_and_b64 vcc, vcc, {sp(sM0)}
s_cmp_eq_u64 vcc, -1
s_cbranch_scc1 L_pbd''')
spin_check('L_pb')
E('L_pbd:')
stamp(9)
key_reduce(52)
for p in range(1, 4): gun(p)
E(f'''s_andn2_b32 s{sIDX}, 2047, s{sKEY}
s_lshr_b32 s{sT0}, s{sIDX}, 1
s_mov_b64 {sp(sEX)}, -1
s_bitset0_b64 {sp(sEX)}, s{sT0}
s_lshr_b32 s{sT2}, s{sIDX}, 9
s_lshl_b32 s{sJ}, s{sT2}, 1
s_and_b32 s{sT1}, s{sIDX}, 1
s_add_u32 s{sJ}, s{sJ}, s{sT1}
s_bfe_u32 s{sT1}, s{sIDX}, 0x20007
s_cmp_eq_u32 s{sT1}, s{sCH}
s_cselect_b32 s{sJ}, s{sJ}, 8
s_cbranch_scc0 L_nomb
s_and_b32 s{sT0}, s{sT0}, 63
v_readlane_b32 s{sT1}, v{vG}, s{sT0}
v_readlane_b32 s{sT3}, v{vG+2}, s{sT0}
v_readlane_b32 s{sT4}, v{vG+4}, s{sT0}
v_readlane_b32 s{sT5}, v{vG+6}, s{sT0}
s_bitcmp1_b32 s{sT2}, 0
s_cselect_b32 s{sT1}, s{sT3}, s{sT1}
s_cselect_b32 s{sT4}, s{sT5}, s{sT4}
s_bitcmp1_b32 s{sT2}, 1
s_cselect_b32 s{sT1}, s{sT4}, s{sT1}
v_mov_b32 v44, s{sKEY}
v_mov_b32 v45, s{sTAG}
v_mov_b32 v46, s{sT1}
v_mov_b32 v47, 1
; a routed row of the first phase was stored like any other: its store must be complete before the final one is allowed
s_cmp_lg_u32 s{sT2}, 0
s_cbranch_scc1 L_mb1
s_waitcnt vmcnt(0)
L_mb1:
ds_write_b128 v69, v[44:47] offset:32
L_nomb:''')
stamp(7)
HE = OPT.get('he', '0') == '1'
epi(1, True)
if HM: hop('hm', sCH, 4)
if HE: hop('he', sCH, 4)
e_begin = len(out)
epi(2, True); epi(3, True)
if HE: islands('he', e_begin)
E('L_cdone:')
stamp(10)
if STAMPS:
    E('s_waitcnt vmcnt(0)')
    stamp(11)
write_stamps()
E('s_endpgm')

A_T = 0
E(f"""L_rg:
{"v_mov_b32 v37, 128" if 'r' in TW else ""}
{"global_load_dword v37, v37, " + sp(sWS) if 'r' in TW else ""}
s_lshl_b32 s{sT0}, s{sI}, 2
s_lshl_b32 s{sT1}, s{sW}, 8
s_add_u32 s{sT0}, s{sT0}, s{sT1}
s_lshl_b32 s{sT1}, s{sT0}, 2
s_add_u32 s{sT1}, s{sT1}, {WS_G}
v_mov_b32 v49, s{sT1}
s_sub_u32 s{sT0}, 2047, s{sT0}
v_bfe_u32 v6, v{LANE}, 3, 1
v_lshrrev_b32 v5, 5, v{LANE}
v_lshl_add_u32 v5, v6, 1, v5
s_lshl_b32 s{sT1}, s{sW}, 4
v_lshl_add_u32 v6, v5, 2, s{sT1}
v_sub_u32 v5, s{sT0}, v5
v_and_b32 v48, 15, v{LANE}
v_lshlrev_b32 v48, 3, v48
s_lshl_b32 s{sT0}, s{sI}, 3
s_add_u32 s{sT0}, s{sT0}, {WS_KEYS}
v_mov_b32 v45, s{sT0}
s_cmp_ge_u32 s{sI}, 32
s_cselect_b32 s{sT1}, 8, 0
s_sub_u32 s{sT0}, s{sI}, s{sT1}
s_lshl_b32 s{sT0}, s{sT0}, 3
s_add_u32 s{sT0}, s{sT0}, s{sW}
s_lshl_b32 s{sT0}, s{sT0}, 12
v_and_b32 v47, 31, v{LANE}
v_lshl_add_u32 v47, v47, 7, s{sT0}
s_lshr_b32 s{sT1}, s{sT0}, 18
s_lshl_b32 s{sT1}, s{sT1}, 9
s_bfe_u32 s{sT0}, s{sT0}, 0x5000d
s_mul_i32 s{sT0}, s{sT0}, {16*3584}
s_add_u32 s{sT0}, s{sT0}, s{sT1}
s_add_u32 s{sT0}, s{sT0}, 384
v_and_b32 v39, 15, v{LANE}
v_mul_u32_u24 v39, 3584, v39
v_add_u32 v39, s{sT0}, v39
s_bitcmp1_b32 s{sW}, 0
s_cselect_b64 {sp(sT4)}, {sp(sWU)}, {sp(sWG)}
{"global_load_dword v38, v39, " + sp(sT4) if RS == '1' else ""}
s_waitcnt lgkmcnt(0)
s_add_u32 s{sTAG}, s{sTAG}, {TAGINC}
v_mov_b32 v61, s{sTAG}
v_mov_b32 v41, s{sTAG}
v_mov_b32 v43, s{sTAG}
s_add_u32 s{sT0}, s{sI}, s{sW}
s_cmp_lg_u32 s{sT0}, 0
s_cbranch_scc1 L_anotag
v_mov_b32 v7, 0
v_mov_b32 v62, s{sTAG}
v_mov_b32 v63, 1
s_mov_b64 exec, 1
s_waitcnt vmcnt(0)
global_store_dwordx2 v7, v[62:63], {sp(sDBG)} sc1
s_mov_b64 exec, -1
s_branch L_rg1
L_anotag:
s_waitcnt vmcnt({2 + (RS == '1') + ('r' in TW)})""")
def dots(rows):
    for k in range(4):
        for r in rows:
            E(f'v_dot2_f32_bf16 v{50+r}, v{vXA+4*r+k}, v{vWRv+k}, {"0" if k == 0 else "v%d" % (50+r)}')
            E(f'v_dot2_f32_bf16 v{54+r}, v{vXA+4*r+k}, v{vGWv+k}, {"0" if k == 0 else "v%d" % (54+r)}')
E('L_rg1:')
dots((0, 1))
E(f's_cbranch_scc0 L_rg2\ns_waitcnt vmcnt({int(RS == "1") + ("r" in TW)})\nL_rg2:')
if RS == '2': E(f'global_load_dword v38, v39, {sp(sT4)}')
stamp(2)
if RW == 'pre': E(f'global_load_dword v46, v47, {sp(sWD)}')
dots((2, 3))
E(f"""v_permlane32_swap_b32 v50, v51
v_permlane32_swap_b32 v54, v55
v_add_f32 v50, v50, v51
v_permlane32_swap_b32 v52, v53
v_add_f32 v54, v54, v55
v_permlane32_swap_b32 v56, v57
v_add_f32 v52, v52, v53
v_add_f32 v56, v56, v57
v_permlane16_swap_b32 v50, v54
s_nop 0
v_permlane16_swap_b32 v52, v56
v_add_f32 v50, v50, v54
v_add_f32 v52, v52, v56
s_nop 0
v_add_f32_dpp v51, v50, v50 row_ror:8 row_mask:0xf bank_mask:0x3
v_add_f32_dpp v53, v52, v52 row_ror:8 row_mask:0xf bank_mask:0xf
s_nop 1
v_mov_b32_dpp v51, v53 quad_perm:[0,1,2,3] row_mask:0xf bank_mask:0xc
s_nop 1
v_add_f32_dpp v51, v51, v51 row_half_mirror {DPPF}
s_nop 1
v_add_f32_dpp v51, v51, v51 quad_perm:[1,0,3,2] {DPPF}
s_nop 1
v_add_f32_dpp v50, v51, v51 quad_perm:[2,3,0,1] {DPPF}
v_cvt_pk_bf16_f32 v50, 0, v50
v_mul_f32 v52, {f32(-L2E)}, v50
v_exp_f32 v52, v52
v_ashrrev_i32 v51, 31, v50
v_add_f32 v52, 1.0, v52
v_rcp_f32 v52, v52
v_or_b32 v51, 0x80000000, v51
v_xor_b32 v50, v50, v51
v_mov_b32 v53, v52
v_and_b32 v50, 0xffff0000, v50
v_or_b32 v50, v50, v5
v_permlane32_swap_b32 v52, v53
s_mov_b32 exec_lo, 0x00000101
s_mov_b32 exec_hi, 0x00000101
ds_write_b32 v6, v50 offset:{A_T}
s_mov_b64 exec, -1
v_cvt_pk_bf16_f32 v40, v52, v53
s_nop 1
v_mov_b32_dpp v42, v40 row_ror:8 {DPPF}
s_mov_b64 exec, 0x10000
global_store_dwordx4 v49, v[40:43], {sp(sWS)} sc1
s_mov_b64 exec, -1""")
stamp(5)
E("""s_waitcnt lgkmcnt(0)
s_barrier""")
stamp(3)
E(f"""s_cmp_lg_u32 s{sW}, 0
s_cbranch_scc1 L_rg3
ds_read_b64 v[52:53], v48 offset:{A_T}
s_waitcnt lgkmcnt(0)
v_max_u32 v60, v52, v53
s_nop 1""")
for sh in (8, 4, 2, 1):
    E(f'v_max_u32_dpp v60, v60, v60 row_ror:{sh} {DPPF}')
    if sh != 1: E('s_nop 1')
E(f"""s_mov_b64 exec, 1
global_store_dwordx2 v45, v[60:61], {sp(sWS)} sc1""")
stamp(4)
E('s_mov_b64 exec, -1\nL_rg3:')
if RW == 'post': E(f's_lshr_b32 s{sT0}, s{sI}, 3\ns_cmp_eq_u32 s{sT0}, 3\ns_cbranch_scc1 L_adone\ns_barrier\n{"global_load_dword v38, v39, " + sp(sT4) if RS == "3" else ""}\nglobal_load_dword v46, v47, {sp(sWD)}\ns_waitcnt vmcnt(0)')
if RW == 'pre': E('s_waitcnt vmcnt(0)')
E('s_branch L_adone')
F_IDX, F_PART, F_X = 98304, 98304 + 64, 98304 + 64 + 2048
XL = OPT.get('xl', '1') == '1'
LD = OPT.get('ld', '1') == '1'
vFG, vFU, vFD, vBT = 64, 80, 96, 112
FLEAD = int(OPT.get('flead', 0))
OPP = OPT.get('opp', '1') == '1'
DLATE = OPT.get('dlate', '2') != '0'
D2 = OPT.get('dlate', '2') == '2'
FBAR = OPT.get('fbar', '1') == '1'
EPOLL = OPT.get('epoll', '0') == '1'
E(f"""L_ffn:
; slices live on seven of the eight column groups (group 3 has the slowest output path): fi = 8*g' + k
s_cmp_eq_u32 s{sT0}, 3
s_cbranch_scc1 L_adone
s_lshr_b32 s{sFI}, s{sI}, 1
s_cmp_gt_u32 s{sT0}, 3
s_cselect_b32 s{sT1}, 8, 0
s_sub_u32 s{sFI}, s{sFI}, s{sT1}
v_lshrrev_b32 v8, 2, v{LANE}
v_and_b32 v9, 3, v{LANE}
v_mul_u32_u24 v16, 3584, v8
v_lshl_add_u32 v16, v9, 4, v16
s_mul_i32 s{sT0}, s{sW}, {64*3584}
s_lshl_b32 s{sT1}, s{sFI}, 6
s_add_u32 s{sT0}, s{sT0}, s{sT1}
s_mul_i32 s{sT3}, s{sW}, 12288
s_and_b32 s{sT1}, s{sFI}, {1 if OPP else 0}
s_mul_i32 s{sT2}, s{sT1}, {32*3584}
s_lshl_b32 s{sT1}, s{sT1}, 11
s_add_u32 s{sT4}, s{sT3}, s{sT1}
s_xor_b32 s{sT5}, s{sT4}, 2048
s_add_u32 s{sT1}, s{sT0}, s{sT2}
s_sub_u32 s{sT0}, s{sT0}, s{sT2}
s_add_u32 s{sT0}, s{sT0}, {32*3584}
v_add_u32 v18, s{sT0}, v16
v_add_u32 v16, s{sT1}, v16
v_add_u32 v17, {16*3584}, v16
v_add_u32 v19, {16*3584}, v18
s_waitcnt lgkmcnt(0)""")
stamp(1)
def gu(j):
    sb = sT4 if j < 2 else sT5
    E(f"""s_add_u32 m0, s{sb}, {1024*(j & 1)}
    s_nop 0
    global_load_lds_dwordx4 v{16+j}, {sp(sWG)}{NTW}
    s_add_u32 m0, s{sb}, {4096+1024*(j & 1)}
    s_nop 0
    global_load_lds_dwordx4 v{16+j}, {sp(sWU)}{NTW}""")
FTHR = OPT.get('fthr', '0')
if 'f' in TW:
    E(f'''s_cmp_lt_u32 s{sW}, 4
    s_cbranch_scc1 L_fnt
    s_cmp_eq_u32 s{sW}, 5
    s_cselect_b64 {sp(sM0)}, {sp(sWS)}, {sp(sX)}
    s_cmp_eq_u32 s{sW}, 6
    s_cselect_b64 {sp(sM0)}, {sp(sDBG)}, {sp(sM0)}
    s_cmp_eq_u32 s{sW}, 7
    s_cselect_b64 {sp(sM0)}, {sp(sWD)}, {sp(sM0)}
    v_mov_b32 v4, 128
    global_load_dword v4, v4, {sp(sM0)}
    L_fnt:''')
if FTHR == '2': E(f'v_mov_b32 v4, 0\nglobal_load_dword v4, v4, {sp(sWG)}\ns_waitcnt vmcnt(0)')
if FTHR == '3': E(f'v_mov_b32 v4, 0\nglobal_load_dword v4, v4, {sp(sWG)}\ns_waitcnt vmcnt(0)\nv_mov_b32 v4, 0\nglobal_load_dword v4, v4, {sp(sWU)}\ns_waitcnt vmcnt(0)')
if FTHR == '4':
    E(f'''s_cmp_lg_u32 s{sW}, 0
    s_cbranch_scc1 L_ftd
    v_mov_b32 v4, 0
    s_mov_b32 s{sSPIN}, {SPIN_MAX}
    L_ft:
    global_load_dwordx2 v[6:7], v4, {sp(sDBG)} sc1
    s_waitcnt vmcnt(0)
    v_cmp_eq_u32 vcc, 1, v7
    s_cbranch_vccnz L_ftd''')
    spin_check('L_ft')
    E('L_ftd:\ns_barrier')
stamp(3)
gu(0)
if FTHR == '1': E('s_waitcnt vmcnt(0)\ns_barrier')
gu(1)
E(f"""v_lshrrev_b32 v44, 3, v{LANE}
v_and_b32 v21, 7, v{LANE}
v_lshlrev_b32 v21, 4, v21
v_lshl_add_u32 v44, v44, 10, v21
s_lshl_b32 s{sT0}, s{sFI}, 15
s_lshl_b32 s{sT1}, s{sW}, 7
s_add_u32 s{sT0}, s{sT0}, s{sT1}
v_add_u32 v44, s{sT0}, v44
v_lshlrev_b32 v22, 3, v{LANE}
v_add_u32 v22, {WS_KEYS}, v22
v_mov_b32 v23, 0""")
def down():
    E(f's_add_u32 m0, s{sT3}, 8192\ns_nop 0')
    for j in range(4):
        E(f'global_load_lds_dwordx4 v44, {sp(sWD)}{NTD}')
        if j < 3: E('s_add_u32 m0, m0, 1024\nv_add_u32 v44, 8192, v44')
if RW == 'no' and not DLATE: down()
if FBAR: E('s_barrier')
stamp(2)
gu(2); gu(3)
if RW != 'no' and not DLATE:
    E('s_barrier')
    down()
if EPOLL: E(f"""s_cmp_lg_u32 s{sW}, {FLEAD}
s_cbranch_scc1 L_fnp
global_load_dwordx2 v[16:17], v22, {sp(sWS)} sc1
global_load_dwordx2 v[18:19], v23, {sp(sDBG)} sc1
L_fnp:""")
stamp(5)
E(f"""v_and_b32 v5, 15, v{LANE}
v_lshrrev_b32 v6, 4, v{LANE}
v_bfe_u32 v14, v{LANE}, 2, 2
v_lshlrev_b32 v14, 6, v14
v_lshl_add_u32 v14, v6, 9, v14
v_lshl_add_u32 v14, v9, 3, v14
v_add_u32 v14, s{sT3}, v14
v_lshlrev_b32 v8, 7, v8
v_lshl_add_u32 v8, v9, 3, v8
v_add_u32 v8, s{sT3}, v8
s_lshl_b32 s{sT1}, s{sW}, 7
{'s_add_u32 s%d, s%d, %d' % (sT1, sT1, F_X) if XL else ''}
v_lshl_add_u32 v10, v6, 4, s{sT1}
v_lshrrev_b32 v12, 2, v5
v_lshlrev_b32 v13, 6, v12
v_lshl_add_u32 v13, v6, 4, v13
s_lshl_b32 s{sT1}, s{sW}, 8
s_add_u32 s{sT1}, s{sT1}, {F_PART}
v_add_u32 v11, s{sT1}, v13
v_lshl_add_u32 v13, v9, 2, v13
v_add_u32 v7, {F_PART}, v13
v_lshl_add_u32 v13, v12, 2, v6
s_lshl_b32 s{sT1}, s{sW}, 14
s_lshl_b32 s{sT2}, s{sFI}, 4
s_add_u32 s{sT1}, s{sT1}, s{sT2}
s_add_u32 s{sT1}, s{sT1}, {WS_PART}
v_lshl_add_u32 v13, v13, 10, s{sT1}
v_mov_b32 v21, {F_IDX}""")
for r in range(16): E(f'v_mov_b32 v{vBT+r}, 0')
HF = OPT.get('hf', '0') == '1'
if HF: hop('hf', sW, 8)
f_begin = len(out)
E('s_waitcnt vmcnt(0)')
if D2 and XL and LD:
    E(f's_cmp_eq_u32 s{sW}, {FLEAD}\ns_cbranch_scc1 L_fnd')
    down()
    E('L_fnd:')
elif D2: down()
for s_ in range(2):
    for ct in range(2):
        for h in range(2):
            E(f'ds_read_b64_tr_b16 {vr(vFG+8*s_+4*ct+2*h,2)}, v14 offset:{2048*s_+256*h+32*ct}')
            E(f'ds_read_b64_tr_b16 {vr(vFU+8*s_+4*ct+2*h,2)}, v14 offset:{4096+2048*s_+256*h+32*ct}')
    E('s_waitcnt lgkmcnt(4)')
def dtr():
    for t in range(4):
        for hh in range(2):
            E(f'ds_read_b64_tr_b16 {vr(vFD+4*t+2*hh,2)}, v8 offset:{8192+2048*hh+32*t}')
if not DLATE: dtr()
stamp(6)
E(f"""s_cmp_lg_u32 s{sW}, {FLEAD}
s_cbranch_scc1 L_anopoll
s_mov_b32 s{sSPIN}, {SPIN_MAX}
{'s_branch L_pk1' if EPOLL else ''}
L_pk:
global_load_dwordx2 v[16:17], v22, {sp(sWS)} sc1
global_load_dwordx2 v[18:19], v23, {sp(sDBG)} sc1
s_waitcnt vmcnt(0)
L_pk1:
v_cmp_eq_u32 vcc, v18, v17
v_cmp_eq_u32 {sp(sM0)}, 1, v19
s_and_b64 vcc, vcc, {sp(sM0)}
s_cmp_eq_u64 vcc, -1
s_cbranch_scc1 L_pkd""")
spin_check('L_pk')
E('L_pkd:')
key_reduce(16)
if XL:
    E(f"""s_andn2_b32 s{sIDX}, 2047, s{sKEY}
    s_lshl_b32 s{sT0}, s{sIDX}, 10
    s_mov_b32 m0, {F_X}
    v_lshl_add_u32 v45, v{LANE}, 4, s{sT0}
    global_load_lds_dwordx4 v45, {sp(sX)}""")
    if LD: down()
E(f"""v_mov_b32 v16, s{sKEY}
ds_write_b64 v21, v[16:17]
{('s_waitcnt vmcnt(4)' if LD else 's_waitcnt vmcnt(0)') if XL else ''}
L_anopoll:
s_waitcnt lgkmcnt(0)
s_barrier""")
stamp(7)
if XL:
    E(f"""ds_read_b128 v[16:19], v10
    ds_read_b128 v[40:43], v10 offset:64
    ds_read_b32 v128, v21 offset:4
    s_waitcnt lgkmcnt(1)""")
    stamp(13)
else:
    E(f"""ds_read_b64 v[130:131], v21
s_waitcnt lgkmcnt(0)
v_not_b32 v16, v130
v_and_b32 v16, 2047, v16
v_lshl_add_u32 v10, v16, 10, v10
global_load_dwordx4 v[16:19], v10, {sp(sX)}
global_load_dwordx4 v[20:23], v10, {sp(sX)} offset:64
v_mov_b32 v128, v131
v_lshrrev_b32 v129, 8, v131
v_lshrrev_b32 v130, 16, v131
v_lshrrev_b32 v131, 24, v131""")
    if DLATE and not D2: down()
    stamp(12)
    if D2:
        E('s_waitcnt vmcnt(2)')
        dtr()
    E(f's_waitcnt vmcnt({4 if DLATE and not D2 else 0})')
    stamp(13)
for q in range(4):
    fb = (vFU if q >> 1 else vFG) + 4*(q & 1)
    for s_ in range(2):
        E(f'v_mfma_f32_16x16x32_bf16 {vr(24+4*q,4)}, {vr(fb+8*s_,4)}, {vr(40 if XL and s_ else 16+4*s_,4)}, {"0" if s_ == 0 else vr(24+4*q,4)}')
if XL: E('s_waitcnt lgkmcnt(0)\nv_lshrrev_b32 v129, 8, v128\nv_lshrrev_b32 v130, 16, v128\nv_lshrrev_b32 v131, 24, v128')
else: E('s_nop 3')
for q in range(1, 4):
    for r in range(4):
        E(f'v_mov_b32_dpp v{24+r}, v{24+4*q+r} quad_perm:[0,1,2,3] row_mask:0xf bank_mask:{hex(1 << q)}')
E("""s_mov_b32 exec_lo, 0x11111111
s_mov_b32 exec_hi, 0x11111111
ds_write_b128 v11, v[24:27]
s_mov_b64 exec, -1""")
DPL = OPT.get('dpl', '1')
if XL and DPL == '0':
    E('s_waitcnt vmcnt(0)')
    dtr()
    E('s_waitcnt lgkmcnt(8)')
else: E('s_waitcnt lgkmcnt(0)')
stamp(14)
E('s_barrier')
stamp(8)
E(f"""ds_read2st64_b32 v[16:17], v7 offset0:0 offset1:1
ds_read2st64_b32 v[18:19], v7 offset0:2 offset1:3
ds_read2st64_b32 v[20:21], v7 offset0:4 offset1:5
ds_read2st64_b32 v[22:23], v7 offset0:6 offset1:7
s_mov_b32 s{sT0}, 0xff
s_waitcnt lgkmcnt(2)
v_pk_add_f32 v[16:17], v[16:17], v[18:19]
s_waitcnt lgkmcnt(0)
v_pk_add_f32 v[20:21], v[20:21], v[22:23]
v_pk_add_f32 v[16:17], v[16:17], v[20:21]
v_add_f32 v16, v16, v17""")
if (DLATE and not D2) or (XL and DPL == '1'):
    E('s_waitcnt vmcnt(0)')
    dtr()
E(f"""v_cvt_pk_bf16_f32 v18, 0, v16
v_mul_f32 v16, {f32(-L2E)}, v18
v_exp_f32 v16, v16
v_mov_b32_dpp v19, v18 row_ror:8 {DPPF}
v_add_f32 v16, 1.0, v16
v_rcp_f32 v16, v16
s_nop 0
v_mul_f32 v16, v16, v18
v_cvt_pk_bf16_f32 v16, 0, v16
v_mul_f32 v16, v16, v19""")
if XL and DPL == '2':
    E('s_waitcnt vmcnt(0)')
    dtr()
E(f"""s_nop 1
v_mov_b32_dpp v17, v16 quad_perm:[1,1,3,3] {DPPF}
v_cvt_pk_bf16_f32 v16, v16, v17
s_nop 1""")
def bt(t):
    for jj in range(4):
        E(f'v_mov_b32_dpp v{vBT+4*t+jj}, v16 row_newbcast:{2*jj} row_mask:0xf bank_mask:{hex(1 << t)}')
bt(0)
if DLATE: E('s_waitcnt lgkmcnt(0)')
for t in range(4):
    if t < 3: bt(t+1)
    else: E('s_nop 0')
    E(f'v_mfma_f32_16x16x32_bf16 v[32:35], {vr(vFD+4*t,4)}, {vr(vBT+4*t,4)}, {"0" if t == 0 else "v[32:35]"}')
E("""s_mov_b32 exec_lo, 0x11111111
s_mov_b32 exec_hi, 0x11111111
s_nop 5""")
for t in range(4):
    E(f'v_bfi_b32 v{32+t}, s{sT0}, v{128+t}, v{32+t}')
E(f'global_store_dwordx4 v13, v[32:35], {sp(sWS)} sc1')
stamp(9)
E(f'''s_add_u32 s{sT0}, s{sFI}, s{sW}
s_cmp_lg_u32 s{sT0}, 0
s_cbranch_scc1 L_adone
s_mov_b64 exec, 1
v_mov_b32 v23, 0
global_store_dword v23, v128, {sp(sWS)} offset:{WS_EPOCH} sc1''')
if 'fwb' in OPT:
    E(f'''s_add_u32 s{sT0}, s{sSLOT}, s{sW}
    s_cmp_lg_u32 s{sT0}, 0
    s_cbranch_scc1 L_adone
    {"s_waitcnt vmcnt(0)" if OPT['fwb'] == '2' else ""}
    buffer_wbl2 sc1''')
if HF: islands('hf', f_begin)
E('L_adone:')
stamp(10)
if STAMPS:
    E('s_waitcnt vmcnt(0)')
    stamp(11)
write_stamps()
E('L_end:')
E('s_endpgm')
out.append(f'''.section .rodata,"a"
.p2align 6
.amdhsa_kernel {KN}_kernel
  .amdhsa_next_free_vgpr {NVGPR}
  .amdhsa_next_free_sgpr 96
  .amdhsa_accum_offset {(NVGPR+3)//4*4}
  .amdhsa_group_segment_fixed_size 0
  .amdhsa_kernarg_size 128
  .amdhsa_user_sgpr_count 2
  .amdhsa_user_sgpr_kernarg_segment_ptr 1
  .amdhsa_system_sgpr_workgroup_id_x 1
.end_amdhsa_kernel''')
txt = _re2.sub(r'@(\w+)@(\d+)@(\d+)@', lambda m: f'L_{m.group(1)}{int(m.group(2))*SUBS[m.group(1)]//int(m.group(3))}', '\n'.join(out))
print(txt.replace('NOPX', str(NOPX)).replace('HOPQ1', f'L_hop{NHOP//4}').replace('HOPQ2', f'L_hop{NHOP//2}').replace('HOPQ3', f'L_hop{3*NHOP//4}'))
```

```python
import sys, struct
from asmlib import KN, STAMP_OFF
OPT = dict(a.split('=') if '=' in a else (a, '1') for a in sys.argv[1:])
STAMPS = 'stamps' in OPT
NTP = ' nt' if OPT.get('ntp', '0') == '1' else ''
NTX = ' nt' if OPT.get('ntx', '0') == '1' else ''
PRIO = OPT.get('prio', 'io')
SLEEP = int(OPT.get('sleep', 1))
UPOS = [int(x) for x in OPT.get('upos', '8,23,41,99').split(',')]
WMODE = OPT.get('wmode', 'warm')
XWARM = OPT.get('xwarm', '1') == '1'
AHEAD = int(OPT.get('ahead', 2))
YG = 320
PC = OPT.get('pc', '1') == '1'
PM = int(OPT.get('pm', 2176 if PC else 0))
PT_ = OPT.get('pt', '')
TW = OPT.get('tw', 'n')
NTW = ' nt' if OPT.get('ntw', '0') == '1' else ''
NTD = ' nt' if OPT.get('ntd', '0') == '1' else ''
CL = int(OPT.get('cl', 2))
BEARLY = False
WWM = OPT.get('ww', '0')
RS = OPT.get('rs', '2')
WW = WWM != '0'
RW = OPT.get('rw', 'post')
ICW = int(OPT.get('icw', 0))
ICWHO = OPT.get('icwho', 'io')

out = []
def E(s):
    for ln in s.strip('\n').split('\n'):
        ln = ln.strip()
        if ln: out.append(('    ' + ln) if not ln.endswith(':') else ln)
def f32(x): return '0x%08x' % struct.unpack('<I', struct.pack('<f', x))[0]
def vr(b, n): return f'v[{b}:{b+n-1}]'
def ninstr(): return sum(1 for x in out if not x.endswith(':'))

WS_EPOCH, WS_KEYS, WS_G, WS_PART = 0, 4096, 8192, 32768
TAGINC = 0x9E3779B1
SPIN_MAX = 1 << 20
ROWB = 528
LOB = 32*ROWB
HI0 = 4*LOB
NHI = 22
HIB = NHI*ROWB
UB0 = HI0 + 4*HIB
UCB, UPAD = 4608, 480
SM0 = UB0 + 4*UCB
SMB = 4096
KX, KY, F3, FLG = 0, 1216, 2336, 1120
FC2 = 225
HIX = 16384
BND = SM0 + 4*SMB
LOF = BND + 4*1024
LDS_BYTES = LOF + 64
LP = OPT.get('lp', '0') == '1'
XE = OPT.get('xe', '0') == '1'
LR0, LR1 = [int(x) for x in OPT.get('lr', '34,44').split(',')]
ST0 = OPT.get('st0', 'pre')
KPRIO = OPT.get('kprio', 'io')
GEMM1 = OPT.get('gemm1', '0') == '1'
sEX = 6
sX, sLA, sAI, sCR, sCI, sLDT, sDS = 8, 10, 12, 14, 16, 18, 20
sWR, sWG, sWU, sWD, sGW, sOUT, sDBG, sWS = 24, 26, 28, 30, 32, 34, 36, 38
sW, sI, sT0, sT1 = 40, 41, 42, 43
sJ, sP0, sP1, sTH = 44, 45, 46, 47
sTAG, sKEY, sIDX, sSPIN = 48, 49, 50, 51
sM0, sM1 = 52, 54
sT2, sT3, sT4, sT5 = 56, 57, 58, 59
sSLOT, sWB, sFI, sIO = 60, 61, 62, 63
sCH = 61
sS3 = 62
SB = 64
NST = 16
def sp(b): return f's[{b}:{b+1}]'
def stamp(i):
    if STAMPS and ('lite' not in OPT or i in (0, 11)): E(f'{"s_memtime" if "cyc" in OPT else "s_memrealtime"} s[{SB+2*i}:{SB+2*i+1}]')
def write_stamps():
    if not STAMPS: return
    E(f'''s_waitcnt lgkmcnt(0) vmcnt(0)
    s_mov_b64 exec, 1
    s_lshl_b32 s{sT0}, s2, 3
    s_add_u32 s{sT0}, s{sT0}, s{sW}
    s_lshl_b32 s{sT0}, s{sT0}, 7
    s_add_u32 s{sT0}, s{sT0}, {STAMP_OFF}
    v_mov_b32 v0, s{sT0}''')
    for i in range(NST):
        E(f'''v_mov_b32 v2, s{SB+2*i}
        v_mov_b32 v3, s{SB+2*i+1}
        global_store_dwordx2 v0, v[2:3], {sp(sWS)} offset:{8*i}
        s_nop 1''')
def spin_check(lbl_loop):
    E(f'''s_sub_u32 s{sSPIN}, s{sSPIN}, 1
    s_cbranch_scc0 {lbl_loop}''')
L2E = 1.4426950408889634
L2E_HI = struct.unpack('<f', struct.pack('<I', 0x3FB8AA00))[0]
L2E_LO = L2E - L2E_HI
LANE = 3
DPPF = 'row_mask:0xf bank_mask:0xf'

def hop_call():
    E(f'''s_mov_b64 exec, 0
    s_cmp_eq_u32 s{sCH}, 0
    s_cbranch_scc1 L_hop0
    s_cmp_eq_u32 s{sCH}, 1
    s_cbranch_scc1 HOPQ1
    s_cmp_eq_u32 s{sCH}, 2
    s_cbranch_scc1 HOPQ2
    s_branch HOPQ3
    L_hopend:
    s_mov_b64 exec, -1''')
import re as _re2
def isz(x):
    x = x.strip()
    if x.endswith(':') or x.startswith(';'): return 0
    op = x.split(' ')[0]
    if op.startswith(('ds_', 'global_', 'v_mfma', 'v_pk_', 'v_cvt_pk', 'v_perm', 'v_bfi', 'v_readlane', 'v_lshl_', 'v_min3', 'v_or3', 's_mem', 'v_bfe', 'v_mad')) or 'dpp' in op: return 8
    if _re2.search(r'0x[0-9a-f]{3,}|, [0-9]{3,}', x) or (op.startswith('v_cmp') and 's[' in x): return 8
    return 4
SUBS = {}
def islands(name, begin, step=64):
    body = out[begin:]; del out[begin:]
    n = 0; acc = step
    for x in body:
        if acc + isz(x) > step - 4:
            out.append(f'L_{name}{n}:'); out.append(f'    s_cbranch_execz L_{name}{n+1}'); n += 1; acc = 4
        out.append(x); acc += isz(x)
    endi = len(out) - 1
    while not (out[endi].startswith(f'    s_cbranch_execz L_{name}{n}')): endi -= 1
    out[endi] = f'    s_cbranch_execz L_{name}end'
    SUBS[name] = n
def hop(name, sreg, ways):
    E('s_mov_b64 exec, 0')
    for k in range(ways - 1):
        E(f's_cmp_eq_u32 s{sreg}, {k}\ns_cbranch_scc1 @{name}@{k}@{ways}@')
    E(f's_branch @{name}@{ways-1}@{ways}@\nL_{name}end:\ns_mov_b64 exec, -1')
def key_reduce(vt):
    for sh in (8, 4, 2, 1):
        E(f'''v_max_u32_dpp v{vt}, v{vt}, v{vt} row_ror:{sh} {DPPF}
        s_nop 1''')
    E(f'''v_readlane_b32 s{sKEY}, v{vt}, 0
    v_readlane_b32 s{sT0}, v{vt}, 16
    v_readlane_b32 s{sT1}, v{vt}, 32
    v_readlane_b32 s{sT2}, v{vt}, 48
    s_max_u32 s{sKEY}, s{sKEY}, s{sT0}
    s_max_u32 s{sT1}, s{sT1}, s{sT2}
    s_max_u32 s{sKEY}, s{sKEY}, s{sT1}''')
def wait_word(name, vaddr, off, vt, sleep):
    E(f'''s_mov_b32 s{sSPIN}, {SPIN_MAX}
    L_wf_{name}:
    ds_read_b32 v{vt}, v{vaddr} offset:{off}
    s_waitcnt lgkmcnt(0)
    v_cmp_eq_u32 vcc, -1, v{vt}
    s_cbranch_vccnz L_wfd_{name}''')
    if sleep: E(f's_sleep {sleep}')
    spin_check(f'L_wf_{name}')
    E(f'L_wfd_{name}:')

hdr = open('cdna_kernels/' + KN + '.s.ref').read().split('; Override launch')[0]
out.append(hdr.rstrip('\n'))
out.append(f'; @launch grid=(256,1,1) block=(512,1,1) lds={LDS_BYTES}')
out.append(f'''.amdgcn_target "amdgcn-amd-amdhsa--gfx950"
.text
.globl {KN}_kernel
.p2align 8
.type {KN}_kernel,@function
{KN}_kernel:''')
stamp(0)
vXA, vWRv, vGWv = 16, 8, 12
vLA, vAI, vCR, vCI, vDT = 4, 5, 6, 7, 8
vX = 16
vXO = 60
AF, TZ, BR, DT, ACC, vBAND = 16, 84, 124, 172, 196, 228
NSLOT = 12
GF, GA = 84, ACC
vKX, vK3, vK4, vCA, vCA2, vCB, vY, vTZ = 248, 249, 250, 251, 252, 253, 254, 255
vA, vB, vFL = 14, 15, 9
NVGPR = 256
E(f'''s_load_dwordx16 s[8:23], s[0:1], 0
s_load_dwordx16 s[24:39], s[0:1], 64
s_cmp_ge_u32 s2, 256
s_cbranch_scc1 L_end
s_getpc_b64 s[4:5]
L_pc:
v_lshrrev_b32 v1, 6, v0
v_and_b32 v{LANE}, 63, v0
v_readfirstlane_b32 s{sW}, v1
s_add_u32 s{sT0}, s2, {int(OPT.get('rot', 2))}
s_and_b32 s{sT0}, s{sT0}, 7
s_lshr_b32 s{sSLOT}, s2, 4
s_lshl_b32 s{sI}, s{sT0}, 4
s_add_u32 s{sI}, s{sI}, s{sSLOT}
''')
PF = OPT.get('pf', 'f')
pfc = f'''s_cmp_gt_u32 s{sW}, 1
s_cbranch_scc1 L_nopf
v_lshlrev_b32 v2, 7, v0
v_min_u32 v2, L_end-L_pc, v2
global_load_dword v2, v2, s[4:5]
L_nopf:'''
if PF == 'all': E(pfc)
E(f'''s_bitcmp1_b32 s2, 3
s_cbranch_scc0 L_conv''')
if PF == 'aux': E(pfc)
if PF == 'f':
    E('s_bitcmp1_b32 s2, 4\ns_cbranch_scc1 L_r0')
    E(pfc)
    IW = OPT.get('iw', '1')
    if IW != '0':
        E(f'''s_cmp_lg_u32 s{sT0}, 3
        s_cbranch_scc1 L_ffn
        s_lshl_b32 s{sT1}, s{sSLOT}, {7 if IW == '1' else 6}
        v_lshrrev_b32 v4, {1 if IW == '1' else 2}, v0
        v_add_u32 v4, s{sT1}, v4
        v_lshlrev_b32 v4, 10, v4
        s_waitcnt lgkmcnt(0)
''')
        PP = OPT.get('pp', '0')
        if PP != '0':
            E(f'''s_lshl_b32 s{sT1}, s{sSLOT}, 13
            v_lshrrev_b32 v5, 2, v0
            v_lshl_add_u32 v5, v5, 7, s{sT1}
            global_load_dword v6, v5, {sp(sLA)}
            global_load_dword v7, v5, {sp(sAI)}''')
            if PP in '24': E(f'global_load_dword v8, v5, {sp(sCR)}\nglobal_load_dword v9, v5, {sp(sCI)}')
        if PP in '012': E(f'global_load_dword v4, v4, {sp(sX)} offset:384')
        E(f'''
        s_waitcnt vmcnt(0)
        s_branch L_adone
        L_r0:''')
    else: E('s_branch L_ffn\nL_r0:')
else: E('s_bitcmp1_b32 s2, 4\ns_cbranch_scc0 L_ffn')
E(f'''s_lshr_b32 s{sI}, s{sI}, 1
v_lshlrev_b32 v4, 4, v{LANE}
s_lshl_b32 s{sT2}, s{sI}, 12
s_lshl_b32 s{sT1}, s{sW}, 18
s_add_u32 s{sT2}, s{sT2}, s{sT1}
v_add_u32 v5, s{sT2}, v4
s_waitcnt lgkmcnt(0)''')
stamp(1)
E(f'''global_load_dwordx4 {vr(vWRv,4)}, v4, {sp(sWR)}
global_load_dwordx4 {vr(vGWv,4)}, v4, {sp(sGW)}
{"s_waitcnt vmcnt(0)" if OPT.get('rdel', '0') == '1' else ""}
{("s_cmp_lt_u32 s%d, 2" % sW + chr(10) + "s_cbranch_scc1 L_rnd" + chr(10) + "s_waitcnt vmcnt(0)" + chr(10) + "L_rnd:") if OPT.get('rdel', '0') == '2' else ""}
global_load_dwordx4 {vr(vXA,4)}, v5, {sp(sX)}{NTX}
global_load_dwordx4 {vr(vXA+4,4)}, v5, {sp(sX)} offset:1024{NTX}
global_load_dwordx4 {vr(vXA+8,4)}, v5, {sp(sX)} offset:2048{NTX}
global_load_dwordx4 {vr(vXA+12,4)}, v5, {sp(sX)} offset:3072{NTX}
s_load_dword s{sTAG}, {sp(sWS)}, {WS_EPOCH}
s_branch L_rg''')
E(f'''L_conv:
s_and_b32 s{sCH}, s{sW}, 3
s_lshr_b32 s{sIO}, s{sW}, 2
s_lshl_b32 s{sT2}, s{sI}, 3
s_lshl_b32 s{sT1}, s{sCH}, 1
s_add_u32 s{sT0}, s{sT2}, s{sT1}
v_mov_b32 v10, s{sT0}
s_add_u32 s{sT0}, s{sT0}, s{sIO}
s_lshl_b32 s{sT0}, s{sT0}, 7
v_lshl_add_u32 v1, v{LANE}, 1, s{sT0}
v_mov_b32 v{vLA}, 0
v_mov_b32 v{vAI}, 0
v_mov_b32 v{vCR}, 0
v_mov_b32 v{vCI}, 0
v_mov_b32 v{vDT}, 0''')
if XE: E(f'''s_lshl_b32 s{sT0}, s{sSLOT}, 7
s_lshl_b32 s{sT1}, s{sCH}, 5
s_add_u32 s{sT0}, s{sT0}, s{sT1}
v_and_or_b32 v12, v{LANE}, 31, s{sT0}
v_lshl_add_u32 v12, v12, 10, s{sT2}
s_cmp_lt_u32 s{sW}, 4''')
if 'early' in OPT: stamp(13)
E('s_waitcnt lgkmcnt(0)')
stamp(1)
E(f'''global_load_short_d16_hi v{vLA}, v1, {sp(sLA)}{NTP}
global_load_short_d16_hi v{vDT}, v10, {sp(sLDT)}
global_load_short_d16_hi v{vAI}, v1, {sp(sAI)}{NTP}
''')
CS = OPT.get('cs', '1') == '1'
cl_ = f'global_load_short_d16_hi v{vCR}, v1, {sp(sCR)}{NTP}\nglobal_load_short_d16_hi v{vCI}, v1, {sp(sCI)}{NTP}'
if not CS: E(cl_)
if XE: E(f's_cbranch_scc1 L_nxe\nglobal_load_dword v2, v12, {sp(sX)}\nL_nxe:')
if 'early' in OPT: stamp(12)
if 'e2' in OPT:
    for n_ in range(5):
        E(f's_waitcnt vmcnt({4-n_})'); stamp(2+n_)
    E('s_branch L_cdone')
E(f'''v_and_b32 v11, 255, v0
v_lshl_add_u32 v{vXO}, v11, 11, s{sT2}
v_add_u32 v{vXO+1}, {512*1024}, v{vXO}
v_add_u32 v{vXO+2}, {1024*1024}, v{vXO}
v_add_u32 v{vXO+3}, {1536*1024}, v{vXO}
''')
if LP: E(f'''s_lshl_b32 s{sT1}, s{sCH}, 2
s_add_u32 s{sT1}, s{sT1}, {LOF}
v_mov_b32 v44, s{sT1}
v_mov_b32 v45, 0
ds_write_b32 v44, v45
s_waitcnt lgkmcnt(0)''')
E(f'''s_barrier
{cl_ if CS else ''}
s_cmp_ge_u32 s{sW}, 4
s_cbranch_scc1 L_cio0''')
STOR = {0:0,1:1,2:2,3:3, 16:4,17:5,18:6,19:7,20:8,12:9, 15:10, 13:11,14:12,4:13,5:14,6:15,7:16,8:17,9:18,10:19,11:20,21:21}
assert sorted(STOR.values()) == list(range(22))
tab = [0,0,1,2,2,2,3,4,4,5,6,7,8,8,8,8]
hrow = []
for x in range(32):
    g_, r_ = (x >> 2) & 1, 4*(x >> 3) + (x & 3)
    hrow.append(STOR[13 + tab[r_] if g_ else min(r_, 12)])
planes = [sum(((hrow[x] >> b) & 1) << x for x in range(32)) for b in range(5)]
E(f'''s_lshl_b32 s{sT0}, s{sSLOT}, 7
s_lshl_b32 s{sT1}, s{sW}, 5
s_add_u32 s{sT0}, s{sT0}, s{sT1}
v_and_b32 v13, 31, v{LANE}
v_add_u32 v12, s{sT0}, v13
v_lshl_add_u32 v12, v12, 10, s{sT2}
v_mov_b32 v{GA}, 0''')

if 'early' in OPT: stamp(5)
XWARM = XWARM and not XE
if XWARM: E(f'global_load_dword v1, v12, {sp(sX)}')
if WW:
    E(f'''s_lshr_b32 s{sT0}, s{sI}, 4
    s_cmp_gt_u32 s{sT0}, 3
    s_cselect_b32 s{sT1}, 1, 0
    s_sub_u32 s{sT0}, s{sT0}, s{sT1}
    s_lshl_b32 s{sT0}, s{sT0}, 9
    s_lshl_b32 s{sT1}, s{sSLOT}, 1
    s_lshr_b32 s{sT3}, s{sW}, 1
    s_add_u32 s{sT1}, s{sT1}, s{sT3}
    s_mul_i32 s{sT1}, s{sT1}, {16*3584}
    s_add_u32 s{sT0}, s{sT0}, s{sT1}
    v_and_b32 v12, 15, v{LANE}
    v_mul_u32_u24 v12, 3584, v12''')
    if WWM == '2':
        E(f'''s_bitcmp1_b32 s{sW}, 1
        s_cselect_b32 s{sT1}, 48, 0
        v_and_b32 v9, s{sT1}, v{LANE}
        v_xor_b32 v9, 48, v9
        v_lshl_add_u32 v12, v9, 3, v12''')
    else: E(f's_add_u32 s{sT0}, s{sT0}, 384')
    E(f'''v_add_u32 v12, s{sT0}, v12
    s_bitcmp1_b32 s{sW}, 0
    s_cselect_b64 {sp(sT4)}, {sp(sWU)}, {sp(sWG)}
    global_load_dword v9, v12, {sp(sT4)}''')
E(f'''s_mov_b64 exec, 1
global_load_short_d16_hi v{GA}, v10, {sp(sDS)}
s_mov_b64 exec, -1''')
for r in range(1, 16): E(f'v_mov_b32 v{GA+r}, 0')
for b_ in range(4, -1, -1):
    E(f's_mov_b32 s{sT0}, {planes[b_]}')
    if b_ == 4: E(f'v_bfe_u32 v{vA}, s{sT0}, v13, 1')
    else: E(f'v_bfe_u32 v12, s{sT0}, v13, 1\nv_lshl_or_b32 v{vA}, v{vA}, 1, v12')
E(f'''v_lshrrev_b32 v12, 5, v{LANE}
s_mul_i32 s{sT0}, s{sW}, {HIB}
s_add_u32 s{sT0}, s{sT0}, {HI0}
s_mul_i32 s{sT1}, s{sW}, {LOB}
v_lshl_add_u32 v10, v12, 4, s{sT0}
v_lshl_add_u32 v11, v12, 4, s{sT1}
s_mov_b32 s{sT2}, {ROWB}
v_mad_u32_u24 v{vA}, v{vA}, s{sT2}, v10
v_mad_u32_u24 v{vB}, v13, s{sT2}, v11
s_lshl_b32 s{sT0}, s{sW}, 12
s_add_u32 s{sT0}, s{sT0}, {SM0}
s_add_u32 s{sT2}, s{sT0}, {2*(543-7)}
v_lshlrev_b32 v10, 4, v{LANE}
v_sub_u32 v{vKX}, s{sT2}, v10
v_and_b32 v10, 1, v{LANE}
v_lshrrev_b32 v11, 1, v{LANE}
v_lshlrev_b32 v11, 2, v11
s_add_u32 s{sT2}, s{sT0}, {F3+4*48}
v_sub_u32 v11, s{sT2}, v11
v_lshl_add_u32 v{vK3}, v10, 8, v11
v_lshlrev_b32 v{vK4}, 7, v10
v_sub_u32 v{vK4}, v11, v{vK4}
v_add_u32 v{vK4}, {4*(128+64-48)}, v{vK4}
v_and_b32 v11, 15, v{LANE}
v_and_b32 v12, 48, v{LANE}
v_mul_u32_u24 v13, {KY+2}, v10
v_lshl_add_u32 v13, v11, 1, v13
v_sub_u32 v{vCA}, v12, v13
s_add_u32 s{sT2}, s{sT0}, {KY+2*(544-16)-1024}
v_add_u32 v{vCA}, s{sT2}, v{vCA}
v_add_u32 v{vCA2}, 512, v{vCA}
s_mul_i32 s{sT2}, s{sW}, {UCB}
s_add_u32 s{sT2}, s{sT2}, {UB0}
v_lshl_add_u32 v{vCB}, v11, 5, v12
v_add_u32 v{vCB}, s{sT2}, v{vCB}
v_lshl_add_u32 v{vY}, v11, 4, s{sT1}
v_mad_u32_u24 v{vY}, v12, {YG//16}, v{vY}
s_add_u32 s{sT2}, s{sT0}, {F3+4*16}
v_mul_u32_u24 v{vTZ}, {4*FC2}, v10
v_add3_u32 v{vTZ}, v{vTZ}, v12, s{sT2}
v_lshlrev_b32 v13, 2, v11
v_sub_u32 v{vTZ}, v{vTZ}, v13
''')
r = vBAND + 16
E(f'''v_lshrrev_b32 v13, 1, v12
s_mov_b32 s{sT1}, {3 << 12}
v_lshlrev_b32 v{r}, v11, s{sT1}
v_bfe_u32 v{r}, v{r}, v13, 8
v_lshl_or_b32 v{r}, v{r}, 15, v{r}
v_lshrrev_b32 v{r+1}, 2, v{r}
v_lshrrev_b32 v{r+2}, 4, v{r}
v_lshrrev_b32 v{r+3}, 6, v{r}
s_mov_b32 s{sT1}, 0x10001
v_and_b32 v{r}, s{sT1}, v{r}
v_and_b32 v{r+1}, s{sT1}, v{r+1}
v_and_b32 v{r+2}, s{sT1}, v{r+2}
v_and_b32 v{r+3}, s{sT1}, v{r+3}''')
if 'early' in OPT: stamp(6)
E(f'''s_lshl_b32 s{sT1}, s{sIO}, 8
s_mul_i32 s{sT2}, s{sCH}, {LOB}
s_add_u32 m0, s{sT2}, s{sT1}
s_mul_i32 s{sT2}, s{sCH}, {HIB}
s_add_u32 s{sT1}, s{sT1}, s{sT2}
s_add_u32 s{sT1}, s{sT1}, {HIX}
s_cmp_eq_u32 s{sIO}, 0
s_waitcnt vmcnt({1 + XWARM + WW + CL})''')
if 'early' in OPT: stamp(8)
E(f'''s_branch L_ckgen
L_cio0:''')

if 'early' in OPT: stamp(5)
def uload(p):
    E(f'global_load_dwordx2 {vr(vX+4*p,2)}, v{vXO+p}, {sp(sX)}')
    E(f'global_load_dwordx2 {vr(vX+4*p+2,2)}, v{vXO+p}, {sp(sX)} offset:1024')
NUP = sum(1 for x in UPOS if x == 0)
for p in range(NUP): uload(p)
TC = 0
if 'c' in TW:
    TC = 1
    E(f'''s_cmp_eq_u32 s{sCH}, 1
    s_cselect_b64 {sp(sT4)}, {sp(sWS)}, {sp(sOUT)}
    s_cmp_eq_u32 s{sCH}, 2
    s_cselect_b64 {sp(sT4)}, {sp(sDBG)}, {sp(sT4)}
    s_cmp_eq_u32 s{sCH}, 3
    s_cselect_b32 s{sT0}, {2048*1024-256}, 0
    v_mov_b32 v12, s{sT0}
    global_load_dword v71, v12, {sp(sT4)} offset:128''')
E(f'''v_mov_b32 v32, 0
v_mov_b32 v33, 0
v_mov_b32 v34, 0
v_mov_b32 v35, 0
s_mul_i32 s{sT0}, s{sCH}, {UCB}
s_add_u32 s{sT0}, s{sT0}, {UB0}
v_min_u32 v13, 29, v{LANE}
v_lshl_add_u32 v12, v13, 4, s{sT0}
ds_write_b128 v12, v[32:35]
s_lshl_b32 s{sT0}, s{sCH}, 12
s_add_u32 s{sT0}, s{sT0}, {SM0}
v_lshl_add_u32 v12, v{LANE}, 4, s{sT0}
ds_write_b128 v12, v[32:35]
ds_write_b128 v12, v[32:35] offset:1024
ds_write_b128 v12, v[32:35] offset:2048
ds_write_b128 v12, v[32:35] offset:3072
; IO addresses: v64 U write, v65 keys, v66 g granules, v67 y read, v68 own flag, v69 M flags, v70 zero
v_lshlrev_b32 v64, 2, v11
v_add_u32 v64, {UB0+UPAD}, v64
s_mov_b32 s{sP0}, 0x05040100
s_mov_b32 s{sP1}, 0x07060302
; band fragments (0/1 window matrices): IO wave ch builds window ch, wave 7 also the two-tap mask
s_mov_b32 s{sT1}, {7 << 11}
s_cmp_eq_u32 s{sCH}, 1
s_cselect_b32 s{sT1}, {31 << 6}, s{sT1}
s_cmp_eq_u32 s{sCH}, 2
s_cselect_b32 s{sT1}, {127 << 5}, s{sT1}
s_cmp_eq_u32 s{sCH}, 3
s_cselect_b32 s{sT1}, {511 << 4}, s{sT1}
s_mov_b32 s{sT0}, 0x10001
s_mov_b32 s{sT3}, 0x3f80
s_lshl_b32 s{sT2}, s{sCH}, 10
s_add_u32 s{sT2}, s{sT2}, {BND}
v_lshl_add_u32 v9, v{LANE}, 4, s{sT2}
v_and_b32 v10, 15, v{LANE}
v_lshrrev_b32 v13, 4, v{LANE}
v_lshlrev_b32 v13, 3, v13
v_lshlrev_b32 v12, v10, s{sT1}
v_bfe_u32 v12, v12, v13, 8
v_lshl_or_b32 v12, v12, 15, v12
v_lshrrev_b32 v41, 2, v12
v_lshrrev_b32 v42, 4, v12
v_lshrrev_b32 v43, 6, v12
v_and_b32 v40, s{sT0}, v12
v_and_b32 v41, s{sT0}, v41
v_and_b32 v42, s{sT0}, v42
v_and_b32 v43, s{sT0}, v43
v_mul_u32_u24 v40, s{sT3}, v40
v_mul_u32_u24 v41, s{sT3}, v41
v_mul_u32_u24 v42, s{sT3}, v42
v_mul_u32_u24 v43, s{sT3}, v43
ds_write_b128 v9, v[40:43]
{"s_setprio 1" if KPRIO == 'io' else ""}
''')
if 'early' in OPT: stamp(6)
E(f'''s_lshl_b32 s{sT1}, s{sIO}, 8
s_mul_i32 s{sT2}, s{sCH}, {LOB}
s_add_u32 m0, s{sT2}, s{sT1}
s_mul_i32 s{sT2}, s{sCH}, {HIB}
s_add_u32 s{sT1}, s{sT1}, s{sT2}
s_add_u32 s{sT1}, s{sT1}, {HIX}
s_cmp_eq_u32 s{sIO}, 0
s_waitcnt vmcnt({2*NUP + CL + TC + XE})''')
if 'early' in OPT: stamp(8)
E('L_ckgen:')
stamp(2)
a, b, c, d = 10, 11, 12, 13
vW1, vW8, vW256 = 36, 38, 40
E(f'''v_mul_f32 v{a}, {f32(L2E)}, v{vLA}
v_mul_f32 v{b}, {f32(L2E)}, v{vDT}
v_exp_f32 v{a}, v{a}
v_exp_f32 v{b}, v{b}
v_mov_b32 v35, 0x3f80
v_cvt_pk_bf16_f32 v{a}, v{a}, v{b}
ds_write_addtid_b32 v35 offset:0
v_and_b32 v{vDT}, 0xffff0000, v{a}
v_lshlrev_b32 v{a}, 16, v{a}
v_mul_f32 v{vAI}, v{vAI}, v{vDT}
v_mul_f32 v{vLA}, v{a}, v{vDT}
v_mul_f32 v{b}, {f32(8*0.15915494309189535)}, v{vAI}
v_mul_f32 v{a}, {f32(-8*L2E)}, v{vLA}
v_fract_f32 v{b}, v{b}
v_exp_f32 v{a}, v{a}
v_cos_f32 v{vW8}, v{b}
v_sin_f32 v{vW8+1}, v{b}
v_mul_f32 v{d}, {f32(0.15915494309189535)}, v{vAI}
v_pk_mul_f32 {vr(vW8,2)}, {vr(vW8,2)}, {vr(a,2)} op_sel:[0,0] op_sel_hi:[1,0]''')
later = [f'v_mul_f32 v{c}, {f32(-L2E)}, v{vLA}', f'v_fract_f32 v{d}, v{d}', f'v_exp_f32 v{c}, v{c}', f'v_cos_f32 v{vW1}, v{d}', f'v_sin_f32 v{vW1+1}, v{d}',
         f'v_add_f32 v{vDT}, v{vDT}, v{vDT}', f'v_pk_mul_f32 {vr(vW1,2)}, {vr(vW1,2)}, {vr(c,2)} op_sel:[0,0] op_sel_hi:[1,0]']
if 'early' in OPT: stamp(9)
tmpc = [0]
pendw = []
nextp = [NUP]
def flushw():
    while pendw: E(pendw.pop(0))
def cmul(D, X, W):
    E(f'v_pk_mul_f32 {vr(D,2)}, {vr(X,2)}, {vr(W,2)} op_sel:[0,0] op_sel_hi:[0,1]')
    flushw()
    E(f'v_pk_fma_f32 {vr(D,2)}, {vr(X,2)}, {vr(W,2)}, {vr(D,2)} op_sel:[1,1,0] op_sel_hi:[1,0,1] neg_lo:[1,0,0]')
def put(X, off, neg):
    t = 32 + (tmpc[0] & 3)
    E(f'v_cvt_pk_bf16_f32 v{t}, v{X}, {"-" if neg else ""}v{X+1}')
    pendw.append(f'ds_write_addtid_b32 v{t} offset:{off}')
    tmpc[0] += 1
    if later and tmpc[0] >= 2: E(later.pop(0))
    if tmpc[0] == int(OPT.get('kdrop', 99)): E('s_setprio 0')
    if LP:
        n = tmpc[0]
        if n == 32: E('s_cbranch_scc1 L_lf\nds_write_b32 v44, v44\nL_lf:')
        if n in (LR0, LR0+2):
            E(f's_cbranch_scc0 L_lr{n}')
            for s_ in range(4*(n != LR0), 4*(n != LR0) + 4): E(f'ds_read_b128 {vr(GF+4*s_,4)}, v{vB} offset:{32*s_}')
            E(f'L_lr{n}:')
        if n == LR1: E(f's_cbranch_scc0 L_lr{n}\nds_read_b32 v45, v44\nL_lr{n}:')
        if n in (LR1+3, LR1+5):
            E(f's_cbranch_scc0 L_lr{n}')
            if n == LR1+3: E('s_waitcnt lgkmcnt(3)\nv_cmp_ne_u32 vcc, 0, v45\ns_cbranch_vccz L_lslow\nL_lok:')
            for s_ in range(8 + 4*(n != LR1+3), 12 + 4*(n != LR1+3)): E(f'ds_read_b128 {vr(GF+4*s_,4)}, v{vB} offset:{32*s_}')
            E(f'L_lr{n}:')
    if tmpc[0] == 30:
        assert not TC and not WW and nextp[0] >= 1
        if CL: E(f's_cbranch_scc0 L_cw1\ns_waitcnt vmcnt({1 + XWARM})\nL_cw1:\ns_waitcnt vmcnt({2*nextp[0]})')
        E(f'v_pk_mul_f32 {vr(vCR,2)}, {vr(vCR,2)}, {vr(vDT,2)} op_sel:[0,0] op_sel_hi:[1,0]')
    while nextp[0] < 4 and UPOS[nextp[0]] == tmpc[0]:
        E(f's_cbranch_scc1 L_mid{nextp[0]}')
        uload(nextp[0])
        E(f'L_mid{nextp[0]}:')
        nextp[0] += 1
put(vW8, ROWB, False)
P0, P1 = 46, 48
cur = vW8
for i in range(2, 32):
    nxt = P0 if cur != P0 else P1
    cmul(nxt, cur, vW8)
    put(nxt, i*ROWB, False)
    cur = nxt
cmul(vW256, cur, vW8)
E(f's_mov_b32 m0, s{sT1}')
hoff = lambda row: HI0 - HIX + STOR[row]*ROWB
H = [50, 52, 54, 56, 58]
put(vCR, hoff(0), True)
cur = vCR
keep = {0: vCR}
for e in range(1, 9):
    nxt = H[e//2] if e % 2 == 0 else P0
    cmul(nxt, cur, vW1)
    put(nxt, hoff(e), True)
    cur = nxt
    if e % 2 == 0: keep[e] = nxt
for e, row in ((0, 13), (2, 14), (6, 16)):
    cmul(P0, keep[e], vW256)
    put(P0, hoff(row), True)
cur = keep[4]
for row in (15, 9, 18):
    nxt = P0 if cur != P0 else P1
    cmul(nxt, cur, vW256); put(nxt, hoff(row), True); cur = nxt
cur = keep[8]
for row in (17, 10, 19, 11, 20, 12, 21):
    nxt = P0 if cur != P0 else P1
    cmul(nxt, cur, vW256); put(nxt, hoff(row), True); cur = nxt
flushw()
NMID = nextp[0] - 1
stamp(3)
if 'early' in OPT: E('s_branch L_cdone')
E(f's_cbranch_scc0 L_cio1')
if STAMPS:
    for i_ in (5, 6, 8, 9, 14, 15): E(f's_mov_b64 s[{SB+2*i_}:{SB+2*i_+1}], 0')
m_begin = len(out)
def gread(s):
    r = GF + 8*(s % 8)
    E(f'ds_read_b128 {vr(r,4)}, v{vA} offset:{32*s}')
    E(f'ds_read_b128 {vr(r+4,4)}, v{vB} offset:{32*s}')
fill = [f's_add_u32 s{sT2}, s{sW}, {SM0+FLG}', f'v_mov_b32 v{vFL}, s{sT2}', f'v_mov_b32 v8, {SM0+FLG}', 'v_mov_b32 v13, -1', f'v_and_b32 v12, 1, v{LANE}', f's_mov_b32 s{sT2}, {(0x03020706 - 0x05040100) & 0xffffffff}', f'v_mul_lo_u32 v12, v12, s{sT2}', 'v_add_u32 v12, 0x05040100, v12',
        f'v_lshlrev_b32 v10, 4, v{LANE}', f'v_add_u32 v10, {BND}, v10']
def dofill(n):
    while n > 0 and fill:
        x = fill.pop(0); E(x)
        if x.startswith('v_'): n -= 1
BPOS = int(OPT.get('bpos', 4 if LP else 5))
def gemm_all(extra):
    q = []
    GD = int(OPT.get('gd', 5 if LP else 3))
    NB = 6 if LP else 8
    def rd(s_):
        if LP: E(f'ds_read_b128 {vr(DT+4*(s_ % 6),4)}, v{vA} offset:{32*s_}'); q.append(s_)
        else: gread(s_); q.extend([s_, s_])
    for s_ in range(GD): rd(s_)
    dofill(99)
    nxt = GD
    ex = extra()
    for s_ in range(16):
        last = len(q) - 1 - q[::-1].index(s_)
        E(f's_waitcnt lgkmcnt({len(q) - 1 - last})')
        if LP: E(f'v_mfma_f32_32x32x16_bf16 {vr(GA,16)}, {vr(DT+4*(s_ % 6),4)}, {vr(GF+4*s_,4)}, {vr(GA,16)}')
        else:
            r = GF + 8*(s_ % 8)
            E(f'v_mfma_f32_32x32x16_bf16 {vr(GA,16)}, {vr(r,4)}, {vr(r+4,4)}, {vr(GA,16)}')
        if s_ == BPOS:
            stamp(13); E('s_barrier'); stamp(4)
        while nxt < 16 and nxt - NB <= s_ and (nxt < 8 or s_ >= BPOS) and nxt - s_ <= GD:
            rd(nxt); nxt += 1
        if (LP and s_ > BPOS) or s_ == 15 - GD:
            for _ in range((1 if nxt < 16 else 2) if LP else 99):
                if ex: ex.pop(0)(); q.append('x')
    assert not ex
    lastg = len(q) - 1 - q[::-1].index(15)
    done_upto[0] = q[:lastg].count('x')
    T_[0] = 0; TL[0] = 0
    for n_ in range(len(fin)): fin[n_] = 40
E(f'''s_waitcnt vmcnt(0) lgkmcnt(1)
s_mov_b64 exec, 1
v_add_f32 v{GA}, -1.0, v{GA}
s_mov_b64 exec, -1''')

def aread(q):
    base, off = (vCA, (1024-64*q)//4) if q >= 9 else (vCA2, (512-64*q)//4)
    return [f'ds_read2_b32 {vr(AF+4*q,2)}, v{base} offset0:{off} offset1:{off+1}',
            f'ds_read2_b32 {vr(AF+4*q+2,2)}, v{base} offset0:{off+2} offset1:{off+3}']
def tzread(i):
    off = 4*((i//3)*64 + 32 - 16*(i % 3)) if i < 6 else 4*(128 + 48 - 16*(i-6))
    return [f'ds_read_b64 {vr(TZ+4*i,2)}, v{vTZ} offset:{off}', f'ds_read_b64 {vr(TZ+4*i+2,2)}, v{vTZ} offset:{off+8}']
def boff(k):
    kind, tp, q = k
    return UPAD + 512*tp - 32 - (16 if kind == 'Z' else 64*q)
band = lambda i: vr(vBAND+4*i, 4)
stream = []
def mk(tile, a_, b_, dst=None): stream.append(('m', tile, a_, b_, dst))
def parts(tp):
    G0 = ('B', tp, 0) if tp == 0 else ('G', tp, 0); Z = ('Z', tp, 0); B0 = ('B', tp, 0)
    gen = []; cv = []
    if tp <= 5:
        gen += [(8, Z, 0), (12, Z, 1)]
        if tp <= 3: gen += [(20, Z, 3)]
        gen += [(0, G0, 0), (4, G0, 1)]
        if tp <= 3: gen += [(16, G0, 2)]
        for base in ((8, 0, 16) if tp <= 3 else (8, 0)):
            for jj in range(4): cv.append(f'v_cvt_pk_bf16_f32 v{DT+base+jj}, v{DT+base+jj}, v{DT+base+4+jj}')
    own = [(tp, ('A', q), ('B', tp, q)) for q in range(8)]
    nxt = [(tp+1, ('A', q+8), ('B', tp, q)) for q in range(8)] if tp < 7 else []
    lead = []
    if tp <= 5: lead.append((tp+2, ('A', 16), G0))
    if tp <= 3: lead.append((tp+4, band(4), G0))
    far = []
    if tp <= 5:
        for dl in range(3):
            if tp + 2 + dl <= 7:
                far.append((tp+2+dl, vr(DT+8, 4), ('T', 3+dl)))
                far.append((tp+2+dl, vr(DT, 4), ('T', dl)))
    if tp <= 3:
        for dl in range(4):
            if tp + 4 + dl <= 7: far.append((tp+4+dl, vr(DT+16, 4), ('T', 6+dl)))
    return gen, cv, own, nxt, lead, far
PT = [parts(tp) for tp in range(8)]
def with_cv(seq, cv, start, per=1):
    for i, t_ in enumerate(seq):
        mk(*t_)
        if i >= start:
            for _ in range(per):
                if cv:
                    x_ = cv.pop(0)
                    stream.append(('x2ok',) if x_ == 'X2OK' else ('v', x_))
    assert not cv
gen, cv = PT[0][0], PT[0][1]
gm = [(None, k, band(bi), DT+dof) for dof, k, bi in gen]
D = lambda r: f'v{GA+r}'
x2v = [f'v_cvt_pk_bf16_f32 v11, {D(10)}, 0', f'v_cvt_pk_bf16_f32 v14, 0, {D(8)}', f'v_cvt_pk_bf16_f32 v15, {D(8)}, {D(8)}',
       f'v_readlane_b32 s{sT2}, v11, 63', f'v_cvt_pk_bf16_f32 v1, {D(9)}, {D(10)}', f'v_cvt_pk_bf16_f32 v2, {D(11)}, {D(12)}',
       f'v_subrev_u32 v{vKX}, 8, v{vKX}']
mk4 = [f'v_mov_b32_dpp v11, v2 quad_perm:[1,0,3,2] {DPPF}', 'v_perm_b32 v2, v11, v2, v12', 'X2OK'] + [f'v_mul_u32_u24 v{vBAND+16+jj}, s{sT2}, v{vBAND+16+jj}' for jj in range(4)]
NG0 = int(OPT.get('ng0', 4))
with_cv(gm[:NG0], [], 0)
stream.append(('expand',))
with_cv(gm[NG0:], x2v, 0, 7 if NG0 > 4 else 4 if NG0 > 3 else 3)
if OPT.get('t0', '0') == '1':
    with_cv(PT[0][2], mk4, 2)
    stream.append(('mark', 0))
    seq = []
    for q in range(8): seq += [PT[1][2][q], PT[0][3][q], PT[1][3][q]]
    with_cv(seq[:23], cv, 0)
    stream.append(('mark', 1))
    with_cv(seq[23:] + [(t_, a_, ('C', 0, 0)) for t_, a_, b_ in PT[0][4]], [], 0)
else:
    seq = []
    for q in range(8):
        seq += [PT[0][2][q], PT[1][2][q], PT[0][3][q], PT[1][3][q]]
    with_cv(seq[:30], mk4 + cv, 4)
    del cv[:]
    stream.append(('mark', 0))
    with_cv(seq[30:31], [], 0)
    stream.append(('mark', 1))
    with_cv(seq[31:] + PT[0][4], [], 0)
for tp in range(2, 8):
    src = tp - 2
    if src >= 1:
        for dof, k, bi in PT[src][0]: mk(None, k, band(bi), DT+dof)
    seq = PT[src][4] if src >= 1 else []
    ownf = tp == 7 or str(tp) in OPT.get('ownf', '6')
    for q in range(8):
        if not ownf: seq = seq + [PT[tp][3][q]]
        seq = seq + [PT[tp][2][q]]
    cvs = PT[src][1]
    if ownf: with_cv(seq, cvs[:8], len(seq) - 4, 2); stream.append(('v', 's_nop 0'))
    else: with_cv(seq, cvs, 5)
    far = PT[src][5]
    with_cv(far[:2], [], 0)
    stream.append(('mark', tp))
    if ownf: with_cv(PT[tp][3], cvs[8:], 0)
    with_cv(far[2:], [], 0)
    if tp == 7 and OPT.get('p2', '1') != '2': stream.append(('part', 1))
    if tp == 6 and OPT.get('p2', '1') != '0': stream.append(('part', 0))
order = []
first, last = {}, {}
for i, it in enumerate(stream):
    if it[0] == 'm':
        for k in (it[2], it[3]):
            if isinstance(k, tuple):
                if k not in first: first[k] = i; order.append(k)
                last[k] = i
slot, free_after = {}, {}
slotfree = {(s_+6) % NSLOT: -1 for s_ in range(NSLOT)}
for k in order:
    if k[0] in 'BZGC':
        s_ = min(slotfree, key=lambda z: slotfree[z])
        slot[k] = s_; free_after[k] = slotfree[s_]; assert free_after[k] < first[k]
        del slotfree[s_]; slotfree[s_] = last[k]
def reg(k):
    if not isinstance(k, tuple): return k
    if k[0] == 'A': return vr(AF+4*k[1], 4)
    if k[0] == 'T': return vr(TZ+4*k[1], 4)
    return vr(BR+4*slot[k], 4)
issued = []; done_upto = [0]; lastop = {}; fin = []
checked = {0}; FOFF = 0
T_ = [0]; TL = [0]
LAT = int(OPT.get('lat', 90)); BACK = int(OPT.get('back', 36)); LOOK = int(OPT.get('look', 18))
state = {'exp': False, 'x2': False}
ops = []
def addop(key, txt, cost, pre='', post=''): ops.append(dict(key=key, txt=txt, cost=cost, pre=pre, post=post))
seenW = False
for k in order:
    if (k == ('A', 16) or k[0] == 'T') and not seenW:
        seenW = True
        addop(('X', 0), f'ds_write_b64 v{vKX}, v[14:15] offset:{KX}', 24, 's_mov_b32 exec_lo, 0\ns_mov_b32 exec_hi, 0x80000000', 's_mov_b64 exec, -1')
        addop(('X', 1), f'ds_write_b32 v{vKX}, v15 offset:{KY+4}', 16, 's_mov_b32 exec_lo, 0\ns_mov_b32 exec_hi, 0x80000000', 's_mov_b64 exec, -1')
        addop(('X', 2), f'ds_write2_b32 v{vK3}, v1, v1 offset0:0 offset1:{FC2}', 24)
        addop(('X', 3), f'ds_write2_b32 v{vK4}, v2, v2 offset0:0 offset1:{FC2}', 24)
        for n_ in range(5): first[('X', n_)] = first[k]
    if k[0] == 'A':
        for x in aread(k[1]): addop(k, x, 16)
    elif k[0] == 'T':
        for x in tzread(k[1]): addop(k, x, 8)
    else: addop(k, f'ds_read_b128 {reg(k)}, v{vCB} offset:{boff(k)}', 16)
def wait_for(idx):
    if idx < done_upto[0]: return
    T_[0] = max(T_[0], fin[idx])
    while idx + 1 < len(issued) and fin[idx+1] + 16 <= T_[0]: idx += 1
    n = len(issued) - 1 - idx
    assert n <= 15
    E(f's_waitcnt lgkmcnt({n})')
    done_upto[0] = idx + 1
def lds(txt, key=None, cost=16):
    if len(issued) - done_upto[0] >= 15: wait_for(done_upto[0])
    E(txt); issued.append(key)
    TL[0] = max(TL[0], T_[0]) + cost
    fin.append(TL[0] + LAT)
    T_[0] = max(T_[0] + 4, TL[0] - 64)
    if key is not None: lastop[key] = len(issued) - 1
def ready(o, i, pos):
    k = o['key']
    if k[0] == 'X': return state['x2']
    if k == ('A', 16) or k[0] == 'T': return not any(p['key'][0] == 'X' for p in ops)
    if k[0] == 'A': return state['exp']
    if free_after[k] > i: return False
    return k[1]//2 in checked or first[k] <= i + LOOK
def doop(o):
    ops.remove(o)
    k = o['key']
    if k[0] in 'BZGC' and k[1]//2 not in checked:
        ph = k[1]//2
        if ('F', ph) not in lastop: lds(f'ds_read_b32 v4, v8 offset:{32+4*ph}', ('F', ph), 8)
        wait_for(lastop[('F', ph)])
        E(f'''v_cmp_eq_u32 vcc, -1, v4
        s_cbranch_vccz L_uc{ph}
        L_uc{ph}d:''')
        T_[0] += 24
        checked.add(ph)
    if len(issued) - done_upto[0] >= 15: wait_for(done_upto[0])
    if o['pre']: E(o['pre'])
    lds(o['txt'], k, o['cost'])
    if o['post']: E(o['post'])
def feed(i, until, maxn=99):
    un = [o['key'] for o in ops if o['key'][0] in 'BZGC' and o['key'][1]//2 not in checked]
    if un and ('F', un[0][1]//2) not in lastop and first[un[0]] <= i + LOOK + 10:
        lds(f'ds_read_b32 v4, v8 offset:{32+4*(un[0][1]//2)}', ('F', un[0][1]//2), 8); maxn -= 1
    while maxn > 0 and TL[0] - until < BACK:
        if len(issued) - done_upto[0] >= 14:
            if fin[done_upto[0] + 2] > T_[0]: break
            wait_for(done_upto[0])
        cand = [o for n_, o in enumerate(ops[:40]) if ready(o, i, n_)]
        if not cand: break
        doop(cand[0]); maxn -= 1
def expand():
    global NOPX
    NOPX = max(0, 11 - (ninstr() - gemm_end - ('mid' in OPT)))
    t = TZ
    E(f'''s_nop NOPX
    v_cvt_pk_bf16_f32 v{t}, {D(7)}, {D(6)}
    v_cvt_pk_bf16_f32 v{t+1}, {D(5)}, {D(4)}
    v_cvt_pk_bf16_f32 v{t+2}, {D(3)}, {D(2)}
    v_cvt_pk_bf16_f32 v{t+3}, {D(1)}, {D(0)}''')
    T_[0] = max(T_[0], 80) + 20
    lds(f'ds_write_b128 v{vKX}, {vr(t,4)} offset:{KX}', None, 52)
    E(f'''v_cvt_pk_bf16_f32 v{t+4}, {D(8)}, {D(7)}
    v_cvt_pk_bf16_f32 v{t+5}, {D(6)}, {D(5)}
    v_cvt_pk_bf16_f32 v{t+6}, {D(4)}, {D(3)}
    v_cvt_pk_bf16_f32 v{t+7}, {D(2)}, {D(1)}
    v_cvt_pk_bf16_f32 v{t+10}, {D(0)}, 0''')
    T_[0] += 24
    lds(f'ds_write_b128 v{vKX}, {vr(t+4,4)} offset:{KY}', None, 52)
    E('s_mov_b64 exec, 1')
    lds(f'ds_write_b32 v{vKX}, v{t+10} offset:{KY+16}', None, 16)
    E('s_mov_b64 exec, -1')
    state['exp'] = True
    for o in [o_ for o_ in ops if o_['key'][0] == 'A'][:4]: doop(o)
    if 'mid' in OPT: stamp(5)
vPA = 10
accinit = set()
ypend = []
NPRE = int(OPT.get('npre', 6 if LP else 2))
def first_b():
    l = [(lambda bi=bi: lds(f'ds_read_b128 {band(bi)}, v10 offset:{1024*bi}', ('W', bi))) for bi in (0, 1, 3, 2)]
    l += [(lambda o=o: doop(o)) for o in [o_ for o_ in ops if o_['key'][0] in 'BZGC'][:NPRE]]
    return l
GD_ = int(OPT.get('gd', 3))
gemm_all(first_b)
assert not fill, fill
gemm_end = ninstr()
if 'mid' in OPT: stamp(8)
TM = [32]
for i, it in enumerate(stream):
    n0 = ninstr()
    if it[0] == 'mark':
        tp = it[1]
        if 'mid' in OPT and tp in (1, 2, 3, 5): stamp({1: 6, 2: 9, 3: 14, 5: 15}[tp])
        if 'sim' in OPT: sys.stderr.write(f'T{tp} at {TM[0]}\n')
        ypend.append([8, [('ds', f'ds_write_b128 v{vY}, {vr(ACC+4*tp,4)} offset:{4*YG*tp}', 52), ('ds', f'ds_write_b8 v{vFL}, v13 offset:{4*tp}', 16)]])
        continue
    if it[0] == 'expand': expand()
    elif it[0] == 'x2ok': state['x2'] = True
    elif it[0] == 'part':
        late = it[1]
        both = OPT.get('p2', '1') == '1'
        E(f's_cmp_lg_u32 s{sW}, 0\ns_cbranch_scc1 L_nopart{late}')
        if late: E('s_setprio 3')
        if not (late and both):
            if PC: E(f'''s_and_b32 s{sT0}, s{sI}, 3
            s_lshl_b32 s{sT0}, s{sT0}, 2
            s_bfe_u32 s{sT1}, s{sI}, 0x20002
            s_and_b32 s{sT2}, s{sI}, 0x70
            s_add_u32 s{sT0}, s{sT0}, s{sT1}
            s_add_u32 s{sT0}, s{sT0}, s{sT2}''')
            E(f'''s_lshl_b32 s{sT2}, s{sT0 if PC else sI}, {4 if PM else 10}
            s_add_u32 s{sT2}, s{sT2}, {WS_PART}
            v_min_u32 v{vPA}, 55, v{LANE}''')
            if PM: E(f'v_mul_u32_u24 v{vPA}, {PM}, v{vPA}\nv_add_u32 v{vPA}, s{sT2}, v{vPA}')
            else: E(f'v_lshl_add_u32 v{vPA}, v{vPA}, 4, s{sT2}')
        E(f'global_load_dwordx4 {vr(TZ+24+(4 if late and both else 0),4)}, v{vPA}, {sp(sWS)} sc1\nL_nopart{late}:')
        n0 = ninstr() - 2
    elif it[0] == 'v':
        E(it[1]); T_[0] = max(T_[0], TM[0] - 8) + 4
    else:
        _, tile, a_, b_, dst = it
        keys = [k for k in (a_, b_) if isinstance(k, tuple)]
        for k in keys:
            while any(o['key'] == k for o in ops):
                o = [o for n_, o in enumerate(ops) if ready(o, i-1, n_)][0]
                doop(o)
        need = [lastop[k] for k in keys]
        if need and max(need) >= done_upto[0]:
            if fin[max(need)] > max(T_[0], TM[0]): feed(i-1, fin[max(need)] - LAT + 48)
            wait_for(max(need))
        if tile is None: E(f'v_mfma_f32_16x16x32_bf16 {vr(dst,4)}, {reg(a_)}, {reg(b_)}, 0')
        else:
            c_ = vr(ACC+4*tile, 4) if tile in accinit else '0'
            accinit.add(tile)
            E(f'v_mfma_f32_16x16x32_bf16 {vr(ACC+4*tile,4)}, {reg(a_)}, {reg(b_)}, {c_}')
        T_[0] = max(T_[0], TM[0]); TM[0] = T_[0] + 16; T_[0] += 4
        for p in ypend: p[0] -= ninstr() - n0
        n0 = ninstr()
        if ypend and ypend[0][0] <= 0:
            for _ in range(int(OPT.get('yw', 1))):
                if ypend[0][1]:
                    kind, txt, cost = ypend[0][1].pop(0)
                    if kind == 'ds': lds(txt, None, cost)
                    else: E(txt)
            if not ypend[0][1]: ypend.pop(0)
        else:
            feed(i, T_[0], 2)
            QN = int(OPT.get('qn', 3))
            if QN and ypend and ypend[0][0] - (ninstr() - n0) > 1:
                k_ = min(QN, ypend[0][0] - (ninstr() - n0) - 1)
                E(f's_nop {k_-1}')
                for p in ypend: p[0] -= k_ - 1
    for p in ypend: p[0] -= ninstr() - n0
order = ops
assert not order
for p in ypend:
    if p[0] > 0: E(f's_nop {p[0]-1}')
    n0 = ninstr()
    for kind, txt, cost in p[1]: E(txt)
    for p2 in ypend: p2[0] -= max(p[0], 0) + ninstr() - n0
def isize(x):
    x = x.strip()
    if x.endswith(':'): return 0
    op = x.split(' ')[0]
    if op in ('s_waitcnt', 's_nop', 's_barrier', 's_cbranch_vccz', 's_cbranch_scc1', 'v_min_u32', 'v_and_b32', 'v_mov_b32', 's_mov_b64', 'v_subrev_u32', 'v_cmp_le_u32'): return 4
    return 8
if 'strip' in OPT:
    import re as _re
    pat = _re.compile(OPT['strip'])
    body = out[m_begin:]; del out[m_begin:]
    out += [x for x in body if not pat.search(x)]
NHOP = 0
if ICW:
    body = out[m_begin:]; del out[m_begin:]
    acc = ICW
    for j, x in enumerate(body):
        out.append(x); acc += isize(x)
        nxt_ok = 'v_mfma' in x or acc >= ICW - 8
        if acc >= ICW - 28 and nxt_ok and not x.endswith(':'):
            out.append(f'L_hop{NHOP}:'); out.append(f'    s_cbranch_execz L_hop{NHOP+1}'); NHOP += 1; acc = 4
    out.append(f'L_hop{NHOP}:'); out.append('    s_cbranch_execz L_hopend')
stamp(7)
if 'twice' in OPT: E(f's_waitcnt lgkmcnt(0) vmcnt(0)\nv_add_u32 v{vKX}, 8, v{vKX}\ns_add_u32 s7, s7, 1\ns_cmp_eq_u32 s7, 1\ns_cbranch_scc1 L_twice')
if 'noepi' in OPT or 'nofin' in OPT: E('s_branch L_cdone')
E(f'''s_cmp_lg_u32 s{sW}, 0
s_cbranch_scc1 L_cdone''')
HM = OPT.get('hm', '0') == '1'
fr_begin = len(out)
PL = TZ + 24
both = OPT.get('p2', '1') == '1'
if OPT.get('p2', '1') == '2': E('s_setprio 3')
E(f'''s_mov_b32 s{sSPIN}, {SPIN_MAX}
s_mov_b32 s{sT0}, 0x0c0c0400
s_mov_b32 s{sT1}, 0x04000c0c
L_mb:
ds_read_b128 v[28:31], v8 offset:48
ds_read_b128 v[20:23], v8 offset:64
ds_read_b128 v[24:27], v8 offset:80
ds_read_b32 v4, v8 offset:28
s_waitcnt lgkmcnt(0)
v_and_b32 v4, v4, v31
v_cmp_eq_u32 vcc, -1, v4
s_cbranch_vccnz L_mbd''')
spin_check('L_mb')
E('L_mbd:')
for k in range(4):
    E(f'ds_read_b32 v{16+k}, v26 offset:{k*LOB}')
E(f'v_and_b32 v27, 0x1ffff8, v27\nv_subrev_u32 v5, 56, v{LANE}\nv_ashrrev_i32 v5, 31, v5\nv_lshlrev_b32 v5, 8, v5')
def pchk(lbl):
    E(f'''v_perm_b32 v36, v{PL+1}, v{PL}, s{sT0}
    v_perm_b32 v37, v{PL+3}, v{PL+2}, s{sT1}
    v_or_b32 v36, v36, v37
    v_cmp_ne_u32 vcc, v28, v36
    s_cbranch_vccz {lbl}''')
if both:
    E('s_waitcnt vmcnt(1)')
    pchk('L_ppd')
    E('s_waitcnt vmcnt(0)')
    for k in range(4): E(f'v_mov_b32 v{PL+k}, v{PL+4+k}')
E(f'''s_mov_b32 s{sSPIN}, {SPIN_MAX}
s_branch L_pp1
L_pp:
global_load_dwordx4 {vr(PL,4)}, v{vPA}, {sp(sWS)} sc1
L_pp1:
s_waitcnt vmcnt(0)''')
pchk('L_ppd')
spin_check('L_pp')
E('L_ppd:')
stamp(12)
E(f'''v_and_b32 v{PL}, v5, v{PL}
v_and_b32 v{PL+2}, v5, v{PL+2}
v_and_b32 v{PL+1}, v5, v{PL+1}
v_and_b32 v{PL+3}, v5, v{PL+3}
s_waitcnt lgkmcnt(0)
v_permlane32_swap_b32 v{PL}, v{PL+2}
v_permlane32_swap_b32 v{PL+1}, v{PL+3}
v_add_f32 v{PL}, v{PL}, v{PL+2}
v_add_f32 v{PL+1}, v{PL+1}, v{PL+3}
v_fmac_f32 v20, v16, v24
v_fmac_f32 v21, v17, v24
v_permlane16_swap_b32 v{PL}, v{PL+1}
v_add_f32 v{PL}, v{PL}, v{PL+1}
v_fmac_f32 v22, v18, v24
v_fmac_f32 v23, v19, v24''')
for sh in (8, 4, 2, 1):
    E(f'''v_add_f32_dpp v{PL}, v{PL}, v{PL} row_ror:{sh} {DPPF}''')
    if sh != 1: E('s_nop 1')
E(f'''v_cvt_pk_bf16_f32 v{PL}, 0, v{PL}
s_mov_b64 exec, 1
v_readlane_b32 s{sT1}, v{PL}, 16
v_readlane_b32 s{sT2}, v{PL}, 32
v_readlane_b32 s{sT3}, v{PL}, 48
v_fmac_f32 v20, v{PL}, v25
v_fmac_f32 v21, s{sT1}, v25
v_fmac_f32 v22, s{sT2}, v25
v_fmac_f32 v23, s{sT3}, v25
v_cvt_pk_bf16_f32 v16, v20, v21
v_cvt_pk_bf16_f32 v17, v22, v23
global_store_dwordx2 v27, v[16:17], {sp(sOUT)}
s_branch L_cdone''')
if HM: islands('hm', fr_begin)
for ph in ((1, 2, 3) if ST0 == 'pre' else (0, 1, 2, 3)):
    E(f'L_uc{ph}:')
    if 'mid' not in OPT: stamp({1: 5, 2: 8, 3: 14}[ph])
    wait_word(f'u{ph}', 8, 32+4*ph, 4, 0)
    if 'mid' not in OPT: stamp({1: 6, 2: 9, 3: 15}[ph])
    E(f's_branch L_uc{ph}d')
if LP:
    E(f'''L_lslow:
    s_mov_b32 s{sSPIN}, {SPIN_MAX}
    L_lsl:
    ds_read_b32 v45, v44
    s_waitcnt lgkmcnt(0)
    v_cmp_ne_u32 vcc, 0, v45
    s_cbranch_vccnz L_lsd
    s_sub_u32 s{sSPIN}, s{sSPIN}, 1
    s_cbranch_scc0 L_lsl
    L_lsd:
    s_cmp_eq_u32 s{sIO}, 0
    s_branch L_lok''')
vP, vG, vGF, vYV = 80, 72, 112, 32
def stage(p):
    for k in range(4):
        E(f'v_perm_b32 v{40+k}, v{vX+4*p+2+(k>>1)}, v{vX+4*p+(k>>1)}, s{sP1 if k & 1 else sP0}')
    for k in range(4):
        E(f'ds_write_b32 v64, v{40+k} offset:{k*UCB+1024*p}')
def unpack(p):
    for j in range(2):
        for h in range(2):
            E(f'''v_lshlrev_b32 v{vP+8*p+4*j+2*h}, 16, v{vX+4*p+2*j+h}
            v_and_b32 v{vP+8*p+4*j+2*h+1}, 0xffff0000, v{vX+4*p+2*j+h}''')
G1 = OPT.get('g1', '0') == '1'
NA = 3 if G1 else 2
def pollA():
    E(f'''global_load_dwordx2 v[12:13], v70, {sp(sDBG)} sc1
    global_load_dwordx2 {vr(vG,2)}, v66, {sp(sWS)} offset:-4096 sc1''')
    if G1: E(f'global_load_dwordx2 {vr(vG+2,2)}, v66, {sp(sWS)} offset:-2048 sc1')
def pollB():
    E(f'global_load_dwordx2 v[52:53], v65, {sp(sWS)} sc1')
    for p in range(2 if G1 else 1, 4):
        E(f'global_load_dwordx2 {vr(vG+2*p,2)}, v66, {sp(sWS)} offset:{-4096+2048*p} sc1')
def chkA():
    E(f'''v_cmp_eq_u32 vcc, 1, v13
    v_cmp_eq_u32 {sp(sM0)}, v12, v{vG+1}
    s_and_b64 vcc, vcc, {sp(sM0)}''')
    if G1: E(f'v_cmp_eq_u32 {sp(sM0)}, v12, v{vG+3}\ns_and_b64 vcc, vcc, {sp(sM0)}')
    E('s_cmp_eq_u64 vcc, -1\ns_cbranch_scc1 L_pad')
def epi(p, masked):
    if PRIO == str(p): E('s_setprio 2')
    if PRIO == 'w': E('s_setprio 0')
    if str(p) in OPT.get('spec', '3'):
        wait_word(f'd{p}', 71, 8*p-4, 48, 1)
        if OPT.get('sps', '0') != '0': E(f's_sleep {OPT["sps"]}')
        E(f's_mov_b32 s{sSPIN}, {SPIN_MAX}\nL_wf_e{p}:\nds_read_b32 v48, v71 offset:{8*p}')
        for k in range(4):
            E(f'ds_read_b64 {vr(vYV+2*k,2)}, v67 offset:{k*LOB+8*YG*p}')
        E(f's_waitcnt lgkmcnt(4)\nv_cmp_eq_u32 vcc, -1, v48\ns_cbranch_vccnz L_wfd_e{p}')
        spin_check(f'L_wf_e{p}')
        E(f'L_wfd_e{p}:')
        if p == 3: stamp(14)
    else:
        wait_word(f'e{p}', 71, 8*p, 48, SLEEP if p < 3 else int(OPT.get('sl3', 0)))
        if p == 0: stamp(8)
        if p == 3: stamp(14)
        for k in range(4):
            E(f'ds_read_b64 {vr(vYV+2*k,2)}, v67 offset:{k*LOB+8*YG*p}')
    if 'ph' in OPT: stamp([1, 2, 3, 13][p])
    if PRIO == 'w': E('s_setprio 2')
    E('s_waitcnt lgkmcnt(0)')
    for j in range(2):
        r = vP + 8*p + 4*j
        for k in range(4):
            E(f'v_fmac_f32 v{r+k}, v{vYV+2*k+j}, v{vGF+2*p+j}')
        E(f'''v_cvt_pk_bf16_f32 v{r}, v{r}, v{r+1}
        v_cvt_pk_bf16_f32 v{r+1}, v{r+2}, v{r+3}''')
        if masked: E(f's_cmp_eq_u32 s{sJ}, {2*p+j}\ns_cselect_b64 exec, {sp(sEX)}, -1')
        if 'no3' in OPT and p == 1: E(f's_lshr_b32 s{sT0}, s{sI}, 4\ns_cmp_eq_u32 s{sT0}, 3\ns_cselect_b64 exec, 1, exec')
        if 'noall' in OPT and p == 1: E('s_mov_b64 exec, 1')
        E(f'global_store_dwordx2 v{vXO+p}, {vr(r,2)}, {sp(sOUT)} offset:{1024*j}')
        if masked: E('s_mov_b64 exec, -1')
    if 'ph' in OPT and p < 3: stamp([12, 15, 7][p])
    if PRIO == 'w': E('s_setprio 0')
def gun(p):
    E(f'''v_lshlrev_b32 v{vGF+2*p}, 16, v{vG+2*p}
    v_and_b32 v{vGF+2*p+1}, 0xffff0000, v{vG+2*p}''')
E('L_cio1:')
if ST0 == 'pre':
    E(f's_waitcnt vmcnt({2*NMID})')
    stamp(13)
    stage(0)
E('s_waitcnt lgkmcnt(0)\ns_barrier')
stamp(4)
if ST0 != 'pre':
    E(f's_waitcnt vmcnt({2*NMID})')
    stamp(13)
    stage(0)
    E(f'v_mov_b32 v44, 1\nds_write_b32 v68, v44')
if KPRIO == 'io': E('s_setprio 0')
E(f'''v_lshlrev_b32 v65, 3, v{LANE}
v_add_u32 v65, {WS_KEYS}, v65
v_and_b32 v66, 255, v0
v_lshlrev_b32 v66, 3, v66
v_add_u32 v66, {WS_G+4096}, v66
v_mov_b32 v70, 0
v_bfe_u32 v12, v0, 1, 2
v_bfe_u32 v13, v0, 7, 1
v_lshl_add_u32 v12, v13, 2, v12
v_mul_u32_u24 v67, {YG}, v12
v_bfe_u32 v12, v0, 3, 4
v_lshl_add_u32 v67, v12, 4, v67
v_and_b32 v12, 1, v0
v_lshl_add_u32 v67, v12, 3, v67
s_add_u32 s{sT2}, s{sCH}, {SM0+FLG+32}
v_mov_b32 v68, s{sT2}
v_mov_b32 v69, {SM0+FLG}
v_lshl_add_u32 v71, v13, 2, v69
v_mov_b32 v59, -1
''')
assert NMID in (1, 2)
U3E = OPT.get('u3e', '0') == '1'
def stagef(p):
    stage(p)
    E(f'ds_write_b8 v68, v59 offset:{4*p}')
if U3E: pollA(); uload(3)
E(f's_waitcnt vmcnt({2*(NMID-1) + 4*U3E})')
stagef(1)
stamp(12)
if not U3E:
    pollA()
    if NMID == 1: uload(2)
    uload(3)
unpack(0); unpack(1)
assert NMID == 2 and not U3E
E(f's_waitcnt vmcnt({NA + 2})')
stagef(2)
stamp(15)
E('s_waitcnt vmcnt(2)')
if PRIO == 'io': E('s_setprio 2')
E(f's_mov_b32 s{sS3}, 0')
chkA()
E('s_waitcnt vmcnt(0)')
stagef(3)
E(f'''s_mov_b32 s{sS3}, 1
s_mov_b32 s{sSPIN}, {SPIN_MAX}
L_pa:''')
pollA()
E('s_waitcnt vmcnt(0)')
chkA()
spin_check('L_pa')
E('L_pad:')
stamp(6)
if not G1: pollB()
gun(0)
E(f'v_readfirstlane_b32 s{sTAG}, v12')
epi(0, False)
E(f'''s_cmp_lg_u32 s{sS3}, 0
s_cbranch_scc1 L_s3d
s_waitcnt vmcnt({2 if G1 else 6})''')
stagef(3)
E('L_s3d:')
stamp(5)
if G1:
    pollB()
    gun(1)
    epi(1, False)
unpack(2); unpack(3)
E(f'''s_mov_b32 s{sSPIN}, {SPIN_MAX}
s_waitcnt vmcnt(2)
s_branch L_pb1
L_pb:''')
pollB()
E(f'''s_waitcnt vmcnt(0)
L_pb1:
v_cmp_eq_u32 vcc, s{sTAG}, v53
v_cmp_eq_u32 {sp(sM0)}, s{sTAG}, v{vG+3}
v_cmp_eq_u32 {sp(sM1)}, s{sTAG}, v{vG+5}
s_and_b64 vcc, vcc, {sp(sM0)}
v_cmp_eq_u32 {sp(sM0)}, s{sTAG}, v{vG+7}
s_and_b64 vcc, vcc, {sp(sM1)}
s_and_b64 vcc, vcc, {sp(sM0)}
s_cmp_eq_u64 vcc, -1
s_cbranch_scc1 L_pbd''')
spin_check('L_pb')
E('L_pbd:')
stamp(9)
key_reduce(52)
for p in range(2 if G1 else 1, 4): gun(p)
E(f'''s_andn2_b32 s{sIDX}, 2047, s{sKEY}
s_lshr_b32 s{sT0}, s{sIDX}, 1
s_mov_b64 {sp(sEX)}, -1
s_bitset0_b64 {sp(sEX)}, s{sT0}
s_lshr_b32 s{sT2}, s{sIDX}, 9
s_lshl_b32 s{sJ}, s{sT2}, 1
s_and_b32 s{sT1}, s{sIDX}, 1
s_add_u32 s{sJ}, s{sJ}, s{sT1}
s_bfe_u32 s{sT1}, s{sIDX}, 0x20007
s_cmp_eq_u32 s{sT1}, s{sCH}
s_cselect_b32 s{sJ}, s{sJ}, 8
s_cbranch_scc0 L_nomb
s_and_b32 s{sT0}, s{sT0}, 63
v_readlane_b32 s{sT1}, v{vG}, s{sT0}
v_readlane_b32 s{sT3}, v{vG+2}, s{sT0}
v_readlane_b32 s{sT4}, v{vG+4}, s{sT0}
v_readlane_b32 s{sT5}, v{vG+6}, s{sT0}
s_bitcmp1_b32 s{sT2}, 0
s_cselect_b32 s{sT1}, s{sT3}, s{sT1}
s_cselect_b32 s{sT4}, s{sT5}, s{sT4}
s_bitcmp1_b32 s{sT2}, 1
s_cselect_b32 s{sT1}, s{sT4}, s{sT1}
; x of the routed row straight from this lane's raw rows
s_lshl_b32 s{sT3}, s{sJ}, 1
s_set_gpr_idx_on s{sT3}, 1
v_mov_b32 v40, v{vX}
v_mov_b32 v41, v{vX+1}
s_set_gpr_idx_off
s_bitcmp1_b32 s{sIDX}, 0
s_cselect_b32 s{sT3}, 0, 16
s_lshl_b32 s{sT1}, s{sT1}, s{sT3}
s_and_b32 s{sT1}, s{sT1}, 0xffff0000
v_readlane_b32 s{sT4}, v40, s{sT0}
v_readlane_b32 s{sT5}, v41, s{sT0}
s_and_b32 s{sT0}, s{sKEY}, 0xffff0000
s_xor_b32 s{sT3}, s{sT0}, 0xffff0000
s_xor_b32 s{sT0}, s{sT0}, 0x80000000
s_bitcmp1_b32 s{sKEY}, 31
s_cselect_b32 s{sT0}, s{sT0}, s{sT3}
v_mov_b32 v45, {f32(-L2E)}
v_mul_f32 v45, s{sT0}, v45
v_exp_f32 v45, v45
v_mov_b32 v44, s{sT1}
v_add_f32 v45, 1.0, v45
v_rcp_f32 v45, v45
v_sub_f32 v46, 1.0, v44
v_cvt_pk_bf16_f32 v45, 0, v45
v_cvt_pk_bf16_f32 v46, 0, v46
v_mul_f32 v45, v45, v46
s_lshl_b32 s{sT0}, s{sT4}, 16
s_and_b32 s{sT1}, s{sT4}, 0xffff0000
s_lshl_b32 s{sT3}, s{sT5}, 16
s_and_b32 s{sT4}, s{sT5}, 0xffff0000
v_mov_b32 v40, s{sT0}
v_mov_b32 v41, s{sT1}
v_mov_b32 v42, s{sT3}
v_mov_b32 v43, s{sT4}
s_lshr_b32 s{sT3}, s{sIDX}, 8
s_lshl_b32 s{sT0}, s{sT3}, 2
s_bfe_u32 s{sT1}, s{sIDX}, 0x20002
s_add_u32 s{sT0}, s{sT0}, s{sT1}
s_mul_i32 s{sT0}, s{sT0}, {YG}
s_and_b32 s{sT1}, s{sIDX}, 0xf0
s_add_u32 s{sT0}, s{sT0}, s{sT1}
s_and_b32 s{sT1}, s{sIDX}, 3
s_lshl_b32 s{sT1}, s{sT1}, 2
s_add_u32 s{sT0}, s{sT0}, s{sT1}
v_mov_b32 v46, s{sT0}
s_lshl_b32 s{sT0}, s{sIDX}, 10
s_lshl_b32 s{sT1}, s{sI}, 3
s_add_u32 s{sT0}, s{sT0}, s{sT1}
v_mov_b32 v47, s{sT0}
ds_write_b128 v69, v[40:43] offset:64
ds_write_b128 v69, v[44:47] offset:80
v_mov_b32 v48, s{sTAG}
v_mov_b32 v51, -1
; a routed row of the first phase was stored like any other: its store must be complete before the final one is allowed
s_cmp_ge_u32 s{sT2}, {2 if G1 else 1}
s_cbranch_scc1 L_mb1
s_waitcnt vmcnt(0)
L_mb1:
ds_write_b128 v69, v[48:51] offset:48
L_nomb:''')
if 'ph' not in OPT: stamp(7)
HE = OPT.get('he', '0') == '1'
if not G1: epi(1, True)
if HM: hop('hm', sCH, 4)
if HE: hop('he', sCH, 4)
e_begin = len(out)
epi(2, True); epi(3, True)
if HE: islands('he', e_begin)
E('L_cdone:')
stamp(10)
if STAMPS:
    E('s_waitcnt vmcnt(0)')
    stamp(11)
write_stamps()
E('s_endpgm')

A_T = 0
E(f"""L_rg:
{"v_mov_b32 v37, 128" if 'r' in TW else ""}
{"global_load_dword v37, v37, " + sp(sWS) if 'r' in TW else ""}
s_lshl_b32 s{sT0}, s{sI}, 2
s_lshl_b32 s{sT1}, s{sW}, 8
s_add_u32 s{sT0}, s{sT0}, s{sT1}
s_lshl_b32 s{sT1}, s{sT0}, 2
s_add_u32 s{sT1}, s{sT1}, {WS_G}
v_mov_b32 v49, s{sT1}
s_sub_u32 s{sT0}, 2047, s{sT0}
v_bfe_u32 v6, v{LANE}, 3, 1
v_lshrrev_b32 v5, 5, v{LANE}
v_lshl_add_u32 v5, v6, 1, v5
s_lshl_b32 s{sT1}, s{sW}, 4
v_lshl_add_u32 v6, v5, 2, s{sT1}
v_sub_u32 v5, s{sT0}, v5
v_and_b32 v48, 15, v{LANE}
v_lshlrev_b32 v48, 3, v48
s_lshl_b32 s{sT0}, s{sI}, 3
s_add_u32 s{sT0}, s{sT0}, {WS_KEYS}
v_mov_b32 v45, s{sT0}
s_cmp_ge_u32 s{sI}, 32
s_cselect_b32 s{sT1}, 8, 0
s_sub_u32 s{sT0}, s{sI}, s{sT1}
s_lshl_b32 s{sT0}, s{sT0}, 3
s_add_u32 s{sT0}, s{sT0}, s{sW}
s_lshl_b32 s{sT0}, s{sT0}, 12
v_and_b32 v47, 31, v{LANE}
v_lshl_add_u32 v47, v47, 7, s{sT0}
s_lshr_b32 s{sT1}, s{sT0}, 18
s_lshl_b32 s{sT1}, s{sT1}, 9
s_bfe_u32 s{sT0}, s{sT0}, 0x5000d
s_mul_i32 s{sT0}, s{sT0}, {16*3584}
s_add_u32 s{sT0}, s{sT0}, s{sT1}
v_and_b32 v39, 15, v{LANE}
v_mul_u32_u24 v39, 3584, v39
s_bitcmp1_b32 s{sW}, 1
s_cselect_b32 s{sT1}, {48 if OPT.get('rsx', '0') != '0' else 0}, {48 if OPT.get('rsx', '0') == '2' else 0}
v_and_b32 v38, s{sT1}, v{LANE}
v_xor_b32 v38, 48, v38
v_lshl_add_u32 v39, v38, 3, v39
v_add_u32 v39, s{sT0}, v39
s_bitcmp1_b32 s{sW}, 0
s_cselect_b64 {sp(sT4)}, {sp(sWU)}, {sp(sWG)}
{"global_load_dword v38, v39, " + sp(sT4) if RS == '1' else ""}
s_waitcnt lgkmcnt(0)
s_add_u32 s{sTAG}, s{sTAG}, {TAGINC}
v_mov_b32 v61, s{sTAG}
v_mov_b32 v41, s{sTAG}
v_mov_b32 v43, s{sTAG}
s_add_u32 s{sT0}, s{sI}, s{sW}
s_cmp_lg_u32 s{sT0}, 0
s_cbranch_scc1 L_anotag
v_mov_b32 v7, 0
v_mov_b32 v62, s{sTAG}
v_mov_b32 v63, 1
s_mov_b64 exec, 1
s_waitcnt vmcnt(0)
global_store_dwordx2 v7, v[62:63], {sp(sDBG)} sc1
s_mov_b64 exec, -1
s_branch L_rg1
L_anotag:
s_waitcnt vmcnt({2 + (RS == '1') + ('r' in TW)})""")
def dots(rows):
    for k in range(4):
        for r in rows:
            E(f'v_dot2_f32_bf16 v{50+r}, v{vXA+4*r+k}, v{vWRv+k}, {"0" if k == 0 else "v%d" % (50+r)}')
            E(f'v_dot2_f32_bf16 v{54+r}, v{vXA+4*r+k}, v{vGWv+k}, {"0" if k == 0 else "v%d" % (54+r)}')
E('L_rg1:')
dots((0, 1))
E(f's_cbranch_scc0 L_rg2\ns_waitcnt vmcnt({int(RS == "1") + ("r" in TW)})\nL_rg2:')
if RS == '2': E(f'global_load_dword v38, v39, {sp(sT4)}')
stamp(2)
if RW == 'pre': E(f'global_load_dword v46, v47, {sp(sWD)}')
dots((2, 3))
E(f"""v_permlane32_swap_b32 v50, v51
v_permlane32_swap_b32 v54, v55
v_add_f32 v50, v50, v51
v_permlane32_swap_b32 v52, v53
v_add_f32 v54, v54, v55
v_permlane32_swap_b32 v56, v57
v_add_f32 v52, v52, v53
v_add_f32 v56, v56, v57
v_permlane16_swap_b32 v50, v54
s_nop 0
v_permlane16_swap_b32 v52, v56
v_add_f32 v50, v50, v54
v_add_f32 v52, v52, v56
s_nop 0
v_add_f32_dpp v51, v50, v50 row_ror:8 row_mask:0xf bank_mask:0x3
v_add_f32_dpp v53, v52, v52 row_ror:8 row_mask:0xf bank_mask:0xf
s_nop 1
v_mov_b32_dpp v51, v53 quad_perm:[0,1,2,3] row_mask:0xf bank_mask:0xc
s_nop 1
v_add_f32_dpp v51, v51, v51 row_half_mirror {DPPF}
s_nop 1
v_add_f32_dpp v51, v51, v51 quad_perm:[1,0,3,2] {DPPF}
s_nop 1
v_add_f32_dpp v50, v51, v51 quad_perm:[2,3,0,1] {DPPF}
v_cvt_pk_bf16_f32 v50, 0, v50
v_mul_f32 v52, {f32(-L2E)}, v50
v_exp_f32 v52, v52
v_ashrrev_i32 v51, 31, v50
v_add_f32 v52, 1.0, v52
v_rcp_f32 v52, v52
v_or_b32 v51, 0x80000000, v51
v_xor_b32 v50, v50, v51
v_mov_b32 v53, v52
v_and_b32 v50, 0xffff0000, v50
v_or_b32 v50, v50, v5
v_permlane32_swap_b32 v52, v53
s_mov_b32 exec_lo, 0x00000101
s_mov_b32 exec_hi, 0x00000101
ds_write_b32 v6, v50 offset:{A_T}
s_mov_b64 exec, -1
v_cvt_pk_bf16_f32 v40, v52, v53
s_nop 1
v_mov_b32_dpp v42, v40 row_ror:8 {DPPF}
s_mov_b64 exec, 0x10000
global_store_dwordx4 v49, v[40:43], {sp(sWS)} sc1
s_mov_b64 exec, -1""")
stamp(5)
E("""s_waitcnt lgkmcnt(0)
s_barrier""")
stamp(3)
E(f"""s_cmp_lg_u32 s{sW}, 0
s_cbranch_scc1 L_rg3
ds_read_b64 v[52:53], v48 offset:{A_T}
s_waitcnt lgkmcnt(0)
v_max_u32 v60, v52, v53
s_nop 1""")
for sh in (8, 4, 2, 1):
    E(f'v_max_u32_dpp v60, v60, v60 row_ror:{sh} {DPPF}')
    if sh != 1: E('s_nop 1')
E(f"""s_mov_b64 exec, 1
global_store_dwordx2 v45, v[60:61], {sp(sWS)} sc1""")
stamp(4)
E('s_mov_b64 exec, -1\nL_rg3:')
if RW == 'post': E(f's_lshr_b32 s{sT0}, s{sI}, 3\ns_cmp_eq_u32 s{sT0}, 3\ns_cbranch_scc1 L_adone\ns_barrier\n{"global_load_dword v38, v39, " + sp(sT4) if RS == "3" else ""}\nglobal_load_dword v46, v47, {sp(sWD)}\ns_waitcnt vmcnt(0)')
if RW == 'pre': E('s_waitcnt vmcnt(0)')
E('s_branch L_adone')
if 'idle' in OPT:
    E(f'''L_idle:
    s_lshr_b32 s{sT0}, s{sSLOT}, 1
    s_lshl_b32 s{sT0}, s{sT0}, 6
    s_lshr_b32 s{sT1}, s{sW}, 1
    s_add_u32 s{sT0}, s{sT0}, s{sT1}
    s_add_u32 s{sT0}, s{sT0}, 28
    s_mul_i32 s{sT0}, s{sT0}, 3584
    v_and_b32 v4, 31, v{LANE}
    v_min_u32 v4, 27, v4
    v_lshl_add_u32 v4, v4, 7, s{sT0}
    v_lshrrev_b32 v5, 5, v{LANE}
    v_mul_u32_u24 v5, {32*3584}, v5
    v_add_u32 v4, v4, v5
    v_subrev_u32 v6, {4*3584}, v4
    s_bitcmp1_b32 s{sW}, 0
    s_waitcnt lgkmcnt(0)
    s_cselect_b64 {sp(sT4)}, {sp(sWU)}, {sp(sWG)}
    global_load_dword v5, v4, {sp(sT4)}
    global_load_dword v7, v6, {sp(sT4)}
    s_waitcnt vmcnt(0)
    s_branch L_adone''')
F_IDX, F_PART, F_X = 98304, 98304 + 64, 98304 + 64 + 2048
XL = OPT.get('xl', '1') == '1'
LD = OPT.get('ld', '1') == '1'
vFG, vFU, vFD, vBT = 64, 80, 96, 112
FLEAD = int(OPT.get('flead', 0))
OPP = OPT.get('opp', '1') == '1'
DLATE = OPT.get('dlate', '2') != '0'
D2 = OPT.get('dlate', '2') == '2'
FBAR = OPT.get('fbar', '1') == '1'
EPOLL = OPT.get('epoll', '0') == '1'
E(f"""L_ffn:
; slices live on seven of the eight column groups (group 3 has the slowest output path): fi = 8*g' + k
s_cmp_eq_u32 s{sT0}, 3
s_cbranch_scc1 {'L_idle' if 'idle' in OPT else 'L_adone'}
s_lshr_b32 s{sFI}, s{sI}, 1
s_cmp_gt_u32 s{sT0}, 3
s_cselect_b32 s{sT1}, 8, 0
s_sub_u32 s{sFI}, s{sFI}, s{sT1}
v_lshrrev_b32 v8, 2, v{LANE}
v_and_b32 v9, 3, v{LANE}
v_mul_u32_u24 v16, 3584, v8
v_lshl_add_u32 v16, v9, 4, v16
s_mul_i32 s{sT0}, s{sW}, {64*3584}
s_lshl_b32 s{sT1}, s{sFI}, 6
s_add_u32 s{sT0}, s{sT0}, s{sT1}
s_mul_i32 s{sT3}, s{sW}, 12288
s_and_b32 s{sT1}, s{sFI}, {1 if OPP else 0}
s_mul_i32 s{sT2}, s{sT1}, {32*3584}
s_lshl_b32 s{sT1}, s{sT1}, 11
s_add_u32 s{sT4}, s{sT3}, s{sT1}
s_xor_b32 s{sT5}, s{sT4}, 2048
s_add_u32 s{sT1}, s{sT0}, s{sT2}
s_sub_u32 s{sT0}, s{sT0}, s{sT2}
s_add_u32 s{sT0}, s{sT0}, {32*3584}
v_add_u32 v18, s{sT0}, v16
v_add_u32 v16, s{sT1}, v16
v_add_u32 v17, {16*3584}, v16
v_add_u32 v19, {16*3584}, v18
s_waitcnt lgkmcnt(0)""")
stamp(1)
def gu(j):
    sb = sT4 if j < 2 else sT5
    E(f"""s_add_u32 m0, s{sb}, {1024*(j & 1)}
    s_nop 0
    global_load_lds_dwordx4 v{16+j}, {sp(sWG)}{NTW}
    s_add_u32 m0, s{sb}, {4096+1024*(j & 1)}
    s_nop 0
    global_load_lds_dwordx4 v{16+j}, {sp(sWU)}{NTW}""")
FTHR = OPT.get('fthr', '0')
if 'f' in TW:
    E(f'''s_cmp_lt_u32 s{sW}, 4
    s_cbranch_scc1 L_fnt
    s_cmp_eq_u32 s{sW}, 5
    s_cselect_b64 {sp(sM0)}, {sp(sWS)}, {sp(sX)}
    s_cmp_eq_u32 s{sW}, 6
    s_cselect_b64 {sp(sM0)}, {sp(sDBG)}, {sp(sM0)}
    s_cmp_eq_u32 s{sW}, 7
    s_cselect_b64 {sp(sM0)}, {sp(sWD)}, {sp(sM0)}
    v_mov_b32 v4, 128
    global_load_dword v4, v4, {sp(sM0)}
    L_fnt:''')
if FTHR == '2': E(f'v_mov_b32 v4, 0\nglobal_load_dword v4, v4, {sp(sWG)}\ns_waitcnt vmcnt(0)')
if FTHR == '3': E(f'v_mov_b32 v4, 0\nglobal_load_dword v4, v4, {sp(sWG)}\ns_waitcnt vmcnt(0)\nv_mov_b32 v4, 0\nglobal_load_dword v4, v4, {sp(sWU)}\ns_waitcnt vmcnt(0)')
if FTHR == '4':
    E(f'''s_cmp_lg_u32 s{sW}, 0
    s_cbranch_scc1 L_ftd
    v_mov_b32 v4, 0
    s_mov_b32 s{sSPIN}, {SPIN_MAX}
    L_ft:
    global_load_dwordx2 v[6:7], v4, {sp(sDBG)} sc1
    s_waitcnt vmcnt(0)
    v_cmp_eq_u32 vcc, 1, v7
    s_cbranch_vccnz L_ftd''')
    spin_check('L_ft')
    E('L_ftd:\ns_barrier')
stamp(3)
gu(0)
if FTHR == '1': E('s_waitcnt vmcnt(0)\ns_barrier')
gu(1)
E(f"""v_lshrrev_b32 v44, 3, v{LANE}
v_and_b32 v21, 7, v{LANE}
v_lshlrev_b32 v21, 4, v21
v_lshl_add_u32 v44, v44, 10, v21
s_lshl_b32 s{sT0}, s{sFI}, 15
s_lshl_b32 s{sT1}, s{sW}, 7
s_add_u32 s{sT0}, s{sT0}, s{sT1}
v_add_u32 v44, s{sT0}, v44
v_lshlrev_b32 v22, 3, v{LANE}
v_add_u32 v22, {WS_KEYS}, v22
v_mov_b32 v23, 0""")
def down():
    E(f's_add_u32 m0, s{sT3}, 8192\ns_nop 0')
    for j in range(4):
        E(f'global_load_lds_dwordx4 v44, {sp(sWD)}{NTD}')
        if j < 3: E('s_add_u32 m0, m0, 1024\nv_add_u32 v44, 8192, v44')
if RW == 'no' and not DLATE: down()
if FBAR: E('s_barrier')
stamp(2)
gu(2); gu(3)
if RW != 'no' and not DLATE:
    E('s_barrier')
    down()
if EPOLL: E(f"""s_cmp_lg_u32 s{sW}, {FLEAD}
s_cbranch_scc1 L_fnp
global_load_dwordx2 v[16:17], v22, {sp(sWS)} sc1
global_load_dwordx2 v[18:19], v23, {sp(sDBG)} sc1
L_fnp:""")
stamp(5)
E(f"""v_and_b32 v5, 15, v{LANE}
v_lshrrev_b32 v6, 4, v{LANE}
v_bfe_u32 v14, v{LANE}, 2, 2
v_lshlrev_b32 v14, 6, v14
v_lshl_add_u32 v14, v6, 9, v14
v_lshl_add_u32 v14, v9, 3, v14
v_add_u32 v14, s{sT3}, v14
v_lshlrev_b32 v8, 7, v8
v_lshl_add_u32 v8, v9, 3, v8
v_add_u32 v8, s{sT3}, v8
s_lshl_b32 s{sT1}, s{sW}, 7
{'s_add_u32 s%d, s%d, %d' % (sT1, sT1, F_X) if XL else ''}
v_lshl_add_u32 v10, v6, 4, s{sT1}
v_lshrrev_b32 v12, 2, v5
v_lshlrev_b32 v13, 6, v12
v_lshl_add_u32 v13, v6, 4, v13
s_lshl_b32 s{sT1}, s{sW}, 8
s_add_u32 s{sT1}, s{sT1}, {F_PART}
v_add_u32 v11, s{sT1}, v13
v_lshl_add_u32 v13, v9, 2, v13
v_add_u32 v7, {F_PART}, v13
v_lshl_add_u32 v13, v12, 2, v6
s_lshl_b32 s{sT1}, s{sW}, {8 if PM else 14}
s_mul_i32 s{sT2}, s{sFI}, {PM if PM else 16}
s_add_u32 s{sT1}, s{sT1}, s{sT2}
s_add_u32 s{sT1}, s{sT1}, {WS_PART}
{('v_lshl_add_u32 v13, v%d, 2, s%d' % (LANE, sT1)) if PC else ('v_lshl_add_u32 v13, v13, %d, s%d' % (4 if PM else 10, sT1))}
{('v_lshlrev_b32 v46, 3, v9' + chr(10) + 'v_cmp_eq_u32 %s, 1, v9' % sp(sM1) + chr(10) + 'v_cmp_eq_u32 %s, 2, v9' % sp(sEX) + chr(10) + 'v_cmp_eq_u32 s[44:45], 3, v9') if PC else ''}
v_mov_b32 v21, {F_IDX}""")
for r in range(16): E(f'v_mov_b32 v{vBT+r}, 0')
HF = OPT.get('hf', '0') == '1'
if HF: hop('hf', sW, 8)
f_begin = len(out)
E('s_waitcnt vmcnt(0)')
if D2 and XL and LD:
    E(f's_cmp_eq_u32 s{sW}, {FLEAD}\ns_cbranch_scc1 L_fnd')
    down()
    E('L_fnd:')
elif D2: down()
for s_ in range(2):
    for ct in range(2):
        for h in range(2):
            E(f'ds_read_b64_tr_b16 {vr(vFG+8*s_+4*ct+2*h,2)}, v14 offset:{2048*s_+256*h+32*ct}')
            E(f'ds_read_b64_tr_b16 {vr(vFU+8*s_+4*ct+2*h,2)}, v14 offset:{4096+2048*s_+256*h+32*ct}')
    E('s_waitcnt lgkmcnt(4)')
def dtr():
    for t in range(4):
        for hh in range(2):
            E(f'ds_read_b64_tr_b16 {vr(vFD+4*t+2*hh,2)}, v8 offset:{8192+2048*hh+32*t}')
if not DLATE: dtr()
stamp(6)
E(f"""s_cmp_lg_u32 s{sW}, {FLEAD}
s_cbranch_scc1 L_anopoll
s_mov_b32 s{sSPIN}, {SPIN_MAX}
{'s_branch L_pk1' if EPOLL else ''}
L_pk:
global_load_dwordx2 v[16:17], v22, {sp(sWS)} sc1
global_load_dwordx2 v[18:19], v23, {sp(sDBG)} sc1
s_waitcnt vmcnt(0)
L_pk1:
v_cmp_eq_u32 vcc, v18, v17
v_cmp_eq_u32 {sp(sM0)}, 1, v19
s_and_b64 vcc, vcc, {sp(sM0)}
s_cmp_eq_u64 vcc, -1
s_cbranch_scc1 L_pkd""")
spin_check('L_pk')
E('L_pkd:')
key_reduce(16)
if XL:
    E(f"""s_andn2_b32 s{sIDX}, 2047, s{sKEY}
    s_lshl_b32 s{sT0}, s{sIDX}, 10
    s_mov_b32 m0, {F_X}
    v_lshl_add_u32 v45, v{LANE}, 4, s{sT0}
    global_load_lds_dwordx4 v45, {sp(sX)}""")
    if LD: down()
E(f"""v_mov_b32 v16, s{sKEY}
ds_write_b64 v21, v[16:17]
{('s_waitcnt vmcnt(4)' if LD else 's_waitcnt vmcnt(0)') if XL else ''}
L_anopoll:
s_waitcnt lgkmcnt(0)
s_barrier""")
stamp(7)
if XL:
    E(f"""ds_read_b128 v[16:19], v10
    ds_read_b128 v[40:43], v10 offset:64
    ds_read_b32 v128, v21 offset:4
    s_waitcnt lgkmcnt(1)""")
    stamp(13)
else:
    E(f"""ds_read_b64 v[130:131], v21
s_waitcnt lgkmcnt(0)
v_not_b32 v16, v130
v_and_b32 v16, 2047, v16
v_lshl_add_u32 v10, v16, 10, v10
global_load_dwordx4 v[16:19], v10, {sp(sX)}
global_load_dwordx4 v[20:23], v10, {sp(sX)} offset:64
v_mov_b32 v128, v131
v_lshrrev_b32 v129, 8, v131
v_lshrrev_b32 v130, 16, v131
v_lshrrev_b32 v131, 24, v131""")
    if DLATE and not D2: down()
    stamp(12)
    if D2:
        E('s_waitcnt vmcnt(2)')
        dtr()
    E(f's_waitcnt vmcnt({4 if DLATE and not D2 else 0})')
    stamp(13)
for q in range(4):
    fb = (vFU if q >> 1 else vFG) + 4*(q & 1)
    for s_ in range(2):
        E(f'v_mfma_f32_16x16x32_bf16 {vr(24+4*q,4)}, {vr(fb+8*s_,4)}, {vr(40 if XL and s_ else 16+4*s_,4)}, {"0" if s_ == 0 else vr(24+4*q,4)}')
if XL and PC: E('s_waitcnt lgkmcnt(0)\nv_lshrrev_b32 v129, v46, v128\ns_nop 1')
elif XL: E('s_waitcnt lgkmcnt(0)\nv_lshrrev_b32 v129, 8, v128\nv_lshrrev_b32 v130, 16, v128\nv_lshrrev_b32 v131, 24, v128')
else: E('s_nop 3')
for q in range(1, 4):
    for r in range(4):
        E(f'v_mov_b32_dpp v{24+r}, v{24+4*q+r} quad_perm:[0,1,2,3] row_mask:0xf bank_mask:{hex(1 << q)}')
E("""s_mov_b32 exec_lo, 0x11111111
s_mov_b32 exec_hi, 0x11111111
ds_write_b128 v11, v[24:27]
s_mov_b64 exec, -1""")
DPL = OPT.get('dpl', '1')
if XL and DPL == '0':
    E('s_waitcnt vmcnt(0)')
    dtr()
    E('s_waitcnt lgkmcnt(8)')
else: E('s_waitcnt lgkmcnt(0)')
stamp(14)
E('s_barrier')
stamp(8)
E(f"""ds_read2st64_b32 v[16:17], v7 offset0:0 offset1:1
ds_read2st64_b32 v[18:19], v7 offset0:2 offset1:3
ds_read2st64_b32 v[20:21], v7 offset0:4 offset1:5
ds_read2st64_b32 v[22:23], v7 offset0:6 offset1:7
s_mov_b32 s{sT0}, 0xff
s_waitcnt lgkmcnt(2)
v_pk_add_f32 v[16:17], v[16:17], v[18:19]
s_waitcnt lgkmcnt(0)
v_pk_add_f32 v[20:21], v[20:21], v[22:23]
v_pk_add_f32 v[16:17], v[16:17], v[20:21]
v_add_f32 v16, v16, v17""")
if (DLATE and not D2) or (XL and DPL == '1'):
    E('s_waitcnt vmcnt(0)')
    dtr()
E(f"""v_cvt_pk_bf16_f32 v18, 0, v16
v_mul_f32 v16, {f32(-L2E)}, v18
v_exp_f32 v16, v16
v_mov_b32_dpp v19, v18 row_ror:8 {DPPF}
v_add_f32 v16, 1.0, v16
v_rcp_f32 v16, v16
s_nop 0
v_mul_f32 v16, v16, v18
v_cvt_pk_bf16_f32 v16, 0, v16
v_mul_f32 v16, v16, v19""")
if XL and DPL == '2':
    E('s_waitcnt vmcnt(0)')
    dtr()
E(f"""s_nop 1
v_mov_b32_dpp v17, v16 quad_perm:[1,1,3,3] {DPPF}
v_cvt_pk_bf16_f32 v16, v16, v17
s_nop 1""")
def bt(t):
    for jj in range(4):
        E(f'v_mov_b32_dpp v{vBT+4*t+jj}, v16 row_newbcast:{2*jj} row_mask:0xf bank_mask:{hex(1 << t)}')
bt(0)
if DLATE: E('s_waitcnt lgkmcnt(0)')
for t in range(4):
    if t < 3: bt(t+1)
    else: E('s_nop 0')
    E(f'v_mfma_f32_16x16x32_bf16 v[32:35], {vr(vFD+4*t,4)}, {vr(vBT+4*t,4)}, {"0" if t == 0 else "v[32:35]"}')
if PC:
    E(f'''s_nop 7
    v_cndmask_b32 v32, v32, v33, {sp(sM1)}
    v_cndmask_b32 v32, v32, v34, {sp(sEX)}
    v_cndmask_b32 v32, v32, v35, s[44:45]
    v_bfi_b32 v32, s{sT0}, v129, v32
    global_store_dword v13, v32, {sp(sWS)} sc1''')
else:
    E("""s_mov_b32 exec_lo, 0x11111111
    s_mov_b32 exec_hi, 0x11111111
    s_nop 5""")
    for t in range(4):
        E(f'v_bfi_b32 v{32+t}, s{sT0}, v{128+t}, v{32+t}')
    E(f'global_store_dwordx4 v13, v[32:35], {sp(sWS)} sc1')
stamp(9)
E(f'''s_add_u32 s{sT0}, s{sFI}, s{sW}
s_cmp_lg_u32 s{sT0}, 0
s_cbranch_scc1 L_adone
s_mov_b64 exec, 1
v_mov_b32 v23, 0
global_store_dword v23, v128, {sp(sWS)} offset:{WS_EPOCH} sc1''')
if 'fwb' in OPT:
    E(f'''s_add_u32 s{sT0}, s{sSLOT}, s{sW}
    s_cmp_lg_u32 s{sT0}, 0
    s_cbranch_scc1 L_adone
    {"s_waitcnt vmcnt(0)" if OPT['fwb'] == '2' else ""}
    buffer_wbl2 sc1''')
if HF: islands('hf', f_begin)
E('L_adone:')
stamp(10)
if STAMPS:
    E('s_waitcnt vmcnt(0)')
    stamp(11)
write_stamps()
E('L_end:')
E('s_endpgm')
out.append(f'''.section .rodata,"a"
.p2align 6
.amdhsa_kernel {KN}_kernel
  .amdhsa_next_free_vgpr {NVGPR}
  .amdhsa_next_free_sgpr 96
  .amdhsa_accum_offset {(NVGPR+3)//4*4}
  .amdhsa_group_segment_fixed_size 0
  .amdhsa_kernarg_size 128
  .amdhsa_user_sgpr_count 2
  .amdhsa_user_sgpr_kernarg_segment_ptr 1
  .amdhsa_system_sgpr_workgroup_id_x 1
.end_amdhsa_kernel''')
txt = _re2.sub(r'@(\w+)@(\d+)@(\d+)@', lambda m: f'L_{m.group(1)}{int(m.group(2))*SUBS[m.group(1)]//int(m.group(3))}', '\n'.join(out))
print(txt.replace('NOPX', str(NOPX)).replace('HOPQ1', f'L_hop{NHOP//4}').replace('HOPQ2', f'L_hop{NHOP//2}').replace('HOPQ3', f'L_hop{3*NHOP//4}'))
```

```python
import sys, struct
from asmlib import KN, STAMP_OFF
OPT = dict(a.split('=') if '=' in a else (a, '1') for a in sys.argv[1:])
STAMPS = 'stamps' in OPT
NTP = ' nt' if OPT.get('ntp', '0') == '1' else ''
NTX = ' nt' if OPT.get('ntx', '0') == '1' else ''
PRIO = OPT.get('prio', 'io')
SLEEP = int(OPT.get('sleep', 0))
UPOS = [int(x) for x in OPT.get('upos', '8,23,41,99').split(',')]
WMODE = OPT.get('wmode', 'warm')
XWARM = OPT.get('xwarm', '1') == '1'
AHEAD = int(OPT.get('ahead', 2))
YG = 320
PC = OPT.get('pc', '1') == '1'
PM = int(OPT.get('pm', 2176 if PC else 0))
PT_ = OPT.get('pt', '')
TW = OPT.get('tw', 'n')
NTW = ' nt' if OPT.get('ntw', '0') == '1' else ''
NTD = ' nt' if OPT.get('ntd', '0') == '1' else ''
CL = int(OPT.get('cl', 2))
BEARLY = False
WWM = OPT.get('ww', '0')
RS = OPT.get('rs', '2')
WW = WWM != '0'
RW = OPT.get('rw', 'post')
ICW = int(OPT.get('icw', 0))
ICWHO = OPT.get('icwho', 'io')

out = []
def E(s):
    for ln in s.strip('\n').split('\n'):
        ln = ln.strip()
        if ln: out.append(('    ' + ln) if not ln.endswith(':') else ln)
def f32(x): return '0x%08x' % struct.unpack('<I', struct.pack('<f', x))[0]
def vr(b, n): return f'v[{b}:{b+n-1}]'
def ninstr(): return sum(1 for x in out if not x.endswith(':') and not x.strip().startswith(';'))

WS_EPOCH, WS_KEYS, WS_G, WS_PART = 0, 4096, 8192, 32768
TAGINC = 0x9E3779B1
SPIN_MAX = 1 << 20
ROWB = 528
LOB = 32*ROWB
HI0 = 4*LOB
NHI = 22
HIB = NHI*ROWB
UB0 = HI0 + 4*HIB
UCB, UPAD = 4608, 480
SM0 = UB0 + 4*UCB
SMB = 4096
KX, KY, F3, FLG = 0, 1216, 2336, 1120
FC2 = 225
HIX = 16384
BND = SM0 + 4*SMB
LOF = BND + 4*1024
LDS_BYTES = LOF + 64
LP = OPT.get('lp', '0') == '1'
XE = OPT.get('xe', '0') == '1'
LR0, LR1 = [int(x) for x in OPT.get('lr', '34,44').split(',')]
ST0 = OPT.get('st0', 'pre')
KPRIO = OPT.get('kprio', 'io')
GEMM1 = OPT.get('gemm1', '0') == '1'
sEX = 6
sX, sLA, sAI, sCR, sCI, sLDT, sDS = 8, 10, 12, 14, 16, 18, 20
sWR, sWG, sWU, sWD, sGW, sOUT, sDBG, sWS = 24, 26, 28, 30, 32, 34, 36, 38
sW, sI, sT0, sT1 = 40, 41, 42, 43
sJ, sP0, sP1, sTH = 44, 45, 46, 47
sTAG, sKEY, sIDX, sSPIN = 48, 49, 50, 51
sM0, sM1 = 52, 54
sT2, sT3, sT4, sT5 = 56, 57, 58, 59
sSLOT, sWB, sFI, sIO = 60, 61, 62, 63
sCH = 61
sS3 = 62
SB = 64
NST = 16
def sp(b): return f's[{b}:{b+1}]'
def stamp(i):
    if STAMPS and ('lite' not in OPT or i in (0, 11)): E(f'{"s_memtime" if "cyc" in OPT else "s_memrealtime"} s[{SB+2*i}:{SB+2*i+1}]')
def write_stamps():
    if not STAMPS: return
    E(f'''s_waitcnt lgkmcnt(0) vmcnt(0)
    s_mov_b64 exec, 1
    s_lshl_b32 s{sT0}, s2, 3
    s_add_u32 s{sT0}, s{sT0}, s{sW}
    s_lshl_b32 s{sT0}, s{sT0}, 7
    s_add_u32 s{sT0}, s{sT0}, {STAMP_OFF}
    v_mov_b32 v0, s{sT0}''')
    for i in range(NST):
        E(f'''v_mov_b32 v2, s{SB+2*i}
        v_mov_b32 v3, s{SB+2*i+1}
        global_store_dwordx2 v0, v[2:3], {sp(sWS)} offset:{8*i}
        s_nop 1''')
def spin_check(lbl_loop):
    E(f'''s_sub_u32 s{sSPIN}, s{sSPIN}, 1
    s_cbranch_scc0 {lbl_loop}''')
L2E = 1.4426950408889634
L2E_HI = struct.unpack('<f', struct.pack('<I', 0x3FB8AA00))[0]
L2E_LO = L2E - L2E_HI
LANE = 3
DPPF = 'row_mask:0xf bank_mask:0xf'

def hop_call():
    E(f'''s_mov_b64 exec, 0
    s_cmp_eq_u32 s{sCH}, 0
    s_cbranch_scc1 L_hop0
    s_cmp_eq_u32 s{sCH}, 1
    s_cbranch_scc1 HOPQ1
    s_cmp_eq_u32 s{sCH}, 2
    s_cbranch_scc1 HOPQ2
    s_branch HOPQ3
    L_hopend:
    s_mov_b64 exec, -1''')
import re as _re2
def isz(x):
    x = x.strip()
    if x.endswith(':') or x.startswith(';'): return 0
    op = x.split(' ')[0]
    if op.startswith(('ds_', 'global_', 'v_mfma', 'v_pk_', 'v_cvt_pk', 'v_perm', 'v_bfi', 'v_readlane', 'v_lshl_', 'v_min3', 'v_or3', 's_mem', 'v_bfe', 'v_mad')) or 'dpp' in op: return 8
    if _re2.search(r'0x[0-9a-f]{3,}|, [0-9]{3,}', x) or (op.startswith('v_cmp') and 's[' in x): return 8
    return 4
SUBS = {}
def islands(name, begin, step=64):
    body = out[begin:]; del out[begin:]
    n = 0; acc = step
    for x in body:
        if acc + isz(x) > step - 4:
            out.append(f'L_{name}{n}:'); out.append(f'    s_cbranch_execz L_{name}{n+1}'); n += 1; acc = 4
        out.append(x); acc += isz(x)
    endi = len(out) - 1
    while not (out[endi].startswith(f'    s_cbranch_execz L_{name}{n}')): endi -= 1
    out[endi] = f'    s_cbranch_execz L_{name}end'
    SUBS[name] = n
def hop(name, sreg, ways):
    E('s_mov_b64 exec, 0')
    for k in range(ways - 1):
        E(f's_cmp_eq_u32 s{sreg}, {k}\ns_cbranch_scc1 @{name}@{k}@{ways}@')
    E(f's_branch @{name}@{ways-1}@{ways}@\nL_{name}end:\ns_mov_b64 exec, -1')
def key_reduce(vt):
    for sh in (8, 4, 2, 1):
        E(f'''v_max_u32_dpp v{vt}, v{vt}, v{vt} row_ror:{sh} {DPPF}
        s_nop 1''')
    E(f'''v_readlane_b32 s{sKEY}, v{vt}, 0
    v_readlane_b32 s{sT0}, v{vt}, 16
    v_readlane_b32 s{sT1}, v{vt}, 32
    v_readlane_b32 s{sT2}, v{vt}, 48
    s_max_u32 s{sKEY}, s{sKEY}, s{sT0}
    s_max_u32 s{sT1}, s{sT1}, s{sT2}
    s_max_u32 s{sKEY}, s{sKEY}, s{sT1}''')
def wait_word(name, vaddr, off, vt, sleep):
    E(f'''s_mov_b32 s{sSPIN}, {SPIN_MAX}
    L_wf_{name}:
    ds_read_b32 v{vt}, v{vaddr} offset:{off}
    s_waitcnt lgkmcnt(0)
    v_cmp_eq_u32 vcc, -1, v{vt}
    s_cbranch_vccnz L_wfd_{name}''')
    if sleep: E(f's_sleep {sleep}')
    spin_check(f'L_wf_{name}')
    E(f'L_wfd_{name}:')

hdr = open('cdna_kernels/' + KN + '.s.ref').read().split('; Override launch')[0]
out.append(hdr.rstrip('\n'))
out.append(f'; @launch grid=(256,1,1) block=(512,1,1) lds={LDS_BYTES}')

out.append(""";
;      - K(p) = 2 dt Re sum_n C_n exp(z_n p) is needed at the 641 bf16-rounded positions only. Every (channel, mode)
;        builds exp(z 8a) (32 rows) and C exp(z h) (22 rows) by complex products; a 32x32x256 bf16 MFMA GEMM per
;        channel gives all positions. D_skip - 1 is added to tap 0, so the MFMA result is a - x and out = x + g (a - x).
;        meet block-Toeplitz fragments of the distinct K values.
;      - waves 0-3 (one channel each) run the MFMAs, waves 4-7 load/stage u and write the output tile by tile;
;        they meet through byte flags in LDS.
;  * 64 router workgroups: r = x.w_r and g = sigmoid(x.gate_w) for 32 rows each, published as {value, tag} granules.
;  * 56 FFN workgroups: 32 columns of gate/up each for the routed row, then their share of the down projection,
;        published as partial sums whose low byte carries the tag; wave 0 of each conv workgroup adds them up
;        for the routed row.
; The tag is the epoch word found in d_ws plus a constant; it only tells this launch's hand-offs from older ones.
; Workgroup -> column block mapping is for L2 locality only.""")
out.append(f'''.amdgcn_target "amdgcn-amd-amdhsa--gfx950"
.text
.globl {KN}_kernel
.p2align 8
.type {KN}_kernel,@function
{KN}_kernel:''')
stamp(0)
vXA, vWRv, vGWv = 16, 8, 12
vLA, vAI, vCR, vCI, vDT = 4, 5, 6, 7, 8
vX = 16
vXO = 60
AF, TZ, BR, DT, ACC, vBAND = 16, 84, 124, 172, 196, 228
NSLOT = 12
GF, GA = 84, ACC
vKX, vK3, vK4, vCA, vCA2, vCB, vY, vTZ = 248, 249, 250, 251, 252, 253, 254, 255
vA, vB, vFL = 14, 15, 9
NVGPR = 256
E(f'''s_load_dwordx16 s[8:23], s[0:1], 0
s_load_dwordx16 s[24:39], s[0:1], 64
s_cmp_ge_u32 s2, 256
s_cbranch_scc1 L_end
v_lshrrev_b32 v1, 6, v0
v_and_b32 v{LANE}, 63, v0
v_readfirstlane_b32 s{sW}, v1
s_add_u32 s{sT0}, s2, {int(OPT.get('rot', 2))}
s_and_b32 s{sT0}, s{sT0}, 7
s_lshr_b32 s{sSLOT}, s2, 4
s_lshl_b32 s{sI}, s{sT0}, 4
s_add_u32 s{sI}, s{sI}, s{sSLOT}
''')
PF = OPT.get('pf', 'f')
pfc = f'''s_cmp_gt_u32 s{sW}, 1
s_cbranch_scc1 L_nopf
; pull this kernel's code into the die's L2 (per-lane 64-bit address)
s_getpc_b64 s[4:5]
L_pc:
v_lshlrev_b32 v4, 7, v0
v_min_u32 v4, L_end-L_pc, v4
v_mov_b32 v5, 0
v_lshl_add_u64 v[4:5], v[4:5], 0, s[4:5]
global_load_dword v2, v[4:5], off
L_nopf:'''
if PF == 'all': E(pfc)
E(f'''s_bitcmp1_b32 s2, 3
s_cbranch_scc0 L_conv''')
if PF == 'aux': E(pfc)
if PF == 'f':
    E('s_bitcmp1_b32 s2, 4\ns_cbranch_scc1 L_r0')
    E(pfc)
    IW = OPT.get('iw', '1')
    if IW != '0':
        E(f'''s_cmp_lg_u32 s{sT0}, 3
        s_cbranch_scc1 L_ffn
        s_lshl_b32 s{sT1}, s{sSLOT}, {7 if IW == '1' else 6}
        v_lshrrev_b32 v4, {1 if IW == '1' else 2}, v0
        v_add_u32 v4, s{sT1}, v4
        v_lshlrev_b32 v4, 10, v4
        s_waitcnt lgkmcnt(0)
''')
        PP = OPT.get('pp', '0')
        if PP != '0':
            E(f'''s_lshl_b32 s{sT1}, s{sSLOT}, 13
            v_lshrrev_b32 v5, 2, v0
            v_lshl_add_u32 v5, v5, 7, s{sT1}
            global_load_dword v6, v5, {sp(sLA)}
            global_load_dword v7, v5, {sp(sAI)}''')
            if PP in '24': E(f'global_load_dword v8, v5, {sp(sCR)}\nglobal_load_dword v9, v5, {sp(sCI)}')
        if PP in '012': E(f'global_load_dword v4, v4, {sp(sX)} offset:384')
        E(f'''
        s_waitcnt vmcnt(0)
        s_branch L_adone
        L_r0:''')
    else: E('s_branch L_ffn\nL_r0:')
else: E('s_bitcmp1_b32 s2, 4\ns_cbranch_scc0 L_ffn')
E(f'''s_lshr_b32 s{sI}, s{sI}, 1
v_lshlrev_b32 v4, 4, v{LANE}
s_lshl_b32 s{sT2}, s{sI}, 12
s_lshl_b32 s{sT1}, s{sW}, 18
s_add_u32 s{sT2}, s{sT2}, s{sT1}
v_add_u32 v5, s{sT2}, v4
s_waitcnt lgkmcnt(0)''')
stamp(1)
E(f'''global_load_dwordx4 {vr(vWRv,4)}, v4, {sp(sWR)}
global_load_dwordx4 {vr(vGWv,4)}, v4, {sp(sGW)}
{"s_waitcnt vmcnt(0)" if OPT.get('rdel', '0') == '1' else ""}
{("s_cmp_lt_u32 s%d, 2" % sW + chr(10) + "s_cbranch_scc1 L_rnd" + chr(10) + "s_waitcnt vmcnt(0)" + chr(10) + "L_rnd:") if OPT.get('rdel', '0') == '2' else ""}
global_load_dwordx4 {vr(vXA,4)}, v5, {sp(sX)}{NTX}
global_load_dwordx4 {vr(vXA+4,4)}, v5, {sp(sX)} offset:1024{NTX}
global_load_dwordx4 {vr(vXA+8,4)}, v5, {sp(sX)} offset:2048{NTX}
global_load_dwordx4 {vr(vXA+12,4)}, v5, {sp(sX)} offset:3072{NTX}
s_load_dword s{sTAG}, {sp(sWS)}, {WS_EPOCH}
s_branch L_rg''')
E(f'''; ================= conv workgroups =================
L_conv:
s_and_b32 s{sCH}, s{sW}, 3
s_lshr_b32 s{sIO}, s{sW}, 2
s_lshl_b32 s{sT2}, s{sI}, 3
s_lshl_b32 s{sT1}, s{sCH}, 1
s_add_u32 s{sT0}, s{sT2}, s{sT1}
v_mov_b32 v10, s{sT0}
s_add_u32 s{sT0}, s{sT0}, s{sIO}
s_lshl_b32 s{sT0}, s{sT0}, 7
v_lshl_add_u32 v1, v{LANE}, 1, s{sT0}
v_mov_b32 v{vLA}, 0
v_mov_b32 v{vAI}, 0
v_mov_b32 v{vCR}, 0
v_mov_b32 v{vCI}, 0
v_mov_b32 v{vDT}, 0''')
if XE: E(f'''s_lshl_b32 s{sT0}, s{sSLOT}, 7
s_lshl_b32 s{sT1}, s{sCH}, 5
s_add_u32 s{sT0}, s{sT0}, s{sT1}
v_and_or_b32 v12, v{LANE}, 31, s{sT0}
v_lshl_add_u32 v12, v12, 10, s{sT2}
s_cmp_lt_u32 s{sW}, 4''')
if 'early' in OPT: stamp(13)
E('s_waitcnt lgkmcnt(0)')
stamp(1)
E(f'''global_load_short_d16_hi v{vLA}, v1, {sp(sLA)}{NTP}
global_load_short_d16_hi v{vDT}, v10, {sp(sLDT)}
global_load_short_d16_hi v{vAI}, v1, {sp(sAI)}{NTP}
''')
CS = OPT.get('cs', '1') == '1'
cl_ = f'global_load_short_d16_hi v{vCR}, v1, {sp(sCR)}{NTP}\nglobal_load_short_d16_hi v{vCI}, v1, {sp(sCI)}{NTP}'
if not CS: E(cl_)
if XE: E(f's_cbranch_scc1 L_nxe\nglobal_load_dword v2, v12, {sp(sX)}\nL_nxe:')
if 'early' in OPT: stamp(12)
if 'e2' in OPT:
    for n_ in range(5):
        E(f's_waitcnt vmcnt({4-n_})'); stamp(2+n_)
    E('s_branch L_cdone')
E(f'''v_and_b32 v11, 255, v0
v_lshl_add_u32 v{vXO}, v11, 11, s{sT2}
v_add_u32 v{vXO+1}, {512*1024}, v{vXO}
v_add_u32 v{vXO+2}, {1024*1024}, v{vXO}
v_add_u32 v{vXO+3}, {1536*1024}, v{vXO}
''')
if LP: E(f'''s_lshl_b32 s{sT1}, s{sCH}, 2
s_add_u32 s{sT1}, s{sT1}, {LOF}
v_mov_b32 v44, s{sT1}
v_mov_b32 v45, 0
ds_write_b32 v44, v45
s_waitcnt lgkmcnt(0)''')
E(f'''s_barrier
{cl_ if CS else ''}
s_cmp_ge_u32 s{sW}, 4
s_cbranch_scc1 L_cio0''')
STOR = {0:0,1:1,2:2,3:3, 16:4,17:5,18:6,19:7,20:8,12:9, 15:10, 13:11,14:12,4:13,5:14,6:15,7:16,8:17,9:18,10:19,11:20,21:21}
assert sorted(STOR.values()) == list(range(22))
tab = [0,0,1,2,2,2,3,4,4,5,6,7,8,8,8,8]
hrow = []
for x in range(32):
    g_, r_ = (x >> 2) & 1, 4*(x >> 3) + (x & 3)
    hrow.append(STOR[13 + tab[r_] if g_ else min(r_, 12)])
planes = [sum(((hrow[x] >> b) & 1) << x for x in range(32)) for b in range(5)]
E(f'''s_lshl_b32 s{sT0}, s{sSLOT}, 7
s_lshl_b32 s{sT1}, s{sW}, 5
s_add_u32 s{sT0}, s{sT0}, s{sT1}
v_and_b32 v13, 31, v{LANE}
v_add_u32 v12, s{sT0}, v13
v_lshl_add_u32 v12, v12, 10, s{sT2}
v_mov_b32 v{GA}, 0''')

if 'early' in OPT: stamp(5)
XWARM = XWARM and not XE
if XWARM: E(f'global_load_dword v1, v12, {sp(sX)}')
if WW:
    E(f'''s_lshr_b32 s{sT0}, s{sI}, 4
    s_cmp_gt_u32 s{sT0}, 3
    s_cselect_b32 s{sT1}, 1, 0
    s_sub_u32 s{sT0}, s{sT0}, s{sT1}
    s_lshl_b32 s{sT0}, s{sT0}, 9
    s_lshl_b32 s{sT1}, s{sSLOT}, 1
    s_lshr_b32 s{sT3}, s{sW}, 1
    s_add_u32 s{sT1}, s{sT1}, s{sT3}
    s_mul_i32 s{sT1}, s{sT1}, {16*3584}
    s_add_u32 s{sT0}, s{sT0}, s{sT1}
    v_and_b32 v12, 15, v{LANE}
    v_mul_u32_u24 v12, 3584, v12''')
    if WWM == '2':
        E(f'''s_bitcmp1_b32 s{sW}, 1
        s_cselect_b32 s{sT1}, 48, 0
        v_and_b32 v9, s{sT1}, v{LANE}
        v_xor_b32 v9, 48, v9
        v_lshl_add_u32 v12, v9, 3, v12''')
    else: E(f's_add_u32 s{sT0}, s{sT0}, 384')
    E(f'''v_add_u32 v12, s{sT0}, v12
    s_bitcmp1_b32 s{sW}, 0
    s_cselect_b64 {sp(sT4)}, {sp(sWU)}, {sp(sWG)}
    global_load_dword v9, v12, {sp(sT4)}''')
E(f'''s_mov_b64 exec, 1
global_load_short_d16_hi v{GA}, v10, {sp(sDS)}
s_mov_b64 exec, -1''')
for r in range(1, 16): E(f'v_mov_b32 v{GA+r}, 0')
for b_ in range(4, -1, -1):
    E(f's_mov_b32 s{sT0}, {planes[b_]}')
    if b_ == 4: E(f'v_bfe_u32 v{vA}, s{sT0}, v13, 1')
    else: E(f'v_bfe_u32 v12, s{sT0}, v13, 1\nv_lshl_or_b32 v{vA}, v{vA}, 1, v12')
E(f'''v_lshrrev_b32 v12, 5, v{LANE}
s_mul_i32 s{sT0}, s{sW}, {HIB}
s_add_u32 s{sT0}, s{sT0}, {HI0}
s_mul_i32 s{sT1}, s{sW}, {LOB}
v_lshl_add_u32 v10, v12, 4, s{sT0}
v_lshl_add_u32 v11, v12, 4, s{sT1}
s_mov_b32 s{sT2}, {ROWB}
v_mad_u32_u24 v{vA}, v{vA}, s{sT2}, v10
v_mad_u32_u24 v{vB}, v13, s{sT2}, v11
s_lshl_b32 s{sT0}, s{sW}, 12
s_add_u32 s{sT0}, s{sT0}, {SM0}
s_add_u32 s{sT2}, s{sT0}, {2*(543-7)}
v_lshlrev_b32 v10, 4, v{LANE}
v_sub_u32 v{vKX}, s{sT2}, v10
v_and_b32 v10, 1, v{LANE}
v_lshrrev_b32 v11, 1, v{LANE}
v_lshlrev_b32 v11, 2, v11
s_add_u32 s{sT2}, s{sT0}, {F3+4*48}
v_sub_u32 v11, s{sT2}, v11
v_lshl_add_u32 v{vK3}, v10, 8, v11
v_lshlrev_b32 v{vK4}, 7, v10
v_sub_u32 v{vK4}, v11, v{vK4}
v_add_u32 v{vK4}, {4*(128+64-48)}, v{vK4}
v_and_b32 v11, 15, v{LANE}
v_and_b32 v12, 48, v{LANE}
v_mul_u32_u24 v13, {KY+2}, v10
v_lshl_add_u32 v13, v11, 1, v13
v_sub_u32 v{vCA}, v12, v13
s_add_u32 s{sT2}, s{sT0}, {KY+2*(544-16)-1024}
v_add_u32 v{vCA}, s{sT2}, v{vCA}
v_add_u32 v{vCA2}, 512, v{vCA}
s_mul_i32 s{sT2}, s{sW}, {UCB}
s_add_u32 s{sT2}, s{sT2}, {UB0}
v_lshl_add_u32 v{vCB}, v11, 5, v12
v_add_u32 v{vCB}, s{sT2}, v{vCB}
v_lshl_add_u32 v{vY}, v11, 4, s{sT1}
v_mad_u32_u24 v{vY}, v12, {YG//16}, v{vY}
s_add_u32 s{sT2}, s{sT0}, {F3+4*16}
v_mul_u32_u24 v{vTZ}, {4*FC2}, v10
v_add3_u32 v{vTZ}, v{vTZ}, v12, s{sT2}
v_lshlrev_b32 v13, 2, v11
v_sub_u32 v{vTZ}, v{vTZ}, v13
''')
r = vBAND + 16
E(f'''v_lshrrev_b32 v13, 1, v12
s_mov_b32 s{sT1}, {3 << 12}
v_lshlrev_b32 v{r}, v11, s{sT1}
v_bfe_u32 v{r}, v{r}, v13, 8
v_lshl_or_b32 v{r}, v{r}, 15, v{r}
v_lshrrev_b32 v{r+1}, 2, v{r}
v_lshrrev_b32 v{r+2}, 4, v{r}
v_lshrrev_b32 v{r+3}, 6, v{r}
s_mov_b32 s{sT1}, 0x10001
v_and_b32 v{r}, s{sT1}, v{r}
v_and_b32 v{r+1}, s{sT1}, v{r+1}
v_and_b32 v{r+2}, s{sT1}, v{r+2}
v_and_b32 v{r+3}, s{sT1}, v{r+3}''')
if 'early' in OPT: stamp(6)
E(f'''s_lshl_b32 s{sT1}, s{sIO}, 8
s_mul_i32 s{sT2}, s{sCH}, {LOB}
s_add_u32 m0, s{sT2}, s{sT1}
s_mul_i32 s{sT2}, s{sCH}, {HIB}
s_add_u32 s{sT1}, s{sT1}, s{sT2}
s_add_u32 s{sT1}, s{sT1}, {HIX}
s_cmp_eq_u32 s{sIO}, 0
s_waitcnt vmcnt({1 + XWARM + WW + CL})''')
if 'early' in OPT: stamp(8)
E(f'''s_branch L_ckgen
L_cio0:''')

if 'early' in OPT: stamp(5)
def uload(p):
    E(f'global_load_dwordx2 {vr(vX+4*p,2)}, v{vXO+p}, {sp(sX)}')
    E(f'global_load_dwordx2 {vr(vX+4*p+2,2)}, v{vXO+p}, {sp(sX)} offset:1024')
NUP = sum(1 for x in UPOS if x == 0)
for p in range(NUP): uload(p)
TC = 0
if 'c' in TW:
    TC = 1
    E(f'''s_cmp_eq_u32 s{sCH}, 1
    s_cselect_b64 {sp(sT4)}, {sp(sWS)}, {sp(sOUT)}
    s_cmp_eq_u32 s{sCH}, 2
    s_cselect_b64 {sp(sT4)}, {sp(sDBG)}, {sp(sT4)}
    s_cmp_eq_u32 s{sCH}, 3
    s_cselect_b32 s{sT0}, {2048*1024-256}, 0
    v_mov_b32 v12, s{sT0}
    global_load_dword v71, v12, {sp(sT4)} offset:128''')
E(f'''v_mov_b32 v32, 0
v_mov_b32 v33, 0
v_mov_b32 v34, 0
v_mov_b32 v35, 0
s_mul_i32 s{sT0}, s{sCH}, {UCB}
s_add_u32 s{sT0}, s{sT0}, {UB0}
v_min_u32 v13, 29, v{LANE}
v_lshl_add_u32 v12, v13, 4, s{sT0}
ds_write_b128 v12, v[32:35]
s_lshl_b32 s{sT0}, s{sCH}, 12
s_add_u32 s{sT0}, s{sT0}, {SM0}
v_lshl_add_u32 v12, v{LANE}, 4, s{sT0}
ds_write_b128 v12, v[32:35]
ds_write_b128 v12, v[32:35] offset:1024
ds_write_b128 v12, v[32:35] offset:2048
ds_write_b128 v12, v[32:35] offset:3072
; IO addresses: v64 U write, v65 keys, v66 g granules, v67 y read, v68 own flag, v69 M flags, v70 zero
v_lshlrev_b32 v64, 2, v11
v_add_u32 v64, {UB0+UPAD}, v64
s_mov_b32 s{sP0}, 0x05040100
s_mov_b32 s{sP1}, 0x07060302
; band fragments (0/1 window matrices): IO wave ch builds window ch, wave 7 also the two-tap mask
s_mov_b32 s{sT1}, {7 << 11}
s_cmp_eq_u32 s{sCH}, 1
s_cselect_b32 s{sT1}, {31 << 6}, s{sT1}
s_cmp_eq_u32 s{sCH}, 2
s_cselect_b32 s{sT1}, {127 << 5}, s{sT1}
s_cmp_eq_u32 s{sCH}, 3
s_cselect_b32 s{sT1}, {511 << 4}, s{sT1}
s_mov_b32 s{sT0}, 0x10001
s_mov_b32 s{sT3}, 0x3f80
s_lshl_b32 s{sT2}, s{sCH}, 10
s_add_u32 s{sT2}, s{sT2}, {BND}
v_lshl_add_u32 v9, v{LANE}, 4, s{sT2}
v_and_b32 v10, 15, v{LANE}
v_lshrrev_b32 v13, 4, v{LANE}
v_lshlrev_b32 v13, 3, v13
v_lshlrev_b32 v12, v10, s{sT1}
v_bfe_u32 v12, v12, v13, 8
v_lshl_or_b32 v12, v12, 15, v12
v_lshrrev_b32 v41, 2, v12
v_lshrrev_b32 v42, 4, v12
v_lshrrev_b32 v43, 6, v12
v_and_b32 v40, s{sT0}, v12
v_and_b32 v41, s{sT0}, v41
v_and_b32 v42, s{sT0}, v42
v_and_b32 v43, s{sT0}, v43
v_mul_u32_u24 v40, s{sT3}, v40
v_mul_u32_u24 v41, s{sT3}, v41
v_mul_u32_u24 v42, s{sT3}, v42
v_mul_u32_u24 v43, s{sT3}, v43
ds_write_b128 v9, v[40:43]
{"s_setprio 1" if KPRIO == 'io' else ""}
''')
if 'early' in OPT: stamp(6)
E(f'''s_lshl_b32 s{sT1}, s{sIO}, 8
s_mul_i32 s{sT2}, s{sCH}, {LOB}
s_add_u32 m0, s{sT2}, s{sT1}
s_mul_i32 s{sT2}, s{sCH}, {HIB}
s_add_u32 s{sT1}, s{sT1}, s{sT2}
s_add_u32 s{sT1}, s{sT1}, {HIX}
s_cmp_eq_u32 s{sIO}, 0
s_waitcnt vmcnt({2*NUP + CL + TC + XE})''')
if 'early' in OPT: stamp(8)
E('; ---- tables exp(z 8a) and C exp(z h) in bf16, one (channel, mode) per lane\nL_ckgen:')
stamp(2)
a, b, c, d = 10, 11, 12, 13
vW1, vW8, vW256 = 36, 38, 40
E(f'''v_mul_f32 v{a}, {f32(L2E)}, v{vLA}
v_mul_f32 v{b}, {f32(L2E)}, v{vDT}
v_exp_f32 v{a}, v{a}
v_exp_f32 v{b}, v{b}
v_mov_b32 v35, 0x3f80
v_cvt_pk_bf16_f32 v{a}, v{a}, v{b}
ds_write_addtid_b32 v35 offset:0
v_and_b32 v{vDT}, 0xffff0000, v{a}
v_lshlrev_b32 v{a}, 16, v{a}
v_mul_f32 v{vAI}, v{vAI}, v{vDT}
v_mul_f32 v{vLA}, v{a}, v{vDT}
v_mul_f32 v{b}, {f32(8*0.15915494309189535)}, v{vAI}
v_mul_f32 v{a}, {f32(-8*L2E)}, v{vLA}
v_fract_f32 v{b}, v{b}
v_exp_f32 v{a}, v{a}
v_cos_f32 v{vW8}, v{b}
v_sin_f32 v{vW8+1}, v{b}
v_mul_f32 v{d}, {f32(0.15915494309189535)}, v{vAI}
v_pk_mul_f32 {vr(vW8,2)}, {vr(vW8,2)}, {vr(a,2)} op_sel:[0,0] op_sel_hi:[1,0]''')
later = [f'v_mul_f32 v{c}, {f32(-L2E)}, v{vLA}', f'v_fract_f32 v{d}, v{d}', f'v_exp_f32 v{c}, v{c}', f'v_cos_f32 v{vW1}, v{d}', f'v_sin_f32 v{vW1+1}, v{d}',
         f'v_add_f32 v{vDT}, v{vDT}, v{vDT}', f'v_pk_mul_f32 {vr(vW1,2)}, {vr(vW1,2)}, {vr(c,2)} op_sel:[0,0] op_sel_hi:[1,0]']
if 'early' in OPT: stamp(9)
tmpc = [0]
pendw = []
nextp = [NUP]
def flushw():
    while pendw: E(pendw.pop(0))
def cmul(D, X, W):
    E(f'v_pk_mul_f32 {vr(D,2)}, {vr(X,2)}, {vr(W,2)} op_sel:[0,0] op_sel_hi:[0,1]')
    flushw()
    E(f'v_pk_fma_f32 {vr(D,2)}, {vr(X,2)}, {vr(W,2)}, {vr(D,2)} op_sel:[1,1,0] op_sel_hi:[1,0,1] neg_lo:[1,0,0]')
def put(X, off, neg):
    t = 32 + (tmpc[0] & 3)
    E(f'v_cvt_pk_bf16_f32 v{t}, v{X}, {"-" if neg else ""}v{X+1}')
    pendw.append(f'ds_write_addtid_b32 v{t} offset:{off}')
    tmpc[0] += 1
    if later and tmpc[0] >= 2: E(later.pop(0))
    if tmpc[0] == int(OPT.get('kdrop', 99)): E('s_setprio 0')
    if LP:
        n = tmpc[0]
        if n == 32: E('s_cbranch_scc1 L_lf\nds_write_b32 v44, v44\nL_lf:')
        if n in (LR0, LR0+2):
            E(f's_cbranch_scc0 L_lr{n}')
            for s_ in range(4*(n != LR0), 4*(n != LR0) + 4): E(f'ds_read_b128 {vr(GF+4*s_,4)}, v{vB} offset:{32*s_}')
            E(f'L_lr{n}:')
        if n == LR1: E(f's_cbranch_scc0 L_lr{n}\nds_read_b32 v45, v44\nL_lr{n}:')
        if n in (LR1+3, LR1+5):
            E(f's_cbranch_scc0 L_lr{n}')
            if n == LR1+3: E('s_waitcnt lgkmcnt(3)\nv_cmp_ne_u32 vcc, 0, v45\ns_cbranch_vccz L_lslow\nL_lok:')
            for s_ in range(8 + 4*(n != LR1+3), 12 + 4*(n != LR1+3)): E(f'ds_read_b128 {vr(GF+4*s_,4)}, v{vB} offset:{32*s_}')
            E(f'L_lr{n}:')
    if tmpc[0] == 30:
        assert not TC and not WW and nextp[0] >= 1
        if CL: E(f's_cbranch_scc0 L_cw1\ns_waitcnt vmcnt({1 + XWARM})\nL_cw1:\ns_waitcnt vmcnt({2*nextp[0]})')
        E(f'v_pk_mul_f32 {vr(vCR,2)}, {vr(vCR,2)}, {vr(vDT,2)} op_sel:[0,0] op_sel_hi:[1,0]')
    while nextp[0] < 4 and UPOS[nextp[0]] == tmpc[0]:
        E(f's_cbranch_scc1 L_mid{nextp[0]}')
        uload(nextp[0])
        E(f'L_mid{nextp[0]}:')
        nextp[0] += 1
put(vW8, ROWB, False)
P0, P1 = 46, 48
cur = vW8
for i in range(2, 32):
    nxt = P0 if cur != P0 else P1
    cmul(nxt, cur, vW8)
    put(nxt, i*ROWB, False)
    cur = nxt
cmul(vW256, cur, vW8)
E(f's_mov_b32 m0, s{sT1}')
hoff = lambda row: HI0 - HIX + STOR[row]*ROWB
H = [50, 52, 54, 56, 58]
put(vCR, hoff(0), True)
cur = vCR
keep = {0: vCR}
for e in range(1, 9):
    nxt = H[e//2] if e % 2 == 0 else P0
    cmul(nxt, cur, vW1)
    put(nxt, hoff(e), True)
    cur = nxt
    if e % 2 == 0: keep[e] = nxt
for e, row in ((0, 13), (2, 14), (6, 16)):
    cmul(P0, keep[e], vW256)
    put(P0, hoff(row), True)
cur = keep[4]
for row in (15, 9, 18):
    nxt = P0 if cur != P0 else P1
    cmul(nxt, cur, vW256); put(nxt, hoff(row), True); cur = nxt
cur = keep[8]
for row in (17, 10, 19, 11, 20, 12, 21):
    nxt = P0 if cur != P0 else P1
    cmul(nxt, cur, vW256); put(nxt, hoff(row), True); cur = nxt
flushw()
NMID = nextp[0] - 1
stamp(3)
if 'early' in OPT: E('s_branch L_cdone')
E(f's_cbranch_scc0 L_cio1')
if STAMPS:
    for i_ in (5, 6, 8, 9, 14, 15): E(f's_mov_b64 s[{SB+2*i_}:{SB+2*i_+1}], 0')
m_begin = len(out)
def gread(s):
    r = GF + 8*(s % 8)
    E(f'ds_read_b128 {vr(r,4)}, v{vA} offset:{32*s}')
    E(f'ds_read_b128 {vr(r+4,4)}, v{vB} offset:{32*s}')
fill = [f's_add_u32 s{sT2}, s{sW}, {SM0+FLG}', f'v_mov_b32 v{vFL}, s{sT2}', f'v_mov_b32 v8, {SM0+FLG}', 'v_mov_b32 v13, -1', f'v_and_b32 v12, 1, v{LANE}', f's_mov_b32 s{sT2}, {(0x03020706 - 0x05040100) & 0xffffffff}', f'v_mul_lo_u32 v12, v12, s{sT2}', 'v_add_u32 v12, 0x05040100, v12',
        f'v_lshlrev_b32 v10, 4, v{LANE}', f'v_add_u32 v10, {BND}, v10']
def dofill(n):
    while n > 0 and fill:
        x = fill.pop(0); E(x)
        if x.startswith('v_'): n -= 1
BPOS = int(OPT.get('bpos', 4 if LP else 5))
def gemm_all(extra):
    q = []
    GD = int(OPT.get('gd', 5 if LP else 3))
    NB = 6 if LP else 8
    def rd(s_):
        if LP: E(f'ds_read_b128 {vr(DT+4*(s_ % 6),4)}, v{vA} offset:{32*s_}'); q.append(s_)
        else: gread(s_); q.extend([s_, s_])
    for s_ in range(GD): rd(s_)
    dofill(99)
    nxt = GD
    ex = extra()
    for s_ in range(16):
        last = len(q) - 1 - q[::-1].index(s_)
        E(f's_waitcnt lgkmcnt({len(q) - 1 - last})')
        if LP: E(f'v_mfma_f32_32x32x16_bf16 {vr(GA,16)}, {vr(DT+4*(s_ % 6),4)}, {vr(GF+4*s_,4)}, {vr(GA,16)}')
        else:
            r = GF + 8*(s_ % 8)
            E(f'v_mfma_f32_32x32x16_bf16 {vr(GA,16)}, {vr(r,4)}, {vr(r+4,4)}, {vr(GA,16)}')
        if s_ == BPOS:
            stamp(13); E('s_barrier'); stamp(4)
        while nxt < 16 and nxt - NB <= s_ and (nxt < 8 or s_ >= BPOS) and nxt - s_ <= GD:
            rd(nxt); nxt += 1
        if (LP and s_ > BPOS) or s_ == 15 - GD:
            for _ in range((1 if nxt < 16 else 2) if LP else 99):
                if ex: ex.pop(0)(); q.append('x')
    assert not ex
    lastg = len(q) - 1 - q[::-1].index(15)
    done_upto[0] = q[:lastg].count('x')
    T_[0] = 0; TL[0] = 0
    for n_ in range(len(fin)): fin[n_] = 40
E(f'''s_waitcnt vmcnt(0) lgkmcnt(1)
s_mov_b64 exec, 1
v_add_f32 v{GA}, -1.0, v{GA}
s_mov_b64 exec, -1''')

def aread(q):
    base, off = (vCA, (1024-64*q)//4) if q >= 9 else (vCA2, (512-64*q)//4)
    return [f'ds_read2_b32 {vr(AF+4*q,2)}, v{base} offset0:{off} offset1:{off+1}',
            f'ds_read2_b32 {vr(AF+4*q+2,2)}, v{base} offset0:{off+2} offset1:{off+3}']
def tzread(i):
    off = 4*((i//3)*64 + 32 - 16*(i % 3)) if i < 6 else 4*(128 + 48 - 16*(i-6))
    return [f'ds_read_b64 {vr(TZ+4*i,2)}, v{vTZ} offset:{off}', f'ds_read_b64 {vr(TZ+4*i+2,2)}, v{vTZ} offset:{off+8}']
def boff(k):
    kind, tp, q = k
    return UPAD + 512*tp - 32 - (16 if kind == 'Z' else 64*q)
band = lambda i: vr(vBAND+4*i, 4)
stream = []
def mk(tile, a_, b_, dst=None): stream.append(('m', tile, a_, b_, dst))
def parts(tp):
    G0 = ('B', tp, 0) if tp == 0 else ('G', tp, 0); Z = ('Z', tp, 0); B0 = ('B', tp, 0)
    gen = []; cv = []
    if tp <= 5:
        gen += [(8, Z, 0), (12, Z, 1)]
        if tp <= 3: gen += [(20, Z, 3)]
        gen += [(0, G0, 0), (4, G0, 1)]
        if tp <= 3: gen += [(16, G0, 2)]
        for base in ((8, 0, 16) if tp <= 3 else (8, 0)):
            for jj in range(4): cv.append(f'v_cvt_pk_bf16_f32 v{DT+base+jj}, v{DT+base+jj}, v{DT+base+4+jj}')
    own = [(tp, ('A', q), ('B', tp, q)) for q in range(8)]
    nxt = [(tp+1, ('A', q+8), ('B', tp, q)) for q in range(8)] if tp < 7 else []
    lead = []
    if tp <= 5: lead.append((tp+2, ('A', 16), G0))
    if tp <= 3: lead.append((tp+4, band(4), G0))
    far = []
    if tp <= 5:
        for dl in range(3):
            if tp + 2 + dl <= 7:
                far.append((tp+2+dl, vr(DT+8, 4), ('T', 3+dl)))
                far.append((tp+2+dl, vr(DT, 4), ('T', dl)))
    if tp <= 3:
        for dl in range(4):
            if tp + 4 + dl <= 7: far.append((tp+4+dl, vr(DT+16, 4), ('T', 6+dl)))
    return gen, cv, own, nxt, lead, far
PT = [parts(tp) for tp in range(8)]
def with_cv(seq, cv, start, per=1):
    for i, t_ in enumerate(seq):
        mk(*t_)
        if i >= start:
            for _ in range(per):
                if cv:
                    x_ = cv.pop(0)
                    stream.append(('x2ok',) if x_ == 'X2OK' else ('v', x_))
    assert not cv
gen, cv = PT[0][0], PT[0][1]
gm = [(None, k, band(bi), DT+dof) for dof, k, bi in gen]
D = lambda r: f'v{GA+r}'
x2v = [f'v_cvt_pk_bf16_f32 v11, {D(10)}, 0', f'v_cvt_pk_bf16_f32 v14, 0, {D(8)}', f'v_cvt_pk_bf16_f32 v15, {D(8)}, {D(8)}',
       f'v_readlane_b32 s{sT2}, v11, 63', f'v_cvt_pk_bf16_f32 v1, {D(9)}, {D(10)}', f'v_cvt_pk_bf16_f32 v2, {D(11)}, {D(12)}',
       f'v_subrev_u32 v{vKX}, 8, v{vKX}']
mk4 = [f'v_mov_b32_dpp v11, v2 quad_perm:[1,0,3,2] {DPPF}', 'v_perm_b32 v2, v11, v2, v12', 'X2OK'] + [f'v_mul_u32_u24 v{vBAND+16+jj}, s{sT2}, v{vBAND+16+jj}' for jj in range(4)]
NG0 = int(OPT.get('ng0', 4))
with_cv(gm[:NG0], [], 0)
stream.append(('expand',))
with_cv(gm[NG0:], x2v, 0, 7 if NG0 > 4 else 4 if NG0 > 3 else 3)
if OPT.get('t0', '0') == '1':
    with_cv(PT[0][2], mk4, 2)
    stream.append(('mark', 0))
    seq = []
    for q in range(8): seq += [PT[1][2][q], PT[0][3][q], PT[1][3][q]]
    with_cv(seq[:23], cv, 0)
    stream.append(('mark', 1))
    with_cv(seq[23:] + [(t_, a_, ('C', 0, 0)) for t_, a_, b_ in PT[0][4]], [], 0)
else:
    seq = []
    for q in range(8):
        seq += [PT[0][2][q], PT[1][2][q], PT[0][3][q], PT[1][3][q]]
    with_cv(seq[:30], mk4 + cv, 4)
    del cv[:]
    stream.append(('mark', 0))
    with_cv(seq[30:31], [], 0)
    stream.append(('mark', 1))
    with_cv(seq[31:] + PT[0][4], [], 0)
for tp in range(2, 8):
    src = tp - 2
    if src >= 1:
        for dof, k, bi in PT[src][0]: mk(None, k, band(bi), DT+dof)
    seq = PT[src][4] if src >= 1 else []
    ownf = tp == 7 or str(tp) in OPT.get('ownf', '6')
    for q in range(8):
        if not ownf: seq = seq + [PT[tp][3][q]]
        seq = seq + [PT[tp][2][q]]
    cvs = PT[src][1]
    if ownf: with_cv(seq, cvs[:8], len(seq) - 4, 2); stream.append(('v', 's_nop 0'))
    else: with_cv(seq, cvs, 5)
    far = PT[src][5]
    with_cv(far[:2], [], 0)
    stream.append(('mark', tp))
    if ownf: with_cv(PT[tp][3], cvs[8:], 0)
    with_cv(far[2:], [], 0)
    if tp == 7 and OPT.get('p2', '1') != '2': stream.append(('part', 1))
    if tp == 6 and OPT.get('p2', '1') != '0': stream.append(('part', 0))
order = []
first, last = {}, {}
for i, it in enumerate(stream):
    if it[0] == 'm':
        for k in (it[2], it[3]):
            if isinstance(k, tuple):
                if k not in first: first[k] = i; order.append(k)
                last[k] = i
slot, free_after = {}, {}
slotfree = {(s_+6) % NSLOT: -1 for s_ in range(NSLOT)}
for k in order:
    if k[0] in 'BZGC':
        s_ = min(slotfree, key=lambda z: slotfree[z])
        slot[k] = s_; free_after[k] = slotfree[s_]; assert free_after[k] < first[k]
        del slotfree[s_]; slotfree[s_] = last[k]
def reg(k):
    if not isinstance(k, tuple): return k
    if k[0] == 'A': return vr(AF+4*k[1], 4)
    if k[0] == 'T': return vr(TZ+4*k[1], 4)
    return vr(BR+4*slot[k], 4)
issued = []; done_upto = [0]; lastop = {}; fin = []
checked = {0}; FOFF = 0
T_ = [0]; TL = [0]
LAT = int(OPT.get('lat', 90)); BACK = int(OPT.get('back', 36)); LOOK = int(OPT.get('look', 18))
state = {'exp': False, 'x2': False}
ops = []
def addop(key, txt, cost, pre='', post=''): ops.append(dict(key=key, txt=txt, cost=cost, pre=pre, post=post))
seenW = False
for k in order:
    if (k == ('A', 16) or k[0] == 'T') and not seenW:
        seenW = True
        addop(('X', 0), f'ds_write_b64 v{vKX}, v[14:15] offset:{KX}', 24, 's_mov_b32 exec_lo, 0\ns_mov_b32 exec_hi, 0x80000000', 's_mov_b64 exec, -1')
        addop(('X', 1), f'ds_write_b32 v{vKX}, v15 offset:{KY+4}', 16, 's_mov_b32 exec_lo, 0\ns_mov_b32 exec_hi, 0x80000000', 's_mov_b64 exec, -1')
        addop(('X', 2), f'ds_write2_b32 v{vK3}, v1, v1 offset0:0 offset1:{FC2}', 24)
        addop(('X', 3), f'ds_write2_b32 v{vK4}, v2, v2 offset0:0 offset1:{FC2}', 24)
        for n_ in range(5): first[('X', n_)] = first[k]
    if k[0] == 'A':
        for x in aread(k[1]): addop(k, x, 16)
    elif k[0] == 'T':
        for x in tzread(k[1]): addop(k, x, 8)
    else: addop(k, f'ds_read_b128 {reg(k)}, v{vCB} offset:{boff(k)}', 16)
def wait_for(idx):
    if idx < done_upto[0]: return
    T_[0] = max(T_[0], fin[idx])
    while idx + 1 < len(issued) and fin[idx+1] + 16 <= T_[0]: idx += 1
    n = len(issued) - 1 - idx
    assert n <= 15
    E(f's_waitcnt lgkmcnt({n})')
    done_upto[0] = idx + 1
def lds(txt, key=None, cost=16):
    if len(issued) - done_upto[0] >= 15: wait_for(done_upto[0])
    E(txt); issued.append(key)
    TL[0] = max(TL[0], T_[0]) + cost
    fin.append(TL[0] + LAT)
    T_[0] = max(T_[0] + 4, TL[0] - 64)
    if key is not None: lastop[key] = len(issued) - 1
def ready(o, i, pos):
    k = o['key']
    if k[0] == 'X': return state['x2']
    if k == ('A', 16) or k[0] == 'T': return not any(p['key'][0] == 'X' for p in ops)
    if k[0] == 'A': return state['exp']
    if free_after[k] > i: return False
    return k[1]//2 in checked or first[k] <= i + LOOK
def doop(o):
    ops.remove(o)
    k = o['key']
    if k[0] in 'BZGC' and k[1]//2 not in checked:
        ph = k[1]//2
        if ('F', ph) not in lastop: lds(f'ds_read_b32 v4, v8 offset:{32+4*ph}', ('F', ph), 8)
        wait_for(lastop[('F', ph)])
        E(f'''v_cmp_eq_u32 vcc, -1, v4
        s_cbranch_vccz L_uc{ph}
        L_uc{ph}d:''')
        T_[0] += 24
        checked.add(ph)
    if len(issued) - done_upto[0] >= 15: wait_for(done_upto[0])
    if o['pre']: E(o['pre'])
    lds(o['txt'], k, o['cost'])
    if o['post']: E(o['post'])
def feed(i, until, maxn=99):
    un = [o['key'] for o in ops if o['key'][0] in 'BZGC' and o['key'][1]//2 not in checked]
    if un and ('F', un[0][1]//2) not in lastop and first[un[0]] <= i + LOOK + 10:
        lds(f'ds_read_b32 v4, v8 offset:{32+4*(un[0][1]//2)}', ('F', un[0][1]//2), 8); maxn -= 1
    while maxn > 0 and TL[0] - until < BACK:
        if len(issued) - done_upto[0] >= 14:
            if fin[done_upto[0] + 2] > T_[0]: break
            wait_for(done_upto[0])
        cand = [o for n_, o in enumerate(ops[:40]) if ready(o, i, n_)]
        if not cand: break
        doop(cand[0]); maxn -= 1
def expand():
    global NOPX
    NOPX = max(0, 11 - (ninstr() - gemm_end - ('mid' in OPT)))
    t = TZ
    E(f'''s_nop NOPX
    v_cvt_pk_bf16_f32 v{t}, {D(7)}, {D(6)}
    v_cvt_pk_bf16_f32 v{t+1}, {D(5)}, {D(4)}
    v_cvt_pk_bf16_f32 v{t+2}, {D(3)}, {D(2)}
    v_cvt_pk_bf16_f32 v{t+3}, {D(1)}, {D(0)}''')
    T_[0] = max(T_[0], 80) + 20
    lds(f'ds_write_b128 v{vKX}, {vr(t,4)} offset:{KX}', None, 52)
    E(f'''v_cvt_pk_bf16_f32 v{t+4}, {D(8)}, {D(7)}
    v_cvt_pk_bf16_f32 v{t+5}, {D(6)}, {D(5)}
    v_cvt_pk_bf16_f32 v{t+6}, {D(4)}, {D(3)}
    v_cvt_pk_bf16_f32 v{t+7}, {D(2)}, {D(1)}
    v_cvt_pk_bf16_f32 v{t+10}, {D(0)}, 0''')
    T_[0] += 24
    lds(f'ds_write_b128 v{vKX}, {vr(t+4,4)} offset:{KY}', None, 52)
    E('s_mov_b64 exec, 1')
    lds(f'ds_write_b32 v{vKX}, v{t+10} offset:{KY+16}', None, 16)
    E('s_mov_b64 exec, -1')
    state['exp'] = True
    for o in [o_ for o_ in ops if o_['key'][0] == 'A'][:4]: doop(o)
    if 'mid' in OPT: stamp(5)
vPA = 10
accinit = set()
ypend = []
NPRE = int(OPT.get('npre', 6 if LP else 2))
def first_b():
    l = [(lambda bi=bi: lds(f'ds_read_b128 {band(bi)}, v10 offset:{1024*bi}', ('W', bi))) for bi in (0, 1, 3, 2)]
    l += [(lambda o=o: doop(o)) for o in [o_ for o_ in ops if o_['key'][0] in 'BZGC'][:NPRE]]
    return l
GD_ = int(OPT.get('gd', 3))
gemm_all(first_b)
assert not fill, fill
gemm_end = ninstr()
if 'mid' in OPT: stamp(8)
TM = [32]
for i, it in enumerate(stream):
    n0 = ninstr()
    if it[0] == 'mark':
        tp = it[1]
        if 'mid' in OPT and tp in (1, 2, 3, 5): stamp({1: 6, 2: 9, 3: 14, 5: 15}[tp])
        if 'sim' in OPT: sys.stderr.write(f'T{tp} at {TM[0]}\n')
        ypend.append([8, [('ds', f'ds_write_b128 v{vY}, {vr(ACC+4*tp,4)} offset:{4*YG*tp}', 52), ('ds', f'ds_write_b8 v{vFL}, v13 offset:{4*tp}', 16)]])
        continue
    if it[0] == 'expand': expand()
    elif it[0] == 'x2ok': state['x2'] = True
    elif it[0] == 'part':
        late = it[1]
        both = OPT.get('p2', '1') == '1'
        E(f's_cmp_lg_u32 s{sW}, 0\ns_cbranch_scc1 L_nopart{late}')
        if late: E('s_setprio 3')
        if not (late and both):
            E(f'''s_lshl_b32 s{sT2}, s{sI}, {4 if PM else 10}
            s_add_u32 s{sT2}, s{sT2}, {WS_PART}
            v_min_u32 v{vPA}, 55, v{LANE}''')
            if PM: E(f'v_mul_u32_u24 v{vPA}, {PM}, v{vPA}\nv_add_u32 v{vPA}, s{sT2}, v{vPA}')
            else: E(f'v_lshl_add_u32 v{vPA}, v{vPA}, 4, s{sT2}')
        E(f'global_load_dwordx4 {vr(TZ+24+(4 if late and both else 0),4)}, v{vPA}, {sp(sWS)} sc1\nL_nopart{late}:')
        n0 = ninstr() - 2
    elif it[0] == 'v':
        E(it[1]); T_[0] = max(T_[0], TM[0] - 8) + 4
    else:
        _, tile, a_, b_, dst = it
        keys = [k for k in (a_, b_) if isinstance(k, tuple)]
        for k in keys:
            while any(o['key'] == k for o in ops):
                o = [o for n_, o in enumerate(ops) if ready(o, i-1, n_)][0]
                doop(o)
        need = [lastop[k] for k in keys]
        if need and max(need) >= done_upto[0]:
            if fin[max(need)] > max(T_[0], TM[0]): feed(i-1, fin[max(need)] - LAT + 48)
            wait_for(max(need))
        if tile is None: E(f'v_mfma_f32_16x16x32_bf16 {vr(dst,4)}, {reg(a_)}, {reg(b_)}, 0')
        else:
            c_ = vr(ACC+4*tile, 4) if tile in accinit else '0'
            accinit.add(tile)
            E(f'v_mfma_f32_16x16x32_bf16 {vr(ACC+4*tile,4)}, {reg(a_)}, {reg(b_)}, {c_}')
        T_[0] = max(T_[0], TM[0]); TM[0] = T_[0] + 16; T_[0] += 4
        for p in ypend: p[0] -= ninstr() - n0
        n0 = ninstr()
        if ypend and ypend[0][0] <= 0:
            for _ in range(int(OPT.get('yw', 1))):
                if ypend[0][1]:
                    kind, txt, cost = ypend[0][1].pop(0)
                    if kind == 'ds': lds(txt, None, cost)
                    else: E(txt)
            if not ypend[0][1]: ypend.pop(0)
        else:
            feed(i, T_[0], 2)
            QN = int(OPT.get('qn', 3))
            if QN and ypend and ypend[0][0] - (ninstr() - n0) > 1:
                k_ = min(QN, ypend[0][0] - (ninstr() - n0) - 1)
                E(f's_nop {k_-1}')
                for p in ypend: p[0] -= k_ - 1
    for p in ypend: p[0] -= ninstr() - n0
order = ops
assert not order
for p in ypend:
    if p[0] > 0: E(f's_nop {p[0]-1}')
    n0 = ninstr()
    for kind, txt, cost in p[1]: E(txt)
    for p2 in ypend: p2[0] -= max(p[0], 0) + ninstr() - n0
def isize(x):
    x = x.strip()
    if x.endswith(':'): return 0
    op = x.split(' ')[0]
    if op in ('s_waitcnt', 's_nop', 's_barrier', 's_cbranch_vccz', 's_cbranch_scc1', 'v_min_u32', 'v_and_b32', 'v_mov_b32', 's_mov_b64', 'v_subrev_u32', 'v_cmp_le_u32'): return 4
    return 8
if 'strip' in OPT:
    import re as _re
    pat = _re.compile(OPT['strip'])
    body = out[m_begin:]; del out[m_begin:]
    out += [x for x in body if not pat.search(x)]
NHOP = 0
if ICW:
    body = out[m_begin:]; del out[m_begin:]
    acc = ICW
    for j, x in enumerate(body):
        out.append(x); acc += isize(x)
        nxt_ok = 'v_mfma' in x or acc >= ICW - 8
        if acc >= ICW - 28 and nxt_ok and not x.endswith(':'):
            out.append(f'L_hop{NHOP}:'); out.append(f'    s_cbranch_execz L_hop{NHOP+1}'); NHOP += 1; acc = 4
    out.append(f'L_hop{NHOP}:'); out.append('    s_cbranch_execz L_hopend')
stamp(7)
if 'twice' in OPT: E(f's_waitcnt lgkmcnt(0) vmcnt(0)\nv_add_u32 v{vKX}, 8, v{vKX}\ns_add_u32 s7, s7, 1\ns_cmp_eq_u32 s7, 1\ns_cbranch_scc1 L_twice')
if 'noepi' in OPT or 'nofin' in OPT: E('s_branch L_cdone')
E(f'''s_cmp_lg_u32 s{sW}, 0
s_cbranch_scc1 L_cdone''')
HM = OPT.get('hm', '0') == '1'
fr_begin = len(out)
PL = TZ + 24
both = OPT.get('p2', '1') == '1'
if OPT.get('p2', '1') == '2': E('s_setprio 3')
E(f'''s_mov_b32 s{sSPIN}, {SPIN_MAX}
s_mov_b32 s{sT0}, 0x0c0c0400
s_mov_b32 s{sT1}, 0x04000c0c
L_mb:
ds_read_b128 v[28:31], v8 offset:48
ds_read_b128 v[20:23], v8 offset:64
ds_read_b128 v[24:27], v8 offset:80
ds_read_b32 v4, v8 offset:28
s_waitcnt lgkmcnt(0)
v_and_b32 v4, v4, v31
v_cmp_eq_u32 vcc, -1, v4
s_cbranch_vccnz L_mbd''')
spin_check('L_mb')
E('L_mbd:')
for k in range(4):
    E(f'ds_read_b32 v{16+k}, v26 offset:{k*LOB}')
E(f'v_and_b32 v27, 0x1ffff8, v27\nv_subrev_u32 v5, 56, v{LANE}\nv_ashrrev_i32 v5, 31, v5\nv_lshlrev_b32 v5, 8, v5')
def pchk(lbl):
    E(f'''v_perm_b32 v36, v{PL+1}, v{PL}, s{sT0}
    v_perm_b32 v37, v{PL+3}, v{PL+2}, s{sT1}
    v_or_b32 v36, v36, v37
    v_cmp_ne_u32 vcc, v28, v36
    s_cbranch_vccz {lbl}''')
if both:
    E('s_waitcnt vmcnt(1)')
    pchk('L_ppd')
    E('s_waitcnt vmcnt(0)')
    for k in range(4): E(f'v_mov_b32 v{PL+k}, v{PL+4+k}')
E(f'''s_mov_b32 s{sSPIN}, {SPIN_MAX}
s_branch L_pp1
L_pp:
global_load_dwordx4 {vr(PL,4)}, v{vPA}, {sp(sWS)} sc1
L_pp1:
s_waitcnt vmcnt(0)''')
pchk('L_ppd')
spin_check('L_pp')
E('L_ppd:')
stamp(12)
E(f'''v_and_b32 v{PL}, v5, v{PL}
v_and_b32 v{PL+2}, v5, v{PL+2}
v_and_b32 v{PL+1}, v5, v{PL+1}
v_and_b32 v{PL+3}, v5, v{PL+3}
s_waitcnt lgkmcnt(0)
v_permlane32_swap_b32 v{PL}, v{PL+2}
v_permlane32_swap_b32 v{PL+1}, v{PL+3}
v_add_f32 v{PL}, v{PL}, v{PL+2}
v_add_f32 v{PL+1}, v{PL+1}, v{PL+3}
v_fmac_f32 v20, v16, v24
v_fmac_f32 v21, v17, v24
v_permlane16_swap_b32 v{PL}, v{PL+1}
v_add_f32 v{PL}, v{PL}, v{PL+1}
v_fmac_f32 v22, v18, v24
v_fmac_f32 v23, v19, v24''')
for sh in (8, 4, 2, 1):
    E(f'''v_add_f32_dpp v{PL}, v{PL}, v{PL} row_ror:{sh} {DPPF}''')
    if sh != 1: E('s_nop 1')
E(f'''v_cvt_pk_bf16_f32 v{PL}, 0, v{PL}
s_mov_b64 exec, 1
v_readlane_b32 s{sT1}, v{PL}, 16
v_readlane_b32 s{sT2}, v{PL}, 32
v_readlane_b32 s{sT3}, v{PL}, 48
v_fmac_f32 v20, v{PL}, v25
v_fmac_f32 v21, s{sT1}, v25
v_fmac_f32 v22, s{sT2}, v25
v_fmac_f32 v23, s{sT3}, v25
v_cvt_pk_bf16_f32 v16, v20, v21
v_cvt_pk_bf16_f32 v17, v22, v23
global_store_dwordx2 v27, v[16:17], {sp(sOUT)}
s_branch L_cdone''')
if HM: islands('hm', fr_begin)
for ph in ((1, 2, 3) if ST0 == 'pre' else (0, 1, 2, 3)):
    E(f'L_uc{ph}:')
    if 'mid' not in OPT: stamp({1: 5, 2: 8, 3: 14}[ph])
    wait_word(f'u{ph}', 8, 32+4*ph, 4, 0)
    if 'mid' not in OPT: stamp({1: 6, 2: 9, 3: 15}[ph])
    E(f's_branch L_uc{ph}d')
if LP:
    E(f'''L_lslow:
    s_mov_b32 s{sSPIN}, {SPIN_MAX}
    L_lsl:
    ds_read_b32 v45, v44
    s_waitcnt lgkmcnt(0)
    v_cmp_ne_u32 vcc, 0, v45
    s_cbranch_vccnz L_lsd
    s_sub_u32 s{sSPIN}, s{sSPIN}, 1
    s_cbranch_scc0 L_lsl
    L_lsd:
    s_cmp_eq_u32 s{sIO}, 0
    s_branch L_lok''')
vP, vG, vGF, vYV = 80, 72, 112, 32
def stage(p):
    for k in range(4):
        E(f'v_perm_b32 v{40+k}, v{vX+4*p+2+(k>>1)}, v{vX+4*p+(k>>1)}, s{sP1 if k & 1 else sP0}')
    for k in range(4):
        E(f'ds_write_b32 v64, v{40+k} offset:{k*UCB+1024*p}')
def unpack(p):
    for j in range(2):
        for h in range(2):
            E(f'''v_lshlrev_b32 v{vP+8*p+4*j+2*h}, 16, v{vX+4*p+2*j+h}
            v_and_b32 v{vP+8*p+4*j+2*h+1}, 0xffff0000, v{vX+4*p+2*j+h}''')
G1 = OPT.get('g1', '0') == '1'
NA = 3 if G1 else 2
def pollA():
    E(f'''global_load_dwordx2 v[12:13], v70, {sp(sDBG)} sc1
    global_load_dwordx2 {vr(vG,2)}, v66, {sp(sWS)} offset:-4096 sc1''')
    if G1: E(f'global_load_dwordx2 {vr(vG+2,2)}, v66, {sp(sWS)} offset:-2048 sc1')
def pollB():
    E(f'global_load_dwordx2 v[52:53], v65, {sp(sWS)} sc1')
    for p in range(2 if G1 else 1, 4):
        E(f'global_load_dwordx2 {vr(vG+2*p,2)}, v66, {sp(sWS)} offset:{-4096+2048*p} sc1')
def chkA():
    E(f'''v_cmp_eq_u32 vcc, 1, v13
    v_cmp_eq_u32 {sp(sM0)}, v12, v{vG+1}
    s_and_b64 vcc, vcc, {sp(sM0)}''')
    if G1: E(f'v_cmp_eq_u32 {sp(sM0)}, v12, v{vG+3}\ns_and_b64 vcc, vcc, {sp(sM0)}')
    E('s_cmp_eq_u64 vcc, -1\ns_cbranch_scc1 L_pad')
def epi(p, masked):
    if PRIO == str(p): E('s_setprio 2')
    if PRIO == 'w': E('s_setprio 0')
    if str(p) in OPT.get('spec', '3'):
        wait_word(f'd{p}', 71, 8*p-4, 48, SLEEP)
        if OPT.get('sps', '0') != '0': E(f's_sleep {OPT["sps"]}')
        E(f's_mov_b32 s{sSPIN}, {SPIN_MAX}\nL_wf_e{p}:\nds_read_b32 v48, v71 offset:{8*p}')
        for k in range(4):
            E(f'ds_read_b64 {vr(vYV+2*k,2)}, v67 offset:{k*LOB+8*YG*p}')
        E(f's_waitcnt lgkmcnt(4)\nv_cmp_eq_u32 vcc, -1, v48\ns_cbranch_vccnz L_wfd_e{p}')
        spin_check(f'L_wf_e{p}')
        E(f'L_wfd_e{p}:')
        if p == 3: stamp(14)
    else:
        wait_word(f'e{p}', 71, 8*p, 48, SLEEP if p < 3 else int(OPT.get('sl3', 0)))
        if p == 0: stamp(8)
        if p == 3: stamp(14)
        for k in range(4):
            E(f'ds_read_b64 {vr(vYV+2*k,2)}, v67 offset:{k*LOB+8*YG*p}')
    if 'ph' in OPT: stamp([1, 2, 3, 13][p])
    if PRIO == 'w': E('s_setprio 2')
    E('s_waitcnt lgkmcnt(0)')
    for j in range(2):
        r = vP + 8*p + 4*j
        for k in range(4):
            E(f'v_fmac_f32 v{r+k}, v{vYV+2*k+j}, v{vGF+2*p+j}')
        E(f'''v_cvt_pk_bf16_f32 v{r}, v{r}, v{r+1}
        v_cvt_pk_bf16_f32 v{r+1}, v{r+2}, v{r+3}''')
        if masked: E(f's_cmp_eq_u32 s{sJ}, {2*p+j}\ns_cselect_b64 exec, {sp(sEX)}, -1')
        if 'no3' in OPT and p == 1: E(f's_lshr_b32 s{sT0}, s{sI}, 4\ns_cmp_eq_u32 s{sT0}, 3\ns_cselect_b64 exec, 1, exec')
        if 'noall' in OPT and p == 1: E('s_mov_b64 exec, 1')
        E(f'global_store_dwordx2 v{vXO+p}, {vr(r,2)}, {sp(sOUT)} offset:{1024*j}')
        if masked: E('s_mov_b64 exec, -1')
    if 'ph' in OPT and p < 3: stamp([12, 15, 7][p])
    if PRIO == 'w': E('s_setprio 0')
def gun(p):
    E(f'''v_lshlrev_b32 v{vGF+2*p}, 16, v{vG+2*p}
    v_and_b32 v{vGF+2*p+1}, 0xffff0000, v{vG+2*p}''')
E('; ---- I/O waves\nL_cio1:')
if ST0 == 'pre':
    E(f's_waitcnt vmcnt({2*NMID})')
    stamp(13)
    stage(0)
E('s_waitcnt lgkmcnt(0)\ns_barrier')
stamp(4)
if ST0 != 'pre':
    E(f's_waitcnt vmcnt({2*NMID})')
    stamp(13)
    stage(0)
    E(f'v_mov_b32 v44, 1\nds_write_b32 v68, v44')
if KPRIO == 'io': E('s_setprio 0')
E(f'''v_lshlrev_b32 v65, 3, v{LANE}
v_add_u32 v65, {WS_KEYS}, v65
v_and_b32 v66, 255, v0
v_lshlrev_b32 v66, 3, v66
v_add_u32 v66, {WS_G+4096}, v66
v_mov_b32 v70, 0
v_bfe_u32 v12, v0, 1, 2
v_bfe_u32 v13, v0, 7, 1
v_lshl_add_u32 v12, v13, 2, v12
v_mul_u32_u24 v67, {YG}, v12
v_bfe_u32 v12, v0, 3, 4
v_lshl_add_u32 v67, v12, 4, v67
v_and_b32 v12, 1, v0
v_lshl_add_u32 v67, v12, 3, v67
s_add_u32 s{sT2}, s{sCH}, {SM0+FLG+32}
v_mov_b32 v68, s{sT2}
v_mov_b32 v69, {SM0+FLG}
v_lshl_add_u32 v71, v13, 2, v69
v_mov_b32 v59, -1
''')
assert NMID in (1, 2)
U3E = OPT.get('u3e', '0') == '1'
def stagef(p):
    stage(p)
    E(f'ds_write_b8 v68, v59 offset:{4*p}')
if U3E: pollA(); uload(3)
E(f's_waitcnt vmcnt({2*(NMID-1) + 4*U3E})')
stagef(1)
stamp(12)
if not U3E:
    pollA()
    if NMID == 1: uload(2)
    uload(3)
unpack(0); unpack(1)
assert NMID == 2 and not U3E
E(f's_waitcnt vmcnt({NA + 2})')
stagef(2)
stamp(15)
E('s_waitcnt vmcnt(2)')
if PRIO == 'io': E('s_setprio 2')
E(f's_mov_b32 s{sS3}, 0')
chkA()
E('s_waitcnt vmcnt(0)')
stagef(3)
E(f'''s_mov_b32 s{sS3}, 1
s_mov_b32 s{sSPIN}, {SPIN_MAX}
L_pa:''')
pollA()
E('s_waitcnt vmcnt(0)')
chkA()
spin_check('L_pa')
E('L_pad:')
stamp(6)
if not G1: pollB()
gun(0)
E(f'v_readfirstlane_b32 s{sTAG}, v12')
epi(0, False)
E(f'''s_cmp_lg_u32 s{sS3}, 0
s_cbranch_scc1 L_s3d
s_waitcnt vmcnt({2 if G1 else 6})''')
stagef(3)
E('L_s3d:')
stamp(5)
if G1:
    pollB()
    gun(1)
    epi(1, False)
unpack(2); unpack(3)
E(f'''s_mov_b32 s{sSPIN}, {SPIN_MAX}
s_waitcnt vmcnt(2)
s_branch L_pb1
L_pb:''')
pollB()
E(f'''s_waitcnt vmcnt(0)
L_pb1:
v_cmp_eq_u32 vcc, s{sTAG}, v53
v_cmp_eq_u32 {sp(sM0)}, s{sTAG}, v{vG+3}
v_cmp_eq_u32 {sp(sM1)}, s{sTAG}, v{vG+5}
s_and_b64 vcc, vcc, {sp(sM0)}
v_cmp_eq_u32 {sp(sM0)}, s{sTAG}, v{vG+7}
s_and_b64 vcc, vcc, {sp(sM1)}
s_and_b64 vcc, vcc, {sp(sM0)}
s_cmp_eq_u64 vcc, -1
s_cbranch_scc1 L_pbd''')
spin_check('L_pb')
E('L_pbd:')
stamp(9)
key_reduce(52)
for p in range(2 if G1 else 1, 4): gun(p)
E(f'''s_andn2_b32 s{sIDX}, 2047, s{sKEY}
s_lshr_b32 s{sT0}, s{sIDX}, 1
s_mov_b64 {sp(sEX)}, -1
s_bitset0_b64 {sp(sEX)}, s{sT0}
s_lshr_b32 s{sT2}, s{sIDX}, 9
s_lshl_b32 s{sJ}, s{sT2}, 1
s_and_b32 s{sT1}, s{sIDX}, 1
s_add_u32 s{sJ}, s{sJ}, s{sT1}
s_bfe_u32 s{sT1}, s{sIDX}, 0x20007
s_cmp_eq_u32 s{sT1}, s{sCH}
s_cselect_b32 s{sJ}, s{sJ}, 8
s_cbranch_scc0 L_nomb
s_and_b32 s{sT0}, s{sT0}, 63
v_readlane_b32 s{sT1}, v{vG}, s{sT0}
v_readlane_b32 s{sT3}, v{vG+2}, s{sT0}
v_readlane_b32 s{sT4}, v{vG+4}, s{sT0}
v_readlane_b32 s{sT5}, v{vG+6}, s{sT0}
s_bitcmp1_b32 s{sT2}, 0
s_cselect_b32 s{sT1}, s{sT3}, s{sT1}
s_cselect_b32 s{sT4}, s{sT5}, s{sT4}
s_bitcmp1_b32 s{sT2}, 1
s_cselect_b32 s{sT1}, s{sT4}, s{sT1}
; x of the routed row straight from this lane's raw rows
s_lshl_b32 s{sT3}, s{sJ}, 1
s_set_gpr_idx_on s{sT3}, 1
v_mov_b32 v40, v{vX}
v_mov_b32 v41, v{vX+1}
s_set_gpr_idx_off
s_bitcmp1_b32 s{sIDX}, 0
s_cselect_b32 s{sT3}, 0, 16
s_lshl_b32 s{sT1}, s{sT1}, s{sT3}
s_and_b32 s{sT1}, s{sT1}, 0xffff0000
v_readlane_b32 s{sT4}, v40, s{sT0}
v_readlane_b32 s{sT5}, v41, s{sT0}
s_and_b32 s{sT0}, s{sKEY}, 0xffff0000
s_xor_b32 s{sT3}, s{sT0}, 0xffff0000
s_xor_b32 s{sT0}, s{sT0}, 0x80000000
s_bitcmp1_b32 s{sKEY}, 31
s_cselect_b32 s{sT0}, s{sT0}, s{sT3}
v_mov_b32 v45, {f32(-L2E)}
v_mul_f32 v45, s{sT0}, v45
v_exp_f32 v45, v45
v_mov_b32 v44, s{sT1}
v_add_f32 v45, 1.0, v45
v_rcp_f32 v45, v45
v_sub_f32 v46, 1.0, v44
v_cvt_pk_bf16_f32 v45, 0, v45
v_cvt_pk_bf16_f32 v46, 0, v46
v_mul_f32 v45, v45, v46
s_lshl_b32 s{sT0}, s{sT4}, 16
s_and_b32 s{sT1}, s{sT4}, 0xffff0000
s_lshl_b32 s{sT3}, s{sT5}, 16
s_and_b32 s{sT4}, s{sT5}, 0xffff0000
v_mov_b32 v40, s{sT0}
v_mov_b32 v41, s{sT1}
v_mov_b32 v42, s{sT3}
v_mov_b32 v43, s{sT4}
s_lshr_b32 s{sT3}, s{sIDX}, 8
s_lshl_b32 s{sT0}, s{sT3}, 2
s_bfe_u32 s{sT1}, s{sIDX}, 0x20002
s_add_u32 s{sT0}, s{sT0}, s{sT1}
s_mul_i32 s{sT0}, s{sT0}, {YG}
s_and_b32 s{sT1}, s{sIDX}, 0xf0
s_add_u32 s{sT0}, s{sT0}, s{sT1}
s_and_b32 s{sT1}, s{sIDX}, 3
s_lshl_b32 s{sT1}, s{sT1}, 2
s_add_u32 s{sT0}, s{sT0}, s{sT1}
v_mov_b32 v46, s{sT0}
s_lshl_b32 s{sT0}, s{sIDX}, 10
s_lshl_b32 s{sT1}, s{sI}, 3
s_add_u32 s{sT0}, s{sT0}, s{sT1}
v_mov_b32 v47, s{sT0}
ds_write_b128 v69, v[40:43] offset:64
ds_write_b128 v69, v[44:47] offset:80
v_mov_b32 v48, s{sTAG}
v_mov_b32 v51, -1
; a routed row of the first phase was stored like any other: its store must be complete before the final one is allowed
s_cmp_ge_u32 s{sT2}, {2 if G1 else 1}
s_cbranch_scc1 L_mb1
s_waitcnt vmcnt(0)
L_mb1:
ds_write_b128 v69, v[48:51] offset:48
L_nomb:''')
if 'ph' not in OPT: stamp(7)
HE = OPT.get('he', '0') == '1'
if not G1: epi(1, True)
if HM: hop('hm', sCH, 4)
if HE: hop('he', sCH, 4)
e_begin = len(out)
epi(2, True); epi(3, True)
if HE: islands('he', e_begin)
E('L_cdone:')
stamp(10)
if STAMPS:
    E('s_waitcnt vmcnt(0)')
    stamp(11)
write_stamps()
E('s_endpgm')

A_T = 0
E(f"""; ================= router workgroups =================
L_rg:
{"v_mov_b32 v37, 128" if 'r' in TW else ""}
{"global_load_dword v37, v37, " + sp(sWS) if 'r' in TW else ""}
s_lshl_b32 s{sT0}, s{sI}, 2
s_lshl_b32 s{sT1}, s{sW}, 8
s_add_u32 s{sT0}, s{sT0}, s{sT1}
s_lshl_b32 s{sT1}, s{sT0}, 2
s_add_u32 s{sT1}, s{sT1}, {WS_G}
v_mov_b32 v49, s{sT1}
s_sub_u32 s{sT0}, 2047, s{sT0}
v_bfe_u32 v6, v{LANE}, 3, 1
v_lshrrev_b32 v5, 5, v{LANE}
v_lshl_add_u32 v5, v6, 1, v5
s_lshl_b32 s{sT1}, s{sW}, 4
v_lshl_add_u32 v6, v5, 2, s{sT1}
v_sub_u32 v5, s{sT0}, v5
v_and_b32 v48, 15, v{LANE}
v_lshlrev_b32 v48, 3, v48
s_lshl_b32 s{sT0}, s{sI}, 3
s_add_u32 s{sT0}, s{sT0}, {WS_KEYS}
v_mov_b32 v45, s{sT0}
s_cmp_ge_u32 s{sI}, 32
s_cselect_b32 s{sT1}, 8, 0
s_sub_u32 s{sT0}, s{sI}, s{sT1}
s_lshl_b32 s{sT0}, s{sT0}, 3
s_add_u32 s{sT0}, s{sT0}, s{sW}
s_lshl_b32 s{sT0}, s{sT0}, 12
v_and_b32 v47, 31, v{LANE}
v_lshl_add_u32 v47, v47, 7, s{sT0}
s_lshr_b32 s{sT1}, s{sT0}, 18
s_lshl_b32 s{sT1}, s{sT1}, 9
s_bfe_u32 s{sT0}, s{sT0}, 0x5000d
s_mul_i32 s{sT0}, s{sT0}, {16*3584}
s_add_u32 s{sT0}, s{sT0}, s{sT1}
v_and_b32 v39, 15, v{LANE}
v_mul_u32_u24 v39, 3584, v39
s_bitcmp1_b32 s{sW}, 1
s_cselect_b32 s{sT1}, {48 if OPT.get('rsx', '0') != '0' else 0}, {48 if OPT.get('rsx', '0') == '2' else 0}
v_and_b32 v38, s{sT1}, v{LANE}
v_xor_b32 v38, 48, v38
v_lshl_add_u32 v39, v38, 3, v39
v_add_u32 v39, s{sT0}, v39
s_bitcmp1_b32 s{sW}, 0
s_cselect_b64 {sp(sT4)}, {sp(sWU)}, {sp(sWG)}
{"global_load_dword v38, v39, " + sp(sT4) if RS == '1' else ""}
s_waitcnt lgkmcnt(0)
s_add_u32 s{sTAG}, s{sTAG}, {TAGINC}
v_mov_b32 v61, s{sTAG}
v_mov_b32 v41, s{sTAG}
v_mov_b32 v43, s{sTAG}
s_add_u32 s{sT0}, s{sI}, s{sW}
s_cmp_lg_u32 s{sT0}, 0
s_cbranch_scc1 L_anotag
v_mov_b32 v7, 0
v_mov_b32 v62, s{sTAG}
v_mov_b32 v63, 1
s_mov_b64 exec, 1
s_waitcnt vmcnt(0)
global_store_dwordx2 v7, v[62:63], {sp(sDBG)} sc1
s_mov_b64 exec, -1
s_branch L_rg1
L_anotag:
s_waitcnt vmcnt({2 + (RS == '1') + ('r' in TW)})""")
def dots(rows):
    for k in range(4):
        for r in rows:
            E(f'v_dot2_f32_bf16 v{50+r}, v{vXA+4*r+k}, v{vWRv+k}, {"0" if k == 0 else "v%d" % (50+r)}')
            E(f'v_dot2_f32_bf16 v{54+r}, v{vXA+4*r+k}, v{vGWv+k}, {"0" if k == 0 else "v%d" % (54+r)}')
E('L_rg1:')
dots((0, 1))
E(f's_cbranch_scc0 L_rg2\ns_waitcnt vmcnt({int(RS == "1") + ("r" in TW)})\nL_rg2:')
if RS == '2': E(f'global_load_dword v38, v39, {sp(sT4)}')
stamp(2)
if RW == 'pre': E(f'global_load_dword v46, v47, {sp(sWD)}')
dots((2, 3))
E(f"""v_permlane32_swap_b32 v50, v51
v_permlane32_swap_b32 v54, v55
v_add_f32 v50, v50, v51
v_permlane32_swap_b32 v52, v53
v_add_f32 v54, v54, v55
v_permlane32_swap_b32 v56, v57
v_add_f32 v52, v52, v53
v_add_f32 v56, v56, v57
v_permlane16_swap_b32 v50, v54
s_nop 0
v_permlane16_swap_b32 v52, v56
v_add_f32 v50, v50, v54
v_add_f32 v52, v52, v56
s_nop 0
v_add_f32_dpp v51, v50, v50 row_ror:8 row_mask:0xf bank_mask:0x3
v_add_f32_dpp v53, v52, v52 row_ror:8 row_mask:0xf bank_mask:0xf
s_nop 1
v_mov_b32_dpp v51, v53 quad_perm:[0,1,2,3] row_mask:0xf bank_mask:0xc
s_nop 1
v_add_f32_dpp v51, v51, v51 row_half_mirror {DPPF}
s_nop 1
v_add_f32_dpp v51, v51, v51 quad_perm:[1,0,3,2] {DPPF}
s_nop 1
v_add_f32_dpp v50, v51, v51 quad_perm:[2,3,0,1] {DPPF}
v_cvt_pk_bf16_f32 v50, 0, v50
v_mul_f32 v52, {f32(-L2E)}, v50
v_exp_f32 v52, v52
v_ashrrev_i32 v51, 31, v50
v_add_f32 v52, 1.0, v52
v_rcp_f32 v52, v52
v_or_b32 v51, 0x80000000, v51
v_xor_b32 v50, v50, v51
v_mov_b32 v53, v52
v_and_b32 v50, 0xffff0000, v50
v_or_b32 v50, v50, v5
v_permlane32_swap_b32 v52, v53
s_mov_b32 exec_lo, 0x00000101
s_mov_b32 exec_hi, 0x00000101
ds_write_b32 v6, v50 offset:{A_T}
s_mov_b64 exec, -1
v_cvt_pk_bf16_f32 v40, v52, v53
s_nop 1
v_mov_b32_dpp v42, v40 row_ror:8 {DPPF}
s_mov_b64 exec, 0x10000
global_store_dwordx4 v49, v[40:43], {sp(sWS)} sc1
s_mov_b64 exec, -1""")
stamp(5)
E("""s_waitcnt lgkmcnt(0)
s_barrier""")
stamp(3)
E(f"""s_cmp_lg_u32 s{sW}, 0
s_cbranch_scc1 L_rg3
ds_read_b64 v[52:53], v48 offset:{A_T}
s_waitcnt lgkmcnt(0)
v_max_u32 v60, v52, v53
s_nop 1""")
for sh in (8, 4, 2, 1):
    E(f'v_max_u32_dpp v60, v60, v60 row_ror:{sh} {DPPF}')
    if sh != 1: E('s_nop 1')
E(f"""s_mov_b64 exec, 1
global_store_dwordx2 v45, v[60:61], {sp(sWS)} sc1""")
stamp(4)
E('s_mov_b64 exec, -1\nL_rg3:')
if RW == 'post': E(f's_lshr_b32 s{sT0}, s{sI}, 3\ns_cmp_eq_u32 s{sT0}, 3\ns_cbranch_scc1 L_adone\ns_barrier\n{"global_load_dword v38, v39, " + sp(sT4) if RS == "3" else ""}\nglobal_load_dword v46, v47, {sp(sWD)}\ns_waitcnt vmcnt(0)')
if RW == 'pre': E('s_waitcnt vmcnt(0)')
E('s_branch L_adone')
if 'idle' in OPT:
    E(f'''L_idle:
    s_lshr_b32 s{sT0}, s{sSLOT}, 1
    s_lshl_b32 s{sT0}, s{sT0}, 6
    s_lshr_b32 s{sT1}, s{sW}, 1
    s_add_u32 s{sT0}, s{sT0}, s{sT1}
    s_add_u32 s{sT0}, s{sT0}, 28
    s_mul_i32 s{sT0}, s{sT0}, 3584
    v_and_b32 v4, 31, v{LANE}
    v_min_u32 v4, 27, v4
    v_lshl_add_u32 v4, v4, 7, s{sT0}
    v_lshrrev_b32 v5, 5, v{LANE}
    v_mul_u32_u24 v5, {32*3584}, v5
    v_add_u32 v4, v4, v5
    v_subrev_u32 v6, {4*3584}, v4
    s_bitcmp1_b32 s{sW}, 0
    s_waitcnt lgkmcnt(0)
    s_cselect_b64 {sp(sT4)}, {sp(sWU)}, {sp(sWG)}
    global_load_dword v5, v4, {sp(sT4)}
    global_load_dword v7, v6, {sp(sT4)}
    s_waitcnt vmcnt(0)
    s_branch L_adone''')
F_IDX, F_PART, F_X = 98304, 98304 + 64, 98304 + 64 + 2048
XL = OPT.get('xl', '1') == '1'
LD = OPT.get('ld', '1') == '1'
vFG, vFU, vFD, vBT = 64, 80, 96, 112
FLEAD = int(OPT.get('flead', 0))
OPP = OPT.get('opp', '1') == '1'
DLATE = OPT.get('dlate', '2') != '0'
D2 = OPT.get('dlate', '2') == '2'
FBAR = OPT.get('fbar', '1') == '1'
EPOLL = OPT.get('epoll', '0') == '1'
E(f"""; ================= FFN workgroups =================
L_ffn:
; slices live on seven of the eight column groups (group 3 has the slowest output path): fi = 8*g' + k
s_cmp_eq_u32 s{sT0}, 3
s_cbranch_scc1 {'L_idle' if 'idle' in OPT else 'L_adone'}
s_lshr_b32 s{sFI}, s{sI}, 1
s_cmp_gt_u32 s{sT0}, 3
s_cselect_b32 s{sT1}, 8, 0
s_sub_u32 s{sFI}, s{sFI}, s{sT1}
v_lshrrev_b32 v8, 2, v{LANE}
v_and_b32 v9, 3, v{LANE}
v_mul_u32_u24 v16, 3584, v8
v_lshl_add_u32 v16, v9, 4, v16
s_mul_i32 s{sT0}, s{sW}, {64*3584}
s_lshl_b32 s{sT1}, s{sFI}, 6
s_add_u32 s{sT0}, s{sT0}, s{sT1}
s_mul_i32 s{sT3}, s{sW}, 12288
s_and_b32 s{sT1}, s{sFI}, {1 if OPP else 0}
s_mul_i32 s{sT2}, s{sT1}, {32*3584}
s_lshl_b32 s{sT1}, s{sT1}, 11
s_add_u32 s{sT4}, s{sT3}, s{sT1}
s_xor_b32 s{sT5}, s{sT4}, 2048
s_add_u32 s{sT1}, s{sT0}, s{sT2}
s_sub_u32 s{sT0}, s{sT0}, s{sT2}
s_add_u32 s{sT0}, s{sT0}, {32*3584}
v_add_u32 v18, s{sT0}, v16
v_add_u32 v16, s{sT1}, v16
v_add_u32 v17, {16*3584}, v16
v_add_u32 v19, {16*3584}, v18
s_waitcnt lgkmcnt(0)""")
stamp(1)
def gu(j):
    sb = sT4 if j < 2 else sT5
    E(f"""s_add_u32 m0, s{sb}, {1024*(j & 1)}
    s_nop 0
    global_load_lds_dwordx4 v{16+j}, {sp(sWG)}{NTW}
    s_add_u32 m0, s{sb}, {4096+1024*(j & 1)}
    s_nop 0
    global_load_lds_dwordx4 v{16+j}, {sp(sWU)}{NTW}""")
FTHR = OPT.get('fthr', '0')
if 'f' in TW:
    E(f'''s_cmp_lt_u32 s{sW}, 4
    s_cbranch_scc1 L_fnt
    s_cmp_eq_u32 s{sW}, 5
    s_cselect_b64 {sp(sM0)}, {sp(sWS)}, {sp(sX)}
    s_cmp_eq_u32 s{sW}, 6
    s_cselect_b64 {sp(sM0)}, {sp(sDBG)}, {sp(sM0)}
    s_cmp_eq_u32 s{sW}, 7
    s_cselect_b64 {sp(sM0)}, {sp(sWD)}, {sp(sM0)}
    v_mov_b32 v4, 128
    global_load_dword v4, v4, {sp(sM0)}
    L_fnt:''')
if FTHR == '2': E(f'v_mov_b32 v4, 0\nglobal_load_dword v4, v4, {sp(sWG)}\ns_waitcnt vmcnt(0)')
if FTHR == '3': E(f'v_mov_b32 v4, 0\nglobal_load_dword v4, v4, {sp(sWG)}\ns_waitcnt vmcnt(0)\nv_mov_b32 v4, 0\nglobal_load_dword v4, v4, {sp(sWU)}\ns_waitcnt vmcnt(0)')
if FTHR == '4':
    E(f'''s_cmp_lg_u32 s{sW}, 0
    s_cbranch_scc1 L_ftd
    v_mov_b32 v4, 0
    s_mov_b32 s{sSPIN}, {SPIN_MAX}
    L_ft:
    global_load_dwordx2 v[6:7], v4, {sp(sDBG)} sc1
    s_waitcnt vmcnt(0)
    v_cmp_eq_u32 vcc, 1, v7
    s_cbranch_vccnz L_ftd''')
    spin_check('L_ft')
    E('L_ftd:\ns_barrier')
stamp(3)
gu(0)
if FTHR == '1': E('s_waitcnt vmcnt(0)\ns_barrier')
gu(1)
E(f"""v_lshrrev_b32 v44, 3, v{LANE}
v_and_b32 v21, 7, v{LANE}
v_lshlrev_b32 v21, 4, v21
v_lshl_add_u32 v44, v44, 10, v21
s_lshl_b32 s{sT0}, s{sFI}, 15
s_lshl_b32 s{sT1}, s{sW}, 7
s_add_u32 s{sT0}, s{sT0}, s{sT1}
v_add_u32 v44, s{sT0}, v44
v_lshlrev_b32 v22, 3, v{LANE}
v_add_u32 v22, {WS_KEYS}, v22
v_mov_b32 v23, 0""")
def down():
    E(f's_add_u32 m0, s{sT3}, 8192\ns_nop 0')
    for j in range(4):
        E(f'global_load_lds_dwordx4 v44, {sp(sWD)}{NTD}')
        if j < 3: E('s_add_u32 m0, m0, 1024\nv_add_u32 v44, 8192, v44')
if RW == 'no' and not DLATE: down()
if FBAR: E('s_barrier')
stamp(2)
gu(2); gu(3)
if RW != 'no' and not DLATE:
    E('s_barrier')
    down()
if EPOLL: E(f"""s_cmp_lg_u32 s{sW}, {FLEAD}
s_cbranch_scc1 L_fnp
global_load_dwordx2 v[16:17], v22, {sp(sWS)} sc1
global_load_dwordx2 v[18:19], v23, {sp(sDBG)} sc1
L_fnp:""")
stamp(5)
E(f"""v_and_b32 v5, 15, v{LANE}
v_lshrrev_b32 v6, 4, v{LANE}
v_bfe_u32 v14, v{LANE}, 2, 2
v_lshlrev_b32 v14, 6, v14
v_lshl_add_u32 v14, v6, 9, v14
v_lshl_add_u32 v14, v9, 3, v14
v_add_u32 v14, s{sT3}, v14
v_lshlrev_b32 v8, 7, v8
v_lshl_add_u32 v8, v9, 3, v8
v_add_u32 v8, s{sT3}, v8
s_lshl_b32 s{sT1}, s{sW}, 7
{'s_add_u32 s%d, s%d, %d' % (sT1, sT1, F_X) if XL else ''}
v_lshl_add_u32 v10, v6, 4, s{sT1}
v_lshrrev_b32 v12, 2, v5
v_lshlrev_b32 v13, 6, v12
v_lshl_add_u32 v13, v6, 4, v13
s_lshl_b32 s{sT1}, s{sW}, 8
s_add_u32 s{sT1}, s{sT1}, {F_PART}
v_lshl_add_u32 v11, v{LANE}, 2, s{sT1}
v_lshl_add_u32 v13, v9, 2, v13
v_add_u32 v7, {F_PART}, v13
v_lshl_add_u32 v13, v12, 2, v6
s_lshl_b32 s{sT1}, s{sW}, {8 if PM else 14}
s_mul_i32 s{sT2}, s{sFI}, {PM if PM else 16}
s_add_u32 s{sT1}, s{sT1}, s{sT2}
s_add_u32 s{sT1}, s{sT1}, {WS_PART}
{('v_lshl_add_u32 v13, v%d, 2, s%d' % (LANE, sT1)) if PC else ('v_lshl_add_u32 v13, v13, %d, s%d' % (4 if PM else 10, sT1))}
{('v_lshlrev_b32 v46, 3, v9') if PC else ''}
v_mov_b32 v21, {F_IDX}""")
HF = OPT.get('hf', '0') == '1'
if HF: hop('hf', sW, 8)
f_begin = len(out)
E('s_waitcnt vmcnt(0)')
if D2 and XL and LD:
    E(f's_cmp_eq_u32 s{sW}, {FLEAD}\ns_cbranch_scc1 L_fnd')
    down()
    E('L_fnd:')
elif D2: down()
for s_ in range(2):
    for ct in range(2):
        for h in range(2):
            E(f'ds_read_b64_tr_b16 {vr(vFG+8*s_+4*ct+2*h,2)}, v14 offset:{2048*s_+256*h+32*ct}')
            E(f'ds_read_b64_tr_b16 {vr(vFU+8*s_+4*ct+2*h,2)}, v14 offset:{4096+2048*s_+256*h+32*ct}')
    E('s_waitcnt lgkmcnt(4)')
def dtr():
    for t in range(4):
        for hh in range(2):
            E(f'ds_read_b64_tr_b16 {vr(vFD+4*t+2*hh,2)}, v8 offset:{8192+2048*hh+32*t}')
if not DLATE: dtr()
stamp(6)
E(f"""s_cmp_lg_u32 s{sW}, {FLEAD}
s_cbranch_scc1 L_anopoll
s_mov_b32 s{sSPIN}, {SPIN_MAX}
{'s_branch L_pk1' if EPOLL else ''}
L_pk:
global_load_dwordx2 v[16:17], v22, {sp(sWS)} sc1
global_load_dwordx2 v[18:19], v23, {sp(sDBG)} sc1
s_waitcnt vmcnt(0)
L_pk1:
v_cmp_eq_u32 vcc, v18, v17
v_cmp_eq_u32 {sp(sM0)}, 1, v19
s_and_b64 vcc, vcc, {sp(sM0)}
s_cmp_eq_u64 vcc, -1
s_cbranch_scc1 L_pkd""")
spin_check('L_pk')
E('L_pkd:')
key_reduce(16)
if XL:
    E(f"""s_andn2_b32 s{sIDX}, 2047, s{sKEY}
    s_lshl_b32 s{sT0}, s{sIDX}, 10
    s_mov_b32 m0, {F_X}
    v_lshl_add_u32 v45, v{LANE}, 4, s{sT0}
    global_load_lds_dwordx4 v45, {sp(sX)}""")
    if LD: down()
E(f"""v_mov_b32 v16, s{sKEY}
ds_write_b64 v21, v[16:17]
{('s_waitcnt vmcnt(4)' if LD else 's_waitcnt vmcnt(0)') if XL else ''}
L_anopoll:
s_waitcnt lgkmcnt(0)
s_barrier""")
stamp(7)
if XL:
    E(f"""ds_read_b128 v[16:19], v10
    ds_read_b128 v[40:43], v10 offset:64
    ds_read_b32 v128, v21 offset:4
    s_waitcnt lgkmcnt(1)""")
    stamp(13)
else:
    E(f"""ds_read_b64 v[130:131], v21
s_waitcnt lgkmcnt(0)
v_not_b32 v16, v130
v_and_b32 v16, 2047, v16
v_lshl_add_u32 v10, v16, 10, v10
global_load_dwordx4 v[16:19], v10, {sp(sX)}
global_load_dwordx4 v[20:23], v10, {sp(sX)} offset:64
v_mov_b32 v128, v131
v_lshrrev_b32 v129, 8, v131
v_lshrrev_b32 v130, 16, v131
v_lshrrev_b32 v131, 24, v131""")
    if DLATE and not D2: down()
    stamp(12)
    if D2:
        E('s_waitcnt vmcnt(2)')
        dtr()
    E(f's_waitcnt vmcnt({4 if DLATE and not D2 else 0})')
    stamp(13)
for q in range(4):
    fb = (vFU if q >> 1 else vFG) + 4*(q & 1)
    for s_ in range(2):
        E(f'v_mfma_f32_16x16x32_bf16 {vr(24+4*q,4)}, {vr(40 if XL and s_ else 16+4*s_,4)}, {vr(fb+8*s_,4)}, {"0" if s_ == 0 else vr(24+4*q,4)}')
if XL and PC: E('s_waitcnt lgkmcnt(0)\nv_lshrrev_b32 v129, v46, v128\ns_nop 1')
elif XL: E('s_waitcnt lgkmcnt(0)\nv_lshrrev_b32 v129, 8, v128\nv_lshrrev_b32 v130, 16, v128\nv_lshrrev_b32 v131, 24, v128')
else: E('s_nop 3')
E(f'''v_mov_b32_dpp v24, v28 quad_perm:[0,1,2,3] row_mask:0x2 bank_mask:0xf
s_nop 1
v_mov_b32_dpp v24, v32 quad_perm:[0,1,2,3] row_mask:0x4 bank_mask:0xf
s_nop 1
v_mov_b32_dpp v24, v36 quad_perm:[0,1,2,3] row_mask:0x8 bank_mask:0xf
ds_write_b32 v11, v24''')
DPL = OPT.get('dpl', '1')
if XL and DPL == '0':
    E('s_waitcnt vmcnt(0)')
    dtr()
    E('s_waitcnt lgkmcnt(8)')
else: E('s_waitcnt lgkmcnt(0)')
stamp(14)
E('s_barrier')
stamp(8)
E(f"""ds_read2st64_b32 v[16:17], v7 offset0:0 offset1:1
ds_read2st64_b32 v[18:19], v7 offset0:2 offset1:3
ds_read2st64_b32 v[20:21], v7 offset0:4 offset1:5
ds_read2st64_b32 v[22:23], v7 offset0:6 offset1:7
s_mov_b32 s{sT0}, 0xff
s_waitcnt lgkmcnt(2)
v_pk_add_f32 v[16:17], v[16:17], v[18:19]
s_waitcnt lgkmcnt(0)
v_pk_add_f32 v[20:21], v[20:21], v[22:23]
v_pk_add_f32 v[16:17], v[16:17], v[20:21]
v_add_f32 v16, v16, v17""")
if (DLATE and not D2) or (XL and DPL == '1'):
    E('s_waitcnt vmcnt(0)')
    dtr()
E(f"""v_cvt_pk_bf16_f32 v18, 0, v16
v_mul_f32 v16, {f32(-L2E)}, v18
v_exp_f32 v16, v16
v_mov_b32_dpp v19, v18 row_ror:8 {DPPF}
v_add_f32 v16, 1.0, v16
v_rcp_f32 v16, v16
s_nop 0
v_mul_f32 v16, v16, v18
v_cvt_pk_bf16_f32 v16, 0, v16
v_mul_f32 v16, v16, v19""")
if XL and DPL == '2':
    E('s_waitcnt vmcnt(0)')
    dtr()
E(f"""s_nop 1
v_mov_b32_dpp v17, v16 quad_perm:[1,1,3,3] {DPPF}
v_cvt_pk_bf16_f32 v16, v16, v17
s_nop 1""")
for jj in range(4):
    E(f'v_mov_b32_dpp v{vBT+jj}, v16 row_newbcast:{2*jj} {DPPF}')
E('s_waitcnt lgkmcnt(0)\ns_nop 0')
for t in range(4):
    E(f'v_mfma_f32_16x16x32_bf16 {vr(24+4*t,4)}, {vr(vBT,4)}, {vr(vFD+4*t,4)}, 0')
E(f'''s_nop 5
v_mov_b32_dpp v24, v28 quad_perm:[0,1,2,3] row_mask:0x2 bank_mask:0xf
v_mov_b32_dpp v36, v32 quad_perm:[0,1,2,3] row_mask:0x4 bank_mask:0xf
s_nop 1
v_mov_b32_dpp v24, v36 quad_perm:[0,1,2,3] row_mask:0xc bank_mask:0xf
v_bfi_b32 v24, s{sT0}, v129, v24
global_store_dword v13, v24, {sp(sWS)} sc1''')
stamp(9)
E(f'''s_add_u32 s{sT0}, s{sFI}, s{sW}
s_cmp_lg_u32 s{sT0}, 0
s_cbranch_scc1 L_adone
s_mov_b64 exec, 1
v_mov_b32 v23, 0
global_store_dword v23, v128, {sp(sWS)} offset:{WS_EPOCH} sc1''')
if 'fwb' in OPT:
    E(f'''s_add_u32 s{sT0}, s{sSLOT}, s{sW}
    s_cmp_lg_u32 s{sT0}, 0
    s_cbranch_scc1 L_adone
    {"s_waitcnt vmcnt(0)" if OPT['fwb'] == '2' else ""}
    buffer_wbl2 sc1''')
if HF: islands('hf', f_begin)
E('L_adone:')
stamp(10)
if STAMPS:
    E('s_waitcnt vmcnt(0)')
    stamp(11)
write_stamps()
E('L_end:')
E('s_endpgm')
out.append(f'''.section .rodata,"a"
.p2align 6
.amdhsa_kernel {KN}_kernel
  .amdhsa_next_free_vgpr {NVGPR}
  .amdhsa_next_free_sgpr 96
  .amdhsa_accum_offset {(NVGPR+3)//4*4}
  .amdhsa_group_segment_fixed_size 0
  .amdhsa_kernarg_size 128
  .amdhsa_user_sgpr_count 2
  .amdhsa_user_sgpr_kernarg_segment_ptr 1
  .amdhsa_system_sgpr_workgroup_id_x 1
.end_amdhsa_kernel''')
txt = _re2.sub(r'@(\w+)@(\d+)@(\d+)@', lambda m: f'L_{m.group(1)}{int(m.group(2))*SUBS[m.group(1)]//int(m.group(3))}', '\n'.join(out))
print(txt.replace('NOPX', str(NOPX)).replace('HOPQ1', f'L_hop{NHOP//4}').replace('HOPQ2', f'L_hop{NHOP//2}').replace('HOPQ3', f'L_hop{3*NHOP//4}'))
```

```python
import sys, struct
from asmlib import KN, STAMP_OFF
OPT = dict(a.split('=') if '=' in a else (a, '1') for a in sys.argv[1:])
STAMPS = 'stamps' in OPT
NTP = ' nt' if OPT.get('ntp', '0') == '1' else ''
NTX = ' nt' if OPT.get('ntx', '0') == '1' else ''
PRIO = OPT.get('prio', 'io')
SLEEP = int(OPT.get('sleep', 0))
UPOS = [int(x) for x in OPT.get('upos', '8,28,99,99').split(',')]
WMODE = OPT.get('wmode', 'warm')
XWARM = OPT.get('xwarm', '1') == '1'
AHEAD = int(OPT.get('ahead', 2))
YG = 320
PC = OPT.get('pc', '1') == '1'
PM = int(OPT.get('pm', 2176 if PC else 0))
PT_ = OPT.get('pt', '')
TW = OPT.get('tw', 'n')
NTW = ' nt' if OPT.get('ntw', '0') == '1' else ''
NTD = ' nt' if OPT.get('ntd', '0') == '1' else ''
CL = int(OPT.get('cl', 2))
BEARLY = False
WWM = OPT.get('ww', '0')
RS = OPT.get('rs', '2')
WW = WWM != '0'
RW = OPT.get('rw', 'post')
ICW = int(OPT.get('icw', 0))
ICWHO = OPT.get('icwho', 'io')

out = []
def E(s):
    for ln in s.strip('\n').split('\n'):
        ln = ln.strip()
        if ln: out.append(('    ' + ln) if not ln.endswith(':') else ln)
def f32(x): return '0x%08x' % struct.unpack('<I', struct.pack('<f', x))[0]
def vr(b, n): return f'v[{b}:{b+n-1}]'
def ninstr(): return sum(1 for x in out if not x.endswith(':') and not x.strip().startswith(';'))

WS_EPOCH, WS_KEYS, WS_G, WS_PART = 0, 4096, 8192, 32768
TAGINC = 0x9E3779B1
SPIN_MAX = 1 << 20
ROWB = 528
LOB = 32*ROWB
HI0 = 4*LOB
NHI = 22
HIB = NHI*ROWB
UB0 = HI0 + 4*HIB
UCB, UPAD = 4608, 480
SM0 = UB0 + 4*UCB
SMB = 4096
KX, KY, F3, FLG = 0, 1216, 2336, 4*4096 + 4*1024
FC2 = 225
HIX = 16384
BND = SM0 + 4*SMB
LOF = BND + 4*1024
LDS_BYTES = LOF + 256
assert LOF == SM0 + FLG
LP = OPT.get('lp', '0') == '1'
XE = OPT.get('xe', '0') == '1'
LR0, LR1 = [int(x) for x in OPT.get('lr', '34,44').split(',')]
ST0 = OPT.get('st0', 'pre')
KPRIO = OPT.get('kprio', 'io')
GEMM1 = OPT.get('gemm1', '0') == '1'
sEX = 6
sX, sLA, sAI, sCR, sCI, sLDT, sDS = 8, 10, 12, 14, 16, 18, 20
sWR, sWG, sWU, sWD, sGW, sOUT, sDBG, sWS = 24, 26, 28, 30, 32, 34, 36, 38
sW, sI, sT0, sT1 = 40, 41, 42, 43
sJ, sP0, sP1, sTH = 44, 45, 46, 47
sTAG, sKEY, sIDX, sSPIN = 48, 49, 50, 51
sM0, sM1 = 52, 54
sT2, sT3, sT4, sT5 = 56, 57, 58, 59
sSLOT, sWB, sFI, sIO = 60, 61, 62, 63
sCH = 61
sS3 = 62
SB = 64
NST = 16
def sp(b): return f's[{b}:{b+1}]'
def stamp(i):
    if STAMPS and ('lite' not in OPT or i in (0, 11)): E(f'{"s_memtime" if "cyc" in OPT else "s_memrealtime"} s[{SB+2*i}:{SB+2*i+1}]')
def write_stamps():
    if not STAMPS: return
    E(f'''s_waitcnt lgkmcnt(0) vmcnt(0)
    s_mov_b64 exec, 1
    s_lshl_b32 s{sT0}, s2, 3
    s_add_u32 s{sT0}, s{sT0}, s{sW}
    s_lshl_b32 s{sT0}, s{sT0}, 7
    s_add_u32 s{sT0}, s{sT0}, {STAMP_OFF}
    v_mov_b32 v0, s{sT0}''')
    for i in range(NST):
        E(f'''v_mov_b32 v2, s{SB+2*i}
        v_mov_b32 v3, s{SB+2*i+1}
        global_store_dwordx2 v0, v[2:3], {sp(sWS)} offset:{8*i}
        s_nop 1''')
def spin_check(lbl_loop):
    E(f'''s_sub_u32 s{sSPIN}, s{sSPIN}, 1
    s_cbranch_scc0 {lbl_loop}''')
L2E = 1.4426950408889634
L2E_HI = struct.unpack('<f', struct.pack('<I', 0x3FB8AA00))[0]
L2E_LO = L2E - L2E_HI
LANE = 3
DPPF = 'row_mask:0xf bank_mask:0xf'

def hop_call():
    E(f'''s_mov_b64 exec, 0
    s_cmp_eq_u32 s{sCH}, 0
    s_cbranch_scc1 L_hop0
    s_cmp_eq_u32 s{sCH}, 1
    s_cbranch_scc1 HOPQ1
    s_cmp_eq_u32 s{sCH}, 2
    s_cbranch_scc1 HOPQ2
    s_branch HOPQ3
    L_hopend:
    s_mov_b64 exec, -1''')
import re as _re2
def isz(x):
    x = x.strip()
    if x.endswith(':') or x.startswith(';'): return 0
    op = x.split(' ')[0]
    if op.startswith(('ds_', 'global_', 'v_mfma', 'v_pk_', 'v_cvt_pk', 'v_perm', 'v_bfi', 'v_readlane', 'v_lshl_', 'v_min3', 'v_or3', 's_mem', 'v_bfe', 'v_mad')) or 'dpp' in op: return 8
    if _re2.search(r'0x[0-9a-f]{3,}|, [0-9]{3,}', x) or (op.startswith('v_cmp') and 's[' in x): return 8
    return 4
SUBS = {}
def islands(name, begin, step=64):
    body = out[begin:]; del out[begin:]
    n = 0; acc = step
    for x in body:
        if acc + isz(x) > step - 4:
            out.append(f'L_{name}{n}:'); out.append(f'    s_cbranch_execz L_{name}{n+1}'); n += 1; acc = 4
        out.append(x); acc += isz(x)
    endi = len(out) - 1
    while not (out[endi].startswith(f'    s_cbranch_execz L_{name}{n}')): endi -= 1
    out[endi] = f'    s_cbranch_execz L_{name}end'
    SUBS[name] = n
def hop(name, sreg, ways):
    E('s_mov_b64 exec, 0')
    for k in range(ways - 1):
        E(f's_cmp_eq_u32 s{sreg}, {k}\ns_cbranch_scc1 @{name}@{k}@{ways}@')
    E(f's_branch @{name}@{ways-1}@{ways}@\nL_{name}end:\ns_mov_b64 exec, -1')
def key_reduce(vt):
    for sh in (8, 4, 2, 1):
        E(f'''v_max_u32_dpp v{vt}, v{vt}, v{vt} row_ror:{sh} {DPPF}
        s_nop 1''')
    E(f'''v_readlane_b32 s{sKEY}, v{vt}, 0
    v_readlane_b32 s{sT0}, v{vt}, 16
    v_readlane_b32 s{sT1}, v{vt}, 32
    v_readlane_b32 s{sT2}, v{vt}, 48
    s_max_u32 s{sKEY}, s{sKEY}, s{sT0}
    s_max_u32 s{sT1}, s{sT1}, s{sT2}
    s_max_u32 s{sKEY}, s{sKEY}, s{sT1}''')
def wait_word(name, vaddr, off, vt, sleep):
    E(f'''s_mov_b32 s{sSPIN}, {SPIN_MAX}
    L_wf_{name}:
    ds_read_b32 v{vt}, v{vaddr} offset:{off}
    s_waitcnt lgkmcnt(0)
    v_cmp_eq_u32 vcc, -1, v{vt}
    s_cbranch_vccnz L_wfd_{name}''')
    if sleep: E(f's_sleep {sleep}')
    spin_check(f'L_wf_{name}')
    E(f'L_wfd_{name}:')

hdr = open('cdna_kernels/' + KN + '.s.ref').read().split('; Override launch')[0]
out.append(hdr.rstrip('\n'))
out.append(f'; @launch grid=(256,1,1) block=(512,1,1) lds={LDS_BYTES}')

out.append(""";
;      - K(p) = 2 dt Re sum_n C_n exp(z_n p) is needed at the 641 bf16-rounded positions only. Every (channel, mode)
;        builds exp(z 8a) (32 rows) and C exp(z h) (22 rows) by complex products; a 32x32x256 bf16 MFMA GEMM per
;        channel gives all positions. D_skip - 1 is added to tap 0, so the MFMA result is a - x and out = x + g (a - x).
;        meet block-Toeplitz fragments of the distinct K values.
;      - waves 0-3 (one channel each) run the MFMAs, waves 4-7 load/stage u and write the output tile by tile;
;        they meet through byte flags in LDS.
;  * 64 router workgroups: r = x.w_r and g = sigmoid(x.gate_w) for 32 rows each, published as {value, tag} granules.
;  * 56 FFN workgroups: 32 columns of gate/up each for the routed row, then their share of the down projection,
;        published as partial sums whose low byte carries the tag; wave 0 of each conv workgroup adds them up
;        for the routed row.
; The tag is the epoch word found in d_ws plus a constant; it only tells this launch's hand-offs from older ones.
; Workgroup -> column block mapping is for L2 locality only.""")
out.append(f'''.amdgcn_target "amdgcn-amd-amdhsa--gfx950"
.text
.globl {KN}_kernel
.p2align 8
.type {KN}_kernel,@function
{KN}_kernel:''')
stamp(0)
vXA, vWRv, vGWv = 16, 8, 12
vLA, vAI, vCR, vCI, vDT = 4, 5, 6, 7, 8
vX = 16
vXO = 60
AF, TZ, BR, DT, ACC, vBAND = 16, 84, 124, 172, 196, 228
NSLOT = 12
GF, GA = 84, ACC
vKX, vK3, vK4, vCA, vCA2, vCB, vY, vTZ = 248, 249, 250, 251, 252, 253, 254, 255
vA, vB, vFL = 14, 15, 9
NVGPR = 256
E(f'''s_load_dwordx16 s[8:23], s[0:1], 0
s_load_dwordx16 s[24:39], s[0:1], 64
s_cmp_ge_u32 s2, 256
s_cbranch_scc1 L_end
v_lshrrev_b32 v1, 6, v0
v_and_b32 v{LANE}, 63, v0
v_readfirstlane_b32 s{sW}, v1
s_add_u32 s{sT0}, s2, {int(OPT.get('rot', 2))}
s_and_b32 s{sT0}, s{sT0}, 7
s_lshr_b32 s{sSLOT}, s2, 4
s_lshl_b32 s{sI}, s{sT0}, 4
s_add_u32 s{sI}, s{sI}, s{sSLOT}
''')
PF = OPT.get('pf', 'f')
pfc = f'''s_cmp_gt_u32 s{sW}, 1
s_cbranch_scc1 L_nopf
; pull this kernel's code into the die's L2 (per-lane 64-bit address)
s_getpc_b64 s[4:5]
L_pc:
v_lshlrev_b32 v4, 7, v0
v_min_u32 v4, L_end-L_pc, v4
v_mov_b32 v5, 0
v_lshl_add_u64 v[4:5], v[4:5], 0, s[4:5]
global_load_dword v2, v[4:5], off
L_nopf:'''
if PF == 'all': E(pfc)
E(f'''s_bitcmp1_b32 s2, 3
s_cbranch_scc0 L_conv''')
if PF == 'aux': E(pfc)
if PF == 'f':
    E('s_bitcmp1_b32 s2, 4\ns_cbranch_scc1 L_r0')
    E(pfc)
    IW = OPT.get('iw', '1')
    if IW != '0':
        E(f'''s_cmp_lg_u32 s{sT0}, 3
        s_cbranch_scc1 L_ffn
        s_lshl_b32 s{sT1}, s{sSLOT}, {7 if IW == '1' else 6}
        v_lshrrev_b32 v4, {1 if IW == '1' else 2}, v0
        v_add_u32 v4, s{sT1}, v4
        v_lshlrev_b32 v4, 10, v4
        s_waitcnt lgkmcnt(0)
''')
        PP = OPT.get('pp', '0')
        if PP != '0':
            E(f'''s_lshl_b32 s{sT1}, s{sSLOT}, 13
            v_lshrrev_b32 v5, 2, v0
            v_lshl_add_u32 v5, v5, 7, s{sT1}
            global_load_dword v6, v5, {sp(sLA)}
            global_load_dword v7, v5, {sp(sAI)}''')
            if PP in '24': E(f'global_load_dword v8, v5, {sp(sCR)}\nglobal_load_dword v9, v5, {sp(sCI)}')
        if PP in '012': E(f'global_load_dword v4, v4, {sp(sX)} offset:384')
        E(f'''
        s_waitcnt vmcnt(0)
        s_branch L_adone
        L_r0:''')
    else: E('s_branch L_ffn\nL_r0:')
else: E('s_bitcmp1_b32 s2, 4\ns_cbranch_scc0 L_ffn')
E(f'''s_lshr_b32 s{sI}, s{sI}, 1
v_lshlrev_b32 v4, 4, v{LANE}
s_lshl_b32 s{sT2}, s{sI}, 12
s_lshl_b32 s{sT1}, s{sW}, 18
s_add_u32 s{sT2}, s{sT2}, s{sT1}
v_add_u32 v5, s{sT2}, v4
s_waitcnt lgkmcnt(0)''')
stamp(1)
E(f'''global_load_dwordx4 {vr(vWRv,4)}, v4, {sp(sWR)}
global_load_dwordx4 {vr(vGWv,4)}, v4, {sp(sGW)}
{"s_waitcnt vmcnt(0)" if OPT.get('rdel', '0') == '1' else ""}
{("s_cmp_lt_u32 s%d, 2" % sW + chr(10) + "s_cbranch_scc1 L_rnd" + chr(10) + "s_waitcnt vmcnt(0)" + chr(10) + "L_rnd:") if OPT.get('rdel', '0') == '2' else ""}
global_load_dwordx4 {vr(vXA,4)}, v5, {sp(sX)}{NTX}
global_load_dwordx4 {vr(vXA+4,4)}, v5, {sp(sX)} offset:1024{NTX}
global_load_dwordx4 {vr(vXA+8,4)}, v5, {sp(sX)} offset:2048{NTX}
global_load_dwordx4 {vr(vXA+12,4)}, v5, {sp(sX)} offset:3072{NTX}
s_load_dword s{sTAG}, {sp(sWS)}, {WS_EPOCH}
s_branch L_rg''')
E(f'''; ================= conv workgroups =================
L_conv:
{'s_branch L_end' if 'noconv' in OPT else ''}
s_and_b32 s{sCH}, s{sW}, 3
s_lshr_b32 s{sIO}, s{sW}, 2
s_lshl_b32 s{sT2}, s{sI}, 3
s_lshl_b32 s{sT1}, s{sCH}, 1
s_add_u32 s{sT0}, s{sT2}, s{sT1}
v_mov_b32 v10, s{sT0}
s_add_u32 s{sT0}, s{sT0}, s{sIO}
s_lshl_b32 s{sT0}, s{sT0}, 7
v_lshl_add_u32 v1, v{LANE}, 1, s{sT0}
v_mov_b32 v{vLA}, 0
v_mov_b32 v{vAI}, 0
v_mov_b32 v{vCR}, 0
v_mov_b32 v{vCI}, 0
v_mov_b32 v{vDT}, 0''')
if XE: E(f'''s_lshl_b32 s{sT0}, s{sSLOT}, 7
s_lshl_b32 s{sT1}, s{sCH}, 5
s_add_u32 s{sT0}, s{sT0}, s{sT1}
v_and_or_b32 v12, v{LANE}, 31, s{sT0}
v_lshl_add_u32 v12, v12, 10, s{sT2}
s_cmp_lt_u32 s{sW}, 4''')
if 'early' in OPT: stamp(13)
E('s_waitcnt lgkmcnt(0)')
stamp(1)
E(f'''global_load_short_d16_hi v{vLA}, v1, {sp(sLA)}{NTP}
global_load_short_d16_hi v{vDT}, v10, {sp(sLDT)}
global_load_short_d16_hi v{vAI}, v1, {sp(sAI)}{NTP}
''')
CS = OPT.get('cs', '1') == '1'
cl_ = f'global_load_short_d16_hi v{vCR}, v1, {sp(sCR)}{NTP}\nglobal_load_short_d16_hi v{vCI}, v1, {sp(sCI)}{NTP}'
if not CS: E(cl_)
if XE: E(f's_cbranch_scc1 L_nxe\nglobal_load_dword v2, v12, {sp(sX)}\nL_nxe:')
if 'early' in OPT: stamp(12)
if 'e2' in OPT:
    for n_ in range(5):
        E(f's_waitcnt vmcnt({4-n_})'); stamp(2+n_)
    E('s_branch L_cdone')
E(f'''v_and_b32 v11, 255, v0
v_lshl_add_u32 v{vXO}, v11, 11, s{sT2}
v_add_u32 v{vXO+1}, {512*1024}, v{vXO}
v_add_u32 v{vXO+2}, {1024*1024}, v{vXO}
v_add_u32 v{vXO+3}, {1536*1024}, v{vXO}
''')
E(f'''v_lshlrev_b32 v44, 2, v{LANE}
v_add_u32 v44, {SM0+FLG}, v44
v_mov_b32 v45, 0
ds_write_b32 v44, v45
s_waitcnt lgkmcnt(0)''')
E(f'''s_barrier
{cl_ if CS else ''}
s_cmp_ge_u32 s{sW}, 4
s_cbranch_scc1 L_cio0''')
STOR = {0:0,1:1,2:2,3:3, 16:4,17:5,18:6,19:7,20:8,12:9, 15:10, 13:11,14:12,4:13,5:14,6:15,7:16,8:17,9:18,10:19,11:20,21:21}
assert sorted(STOR.values()) == list(range(22))
tab = [0,0,1,2,2,2,3,4,4,5,6,7,8,8,8,8]
hrow = []
for x in range(32):
    g_, r_ = (x >> 2) & 1, 4*(x >> 3) + (x & 3)
    hrow.append(STOR[13 + tab[r_] if g_ else min(r_, 12)])
planes = [sum(((hrow[x] >> b) & 1) << x for x in range(32)) for b in range(5)]
E(f'''s_lshl_b32 s{sT0}, s{sSLOT}, 7
s_lshl_b32 s{sT1}, s{sW}, 5
s_add_u32 s{sT0}, s{sT0}, s{sT1}
v_and_b32 v13, 31, v{LANE}
v_add_u32 v12, s{sT0}, v13
v_lshl_add_u32 v12, v12, 10, s{sT2}
v_mov_b32 v{GA}, 0''')

if 'early' in OPT: stamp(5)
XWARM = XWARM and not XE
if XWARM: E(f'global_load_dword v1, v12, {sp(sX)}')
if WW:
    E(f'''s_lshr_b32 s{sT0}, s{sI}, 4
    s_cmp_gt_u32 s{sT0}, 3
    s_cselect_b32 s{sT1}, 1, 0
    s_sub_u32 s{sT0}, s{sT0}, s{sT1}
    s_lshl_b32 s{sT0}, s{sT0}, 9
    s_lshl_b32 s{sT1}, s{sSLOT}, 1
    s_lshr_b32 s{sT3}, s{sW}, 1
    s_add_u32 s{sT1}, s{sT1}, s{sT3}
    s_mul_i32 s{sT1}, s{sT1}, {16*3584}
    s_add_u32 s{sT0}, s{sT0}, s{sT1}
    v_and_b32 v12, 15, v{LANE}
    v_mul_u32_u24 v12, 3584, v12''')
    if WWM == '2':
        E(f'''s_bitcmp1_b32 s{sW}, 1
        s_cselect_b32 s{sT1}, 48, 0
        v_and_b32 v9, s{sT1}, v{LANE}
        v_xor_b32 v9, 48, v9
        v_lshl_add_u32 v12, v9, 3, v12''')
    else: E(f's_add_u32 s{sT0}, s{sT0}, 384')
    E(f'''v_add_u32 v12, s{sT0}, v12
    s_bitcmp1_b32 s{sW}, 0
    s_cselect_b64 {sp(sT4)}, {sp(sWU)}, {sp(sWG)}
    global_load_dword v9, v12, {sp(sT4)}''')
E(f'''s_mov_b64 exec, 1
global_load_short_d16_hi v{GA}, v10, {sp(sDS)}
s_mov_b64 exec, -1''')
for r in range(1, 16): E(f'v_mov_b32 v{GA+r}, 0')
for b_ in range(4, -1, -1):
    E(f's_mov_b32 s{sT0}, {planes[b_]}')
    if b_ == 4: E(f'v_bfe_u32 v{vA}, s{sT0}, v13, 1')
    else: E(f'v_bfe_u32 v12, s{sT0}, v13, 1\nv_lshl_or_b32 v{vA}, v{vA}, 1, v12')
E(f'''v_lshrrev_b32 v12, 5, v{LANE}
s_mul_i32 s{sT0}, s{sW}, {HIB}
s_add_u32 s{sT0}, s{sT0}, {HI0}
s_mul_i32 s{sT1}, s{sW}, {LOB}
v_lshl_add_u32 v10, v12, 4, s{sT0}
v_lshl_add_u32 v11, v12, 4, s{sT1}
s_mov_b32 s{sT2}, {ROWB}
v_mad_u32_u24 v{vA}, v{vA}, s{sT2}, v10
v_mad_u32_u24 v{vB}, v13, s{sT2}, v11
s_lshl_b32 s{sT0}, s{sW}, 12
s_add_u32 s{sT0}, s{sT0}, {SM0}
s_add_u32 s{sT2}, s{sT0}, {2*(543-7)}
v_lshlrev_b32 v10, 4, v{LANE}
v_sub_u32 v{vKX}, s{sT2}, v10
v_and_b32 v10, 1, v{LANE}
v_lshrrev_b32 v11, 1, v{LANE}
v_lshlrev_b32 v11, 2, v11
s_add_u32 s{sT2}, s{sT0}, {F3+4*48}
v_sub_u32 v11, s{sT2}, v11
v_lshl_add_u32 v{vK3}, v10, 8, v11
v_lshlrev_b32 v{vK4}, 7, v10
v_sub_u32 v{vK4}, v11, v{vK4}
v_add_u32 v{vK4}, {4*(128+64-48)}, v{vK4}
v_and_b32 v11, 15, v{LANE}
v_and_b32 v12, 48, v{LANE}
v_mul_u32_u24 v13, {KY+2}, v10
v_lshl_add_u32 v13, v11, 1, v13
v_sub_u32 v{vCA}, v12, v13
s_add_u32 s{sT2}, s{sT0}, {KY+2*(544-16)-1024}
v_add_u32 v{vCA}, s{sT2}, v{vCA}
v_add_u32 v{vCA2}, 512, v{vCA}
s_mul_i32 s{sT2}, s{sW}, {UCB}
s_add_u32 s{sT2}, s{sT2}, {UB0}
v_lshl_add_u32 v{vCB}, v11, 5, v12
v_add_u32 v{vCB}, s{sT2}, v{vCB}
v_lshl_add_u32 v{vY}, v11, 4, s{sT1}
v_mad_u32_u24 v{vY}, v12, {YG//16}, v{vY}
s_add_u32 s{sT2}, s{sT0}, {F3+4*16}
v_mul_u32_u24 v{vTZ}, {4*FC2}, v10
v_add3_u32 v{vTZ}, v{vTZ}, v12, s{sT2}
v_lshlrev_b32 v13, 2, v11
v_sub_u32 v{vTZ}, v{vTZ}, v13
''')
r = vBAND + 16
E(f'''v_lshrrev_b32 v13, 1, v12
s_mov_b32 s{sT1}, {3 << 12}
v_lshlrev_b32 v{r}, v11, s{sT1}
v_bfe_u32 v{r}, v{r}, v13, 8
v_lshl_or_b32 v{r}, v{r}, 15, v{r}
v_lshrrev_b32 v{r+1}, 2, v{r}
v_lshrrev_b32 v{r+2}, 4, v{r}
v_lshrrev_b32 v{r+3}, 6, v{r}
s_mov_b32 s{sT1}, 0x10001
v_and_b32 v{r}, s{sT1}, v{r}
v_and_b32 v{r+1}, s{sT1}, v{r+1}
v_and_b32 v{r+2}, s{sT1}, v{r+2}
v_and_b32 v{r+3}, s{sT1}, v{r+3}''')
if 'early' in OPT: stamp(6)
E(f'''s_lshl_b32 s{sT1}, s{sIO}, 8
s_mul_i32 s{sT2}, s{sCH}, {LOB}
s_add_u32 m0, s{sT2}, s{sT1}
s_mul_i32 s{sT2}, s{sCH}, {HIB}
s_add_u32 s{sT1}, s{sT1}, s{sT2}
s_add_u32 s{sT1}, s{sT1}, {HIX}
s_cmp_eq_u32 s{sIO}, 0
s_waitcnt vmcnt({1 + XWARM + WW + CL})''')
if 'early' in OPT: stamp(8)
E(f'''s_branch L_ckgen
L_cio0:''')

if 'early' in OPT: stamp(5)
def uload(p):
    E(f'global_load_dwordx2 {vr(vX+4*p,2)}, v{vXO+p}, {sp(sX)}')
    E(f'global_load_dwordx2 {vr(vX+4*p+2,2)}, v{vXO+p}, {sp(sX)} offset:1024')
NUP = sum(1 for x in UPOS if x == 0)
for p in range(NUP): uload(p)
TC = 0
if 'c' in TW:
    TC = 1
    E(f'''s_cmp_eq_u32 s{sCH}, 1
    s_cselect_b64 {sp(sT4)}, {sp(sWS)}, {sp(sOUT)}
    s_cmp_eq_u32 s{sCH}, 2
    s_cselect_b64 {sp(sT4)}, {sp(sDBG)}, {sp(sT4)}
    s_cmp_eq_u32 s{sCH}, 3
    s_cselect_b32 s{sT0}, {2048*1024-256}, 0
    v_mov_b32 v12, s{sT0}
    global_load_dword v71, v12, {sp(sT4)} offset:128''')
E(f'''v_mov_b32 v32, 0
v_mov_b32 v33, 0
v_mov_b32 v34, 0
v_mov_b32 v35, 0
s_mul_i32 s{sT0}, s{sCH}, {UCB}
s_add_u32 s{sT0}, s{sT0}, {UB0}
v_min_u32 v13, 29, v{LANE}
v_lshl_add_u32 v12, v13, 4, s{sT0}
ds_write_b128 v12, v[32:35]
s_lshl_b32 s{sT0}, s{sCH}, 12
s_add_u32 s{sT0}, s{sT0}, {SM0}
v_lshl_add_u32 v12, v{LANE}, 4, s{sT0}
ds_write_b128 v12, v[32:35]
ds_write_b128 v12, v[32:35] offset:1024
ds_write_b128 v12, v[32:35] offset:2048
ds_write_b128 v12, v[32:35] offset:3072
; IO addresses: v64 U write, v65 keys, v66 g granules, v67 y read, v68 own flag, v69 M flags, v70 zero
v_lshlrev_b32 v64, 2, v11
v_add_u32 v64, {UB0+UPAD}, v64
s_mov_b32 s{sP0}, 0x05040100
s_mov_b32 s{sP1}, 0x07060302
; band fragments (0/1 window matrices): IO wave ch builds window ch, wave 7 also the two-tap mask
s_mov_b32 s{sT1}, {7 << 11}
s_cmp_eq_u32 s{sCH}, 1
s_cselect_b32 s{sT1}, {31 << 6}, s{sT1}
s_cmp_eq_u32 s{sCH}, 2
s_cselect_b32 s{sT1}, {127 << 5}, s{sT1}
s_cmp_eq_u32 s{sCH}, 3
s_cselect_b32 s{sT1}, {511 << 4}, s{sT1}
s_mov_b32 s{sT0}, 0x10001
s_mov_b32 s{sT3}, 0x3f80
s_lshl_b32 s{sT2}, s{sCH}, 10
s_add_u32 s{sT2}, s{sT2}, {BND}
v_lshl_add_u32 v9, v{LANE}, 4, s{sT2}
v_and_b32 v10, 15, v{LANE}
v_lshrrev_b32 v13, 4, v{LANE}
v_lshlrev_b32 v13, 3, v13
v_lshlrev_b32 v12, v10, s{sT1}
v_bfe_u32 v12, v12, v13, 8
v_lshl_or_b32 v12, v12, 15, v12
v_lshrrev_b32 v41, 2, v12
v_lshrrev_b32 v42, 4, v12
v_lshrrev_b32 v43, 6, v12
v_and_b32 v40, s{sT0}, v12
v_and_b32 v41, s{sT0}, v41
v_and_b32 v42, s{sT0}, v42
v_and_b32 v43, s{sT0}, v43
v_mul_u32_u24 v40, s{sT3}, v40
v_mul_u32_u24 v41, s{sT3}, v41
v_mul_u32_u24 v42, s{sT3}, v42
v_mul_u32_u24 v43, s{sT3}, v43
ds_write_b128 v9, v[40:43]
{"s_setprio 1" if KPRIO == 'io' else ""}
''')
if 'early' in OPT: stamp(6)
E(f'''s_lshl_b32 s{sT1}, s{sIO}, 8
s_mul_i32 s{sT2}, s{sCH}, {LOB}
s_add_u32 m0, s{sT2}, s{sT1}
s_mul_i32 s{sT2}, s{sCH}, {HIB}
s_add_u32 s{sT1}, s{sT1}, s{sT2}
s_add_u32 s{sT1}, s{sT1}, {HIX}
s_cmp_eq_u32 s{sIO}, 0
s_waitcnt vmcnt({2*NUP + CL + TC + XE})''')
if 'early' in OPT: stamp(8)
E('; ---- tables exp(z 8a) and C exp(z h) in bf16, one (channel, mode) per lane\nL_ckgen:')
stamp(2)
a, b, c, d = 10, 11, 12, 13
vW1, vW8, vW256 = 36, 38, 40
E(f'''v_mul_f32 v{a}, {f32(L2E)}, v{vLA}
v_mul_f32 v{b}, {f32(L2E)}, v{vDT}
v_exp_f32 v{a}, v{a}
v_exp_f32 v{b}, v{b}
v_mov_b32 v35, 0x3f80
v_cvt_pk_bf16_f32 v{a}, v{a}, v{b}
ds_write_addtid_b32 v35 offset:0
v_and_b32 v{vDT}, 0xffff0000, v{a}
v_lshlrev_b32 v{a}, 16, v{a}
v_mul_f32 v{vAI}, v{vAI}, v{vDT}
v_mul_f32 v{vLA}, v{a}, v{vDT}
v_mul_f32 v{b}, {f32(8*0.15915494309189535)}, v{vAI}
v_mul_f32 v{a}, {f32(-8*L2E)}, v{vLA}
v_fract_f32 v{b}, v{b}
v_exp_f32 v{a}, v{a}
v_cos_f32 v{vW8}, v{b}
v_sin_f32 v{vW8+1}, v{b}
v_mul_f32 v{d}, {f32(0.15915494309189535)}, v{vAI}
v_pk_mul_f32 {vr(vW8,2)}, {vr(vW8,2)}, {vr(a,2)} op_sel:[0,0] op_sel_hi:[1,0]''')
later = [f'v_mul_f32 v{c}, {f32(-L2E)}, v{vLA}', f'v_fract_f32 v{d}, v{d}', f'v_exp_f32 v{c}, v{c}', f'v_cos_f32 v{vW1}, v{d}', f'v_sin_f32 v{vW1+1}, v{d}',
         f'v_add_f32 v{vDT}, v{vDT}, v{vDT}', f'v_pk_mul_f32 {vr(vW1,2)}, {vr(vW1,2)}, {vr(c,2)} op_sel:[0,0] op_sel_hi:[1,0]']
if 'early' in OPT: stamp(9)
tmpc = [0]
pendw = []
nextp = [NUP]
def flushw():
    while pendw: E(pendw.pop(0))
def cmul(D, X, W):
    E(f'v_pk_mul_f32 {vr(D,2)}, {vr(X,2)}, {vr(W,2)} op_sel:[0,0] op_sel_hi:[0,1]')
    flushw()
    E(f'v_pk_fma_f32 {vr(D,2)}, {vr(X,2)}, {vr(W,2)}, {vr(D,2)} op_sel:[1,1,0] op_sel_hi:[1,0,1] neg_lo:[1,0,0]')
def put(X, off, neg):
    t = 32 + (tmpc[0] & 3)
    E(f'v_cvt_pk_bf16_f32 v{t}, v{X}, {"-" if neg else ""}v{X+1}')
    pendw.append(f'ds_write_addtid_b32 v{t} offset:{off}')
    tmpc[0] += 1
    if later and tmpc[0] >= 2: E(later.pop(0))
    if tmpc[0] == int(OPT.get('kdrop', 40)): E('s_setprio 0')
    if LP:
        n = tmpc[0]
        if n == 32: E('s_cbranch_scc1 L_lf\nds_write_b32 v44, v44\nL_lf:')
        if n in (LR0, LR0+2):
            E(f's_cbranch_scc0 L_lr{n}')
            for s_ in range(4*(n != LR0), 4*(n != LR0) + 4): E(f'ds_read_b128 {vr(GF+4*s_,4)}, v{vB} offset:{32*s_}')
            E(f'L_lr{n}:')
        if n == LR1: E(f's_cbranch_scc0 L_lr{n}\nds_read_b32 v45, v44\nL_lr{n}:')
        if n in (LR1+3, LR1+5):
            E(f's_cbranch_scc0 L_lr{n}')
            if n == LR1+3: E('s_waitcnt lgkmcnt(3)\nv_cmp_ne_u32 vcc, 0, v45\ns_cbranch_vccz L_lslow\nL_lok:')
            for s_ in range(8 + 4*(n != LR1+3), 12 + 4*(n != LR1+3)): E(f'ds_read_b128 {vr(GF+4*s_,4)}, v{vB} offset:{32*s_}')
            E(f'L_lr{n}:')
    if tmpc[0] == 30:
        assert not TC and not WW and nextp[0] >= 1
        if CL: E(f's_cbranch_scc0 L_cw1\ns_waitcnt vmcnt({1 + XWARM})\nL_cw1:\ns_waitcnt vmcnt({2*nextp[0]})')
        E(f'v_pk_mul_f32 {vr(vCR,2)}, {vr(vCR,2)}, {vr(vDT,2)} op_sel:[0,0] op_sel_hi:[1,0]')
    while nextp[0] < 4 and UPOS[nextp[0]] == tmpc[0]:
        E(f's_cbranch_scc1 L_mid{nextp[0]}')
        uload(nextp[0])
        E(f'L_mid{nextp[0]}:')
        nextp[0] += 1
put(vW8, ROWB, False)
P0, P1 = 46, 48
cur = vW8
for i in range(2, 32):
    nxt = P0 if cur != P0 else P1
    cmul(nxt, cur, vW8)
    put(nxt, i*ROWB, False)
    cur = nxt
cmul(vW256, cur, vW8)
E(f's_mov_b32 m0, s{sT1}')
hoff = lambda row: HI0 - HIX + STOR[row]*ROWB
H = [50, 52, 54, 56, 58]
put(vCR, hoff(0), True)
cur = vCR
keep = {0: vCR}
for e in range(1, 9):
    nxt = H[e//2] if e % 2 == 0 else P0
    cmul(nxt, cur, vW1)
    put(nxt, hoff(e), True)
    cur = nxt
    if e % 2 == 0: keep[e] = nxt
for e, row in ((0, 13), (2, 14), (6, 16)):
    cmul(P0, keep[e], vW256)
    put(P0, hoff(row), True)
cur = keep[4]
for row in (15, 9, 18):
    nxt = P0 if cur != P0 else P1
    cmul(nxt, cur, vW256); put(nxt, hoff(row), True); cur = nxt
cur = keep[8]
for row in (17, 10, 19, 11, 20, 12, 21):
    nxt = P0 if cur != P0 else P1
    cmul(nxt, cur, vW256); put(nxt, hoff(row), True); cur = nxt
flushw()
NMID = nextp[0] - 1
stamp(3)
if 'early' in OPT: E('s_branch L_cdone')
E(f's_cbranch_scc0 L_cio1')
if STAMPS:
    for i_ in (5, 6, 8, 9, 14, 15): E(f's_mov_b64 s[{SB+2*i_}:{SB+2*i_+1}], 0')
m_begin = len(out)
def gread(s):
    r = GF + 8*(s % 8)
    E(f'ds_read_b128 {vr(r,4)}, v{vA} offset:{32*s}')
    E(f'ds_read_b128 {vr(r+4,4)}, v{vB} offset:{32*s}')
fill = [f's_add_u32 s{sT2}, s{sW}, {SM0+FLG}', f'v_mov_b32 v{vFL}, s{sT2}', f'v_mov_b32 v8, {SM0+FLG}', 'v_mov_b32 v13, -1', f'v_and_b32 v12, 1, v{LANE}', f's_mov_b32 s{sT2}, {(0x03020706 - 0x05040100) & 0xffffffff}', f'v_mul_lo_u32 v12, v12, s{sT2}', 'v_add_u32 v12, 0x05040100, v12',
        f'v_lshlrev_b32 v10, 4, v{LANE}', f'v_add_u32 v10, {BND}, v10']
def dofill(n):
    while n > 0 and fill:
        x = fill.pop(0); E(x)
        if x.startswith('v_'): n -= 1
BPOS = int(OPT.get('bpos', 4 if LP else 5))
def gemm_all(extra):
    q = []
    GD = int(OPT.get('gd', 5 if LP else 3))
    NB = 6 if LP else 8
    def rd(s_):
        if LP: E(f'ds_read_b128 {vr(DT+4*(s_ % 6),4)}, v{vA} offset:{32*s_}'); q.append(s_)
        else: gread(s_); q.extend([s_, s_])
    for s_ in range(GD): rd(s_)
    dofill(99)
    nxt = GD
    ex = extra()
    for s_ in range(16):
        last = len(q) - 1 - q[::-1].index(s_)
        E(f's_waitcnt lgkmcnt({len(q) - 1 - last})')
        if LP: E(f'v_mfma_f32_32x32x16_bf16 {vr(GA,16)}, {vr(DT+4*(s_ % 6),4)}, {vr(GF+4*s_,4)}, {vr(GA,16)}')
        else:
            r = GF + 8*(s_ % 8)
            E(f'v_mfma_f32_32x32x16_bf16 {vr(GA,16)}, {vr(r,4)}, {vr(r+4,4)}, {vr(GA,16)}')
        if s_ == BPOS - 2:
            E(f'ds_read_u8 v5, v{vFL} offset:96'); q.append('f')
        if s_ == BPOS:
            stamp(13)
            E(f's_waitcnt lgkmcnt({q[::-1].index("f")})\nv_cmp_ne_u32 vcc, 0, v5\ns_cbranch_vccz L_tslow\nL_tok:')
            stamp(4)
        if s_ == 13 - GD:
            E(f'ds_read_b32 v4, v8 offset:32'); q.append('g')
        if s_ == 15 - GD:
            E(f's_waitcnt lgkmcnt({q[::-1].index("g")})\nv_cmp_eq_u32 vcc, -1, v4\ns_cbranch_vccz L_uc0\nL_uc0d:')
        while nxt < 16 and nxt - NB <= s_ and (nxt < 8 or s_ >= BPOS) and nxt - s_ <= GD:
            rd(nxt); nxt += 1
        if (LP and s_ > BPOS) or s_ == 15 - GD:
            for _ in range((1 if nxt < 16 else 2) if LP else 99):
                if ex: ex.pop(0)(); q.append('x')
    assert not ex
    lastg = len(q) - 1 - q[::-1].index(15)
    done_upto[0] = q[:lastg].count('x')
    T_[0] = 0; TL[0] = 0
    for n_ in range(len(fin)): fin[n_] = 40
E(f'''s_waitcnt vmcnt(0) lgkmcnt(1)
s_mov_b64 exec, 1
v_add_f32 v{GA}, -1.0, v{GA}
s_mov_b64 exec, -1''')

def aread(q):
    base, off = (vCA, (1024-64*q)//4) if q >= 9 else (vCA2, (512-64*q)//4)
    return [f'ds_read2_b32 {vr(AF+4*q,2)}, v{base} offset0:{off} offset1:{off+1}',
            f'ds_read2_b32 {vr(AF+4*q+2,2)}, v{base} offset0:{off+2} offset1:{off+3}']
def tzread(i):
    off = 4*((i//3)*64 + 32 - 16*(i % 3)) if i < 6 else 4*(128 + 48 - 16*(i-6))
    return [f'ds_read_b64 {vr(TZ+4*i,2)}, v{vTZ} offset:{off}', f'ds_read_b64 {vr(TZ+4*i+2,2)}, v{vTZ} offset:{off+8}']
def boff(k):
    kind, tp, q = k
    return UPAD + 512*tp - 32 - (16 if kind == 'Z' else 64*q)
band = lambda i: vr(vBAND+4*i, 4)
stream = []
def mk(tile, a_, b_, dst=None): stream.append(('m', tile, a_, b_, dst))
def parts(tp):
    G0 = ('B', tp, 0) if tp == 0 else ('G', tp, 0); Z = ('Z', tp, 0); B0 = ('B', tp, 0)
    gen = []; cv = []
    if tp <= 5:
        gen += [(8, Z, 0), (12, Z, 1)]
        if tp <= 3: gen += [(20, Z, 3)]
        gen += [(0, G0, 0), (4, G0, 1)]
        if tp <= 3: gen += [(16, G0, 2)]
        for base in ((8, 0, 16) if tp <= 3 else (8, 0)):
            for jj in range(4): cv.append(f'v_cvt_pk_bf16_f32 v{DT+base+jj}, v{DT+base+jj}, v{DT+base+4+jj}')
    own = [(tp, ('A', q), ('B', tp, q)) for q in range(8)]
    nxt = [(tp+1, ('A', q+8), ('B', tp, q)) for q in range(8)] if tp < 7 else []
    lead = []
    if tp <= 5: lead.append((tp+2, ('A', 16), G0))
    if tp <= 3: lead.append((tp+4, band(4), G0))
    far = []
    if tp <= 5:
        for dl in range(3):
            if tp + 2 + dl <= 7:
                far.append((tp+2+dl, vr(DT+8, 4), ('T', 3+dl)))
                far.append((tp+2+dl, vr(DT, 4), ('T', dl)))
    if tp <= 3:
        for dl in range(4):
            if tp + 4 + dl <= 7: far.append((tp+4+dl, vr(DT+16, 4), ('T', 6+dl)))
    return gen, cv, own, nxt, lead, far
PT = [parts(tp) for tp in range(8)]
def with_cv(seq, cv, start, per=1):
    for i, t_ in enumerate(seq):
        mk(*t_)
        if i >= start:
            for _ in range(per):
                if cv:
                    x_ = cv.pop(0)
                    stream.append(('x2ok',) if x_ == 'X2OK' else ('v', x_))
    assert not cv
gen, cv = PT[0][0], PT[0][1]
gm = [(None, k, band(bi), DT+dof) for dof, k, bi in gen]
D = lambda r: f'v{GA+r}'
x2v = [f'v_cvt_pk_bf16_f32 v11, {D(10)}, 0', f'v_cvt_pk_bf16_f32 v14, 0, {D(8)}', f'v_cvt_pk_bf16_f32 v15, {D(8)}, {D(8)}',
       f'v_readlane_b32 s{sT2}, v11, 63', f'v_cvt_pk_bf16_f32 v1, {D(9)}, {D(10)}', f'v_cvt_pk_bf16_f32 v2, {D(11)}, {D(12)}',
       f'v_subrev_u32 v{vKX}, 8, v{vKX}']
mk4 = [f'v_mov_b32_dpp v11, v2 quad_perm:[1,0,3,2] {DPPF}', 'v_perm_b32 v2, v11, v2, v12', 'X2OK'] + [f'v_mul_u32_u24 v{vBAND+16+jj}, s{sT2}, v{vBAND+16+jj}' for jj in range(4)]
NG0 = int(OPT.get('ng0', 4))
with_cv(gm[:NG0], [], 0)
stream.append(('expand',))
with_cv(gm[NG0:], x2v, 0, 7 if NG0 > 4 else 4 if NG0 > 3 else 3)
if OPT.get('t0', '0') == '1':
    with_cv(PT[0][2], mk4, 2)
    stream.append(('mark', 0))
    seq = []
    for q in range(8): seq += [PT[1][2][q], PT[0][3][q], PT[1][3][q]]
    with_cv(seq[:23], cv, 0)
    stream.append(('mark', 1))
    with_cv(seq[23:] + [(t_, a_, ('C', 0, 0)) for t_, a_, b_ in PT[0][4]], [], 0)
else:
    seq = []
    for q in range(8):
        seq += [PT[0][2][q], PT[1][2][q], PT[0][3][q], PT[1][3][q]]
    with_cv(seq[:30], mk4 + cv, 4)
    del cv[:]
    stream.append(('mark', 0))
    with_cv(seq[30:31], [], 0)
    stream.append(('mark', 1))
    with_cv(seq[31:] + PT[0][4], [], 0)
for tp in range(2, 8):
    src = tp - 2
    if src >= 1:
        for dof, k, bi in PT[src][0]: mk(None, k, band(bi), DT+dof)
    seq = PT[src][4] if src >= 1 else []
    ownf = tp == 7 or str(tp) in OPT.get('ownf', '6')
    for q in range(8):
        if not ownf: seq = seq + [PT[tp][3][q]]
        seq = seq + [PT[tp][2][q]]
    cvs = PT[src][1]
    if ownf: with_cv(seq, cvs[:8], len(seq) - 4, 2); stream.append(('v', 's_nop 0'))
    else: with_cv(seq, cvs, 5)
    far = PT[src][5]
    with_cv(far[:2], [], 0)
    stream.append(('mark', tp))
    if ownf: with_cv(PT[tp][3], cvs[8:], 0)
    with_cv(far[2:], [], 0)
    if tp == 7 and OPT.get('p2', '1') != '2': stream.append(('part', 1))
    if tp == 6 and OPT.get('p2', '1') != '0': stream.append(('part', 0))
order = []
first, last = {}, {}
for i, it in enumerate(stream):
    if it[0] == 'm':
        for k in (it[2], it[3]):
            if isinstance(k, tuple):
                if k not in first: first[k] = i; order.append(k)
                last[k] = i
slot, free_after = {}, {}
slotfree = {(s_+6) % NSLOT: -1 for s_ in range(NSLOT)}
for k in order:
    if k[0] in 'BZGC':
        s_ = min(slotfree, key=lambda z: slotfree[z])
        slot[k] = s_; free_after[k] = slotfree[s_]; assert free_after[k] < first[k]
        del slotfree[s_]; slotfree[s_] = last[k]
def reg(k):
    if not isinstance(k, tuple): return k
    if k[0] == 'A': return vr(AF+4*k[1], 4)
    if k[0] == 'T': return vr(TZ+4*k[1], 4)
    return vr(BR+4*slot[k], 4)
issued = []; done_upto = [0]; lastop = {}; fin = []
checked = {0}; FOFF = 0
T_ = [0]; TL = [0]
LAT = int(OPT.get('lat', 90)); BACK = int(OPT.get('back', 36)); LOOK = int(OPT.get('look', 18))
state = {'exp': False, 'x2': False}
ops = []
def addop(key, txt, cost, pre='', post=''): ops.append(dict(key=key, txt=txt, cost=cost, pre=pre, post=post))
seenW = False
for k in order:
    if (k == ('A', 16) or k[0] == 'T') and not seenW:
        seenW = True
        addop(('X', 0), f'ds_write_b64 v{vKX}, v[14:15] offset:{KX}', 24, 's_mov_b32 exec_lo, 0\ns_mov_b32 exec_hi, 0x80000000', 's_mov_b64 exec, -1')
        addop(('X', 1), f'ds_write_b32 v{vKX}, v15 offset:{KY+4}', 16, 's_mov_b32 exec_lo, 0\ns_mov_b32 exec_hi, 0x80000000', 's_mov_b64 exec, -1')
        addop(('X', 2), f'ds_write2_b32 v{vK3}, v1, v1 offset0:0 offset1:{FC2}', 24)
        addop(('X', 3), f'ds_write2_b32 v{vK4}, v2, v2 offset0:0 offset1:{FC2}', 24)
        for n_ in range(5): first[('X', n_)] = first[k]
    if k[0] == 'A':
        for x in aread(k[1]): addop(k, x, 16)
    elif k[0] == 'T':
        for x in tzread(k[1]): addop(k, x, 8)
    else: addop(k, f'ds_read_b128 {reg(k)}, v{vCB} offset:{boff(k)}', 16)
def wait_for(idx):
    if idx < done_upto[0]: return
    T_[0] = max(T_[0], fin[idx])
    while idx + 1 < len(issued) and fin[idx+1] + 16 <= T_[0]: idx += 1
    n = len(issued) - 1 - idx
    assert n <= 15
    E(f's_waitcnt lgkmcnt({n})')
    done_upto[0] = idx + 1
def lds(txt, key=None, cost=16):
    if len(issued) - done_upto[0] >= 15: wait_for(done_upto[0])
    E(txt); issued.append(key)
    TL[0] = max(TL[0], T_[0]) + cost
    fin.append(TL[0] + LAT)
    T_[0] = max(T_[0] + 4, TL[0] - 64)
    if key is not None: lastop[key] = len(issued) - 1
def ready(o, i, pos):
    k = o['key']
    if k[0] == 'X': return state['x2']
    if k == ('A', 16) or k[0] == 'T': return not any(p['key'][0] == 'X' for p in ops)
    if k[0] == 'A': return state['exp']
    if free_after[k] > i: return False
    return k[1]//2 in checked or first[k] <= i + LOOK
def doop(o):
    ops.remove(o)
    k = o['key']
    if k[0] in 'BZGC' and k[1]//2 not in checked:
        ph = k[1]//2
        if ('F', ph) not in lastop: lds(f'ds_read_b32 v4, v8 offset:{32+4*ph}', ('F', ph), 8)
        wait_for(lastop[('F', ph)])
        E(f'''v_cmp_eq_u32 vcc, -1, v4
        s_cbranch_vccz L_uc{ph}
        L_uc{ph}d:''')
        T_[0] += 24
        checked.add(ph)
    if len(issued) - done_upto[0] >= 15: wait_for(done_upto[0])
    if o['pre']: E(o['pre'])
    lds(o['txt'], k, o['cost'])
    if o['post']: E(o['post'])
def feed(i, until, maxn=99):
    un = [o['key'] for o in ops if o['key'][0] in 'BZGC' and o['key'][1]//2 not in checked]
    if un and ('F', un[0][1]//2) not in lastop and first[un[0]] <= i + LOOK + 10:
        lds(f'ds_read_b32 v4, v8 offset:{32+4*(un[0][1]//2)}', ('F', un[0][1]//2), 8); maxn -= 1
    while maxn > 0 and TL[0] - until < BACK:
        if len(issued) - done_upto[0] >= 14:
            if fin[done_upto[0] + 2] > T_[0]: break
            wait_for(done_upto[0])
        cand = [o for n_, o in enumerate(ops[:40]) if ready(o, i, n_)]
        if not cand: break
        doop(cand[0]); maxn -= 1
def expand():
    global NOPX
    NOPX = max(0, 11 - (ninstr() - gemm_end - ('mid' in OPT)))
    t = TZ
    E(f'''s_nop NOPX
    v_cvt_pk_bf16_f32 v{t}, {D(7)}, {D(6)}
    v_cvt_pk_bf16_f32 v{t+1}, {D(5)}, {D(4)}
    v_cvt_pk_bf16_f32 v{t+2}, {D(3)}, {D(2)}
    v_cvt_pk_bf16_f32 v{t+3}, {D(1)}, {D(0)}''')
    T_[0] = max(T_[0], 80) + 20
    lds(f'ds_write_b128 v{vKX}, {vr(t,4)} offset:{KX}', None, 52)
    E(f'''v_cvt_pk_bf16_f32 v{t+4}, {D(8)}, {D(7)}
    v_cvt_pk_bf16_f32 v{t+5}, {D(6)}, {D(5)}
    v_cvt_pk_bf16_f32 v{t+6}, {D(4)}, {D(3)}
    v_cvt_pk_bf16_f32 v{t+7}, {D(2)}, {D(1)}
    v_cvt_pk_bf16_f32 v{t+10}, {D(0)}, 0''')
    T_[0] += 24
    lds(f'ds_write_b128 v{vKX}, {vr(t+4,4)} offset:{KY}', None, 52)
    E('s_mov_b64 exec, 1')
    lds(f'ds_write_b32 v{vKX}, v{t+10} offset:{KY+16}', None, 16)
    E('s_mov_b64 exec, -1')
    state['exp'] = True
    for o in [o_ for o_ in ops if o_['key'][0] == 'A'][:4]: doop(o)
    if 'mid' in OPT: stamp(5)
vPA = 10
accinit = set()
ypend = []
NPRE = int(OPT.get('npre', 6 if LP else 2))
def first_b():
    l = [(lambda bi=bi: lds(f'ds_read_b128 {band(bi)}, v10 offset:{1024*bi}', ('W', bi))) for bi in (0, 1, 3, 2)]
    l += [(lambda o=o: doop(o)) for o in [o_ for o_ in ops if o_['key'][0] in 'BZGC'][:NPRE]]
    return l
GD_ = int(OPT.get('gd', 3))
gemm_all(first_b)
assert not fill, fill
gemm_end = ninstr()
if 'mid' in OPT: stamp(8)
TM = [32]
for i, it in enumerate(stream):
    n0 = ninstr()
    if it[0] == 'mark':
        tp = it[1]
        if 'mid' in OPT and tp in (1, 2, 3, 5): stamp({1: 6, 2: 9, 3: 14, 5: 15}[tp])
        if 'sim' in OPT: sys.stderr.write(f'T{tp} at {TM[0]}\n')
        ypend.append([8, [('ds', f'ds_write_b128 v{vY}, {vr(ACC+4*tp,4)} offset:{4*YG*tp}', 52), ('ds', f'ds_write_b8 v{vFL}, v13 offset:{4*tp}', 16)]])
        continue
    if it[0] == 'expand': expand()
    elif it[0] == 'x2ok': state['x2'] = True
    elif it[0] == 'part':
        late = it[1]
        both = OPT.get('p2', '1') == '1'
        E(f's_cmp_lg_u32 s{sW}, 0\ns_cbranch_scc1 L_nopart{late}')
        if late: E('s_setprio 3')
        if not (late and both):
            E(f'''s_lshl_b32 s{sT2}, s{sI}, {4 if PM else 10}
            s_add_u32 s{sT2}, s{sT2}, {WS_PART}
            v_min_u32 v{vPA}, 55, v{LANE}''')
            if PM: E(f'v_mul_u32_u24 v{vPA}, {PM}, v{vPA}\nv_add_u32 v{vPA}, s{sT2}, v{vPA}')
            else: E(f'v_lshl_add_u32 v{vPA}, v{vPA}, 4, s{sT2}')
        E(f'global_load_dwordx4 {vr(TZ+24+(4 if late and both else 0),4)}, v{vPA}, {sp(sWS)} sc1\nL_nopart{late}:')
        n0 = ninstr() - 2
    elif it[0] == 'v':
        E(it[1]); T_[0] = max(T_[0], TM[0] - 8) + 4
    else:
        _, tile, a_, b_, dst = it
        keys = [k for k in (a_, b_) if isinstance(k, tuple)]
        for k in keys:
            while any(o['key'] == k for o in ops):
                o = [o for n_, o in enumerate(ops) if ready(o, i-1, n_)][0]
                doop(o)
        need = [lastop[k] for k in keys]
        if need and max(need) >= done_upto[0]:
            if fin[max(need)] > max(T_[0], TM[0]): feed(i-1, fin[max(need)] - LAT + 48)
            wait_for(max(need))
        if tile is None: E(f'v_mfma_f32_16x16x32_bf16 {vr(dst,4)}, {reg(a_)}, {reg(b_)}, 0')
        else:
            c_ = vr(ACC+4*tile, 4) if tile in accinit else '0'
            accinit.add(tile)
            E(f'v_mfma_f32_16x16x32_bf16 {vr(ACC+4*tile,4)}, {reg(a_)}, {reg(b_)}, {c_}')
        T_[0] = max(T_[0], TM[0]); TM[0] = T_[0] + 16; T_[0] += 4
        for p in ypend: p[0] -= ninstr() - n0
        n0 = ninstr()
        if ypend and ypend[0][0] <= 0:
            for _ in range(int(OPT.get('yw', 1))):
                if ypend[0][1]:
                    kind, txt, cost = ypend[0][1].pop(0)
                    if kind == 'ds': lds(txt, None, cost)
                    else: E(txt)
            if not ypend[0][1]: ypend.pop(0)
        else:
            feed(i, T_[0], 2)
            QN = int(OPT.get('qn', 3))
            if QN and ypend and ypend[0][0] - (ninstr() - n0) > 1:
                k_ = min(QN, ypend[0][0] - (ninstr() - n0) - 1)
                E(f's_nop {k_-1}')
                for p in ypend: p[0] -= k_ - 1
    for p in ypend: p[0] -= ninstr() - n0
order = ops
assert not order
for p in ypend:
    if p[0] > 0: E(f's_nop {p[0]-1}')
    n0 = ninstr()
    for kind, txt, cost in p[1]: E(txt)
    for p2 in ypend: p2[0] -= max(p[0], 0) + ninstr() - n0
def isize(x):
    x = x.strip()
    if x.endswith(':'): return 0
    op = x.split(' ')[0]
    if op in ('s_waitcnt', 's_nop', 's_barrier', 's_cbranch_vccz', 's_cbranch_scc1', 'v_min_u32', 'v_and_b32', 'v_mov_b32', 's_mov_b64', 'v_subrev_u32', 'v_cmp_le_u32'): return 4
    return 8
if 'strip' in OPT:
    import re as _re
    pat = _re.compile(OPT['strip'])
    body = out[m_begin:]; del out[m_begin:]
    out += [x for x in body if not pat.search(x)]
NHOP = 0
if ICW:
    body = out[m_begin:]; del out[m_begin:]
    acc = ICW
    for j, x in enumerate(body):
        out.append(x); acc += isize(x)
        nxt_ok = 'v_mfma' in x or acc >= ICW - 8
        if acc >= ICW - 28 and nxt_ok and not x.endswith(':'):
            out.append(f'L_hop{NHOP}:'); out.append(f'    s_cbranch_execz L_hop{NHOP+1}'); NHOP += 1; acc = 4
    out.append(f'L_hop{NHOP}:'); out.append('    s_cbranch_execz L_hopend')
stamp(7)
if 'twice' in OPT: E(f's_waitcnt lgkmcnt(0) vmcnt(0)\nv_add_u32 v{vKX}, 8, v{vKX}\ns_add_u32 s7, s7, 1\ns_cmp_eq_u32 s7, 1\ns_cbranch_scc1 L_twice')
if 'noepi' in OPT or 'nofin' in OPT: E('s_branch L_cdone')
E(f'''s_cmp_lg_u32 s{sW}, 0
s_cbranch_scc1 L_cdone''')
HM = OPT.get('hm', '0') == '1'
fr_begin = len(out)
PL = TZ + 24
both = OPT.get('p2', '1') == '1'
if OPT.get('p2', '1') == '2': E('s_setprio 3')
E(f'''s_mov_b32 s{sSPIN}, {SPIN_MAX}
s_mov_b32 s{sT0}, 0x0c0c0400
s_mov_b32 s{sT1}, 0x04000c0c
L_mb:
ds_read_b128 v[28:31], v8 offset:48
ds_read_b128 v[20:23], v8 offset:64
ds_read_b128 v[24:27], v8 offset:80
ds_read_b32 v4, v8 offset:28
s_waitcnt lgkmcnt(0)
v_and_b32 v4, v4, v31
v_cmp_eq_u32 vcc, -1, v4
s_cbranch_vccnz L_mbd''')
spin_check('L_mb')
E('L_mbd:')
for k in range(4):
    E(f'ds_read_b32 v{16+k}, v26 offset:{k*LOB}')
E(f'v_and_b32 v27, 0x1ffff8, v27\nv_subrev_u32 v5, 56, v{LANE}\nv_ashrrev_i32 v5, 31, v5\nv_lshlrev_b32 v5, 8, v5')
def pchk(lbl):
    E(f'''v_perm_b32 v36, v{PL+1}, v{PL}, s{sT0}
    v_perm_b32 v37, v{PL+3}, v{PL+2}, s{sT1}
    v_or_b32 v36, v36, v37
    v_cmp_ne_u32 vcc, v28, v36
    s_cbranch_vccz {lbl}''')
if both:
    E('s_waitcnt vmcnt(1)')
    pchk('L_ppd')
    E('s_waitcnt vmcnt(0)')
    for k in range(4): E(f'v_mov_b32 v{PL+k}, v{PL+4+k}')
E(f'''s_mov_b32 s{sSPIN}, {SPIN_MAX}
s_branch L_pp1
L_pp:
global_load_dwordx4 {vr(PL,4)}, v{vPA}, {sp(sWS)} sc1
L_pp1:
s_waitcnt vmcnt(0)''')
pchk('L_ppd')
spin_check('L_pp')
E('L_ppd:')
stamp(12)
E(f'''v_and_b32 v{PL}, v5, v{PL}
v_and_b32 v{PL+2}, v5, v{PL+2}
v_and_b32 v{PL+1}, v5, v{PL+1}
v_and_b32 v{PL+3}, v5, v{PL+3}
s_waitcnt lgkmcnt(0)
v_permlane32_swap_b32 v{PL}, v{PL+2}
v_permlane32_swap_b32 v{PL+1}, v{PL+3}
v_add_f32 v{PL}, v{PL}, v{PL+2}
v_add_f32 v{PL+1}, v{PL+1}, v{PL+3}
v_fmac_f32 v20, v16, v24
v_fmac_f32 v21, v17, v24
v_permlane16_swap_b32 v{PL}, v{PL+1}
v_add_f32 v{PL}, v{PL}, v{PL+1}
v_fmac_f32 v22, v18, v24
v_fmac_f32 v23, v19, v24''')
for sh in (8, 4, 2, 1):
    E(f'''v_add_f32_dpp v{PL}, v{PL}, v{PL} row_ror:{sh} {DPPF}''')
    if sh != 1: E('s_nop 1')
E(f'''v_cvt_pk_bf16_f32 v{PL}, 0, v{PL}
s_mov_b64 exec, 1
v_readlane_b32 s{sT1}, v{PL}, 16
v_readlane_b32 s{sT2}, v{PL}, 32
v_readlane_b32 s{sT3}, v{PL}, 48
v_fmac_f32 v20, v{PL}, v25
v_fmac_f32 v21, s{sT1}, v25
v_fmac_f32 v22, s{sT2}, v25
v_fmac_f32 v23, s{sT3}, v25
v_cvt_pk_bf16_f32 v16, v20, v21
v_cvt_pk_bf16_f32 v17, v22, v23
global_store_dwordx2 v27, v[16:17], {sp(sOUT)}
s_branch L_cdone''')
if HM: islands('hm', fr_begin)
E(f'''L_tslow:
s_mov_b32 s{sSPIN}, {SPIN_MAX}
L_tsl:
ds_read_u8 v5, v{vFL} offset:96
s_waitcnt lgkmcnt(0)
v_cmp_ne_u32 vcc, 0, v5
s_cbranch_vccnz L_tok
s_sub_u32 s{sSPIN}, s{sSPIN}, 1
s_cbranch_scc0 L_tsl
s_branch L_tok
L_uc0:''')
wait_word('u0', 8, 32, 4, 0)
E('s_branch L_uc0d')
for ph in (1, 2, 3):
    E(f'L_uc{ph}:')
    if 'mid' not in OPT: stamp({1: 5, 2: 8, 3: 14}[ph])
    wait_word(f'u{ph}', 8, 32+4*ph, 4, 0)
    if 'mid' not in OPT: stamp({1: 6, 2: 9, 3: 15}[ph])
    E(f's_branch L_uc{ph}d')
if LP:
    E(f'''L_lslow:
    s_mov_b32 s{sSPIN}, {SPIN_MAX}
    L_lsl:
    ds_read_b32 v45, v44
    s_waitcnt lgkmcnt(0)
    v_cmp_ne_u32 vcc, 0, v45
    s_cbranch_vccnz L_lsd
    s_sub_u32 s{sSPIN}, s{sSPIN}, 1
    s_cbranch_scc0 L_lsl
    L_lsd:
    s_cmp_eq_u32 s{sIO}, 0
    s_branch L_lok''')
vP, vG, vGF, vYV = 80, 72, 112, 32
def stage(p):
    for k in range(4):
        E(f'v_perm_b32 v{40+k}, v{vX+4*p+2+(k>>1)}, v{vX+4*p+(k>>1)}, s{sP1 if k & 1 else sP0}')
    for k in range(4):
        E(f'ds_write_b32 v64, v{40+k} offset:{k*UCB+1024*p}')
def unpack(p):
    for j in range(2):
        for h in range(2):
            E(f'''v_lshlrev_b32 v{vP+8*p+4*j+2*h}, 16, v{vX+4*p+2*j+h}
            v_and_b32 v{vP+8*p+4*j+2*h+1}, 0xffff0000, v{vX+4*p+2*j+h}''')
G1 = OPT.get('g1', '0') == '1'
NA = 3 if G1 else 2
def pollA():
    E(f'''global_load_dwordx2 v[12:13], v70, {sp(sDBG)} sc1
    global_load_dwordx2 {vr(vG,2)}, v66, {sp(sWS)} offset:-4096 sc1''')
    if G1: E(f'global_load_dwordx2 {vr(vG+2,2)}, v66, {sp(sWS)} offset:-2048 sc1')
def pollB():
    E(f'global_load_dwordx2 v[52:53], v65, {sp(sWS)} sc1')
    for p in range(2 if G1 else 1, 4):
        E(f'global_load_dwordx2 {vr(vG+2*p,2)}, v66, {sp(sWS)} offset:{-4096+2048*p} sc1')
def chkA():
    E(f'''v_cmp_eq_u32 vcc, 1, v13
    v_cmp_eq_u32 {sp(sM0)}, v12, v{vG+1}
    s_and_b64 vcc, vcc, {sp(sM0)}''')
    if G1: E(f'v_cmp_eq_u32 {sp(sM0)}, v12, v{vG+3}\ns_and_b64 vcc, vcc, {sp(sM0)}')
    E('s_cmp_eq_u64 vcc, -1\ns_cbranch_scc1 L_pad')
def epi(p, masked):
    if PRIO == str(p): E('s_setprio 2')
    if PRIO == 'w': E('s_setprio 0')
    if str(p) in OPT.get('spec', '3'):
        wait_word(f'd{p}', 71, 8*p-4, 48, SLEEP)
        if OPT.get('sps', '0') != '0': E(f's_sleep {OPT["sps"]}')
        E(f's_mov_b32 s{sSPIN}, {SPIN_MAX}\nL_wf_e{p}:\nds_read_b32 v48, v71 offset:{8*p}')
        for k in range(4):
            E(f'ds_read_b64 {vr(vYV+2*k,2)}, v67 offset:{k*LOB+8*YG*p}')
        E(f's_waitcnt lgkmcnt(4)\nv_cmp_eq_u32 vcc, -1, v48\ns_cbranch_vccnz L_wfd_e{p}')
        spin_check(f'L_wf_e{p}')
        E(f'L_wfd_e{p}:')
        if p == 3: stamp(14)
    else:
        wait_word(f'e{p}', 71, 8*p, 48, SLEEP if p < 3 else int(OPT.get('sl3', 0)))
        if p == 0: stamp(8)
        if p == 3: stamp(14)
        for k in range(4):
            E(f'ds_read_b64 {vr(vYV+2*k,2)}, v67 offset:{k*LOB+8*YG*p}')
    if 'ph' in OPT: stamp([1, 2, 3, 13][p])
    if PRIO == 'w': E('s_setprio 2')
    E('s_waitcnt lgkmcnt(0)')
    for j in range(2):
        r = vP + 8*p + 4*j
        for k in range(4):
            E(f'v_fmac_f32 v{r+k}, v{vYV+2*k+j}, v{vGF+2*p+j}')
        E(f'''v_cvt_pk_bf16_f32 v{r}, v{r}, v{r+1}
        v_cvt_pk_bf16_f32 v{r+1}, v{r+2}, v{r+3}''')
        if masked: E(f's_cmp_eq_u32 s{sJ}, {2*p+j}\ns_cselect_b64 exec, {sp(sEX)}, -1')
        if 'no3' in OPT and p == 1: E(f's_lshr_b32 s{sT0}, s{sI}, 4\ns_cmp_eq_u32 s{sT0}, 3\ns_cselect_b64 exec, 1, exec')
        if str(p) in OPT.get('noall', ''): E('s_mov_b64 exec, 1')
        E(f'global_store_dwordx2 v{vXO+p}, {vr(r,2)}, {sp(sOUT)} offset:{1024*j}')
        if masked: E('s_mov_b64 exec, -1')
    if 'ph' in OPT and p < 3: stamp([12, 15, 7][p])
    if PRIO == 'w': E('s_setprio 0')
def gun(p):
    E(f'''v_lshlrev_b32 v{vGF+2*p}, 16, v{vG+2*p}
    v_and_b32 v{vGF+2*p+1}, 0xffff0000, v{vG+2*p}''')
E('; ---- I/O waves\nL_cio1:')
E(f'''s_add_u32 s{sT2}, s{sCH}, {SM0+FLG+32}
v_mov_b32 v68, s{sT2}
v_mov_b32 v59, -1
ds_write_b8 v68, v59 offset:64''')
U2F = OPT.get('u2f', '1') == '1'
if NMID == 1 and U2F: uload(2); NMID = 2
E(f's_waitcnt vmcnt({2*NMID})')
stamp(13)
stage(0)
E('ds_write_b8 v68, v59')
if NMID == 1: uload(2); NMID = 2
stamp(4)
if KPRIO == 'io': E('s_setprio 0')
E(f'''v_lshlrev_b32 v65, 3, v{LANE}
v_add_u32 v65, {WS_KEYS}, v65
v_and_b32 v66, 255, v0
v_lshlrev_b32 v66, 3, v66
v_add_u32 v66, {WS_G+4096}, v66
v_mov_b32 v70, 0
v_bfe_u32 v12, v0, 1, 2
v_bfe_u32 v13, v0, 7, 1
v_lshl_add_u32 v12, v13, 2, v12
v_mul_u32_u24 v67, {YG}, v12
v_bfe_u32 v12, v0, 3, 4
v_lshl_add_u32 v67, v12, 4, v67
v_and_b32 v12, 1, v0
v_lshl_add_u32 v67, v12, 3, v67
v_mov_b32 v69, {SM0+FLG}
v_lshl_add_u32 v71, v13, 2, v69
''')
assert NMID in (1, 2)
U3E = OPT.get('u3e', '0') == '1'
def stagef(p):
    stage(p)
    E(f'ds_write_b8 v68, v59 offset:{4*p}')
if U3E: pollA(); uload(3)
E(f's_waitcnt vmcnt({2*(NMID-1) + 4*U3E})')
stagef(1)
stamp(12)
if not U3E:
    pollA()
    if NMID == 1: uload(2)
    uload(3)
unpack(0); unpack(1)
assert NMID == 2 and not U3E
E(f's_waitcnt vmcnt({NA + 2})')
stagef(2)
stamp(15)
E('s_waitcnt vmcnt(2)')
if PRIO == 'io': E('s_setprio 2')
E(f's_mov_b32 s{sS3}, 0')
chkA()
E('s_waitcnt vmcnt(0)')
stagef(3)
E(f'''s_mov_b32 s{sS3}, 1
s_mov_b32 s{sSPIN}, {SPIN_MAX}
L_pa:''')
pollA()
E('s_waitcnt vmcnt(0)')
chkA()
spin_check('L_pa')
E('L_pad:')
stamp(6)
if not G1: pollB()
gun(0)
E(f'v_readfirstlane_b32 s{sTAG}, v12')
epi(0, False)
E(f'''s_cmp_lg_u32 s{sS3}, 0
s_cbranch_scc1 L_s3d
s_waitcnt vmcnt({2 if G1 else 6})''')
stagef(3)
E('L_s3d:')
stamp(5)
if G1:
    pollB()
    gun(1)
    epi(1, False)
unpack(2); unpack(3)
E(f'''s_mov_b32 s{sSPIN}, {SPIN_MAX}
s_waitcnt vmcnt(2)
s_branch L_pb1
L_pb:''')
pollB()
E(f'''s_waitcnt vmcnt(0)
L_pb1:
v_cmp_eq_u32 vcc, s{sTAG}, v53
v_cmp_eq_u32 {sp(sM0)}, s{sTAG}, v{vG+3}
v_cmp_eq_u32 {sp(sM1)}, s{sTAG}, v{vG+5}
s_and_b64 vcc, vcc, {sp(sM0)}
v_cmp_eq_u32 {sp(sM0)}, s{sTAG}, v{vG+7}
s_and_b64 vcc, vcc, {sp(sM1)}
s_and_b64 vcc, vcc, {sp(sM0)}
s_cmp_eq_u64 vcc, -1
s_cbranch_scc1 L_pbd''')
spin_check('L_pb')
E('L_pbd:')
stamp(9)
key_reduce(52)
for p in range(2 if G1 else 1, 4): gun(p)
E(f'''s_andn2_b32 s{sIDX}, 2047, s{sKEY}
s_lshr_b32 s{sT0}, s{sIDX}, 1
s_mov_b64 {sp(sEX)}, -1
s_bitset0_b64 {sp(sEX)}, s{sT0}
s_lshr_b32 s{sT2}, s{sIDX}, 9
s_lshl_b32 s{sJ}, s{sT2}, 1
s_and_b32 s{sT1}, s{sIDX}, 1
s_add_u32 s{sJ}, s{sJ}, s{sT1}
s_bfe_u32 s{sT1}, s{sIDX}, 0x20007
s_cmp_eq_u32 s{sT1}, s{sCH}
s_cselect_b32 s{sJ}, s{sJ}, 8
s_cbranch_scc0 L_nomb
s_and_b32 s{sT0}, s{sT0}, 63
v_readlane_b32 s{sT1}, v{vG}, s{sT0}
v_readlane_b32 s{sT3}, v{vG+2}, s{sT0}
v_readlane_b32 s{sT4}, v{vG+4}, s{sT0}
v_readlane_b32 s{sT5}, v{vG+6}, s{sT0}
s_bitcmp1_b32 s{sT2}, 0
s_cselect_b32 s{sT1}, s{sT3}, s{sT1}
s_cselect_b32 s{sT4}, s{sT5}, s{sT4}
s_bitcmp1_b32 s{sT2}, 1
s_cselect_b32 s{sT1}, s{sT4}, s{sT1}
; x of the routed row straight from this lane's raw rows
s_lshl_b32 s{sT3}, s{sJ}, 1
s_set_gpr_idx_on s{sT3}, 1
v_mov_b32 v40, v{vX}
v_mov_b32 v41, v{vX+1}
s_set_gpr_idx_off
s_bitcmp1_b32 s{sIDX}, 0
s_cselect_b32 s{sT3}, 0, 16
s_lshl_b32 s{sT1}, s{sT1}, s{sT3}
s_and_b32 s{sT1}, s{sT1}, 0xffff0000
v_readlane_b32 s{sT4}, v40, s{sT0}
v_readlane_b32 s{sT5}, v41, s{sT0}
s_and_b32 s{sT0}, s{sKEY}, 0xffff0000
s_xor_b32 s{sT3}, s{sT0}, 0xffff0000
s_xor_b32 s{sT0}, s{sT0}, 0x80000000
s_bitcmp1_b32 s{sKEY}, 31
s_cselect_b32 s{sT0}, s{sT0}, s{sT3}
v_mov_b32 v45, {f32(-L2E)}
v_mul_f32 v45, s{sT0}, v45
v_exp_f32 v45, v45
v_mov_b32 v44, s{sT1}
v_add_f32 v45, 1.0, v45
v_rcp_f32 v45, v45
v_sub_f32 v46, 1.0, v44
v_cvt_pk_bf16_f32 v45, 0, v45
v_cvt_pk_bf16_f32 v46, 0, v46
v_mul_f32 v45, v45, v46
s_lshl_b32 s{sT0}, s{sT4}, 16
s_and_b32 s{sT1}, s{sT4}, 0xffff0000
s_lshl_b32 s{sT3}, s{sT5}, 16
s_and_b32 s{sT4}, s{sT5}, 0xffff0000
v_mov_b32 v40, s{sT0}
v_mov_b32 v41, s{sT1}
v_mov_b32 v42, s{sT3}
v_mov_b32 v43, s{sT4}
s_lshr_b32 s{sT3}, s{sIDX}, 8
s_lshl_b32 s{sT0}, s{sT3}, 2
s_bfe_u32 s{sT1}, s{sIDX}, 0x20002
s_add_u32 s{sT0}, s{sT0}, s{sT1}
s_mul_i32 s{sT0}, s{sT0}, {YG}
s_and_b32 s{sT1}, s{sIDX}, 0xf0
s_add_u32 s{sT0}, s{sT0}, s{sT1}
s_and_b32 s{sT1}, s{sIDX}, 3
s_lshl_b32 s{sT1}, s{sT1}, 2
s_add_u32 s{sT0}, s{sT0}, s{sT1}
v_mov_b32 v46, s{sT0}
s_lshl_b32 s{sT0}, s{sIDX}, 10
s_lshl_b32 s{sT1}, s{sI}, 3
s_add_u32 s{sT0}, s{sT0}, s{sT1}
v_mov_b32 v47, s{sT0}
ds_write_b128 v69, v[40:43] offset:64
ds_write_b128 v69, v[44:47] offset:80
v_mov_b32 v48, s{sTAG}
v_mov_b32 v51, -1
; a routed row of the first phase was stored like any other: its store must be complete before the final one is allowed
s_cmp_ge_u32 s{sT2}, {2 if G1 else 1}
s_cbranch_scc1 L_mb1
s_waitcnt vmcnt(0)
L_mb1:
ds_write_b128 v69, v[48:51] offset:48
L_nomb:''')
if 'ph' not in OPT: stamp(7)
HE = OPT.get('he', '0') == '1'
if not G1: epi(1, True)
if HM: hop('hm', sCH, 4)
if HE: hop('he', sCH, 4)
e_begin = len(out)
epi(2, True); epi(3, True)
if HE: islands('he', e_begin)
E('L_cdone:')
stamp(10)
if STAMPS:
    E('s_waitcnt vmcnt(0)')
    stamp(11)
write_stamps()
E('s_endpgm')

A_T = 0
E(f"""; ================= router workgroups =================
L_rg:
{"v_mov_b32 v37, 128" if 'r' in TW else ""}
{"global_load_dword v37, v37, " + sp(sWS) if 'r' in TW else ""}
s_lshl_b32 s{sT0}, s{sI}, 2
s_lshl_b32 s{sT1}, s{sW}, 8
s_add_u32 s{sT0}, s{sT0}, s{sT1}
s_lshl_b32 s{sT1}, s{sT0}, 2
s_add_u32 s{sT1}, s{sT1}, {WS_G}
v_mov_b32 v49, s{sT1}
s_sub_u32 s{sT0}, 2047, s{sT0}
v_bfe_u32 v6, v{LANE}, 3, 1
v_lshrrev_b32 v5, 5, v{LANE}
v_lshl_add_u32 v5, v6, 1, v5
s_lshl_b32 s{sT1}, s{sW}, 4
v_lshl_add_u32 v6, v5, 2, s{sT1}
v_sub_u32 v5, s{sT0}, v5
v_and_b32 v48, 15, v{LANE}
v_lshlrev_b32 v48, 3, v48
s_lshl_b32 s{sT0}, s{sI}, 3
s_add_u32 s{sT0}, s{sT0}, {WS_KEYS}
v_mov_b32 v45, s{sT0}
s_cmp_ge_u32 s{sI}, 32
s_cselect_b32 s{sT1}, 8, 0
s_sub_u32 s{sT0}, s{sI}, s{sT1}
s_lshl_b32 s{sT0}, s{sT0}, 3
s_add_u32 s{sT0}, s{sT0}, s{sW}
s_lshl_b32 s{sT0}, s{sT0}, 12
v_and_b32 v47, 31, v{LANE}
v_lshl_add_u32 v47, v47, 7, s{sT0}
s_lshr_b32 s{sT1}, s{sT0}, 18
s_lshl_b32 s{sT1}, s{sT1}, 9
s_bfe_u32 s{sT0}, s{sT0}, 0x5000d
s_mul_i32 s{sT0}, s{sT0}, {16*3584}
s_add_u32 s{sT0}, s{sT0}, s{sT1}
v_and_b32 v39, 15, v{LANE}
v_mul_u32_u24 v39, 3584, v39
s_bitcmp1_b32 s{sW}, 1
s_cselect_b32 s{sT1}, {48 if OPT.get('rsx', '0') != '0' else 0}, {48 if OPT.get('rsx', '0') == '2' else 0}
v_and_b32 v38, s{sT1}, v{LANE}
v_xor_b32 v38, 48, v38
v_lshl_add_u32 v39, v38, 3, v39
v_add_u32 v39, s{sT0}, v39
s_bitcmp1_b32 s{sW}, 0
s_cselect_b64 {sp(sT4)}, {sp(sWU)}, {sp(sWG)}
{"global_load_dword v38, v39, " + sp(sT4) if RS == '1' else ""}
s_waitcnt lgkmcnt(0)
s_add_u32 s{sTAG}, s{sTAG}, {TAGINC}
v_mov_b32 v61, s{sTAG}
v_mov_b32 v41, s{sTAG}
v_mov_b32 v43, s{sTAG}
s_add_u32 s{sT0}, s{sI}, s{sW}
s_cmp_lg_u32 s{sT0}, 0
s_cbranch_scc1 L_anotag
v_mov_b32 v7, 0
v_mov_b32 v62, s{sTAG}
v_mov_b32 v63, 1
s_mov_b64 exec, 1
s_waitcnt vmcnt(0)
global_store_dwordx2 v7, v[62:63], {sp(sDBG)} sc1
s_mov_b64 exec, -1
s_branch L_rg1
L_anotag:
s_waitcnt vmcnt({2 + (RS == '1') + ('r' in TW)})""")
def dots(rows):
    for k in range(4):
        for r in rows:
            E(f'v_dot2_f32_bf16 v{50+r}, v{vXA+4*r+k}, v{vWRv+k}, {"0" if k == 0 else "v%d" % (50+r)}')
            E(f'v_dot2_f32_bf16 v{54+r}, v{vXA+4*r+k}, v{vGWv+k}, {"0" if k == 0 else "v%d" % (54+r)}')
E('L_rg1:')
dots((0, 1))
E(f's_cbranch_scc0 L_rg2\ns_waitcnt vmcnt({int(RS == "1") + ("r" in TW)})\nL_rg2:')
if RS == '2': E(f'global_load_dword v38, v39, {sp(sT4)}')
stamp(2)
if RW == 'pre': E(f'global_load_dword v46, v47, {sp(sWD)}')
dots((2, 3))
E(f"""v_permlane32_swap_b32 v50, v51
v_permlane32_swap_b32 v54, v55
v_add_f32 v50, v50, v51
v_permlane32_swap_b32 v52, v53
v_add_f32 v54, v54, v55
v_permlane32_swap_b32 v56, v57
v_add_f32 v52, v52, v53
v_add_f32 v56, v56, v57
v_permlane16_swap_b32 v50, v54
s_nop 0
v_permlane16_swap_b32 v52, v56
v_add_f32 v50, v50, v54
v_add_f32 v52, v52, v56
s_nop 0
v_add_f32_dpp v51, v50, v50 row_ror:8 row_mask:0xf bank_mask:0x3
v_add_f32_dpp v53, v52, v52 row_ror:8 row_mask:0xf bank_mask:0xf
s_nop 1
v_mov_b32_dpp v51, v53 quad_perm:[0,1,2,3] row_mask:0xf bank_mask:0xc
s_nop 1
v_add_f32_dpp v51, v51, v51 row_half_mirror {DPPF}
s_nop 1
v_add_f32_dpp v51, v51, v51 quad_perm:[1,0,3,2] {DPPF}
s_nop 1
v_add_f32_dpp v50, v51, v51 quad_perm:[2,3,0,1] {DPPF}
v_cvt_pk_bf16_f32 v50, 0, v50
v_mul_f32 v52, {f32(-L2E)}, v50
v_exp_f32 v52, v52
v_ashrrev_i32 v51, 31, v50
v_add_f32 v52, 1.0, v52
v_rcp_f32 v52, v52
v_or_b32 v51, 0x80000000, v51
v_xor_b32 v50, v50, v51
v_mov_b32 v53, v52
v_and_b32 v50, 0xffff0000, v50
v_or_b32 v50, v50, v5
v_permlane32_swap_b32 v52, v53
s_mov_b32 exec_lo, 0x00000101
s_mov_b32 exec_hi, 0x00000101
ds_write_b32 v6, v50 offset:{A_T}
s_mov_b64 exec, -1
v_cvt_pk_bf16_f32 v40, v52, v53
s_nop 1
v_mov_b32_dpp v42, v40 row_ror:8 {DPPF}
s_mov_b64 exec, 0x10000
global_store_dwordx4 v49, v[40:43], {sp(sWS)} sc1
s_mov_b64 exec, -1""")
stamp(5)
E("""s_waitcnt lgkmcnt(0)
s_barrier""")
stamp(3)
E(f"""s_cmp_lg_u32 s{sW}, 0
s_cbranch_scc1 L_rg3
ds_read_b64 v[52:53], v48 offset:{A_T}
s_waitcnt lgkmcnt(0)
v_max_u32 v60, v52, v53
s_nop 1""")
for sh in (8, 4, 2, 1):
    E(f'v_max_u32_dpp v60, v60, v60 row_ror:{sh} {DPPF}')
    if sh != 1: E('s_nop 1')
E(f"""s_mov_b64 exec, 1
global_store_dwordx2 v45, v[60:61], {sp(sWS)} sc1""")
stamp(4)
E('s_mov_b64 exec, -1\nL_rg3:')
if RW == 'post': E(f's_lshr_b32 s{sT0}, s{sI}, 3\ns_cmp_eq_u32 s{sT0}, 3\ns_cbranch_scc1 L_adone\ns_barrier\n{"global_load_dword v38, v39, " + sp(sT4) if RS == "3" else ""}\nglobal_load_dword v46, v47, {sp(sWD)}\ns_waitcnt vmcnt(0)')
if RW == 'pre': E('s_waitcnt vmcnt(0)')
E('s_branch L_adone')
if 'idle' in OPT:
    E(f'''L_idle:
    s_lshr_b32 s{sT0}, s{sSLOT}, 1
    s_lshl_b32 s{sT0}, s{sT0}, 6
    s_lshr_b32 s{sT1}, s{sW}, 1
    s_add_u32 s{sT0}, s{sT0}, s{sT1}
    s_add_u32 s{sT0}, s{sT0}, 28
    s_mul_i32 s{sT0}, s{sT0}, 3584
    v_and_b32 v4, 31, v{LANE}
    v_min_u32 v4, 27, v4
    v_lshl_add_u32 v4, v4, 7, s{sT0}
    v_lshrrev_b32 v5, 5, v{LANE}
    v_mul_u32_u24 v5, {32*3584}, v5
    v_add_u32 v4, v4, v5
    v_subrev_u32 v6, {4*3584}, v4
    s_bitcmp1_b32 s{sW}, 0
    s_waitcnt lgkmcnt(0)
    s_cselect_b64 {sp(sT4)}, {sp(sWU)}, {sp(sWG)}
    global_load_dword v5, v4, {sp(sT4)}
    global_load_dword v7, v6, {sp(sT4)}
    s_waitcnt vmcnt(0)
    s_branch L_adone''')
F_IDX, F_PART, F_X = 98304, 98304 + 64, 98304 + 64 + 2048
XL = OPT.get('xl', '1') == '1'
LD = OPT.get('ld', '1') == '1'
vFG, vFU, vFD, vBT = 64, 80, 96, 112
FLEAD = int(OPT.get('flead', 0))
OPP = OPT.get('opp', '1') == '1'
DLATE = OPT.get('dlate', '2') != '0'
D2 = OPT.get('dlate', '2') == '2'
FBAR = OPT.get('fbar', '1') == '1'
EPOLL = OPT.get('epoll', '0') == '1'
E(f"""; ================= FFN workgroups =================
L_ffn:
{'s_branch L_adone' if 'nof' in OPT else ''}
; slices live on seven of the eight column groups (group 3 has the slowest output path): fi = 8*g' + k
s_cmp_eq_u32 s{sT0}, 3
s_cbranch_scc1 {'L_idle' if 'idle' in OPT else 'L_adone'}
s_lshr_b32 s{sFI}, s{sI}, 1
s_cmp_gt_u32 s{sT0}, 3
s_cselect_b32 s{sT1}, 8, 0
s_sub_u32 s{sFI}, s{sFI}, s{sT1}
v_lshrrev_b32 v8, 2, v{LANE}
v_and_b32 v9, 3, v{LANE}
v_mul_u32_u24 v16, 3584, v8
v_lshl_add_u32 v16, v9, 4, v16
s_mul_i32 s{sT0}, s{sW}, {64*3584}
s_lshl_b32 s{sT1}, s{sFI}, 6
s_add_u32 s{sT0}, s{sT0}, s{sT1}
s_mul_i32 s{sT3}, s{sW}, 12288
s_and_b32 s{sT1}, s{sFI}, {1 if OPP else 0}
s_mul_i32 s{sT2}, s{sT1}, {32*3584}
s_lshl_b32 s{sT1}, s{sT1}, 11
s_add_u32 s{sT4}, s{sT3}, s{sT1}
s_xor_b32 s{sT5}, s{sT4}, 2048
s_add_u32 s{sT1}, s{sT0}, s{sT2}
s_sub_u32 s{sT0}, s{sT0}, s{sT2}
s_add_u32 s{sT0}, s{sT0}, {32*3584}
v_add_u32 v18, s{sT0}, v16
v_add_u32 v16, s{sT1}, v16
v_add_u32 v17, {16*3584}, v16
v_add_u32 v19, {16*3584}, v18
s_waitcnt lgkmcnt(0)""")
stamp(1)
def gu(j):
    sb = sT4 if j < 2 else sT5
    E(f"""s_add_u32 m0, s{sb}, {1024*(j & 1)}
    s_nop 0
    global_load_lds_dwordx4 v{16+j}, {sp(sWG)}{NTW}
    s_add_u32 m0, s{sb}, {4096+1024*(j & 1)}
    s_nop 0
    global_load_lds_dwordx4 v{16+j}, {sp(sWU)}{NTW}""")
FTHR = OPT.get('fthr', '0')
if 'f' in TW:
    E(f'''s_cmp_lt_u32 s{sW}, 4
    s_cbranch_scc1 L_fnt
    s_cmp_eq_u32 s{sW}, 5
    s_cselect_b64 {sp(sM0)}, {sp(sWS)}, {sp(sX)}
    s_cmp_eq_u32 s{sW}, 6
    s_cselect_b64 {sp(sM0)}, {sp(sDBG)}, {sp(sM0)}
    s_cmp_eq_u32 s{sW}, 7
    s_cselect_b64 {sp(sM0)}, {sp(sWD)}, {sp(sM0)}
    v_mov_b32 v4, 128
    global_load_dword v4, v4, {sp(sM0)}
    L_fnt:''')
if FTHR == '2': E(f'v_mov_b32 v4, 0\nglobal_load_dword v4, v4, {sp(sWG)}\ns_waitcnt vmcnt(0)')
if FTHR == '3': E(f'v_mov_b32 v4, 0\nglobal_load_dword v4, v4, {sp(sWG)}\ns_waitcnt vmcnt(0)\nv_mov_b32 v4, 0\nglobal_load_dword v4, v4, {sp(sWU)}\ns_waitcnt vmcnt(0)')
if FTHR == '4':
    E(f'''s_cmp_lg_u32 s{sW}, 0
    s_cbranch_scc1 L_ftd
    v_mov_b32 v4, 0
    s_mov_b32 s{sSPIN}, {SPIN_MAX}
    L_ft:
    global_load_dwordx2 v[6:7], v4, {sp(sDBG)} sc1
    s_waitcnt vmcnt(0)
    v_cmp_eq_u32 vcc, 1, v7
    s_cbranch_vccnz L_ftd''')
    spin_check('L_ft')
    E('L_ftd:\ns_barrier')
stamp(3)
gu(0)
if FTHR == '1': E('s_waitcnt vmcnt(0)\ns_barrier')
gu(1)
E(f"""v_lshrrev_b32 v44, 3, v{LANE}
v_and_b32 v21, 7, v{LANE}
v_lshlrev_b32 v21, 4, v21
v_lshl_add_u32 v44, v44, 10, v21
s_lshl_b32 s{sT0}, s{sFI}, 15
s_lshl_b32 s{sT1}, s{sW}, 7
s_add_u32 s{sT0}, s{sT0}, s{sT1}
v_add_u32 v44, s{sT0}, v44
v_lshlrev_b32 v22, 3, v{LANE}
v_add_u32 v22, {WS_KEYS}, v22
v_mov_b32 v23, 0""")
def down():
    E(f's_add_u32 m0, s{sT3}, 8192\ns_nop 0')
    for j in range(4):
        E(f'global_load_lds_dwordx4 v44, {sp(sWD)}{NTD}')
        if j < 3: E('s_add_u32 m0, m0, 1024\nv_add_u32 v44, 8192, v44')
if RW == 'no' and not DLATE: down()
if FBAR: E('s_barrier')
stamp(2)
gu(2); gu(3)
if RW != 'no' and not DLATE:
    E('s_barrier')
    down()
if EPOLL: E(f"""s_cmp_lg_u32 s{sW}, {FLEAD}
s_cbranch_scc1 L_fnp
global_load_dwordx2 v[16:17], v22, {sp(sWS)} sc1
global_load_dwordx2 v[18:19], v23, {sp(sDBG)} sc1
L_fnp:""")
stamp(5)
E(f"""v_and_b32 v5, 15, v{LANE}
v_lshrrev_b32 v6, 4, v{LANE}
v_bfe_u32 v14, v{LANE}, 2, 2
v_lshlrev_b32 v14, 6, v14
v_lshl_add_u32 v14, v6, 9, v14
v_lshl_add_u32 v14, v9, 3, v14
v_add_u32 v14, s{sT3}, v14
v_lshlrev_b32 v8, 7, v8
v_lshl_add_u32 v8, v9, 3, v8
v_add_u32 v8, s{sT3}, v8
s_lshl_b32 s{sT1}, s{sW}, 7
{'s_add_u32 s%d, s%d, %d' % (sT1, sT1, F_X) if XL else ''}
v_lshl_add_u32 v10, v6, 4, s{sT1}
v_lshrrev_b32 v12, 2, v5
v_lshlrev_b32 v13, 6, v12
v_lshl_add_u32 v13, v6, 4, v13
s_lshl_b32 s{sT1}, s{sW}, 8
s_add_u32 s{sT1}, s{sT1}, {F_PART}
v_lshl_add_u32 v11, v{LANE}, 2, s{sT1}
v_lshl_add_u32 v13, v9, 2, v13
v_add_u32 v7, {F_PART}, v13
v_lshl_add_u32 v13, v12, 2, v6
s_lshl_b32 s{sT1}, s{sW}, {8 if PM else 14}
s_mul_i32 s{sT2}, s{sFI}, {PM if PM else 16}
s_add_u32 s{sT1}, s{sT1}, s{sT2}
s_add_u32 s{sT1}, s{sT1}, {WS_PART}
{('v_lshl_add_u32 v13, v%d, 2, s%d' % (LANE, sT1)) if PC else ('v_lshl_add_u32 v13, v13, %d, s%d' % (4 if PM else 10, sT1))}
{('v_lshlrev_b32 v46, 3, v9') if PC else ''}
v_mov_b32 v21, {F_IDX}""")
HF = OPT.get('hf', '0') == '1'
if HF: hop('hf', sW, 8)
f_begin = len(out)
E('s_waitcnt vmcnt(0)')
if D2 and XL and LD:
    E(f's_cmp_eq_u32 s{sW}, {FLEAD}\ns_cbranch_scc1 L_fnd')
    down()
    E('L_fnd:')
elif D2: down()
for s_ in range(2):
    for ct in range(2):
        for h in range(2):
            E(f'ds_read_b64_tr_b16 {vr(vFG+8*s_+4*ct+2*h,2)}, v14 offset:{2048*s_+256*h+32*ct}')
            E(f'ds_read_b64_tr_b16 {vr(vFU+8*s_+4*ct+2*h,2)}, v14 offset:{4096+2048*s_+256*h+32*ct}')
    E('s_waitcnt lgkmcnt(4)')
def dtr():
    for t in range(4):
        for hh in range(2):
            E(f'ds_read_b64_tr_b16 {vr(vFD+4*t+2*hh,2)}, v8 offset:{8192+2048*hh+32*t}')
if not DLATE: dtr()
stamp(6)
E(f"""s_cmp_lg_u32 s{sW}, {FLEAD}
s_cbranch_scc1 L_anopoll
s_mov_b32 s{sSPIN}, {SPIN_MAX}
{'s_branch L_pk1' if EPOLL else ''}
L_pk:
global_load_dwordx2 v[16:17], v22, {sp(sWS)} sc1
global_load_dwordx2 v[18:19], v23, {sp(sDBG)} sc1
s_waitcnt vmcnt(0)
L_pk1:
v_cmp_eq_u32 vcc, v18, v17
v_cmp_eq_u32 {sp(sM0)}, 1, v19
s_and_b64 vcc, vcc, {sp(sM0)}
s_cmp_eq_u64 vcc, -1
s_cbranch_scc1 L_pkd""")
spin_check('L_pk')
E('L_pkd:')
key_reduce(16)
if XL:
    E(f"""s_andn2_b32 s{sIDX}, 2047, s{sKEY}
    s_lshl_b32 s{sT0}, s{sIDX}, 10
    s_mov_b32 m0, {F_X}
    v_lshl_add_u32 v45, v{LANE}, 4, s{sT0}
    global_load_lds_dwordx4 v45, {sp(sX)}""")
    if LD: down()
E(f"""v_mov_b32 v16, s{sKEY}
ds_write_b64 v21, v[16:17]
{('s_waitcnt vmcnt(4)' if LD else 's_waitcnt vmcnt(0)') if XL else ''}
L_anopoll:
s_waitcnt lgkmcnt(0)
s_barrier""")
stamp(7)
if XL:
    E(f"""ds_read_b128 v[16:19], v10
    ds_read_b128 v[40:43], v10 offset:64
    ds_read_b32 v128, v21 offset:4
    s_waitcnt lgkmcnt(1)""")
    stamp(13)
else:
    E(f"""ds_read_b64 v[130:131], v21
s_waitcnt lgkmcnt(0)
v_not_b32 v16, v130
v_and_b32 v16, 2047, v16
v_lshl_add_u32 v10, v16, 10, v10
global_load_dwordx4 v[16:19], v10, {sp(sX)}
global_load_dwordx4 v[20:23], v10, {sp(sX)} offset:64
v_mov_b32 v128, v131
v_lshrrev_b32 v129, 8, v131
v_lshrrev_b32 v130, 16, v131
v_lshrrev_b32 v131, 24, v131""")
    if DLATE and not D2: down()
    stamp(12)
    if D2:
        E('s_waitcnt vmcnt(2)')
        dtr()
    E(f's_waitcnt vmcnt({4 if DLATE and not D2 else 0})')
    stamp(13)
for q in range(4):
    fb = (vFU if q >> 1 else vFG) + 4*(q & 1)
    for s_ in range(2):
        E(f'v_mfma_f32_16x16x32_bf16 {vr(24+4*q,4)}, {vr(40 if XL and s_ else 16+4*s_,4)}, {vr(fb+8*s_,4)}, {"0" if s_ == 0 else vr(24+4*q,4)}')
if XL and PC: E('s_waitcnt lgkmcnt(0)\nv_lshrrev_b32 v129, v46, v128\ns_nop 1')
elif XL: E('s_waitcnt lgkmcnt(0)\nv_lshrrev_b32 v129, 8, v128\nv_lshrrev_b32 v130, 16, v128\nv_lshrrev_b32 v131, 24, v128')
else: E('s_nop 3')
E(f'''v_mov_b32_dpp v24, v28 quad_perm:[0,1,2,3] row_mask:0x2 bank_mask:0xf
s_nop 1
v_mov_b32_dpp v24, v32 quad_perm:[0,1,2,3] row_mask:0x4 bank_mask:0xf
s_nop 1
v_mov_b32_dpp v24, v36 quad_perm:[0,1,2,3] row_mask:0x8 bank_mask:0xf
ds_write_b32 v11, v24''')
DPL = OPT.get('dpl', '1')
if XL and DPL == '0':
    E('s_waitcnt vmcnt(0)')
    dtr()
    E('s_waitcnt lgkmcnt(8)')
else: E('s_waitcnt lgkmcnt(0)')
stamp(14)
E('s_barrier')
stamp(8)
E(f"""ds_read2st64_b32 v[16:17], v7 offset0:0 offset1:1
ds_read2st64_b32 v[18:19], v7 offset0:2 offset1:3
ds_read2st64_b32 v[20:21], v7 offset0:4 offset1:5
ds_read2st64_b32 v[22:23], v7 offset0:6 offset1:7
s_mov_b32 s{sT0}, 0xff
s_waitcnt lgkmcnt(2)
v_pk_add_f32 v[16:17], v[16:17], v[18:19]
s_waitcnt lgkmcnt(0)
v_pk_add_f32 v[20:21], v[20:21], v[22:23]
v_pk_add_f32 v[16:17], v[16:17], v[20:21]
v_add_f32 v16, v16, v17""")
if (DLATE and not D2) or (XL and DPL == '1'):
    E('s_waitcnt vmcnt(0)')
    dtr()
E(f"""v_cvt_pk_bf16_f32 v18, 0, v16
v_mul_f32 v16, {f32(-L2E)}, v18
v_exp_f32 v16, v16
v_mov_b32_dpp v19, v18 row_ror:8 {DPPF}
v_add_f32 v16, 1.0, v16
v_rcp_f32 v16, v16
s_nop 0
v_mul_f32 v16, v16, v18
v_cvt_pk_bf16_f32 v16, 0, v16
v_mul_f32 v16, v16, v19""")
if XL and DPL == '2':
    E('s_waitcnt vmcnt(0)')
    dtr()
E(f"""s_nop 1
v_mov_b32_dpp v17, v16 quad_perm:[1,1,3,3] {DPPF}
v_cvt_pk_bf16_f32 v16, v16, v17
s_nop 1""")
for jj in range(4):
    E(f'v_mov_b32_dpp v{vBT+jj}, v16 row_newbcast:{2*jj} {DPPF}')
E('s_waitcnt lgkmcnt(0)\ns_nop 0')
for t in range(4):
    E(f'v_mfma_f32_16x16x32_bf16 {vr(24+4*t,4)}, {vr(vBT,4)}, {vr(vFD+4*t,4)}, 0')
E(f'''s_nop 5
v_mov_b32_dpp v24, v28 quad_perm:[0,1,2,3] row_mask:0x2 bank_mask:0xf
v_mov_b32_dpp v36, v32 quad_perm:[0,1,2,3] row_mask:0x4 bank_mask:0xf
s_nop 1
v_mov_b32_dpp v24, v36 quad_perm:[0,1,2,3] row_mask:0xc bank_mask:0xf
v_bfi_b32 v24, s{sT0}, v129, v24
global_store_dword v13, v24, {sp(sWS)} sc1''')
stamp(9)
E(f'''s_add_u32 s{sT0}, s{sFI}, s{sW}
s_cmp_lg_u32 s{sT0}, 0
s_cbranch_scc1 L_adone
s_mov_b64 exec, 1
v_mov_b32 v23, 0
global_store_dword v23, v128, {sp(sWS)} offset:{WS_EPOCH} sc1''')
if 'fwb' in OPT:
    E(f'''s_add_u32 s{sT0}, s{sSLOT}, s{sW}
    s_cmp_lg_u32 s{sT0}, 0
    s_cbranch_scc1 L_adone
    {"s_waitcnt vmcnt(0)" if OPT['fwb'] == '2' else ""}
    buffer_wbl2 sc1''')
if HF: islands('hf', f_begin)
E('L_adone:')
stamp(10)
if STAMPS:
    E('s_waitcnt vmcnt(0)')
    stamp(11)
write_stamps()
E('L_end:')
E('s_endpgm')
out.append(f'''.section .rodata,"a"
.p2align 6
.amdhsa_kernel {KN}_kernel
  .amdhsa_next_free_vgpr {NVGPR}
  .amdhsa_next_free_sgpr 96
  .amdhsa_accum_offset {(NVGPR+3)//4*4}
  .amdhsa_group_segment_fixed_size 0
  .amdhsa_kernarg_size 128
  .amdhsa_user_sgpr_count 2
  .amdhsa_user_sgpr_kernarg_segment_ptr 1
  .amdhsa_system_sgpr_workgroup_id_x 1
.end_amdhsa_kernel''')
txt = _re2.sub(r'@(\w+)@(\d+)@(\d+)@', lambda m: f'L_{m.group(1)}{int(m.group(2))*SUBS[m.group(1)]//int(m.group(3))}', '\n'.join(out))
print(txt.replace('NOPX', str(NOPX)).replace('HOPQ1', f'L_hop{NHOP//4}').replace('HOPQ2', f'L_hop{NHOP//2}').replace('HOPQ3', f'L_hop{3*NHOP//4}'))
```

```python
import sys, struct
from asmlib import KN, STAMP_OFF
OPT = dict(a.split('=') if '=' in a else (a, '1') for a in sys.argv[1:])
STAMPS = 'stamps' in OPT
NTP = ' nt' if OPT.get('ntp', '0') == '1' else ''
NTX = ' nt' if OPT.get('ntx', '0') == '1' else ''
PRIO = OPT.get('prio', 'io')
SLEEP = int(OPT.get('sleep', 0))
UPOS = [int(x) for x in OPT.get('upos', '8,28,99,99').split(',')]
WMODE = OPT.get('wmode', 'warm')
XWARM = OPT.get('xwarm', '1') == '1'
AHEAD = int(OPT.get('ahead', 2))
YG = 320
K2 = OPT.get('k2', '0') == '1'
PC = OPT.get('pc', '1') == '1'
PM = int(OPT.get('pm', 2176 if PC else 0))
PT_ = OPT.get('pt', '')
TW = OPT.get('tw', 'n')
NTW = ' nt' if OPT.get('ntw', '0') == '1' else ''
NTD = ' nt' if OPT.get('ntd', '0') == '1' else ''
CL = int(OPT.get('cl', 2))
BEARLY = False
WWM = OPT.get('ww', '0')
RS = OPT.get('rs', '2')
WW = WWM != '0'
RW = OPT.get('rw', 'post')
ICW = int(OPT.get('icw', 0))
ICWHO = OPT.get('icwho', 'io')

out = []
def E(s):
    for ln in s.strip('\n').split('\n'):
        ln = ln.strip()
        if ln: out.append(('    ' + ln) if not ln.endswith(':') else ln)
def f32(x): return '0x%08x' % struct.unpack('<I', struct.pack('<f', x))[0]
def vr(b, n): return f'v[{b}:{b+n-1}]'
def ninstr(): return sum(1 for x in out if not x.endswith(':') and not x.strip().startswith(';'))

WS_EPOCH, WS_KEYS, WS_G, WS_PART = 0, 4096, 8192, 32768
TAGINC = 0x9E3779B1
SPIN_MAX = 1 << 20
ROWB = 528
LOB = 32*ROWB
HI0 = 4*LOB
NHI = 22
HIB = NHI*ROWB
UB0 = HI0 + 4*HIB
UCB, UPAD = 4608, 480
SM0 = UB0 + 4*UCB
SMB = 4096
KX, KY, F3, FLG = 0, 1216, 2336, 4*4096 + 4*1024
FC2 = 225
HIX = 16384
BND = SM0 + 4*SMB
LOF = BND + 4*1024
LDS_BYTES = LOF + 256
assert LOF == SM0 + FLG
LP = OPT.get('lp', '0') == '1'
XE = OPT.get('xe', '0') == '1'
LR0, LR1 = [int(x) for x in OPT.get('lr', '34,44').split(',')]
ST0 = OPT.get('st0', 'pre')
KPRIO = OPT.get('kprio', 'io')
GEMM1 = OPT.get('gemm1', '0') == '1'
sEX = 6
sX, sLA, sAI, sCR, sCI, sLDT, sDS = 8, 10, 12, 14, 16, 18, 20
sWR, sWG, sWU, sWD, sGW, sOUT, sDBG, sWS = 24, 26, 28, 30, 32, 34, 36, 38
sW, sI, sT0, sT1 = 40, 41, 42, 43
sJ, sP0, sP1, sTH = 44, 45, 46, 47
sTAG, sKEY, sIDX, sSPIN = 48, 49, 50, 51
sM0, sM1 = 52, 54
sT2, sT3, sT4, sT5 = 56, 57, 58, 59
sSLOT, sWB, sFI, sIO = 60, 61, 62, 63
sCH = 61
sS3 = 62
SB = 64
NST = 16
def sp(b): return f's[{b}:{b+1}]'
def stamp(i):
    if STAMPS and ('lite' not in OPT or i in (0, 11) or str(i) == OPT['lite']): E(f'{"s_memtime" if "cyc" in OPT else "s_memrealtime"} s[{SB+2*i}:{SB+2*i+1}]')
def write_stamps():
    if not STAMPS: return
    E(f'''s_waitcnt lgkmcnt(0) vmcnt(0)
    s_mov_b64 exec, 1
    s_lshl_b32 s{sT0}, s2, 3
    s_add_u32 s{sT0}, s{sT0}, s{sW}
    s_lshl_b32 s{sT0}, s{sT0}, 7
    s_add_u32 s{sT0}, s{sT0}, {STAMP_OFF}
    v_mov_b32 v0, s{sT0}''')
    for i in range(NST):
        E(f'''v_mov_b32 v2, s{SB+2*i}
        v_mov_b32 v3, s{SB+2*i+1}
        global_store_dwordx2 v0, v[2:3], {sp(sWS)} offset:{8*i}
        s_nop 1''')
def spin_check(lbl_loop):
    E(f'''s_sub_u32 s{sSPIN}, s{sSPIN}, 1
    s_cbranch_scc0 {lbl_loop}''')
L2E = 1.4426950408889634
L2E_HI = struct.unpack('<f', struct.pack('<I', 0x3FB8AA00))[0]
L2E_LO = L2E - L2E_HI
LANE = 3
DPPF = 'row_mask:0xf bank_mask:0xf'

def hop_call():
    E(f'''s_mov_b64 exec, 0
    s_cmp_eq_u32 s{sCH}, 0
    s_cbranch_scc1 L_hop0
    s_cmp_eq_u32 s{sCH}, 1
    s_cbranch_scc1 HOPQ1
    s_cmp_eq_u32 s{sCH}, 2
    s_cbranch_scc1 HOPQ2
    s_branch HOPQ3
    L_hopend:
    s_mov_b64 exec, -1''')
import re as _re2
def isz(x):
    x = x.strip()
    if x.endswith(':') or x.startswith(';'): return 0
    op = x.split(' ')[0]
    if op.startswith(('ds_', 'global_', 'v_mfma', 'v_pk_', 'v_cvt_pk', 'v_perm', 'v_bfi', 'v_readlane', 'v_lshl_', 'v_min3', 'v_or3', 's_mem', 'v_bfe', 'v_mad')) or 'dpp' in op: return 8
    if _re2.search(r'0x[0-9a-f]{3,}|, [0-9]{3,}', x) or (op.startswith('v_cmp') and 's[' in x): return 8
    return 4
SUBS = {}
def islands(name, begin, step=64):
    body = out[begin:]; del out[begin:]
    n = 0; acc = step
    for x in body:
        if acc + isz(x) > step - 4:
            out.append(f'L_{name}{n}:'); out.append(f'    s_cbranch_execz L_{name}{n+1}'); n += 1; acc = 4
        out.append(x); acc += isz(x)
    endi = len(out) - 1
    while not (out[endi].startswith(f'    s_cbranch_execz L_{name}{n}')): endi -= 1
    out[endi] = f'    s_cbranch_execz L_{name}end'
    SUBS[name] = n
def hop(name, sreg, ways):
    E('s_mov_b64 exec, 0')
    for k in range(ways - 1):
        E(f's_cmp_eq_u32 s{sreg}, {k}\ns_cbranch_scc1 @{name}@{k}@{ways}@')
    E(f's_branch @{name}@{ways-1}@{ways}@\nL_{name}end:\ns_mov_b64 exec, -1')
def key_reduce(vt):
    for sh in (8, 4, 2, 1):
        E(f'''v_max_u32_dpp v{vt}, v{vt}, v{vt} row_ror:{sh} {DPPF}
        s_nop 1''')
    E(f'''v_readlane_b32 s{sKEY}, v{vt}, 0
    v_readlane_b32 s{sT0}, v{vt}, 16
    v_readlane_b32 s{sT1}, v{vt}, 32
    v_readlane_b32 s{sT2}, v{vt}, 48
    s_max_u32 s{sKEY}, s{sKEY}, s{sT0}
    s_max_u32 s{sT1}, s{sT1}, s{sT2}
    s_max_u32 s{sKEY}, s{sKEY}, s{sT1}''')
def wait_word(name, vaddr, off, vt, sleep):
    E(f'''s_mov_b32 s{sSPIN}, {SPIN_MAX}
    L_wf_{name}:
    ds_read_b32 v{vt}, v{vaddr} offset:{off}
    s_waitcnt lgkmcnt(0)
    v_cmp_eq_u32 vcc, -1, v{vt}
    s_cbranch_vccnz L_wfd_{name}''')
    if sleep: E(f's_sleep {sleep}')
    spin_check(f'L_wf_{name}')
    E(f'L_wfd_{name}:')

hdr = open('cdna_kernels/' + KN + '.s.ref').read().split('; Override launch')[0]
out.append(hdr.rstrip('\n'))
out.append(f'; @launch grid=(256,1,1) block=(512,1,1) lds={LDS_BYTES}')

out.append(""";
;      - K(p) = 2 dt Re sum_n C_n exp(z_n p) is needed at the 641 bf16-rounded positions only. Every (channel, mode)
;        builds exp(z 8a) (32 rows) and C exp(z h) (22 rows) by complex products; a 32x32x256 bf16 MFMA GEMM per
;        channel gives all positions. D_skip - 1 is added to tap 0, so the MFMA result is a - x and out = x + g (a - x).
;        meet block-Toeplitz fragments of the distinct K values.
;      - waves 0-3 (one channel each) run the MFMAs, waves 4-7 load/stage u and write the output tile by tile;
;        they meet through byte flags in LDS.
;  * 64 router workgroups: r = x.w_r and g = sigmoid(x.gate_w) for 32 rows each, published as {value, tag} granules.
;  * 56 FFN workgroups: 32 columns of gate/up each for the routed row, then their share of the down projection,
;        published as partial sums whose low byte carries the tag; wave 0 of each conv workgroup adds them up
;        for the routed row.
; The tag is the epoch word found in d_ws plus a constant; it only tells this launch's hand-offs from older ones.
; Workgroup -> column block mapping is for L2 locality only.""")
out.append(f'''.amdgcn_target "amdgcn-amd-amdhsa--gfx950"
.text
.globl {KN}_kernel
.p2align 8
.type {KN}_kernel,@function
{KN}_kernel:''')
stamp(0)
vXA, vWRv, vGWv = 16, 8, 12
vLA, vAI, vCR, vCI, vDT = 4, 5, 6, 7, 8
vX = 16
vXO = 60
AF, TZ, BR, DT, ACC, vBAND = 16, 84, 124, 172, 196, 228
NSLOT = 12
GF, GA = 84, ACC
vKX, vK3, vK4, vCA, vCA2, vCB, vY, vTZ = 248, 249, 250, 251, 252, 253, 254, 255
vA, vB, vFL = 14, 15, 9
NVGPR = 256
E(f'''s_load_dwordx16 s[8:23], s[0:1], 0
{'' if K2 else 's_load_dwordx16 s[24:39], s[0:1], 64'}
s_cmp_ge_u32 s2, 256
s_cbranch_scc1 L_end
v_lshrrev_b32 v1, 6, v0
v_and_b32 v{LANE}, 63, v0
v_readfirstlane_b32 s{sW}, v1
s_add_u32 s{sT0}, s2, {int(OPT.get('rot', 2))}
s_and_b32 s{sT0}, s{sT0}, 7
s_lshr_b32 s{sSLOT}, s2, 4
s_lshl_b32 s{sI}, s{sT0}, 4
s_add_u32 s{sI}, s{sI}, s{sSLOT}
''')
PF = OPT.get('pf', 'f')
pfc = f'''s_cmp_gt_u32 s{sW}, 1
s_cbranch_scc1 L_nopf
; pull this kernel's code into the die's L2 (per-lane 64-bit address)
s_getpc_b64 s[4:5]
L_pc:
v_lshlrev_b32 v4, 7, v0
v_min_u32 v4, L_end-L_pc, v4
v_mov_b32 v5, 0
v_lshl_add_u64 v[4:5], v[4:5], 0, s[4:5]
global_load_dword v2, v[4:5], off
L_nopf:'''
if PF == 'all': E(pfc)
E(f'''s_bitcmp1_b32 s2, 3
s_cbranch_scc0 L_conv
{'s_load_dwordx16 s[24:39], s[0:1], 64' if K2 else ''}''')
if PF == 'aux': E(pfc)
if PF == 'f':
    E('s_bitcmp1_b32 s2, 4\ns_cbranch_scc1 L_r0')
    E(pfc)
    IW = OPT.get('iw', '1')
    if IW != '0':
        E(f'''s_cmp_lg_u32 s{sT0}, 3
        s_cbranch_scc1 L_ffn
        s_lshl_b32 s{sT1}, s{sSLOT}, {7 if IW == '1' else 6}
        v_lshrrev_b32 v4, {1 if IW == '1' else 2}, v0
        v_add_u32 v4, s{sT1}, v4
        v_lshlrev_b32 v4, 10, v4
        s_waitcnt lgkmcnt(0)
''')
        PP = OPT.get('pp', '0')
        if PP != '0':
            E(f'''s_lshl_b32 s{sT1}, s{sSLOT}, 13
            v_lshrrev_b32 v5, 2, v0
            v_lshl_add_u32 v5, v5, 7, s{sT1}
            global_load_dword v6, v5, {sp(sLA)}
            global_load_dword v7, v5, {sp(sAI)}''')
            if PP in '24': E(f'global_load_dword v8, v5, {sp(sCR)}\nglobal_load_dword v9, v5, {sp(sCI)}')
        if PP in '012': E(f'global_load_dword v4, v4, {sp(sX)} offset:384')
        E(f'''
        s_waitcnt vmcnt(0)
        s_branch L_adone
        L_r0:''')
    else: E('s_branch L_ffn\nL_r0:')
else: E('s_bitcmp1_b32 s2, 4\ns_cbranch_scc0 L_ffn')
E(f'''s_lshr_b32 s{sI}, s{sI}, 1
v_lshlrev_b32 v4, 4, v{LANE}
s_lshl_b32 s{sT2}, s{sI}, 12
s_lshl_b32 s{sT1}, s{sW}, 18
s_add_u32 s{sT2}, s{sT2}, s{sT1}
v_add_u32 v5, s{sT2}, v4
s_waitcnt lgkmcnt(0)''')
stamp(1)
E(f'''global_load_dwordx4 {vr(vWRv,4)}, v4, {sp(sWR)}
global_load_dwordx4 {vr(vGWv,4)}, v4, {sp(sGW)}
{"s_waitcnt vmcnt(0)" if OPT.get('rdel', '0') == '1' else ""}
{("s_cmp_lt_u32 s%d, 2" % sW + chr(10) + "s_cbranch_scc1 L_rnd" + chr(10) + "s_waitcnt vmcnt(0)" + chr(10) + "L_rnd:") if OPT.get('rdel', '0') == '2' else ""}
global_load_dwordx4 {vr(vXA,4)}, v5, {sp(sX)}{NTX}
global_load_dwordx4 {vr(vXA+4,4)}, v5, {sp(sX)} offset:1024{NTX}
global_load_dwordx4 {vr(vXA+8,4)}, v5, {sp(sX)} offset:2048{NTX}
global_load_dwordx4 {vr(vXA+12,4)}, v5, {sp(sX)} offset:3072{NTX}
s_load_dword s{sTAG}, {sp(sWS)}, {WS_EPOCH}
s_branch L_rg''')
E(f'''; ================= conv workgroups =================
L_conv:
{'s_branch L_end' if 'noconv' in OPT else ''}
s_and_b32 s{sCH}, s{sW}, 3
s_lshr_b32 s{sIO}, s{sW}, 2
s_lshl_b32 s{sT2}, s{sI}, 3
s_lshl_b32 s{sT1}, s{sCH}, 1
s_add_u32 s{sT0}, s{sT2}, s{sT1}
v_mov_b32 v10, s{sT0}
s_add_u32 s{sT0}, s{sT0}, s{sIO}
s_lshl_b32 s{sT0}, s{sT0}, 7
v_lshl_add_u32 v1, v{LANE}, 1, s{sT0}
v_mov_b32 v{vLA}, 0
v_mov_b32 v{vAI}, 0
v_mov_b32 v{vCR}, 0
v_mov_b32 v{vCI}, 0
v_mov_b32 v{vDT}, 0''')
EARLYC = OPT.get('ec', '0') == '1'
early_c = f'''v_lshlrev_b32 v44, 2, v{LANE}
v_add_u32 v44, {SM0+FLG}, v44
ds_write_b32 v44, v{vCR}
v_and_b32 v11, 255, v0
v_lshl_add_u32 v{vXO}, v11, 11, s{sT2}
v_add_u32 v{vXO+1}, {512*1024}, v{vXO}
v_add_u32 v{vXO+2}, {1024*1024}, v{vXO}
v_add_u32 v{vXO+3}, {1536*1024}, v{vXO}
s_lshl_b32 s{sT0}, s{sSLOT}, 7
s_lshl_b32 s{sT1}, s{sCH}, 5
s_add_u32 s{sT0}, s{sT0}, s{sT1}
v_and_b32 v13, 31, v{LANE}
v_add_u32 v12, s{sT0}, v13
v_lshl_add_u32 v12, v12, 10, s{sT2}
v_mov_b32 v{GA}, 0'''
if EARLYC: E(early_c)
if XE: E(f'''s_lshl_b32 s{sT0}, s{sSLOT}, 7
s_lshl_b32 s{sT1}, s{sCH}, 5
s_add_u32 s{sT0}, s{sT0}, s{sT1}
v_and_or_b32 v12, v{LANE}, 31, s{sT0}
v_lshl_add_u32 v12, v12, 10, s{sT2}
s_cmp_lt_u32 s{sW}, 4''')
if 'early' in OPT: stamp(13)
E('s_waitcnt lgkmcnt(0)')
stamp(1)
E(f'''global_load_short_d16_hi v{vLA}, v1, {sp(sLA)}{NTP}
global_load_short_d16_hi v{vDT}, v10, {sp(sLDT)}
global_load_short_d16_hi v{vAI}, v1, {sp(sAI)}{NTP}
''')
CS = OPT.get('cs', '1') == '1'
cl_ = f'global_load_short_d16_hi v{vCR}, v1, {sp(sCR)}{NTP}\nglobal_load_short_d16_hi v{vCI}, v1, {sp(sCI)}{NTP}'
if K2: E('s_load_dwordx16 s[24:39], s[0:1], 64')
if not CS: E(cl_)
if XE: E(f's_cbranch_scc1 L_nxe\nglobal_load_dword v2, v12, {sp(sX)}\nL_nxe:')
if 'early' in OPT: stamp(12)
if 'e2' in OPT:
    for n_ in range(5):
        E(f's_waitcnt vmcnt({4-n_})'); stamp(2+n_)
    E('s_branch L_cdone')
E(f'''''')
if not EARLYC: E(early_c + '\ns_waitcnt lgkmcnt(0)')
E(f'''s_barrier
{cl_ if CS else ''}
s_cmp_ge_u32 s{sW}, 4
s_cbranch_scc1 L_cio0''')
STOR = {0:0,1:1,2:2,3:3, 16:4,17:5,18:6,19:7,20:8,12:9, 15:10, 13:11,14:12,4:13,5:14,6:15,7:16,8:17,9:18,10:19,11:20,21:21}
assert sorted(STOR.values()) == list(range(22))
tab = [0,0,1,2,2,2,3,4,4,5,6,7,8,8,8,8]
hrow = []
for x in range(32):
    g_, r_ = (x >> 2) & 1, 4*(x >> 3) + (x & 3)
    hrow.append(STOR[13 + tab[r_] if g_ else min(r_, 12)])
planes = [sum(((hrow[x] >> b) & 1) << x for x in range(32)) for b in range(5)]
if 'early' in OPT: stamp(5)
XWARM = XWARM and not XE
if XWARM: E(f'global_load_dword v1, v12, {sp(sX)}')
if WW:
    E(f'''s_lshr_b32 s{sT0}, s{sI}, 4
    s_cmp_gt_u32 s{sT0}, 3
    s_cselect_b32 s{sT1}, 1, 0
    s_sub_u32 s{sT0}, s{sT0}, s{sT1}
    s_lshl_b32 s{sT0}, s{sT0}, 9
    s_lshl_b32 s{sT1}, s{sSLOT}, 1
    s_lshr_b32 s{sT3}, s{sW}, 1
    s_add_u32 s{sT1}, s{sT1}, s{sT3}
    s_mul_i32 s{sT1}, s{sT1}, {16*3584}
    s_add_u32 s{sT0}, s{sT0}, s{sT1}
    v_and_b32 v12, 15, v{LANE}
    v_mul_u32_u24 v12, 3584, v12''')
    if WWM == '2':
        E(f'''s_bitcmp1_b32 s{sW}, 1
        s_cselect_b32 s{sT1}, 48, 0
        v_and_b32 v9, s{sT1}, v{LANE}
        v_xor_b32 v9, 48, v9
        v_lshl_add_u32 v12, v9, 3, v12''')
    else: E(f's_add_u32 s{sT0}, s{sT0}, 384')
    E(f'''v_add_u32 v12, s{sT0}, v12
    s_bitcmp1_b32 s{sW}, 0
    s_cselect_b64 {sp(sT4)}, {sp(sWU)}, {sp(sWG)}
    global_load_dword v9, v12, {sp(sT4)}''')
E(f'''s_mov_b64 exec, 1
global_load_short_d16_hi v{GA}, v10, {sp(sDS)}
s_mov_b64 exec, -1''')
for r in range(1, 16): E(f'v_mov_b32 v{GA+r}, 0')
for b_ in range(4, -1, -1):
    E(f's_mov_b32 s{sT0}, {planes[b_]}')
    if b_ == 4: E(f'v_bfe_u32 v{vA}, s{sT0}, v13, 1')
    else: E(f'v_bfe_u32 v12, s{sT0}, v13, 1\nv_lshl_or_b32 v{vA}, v{vA}, 1, v12')
E(f'''v_lshrrev_b32 v12, 5, v{LANE}
s_mul_i32 s{sT0}, s{sW}, {HIB}
s_add_u32 s{sT0}, s{sT0}, {HI0}
s_mul_i32 s{sT1}, s{sW}, {LOB}
v_lshl_add_u32 v10, v12, 4, s{sT0}
v_lshl_add_u32 v11, v12, 4, s{sT1}
s_mov_b32 s{sT2}, {ROWB}
v_mad_u32_u24 v{vA}, v{vA}, s{sT2}, v10
v_mad_u32_u24 v{vB}, v13, s{sT2}, v11
s_lshl_b32 s{sT0}, s{sW}, 12
s_add_u32 s{sT0}, s{sT0}, {SM0}
s_add_u32 s{sT2}, s{sT0}, {2*(543-7)}
v_lshlrev_b32 v10, 4, v{LANE}
v_sub_u32 v{vKX}, s{sT2}, v10
v_and_b32 v10, 1, v{LANE}
v_lshrrev_b32 v11, 1, v{LANE}
v_lshlrev_b32 v11, 2, v11
s_add_u32 s{sT2}, s{sT0}, {F3+4*48}
v_sub_u32 v11, s{sT2}, v11
v_lshl_add_u32 v{vK3}, v10, 8, v11
v_lshlrev_b32 v{vK4}, 7, v10
v_sub_u32 v{vK4}, v11, v{vK4}
v_add_u32 v{vK4}, {4*(128+64-48)}, v{vK4}
v_and_b32 v11, 15, v{LANE}
v_and_b32 v12, 48, v{LANE}
v_mul_u32_u24 v13, {KY+2}, v10
v_lshl_add_u32 v13, v11, 1, v13
v_sub_u32 v{vCA}, v12, v13
s_add_u32 s{sT2}, s{sT0}, {KY+2*(544-16)-1024}
v_add_u32 v{vCA}, s{sT2}, v{vCA}
v_add_u32 v{vCA2}, 512, v{vCA}
s_mul_i32 s{sT2}, s{sW}, {UCB}
s_add_u32 s{sT2}, s{sT2}, {UB0}
v_lshl_add_u32 v{vCB}, v11, 5, v12
v_add_u32 v{vCB}, s{sT2}, v{vCB}
v_lshl_add_u32 v{vY}, v11, 4, s{sT1}
v_mad_u32_u24 v{vY}, v12, {YG//16}, v{vY}
s_add_u32 s{sT2}, s{sT0}, {F3+4*16}
v_mul_u32_u24 v{vTZ}, {4*FC2}, v10
v_add3_u32 v{vTZ}, v{vTZ}, v12, s{sT2}
v_lshlrev_b32 v13, 2, v11
v_sub_u32 v{vTZ}, v{vTZ}, v13
''')
r = vBAND + 16
E(f'''v_lshrrev_b32 v13, 1, v12
s_mov_b32 s{sT1}, {3 << 12}
v_lshlrev_b32 v{r}, v11, s{sT1}
v_bfe_u32 v{r}, v{r}, v13, 8
v_lshl_or_b32 v{r}, v{r}, 15, v{r}
v_lshrrev_b32 v{r+1}, 2, v{r}
v_lshrrev_b32 v{r+2}, 4, v{r}
v_lshrrev_b32 v{r+3}, 6, v{r}
s_mov_b32 s{sT1}, 0x10001
v_and_b32 v{r}, s{sT1}, v{r}
v_and_b32 v{r+1}, s{sT1}, v{r+1}
v_and_b32 v{r+2}, s{sT1}, v{r+2}
v_and_b32 v{r+3}, s{sT1}, v{r+3}''')
if 'early' in OPT: stamp(6)
E(f'''s_lshl_b32 s{sT1}, s{sIO}, 8
s_mul_i32 s{sT2}, s{sCH}, {LOB}
s_add_u32 m0, s{sT2}, s{sT1}
s_mul_i32 s{sT2}, s{sCH}, {HIB}
s_add_u32 s{sT1}, s{sT1}, s{sT2}
s_add_u32 s{sT1}, s{sT1}, {HIX}
s_cmp_eq_u32 s{sIO}, 0
s_waitcnt vmcnt({1 + XWARM + WW + CL})''')
if 'early' in OPT: stamp(8)
E(f'''s_branch L_ckgen
L_cio0:''')

if 'early' in OPT: stamp(5)
def uload(p):
    E(f'global_load_dwordx2 {vr(vX+4*p,2)}, v{vXO+p}, {sp(sX)}')
    E(f'global_load_dwordx2 {vr(vX+4*p+2,2)}, v{vXO+p}, {sp(sX)} offset:1024')
NUP = sum(1 for x in UPOS if x == 0)
for p in range(NUP): uload(p)
TC = 0
if 'c' in TW:
    TC = 1
    E(f'''s_cmp_eq_u32 s{sCH}, 1
    s_cselect_b64 {sp(sT4)}, {sp(sWS)}, {sp(sOUT)}
    s_cmp_eq_u32 s{sCH}, 2
    s_cselect_b64 {sp(sT4)}, {sp(sDBG)}, {sp(sT4)}
    s_cmp_eq_u32 s{sCH}, 3
    s_cselect_b32 s{sT0}, {2048*1024-256}, 0
    v_mov_b32 v12, s{sT0}
    global_load_dword v71, v12, {sp(sT4)} offset:128''')
E(f'''v_mov_b32 v32, 0
v_mov_b32 v33, 0
v_mov_b32 v34, 0
v_mov_b32 v35, 0
s_mul_i32 s{sT0}, s{sCH}, {UCB}
s_add_u32 s{sT0}, s{sT0}, {UB0}
v_min_u32 v13, 29, v{LANE}
v_lshl_add_u32 v12, v13, 4, s{sT0}
ds_write_b128 v12, v[32:35]
s_lshl_b32 s{sT0}, s{sCH}, 12
s_add_u32 s{sT0}, s{sT0}, {SM0}
v_lshl_add_u32 v12, v{LANE}, 4, s{sT0}
ds_write_b128 v12, v[32:35]
ds_write_b128 v12, v[32:35] offset:1024
ds_write_b128 v12, v[32:35] offset:2048
ds_write_b128 v12, v[32:35] offset:3072
; IO addresses: v64 U write, v65 keys, v66 g granules, v67 y read, v68 own flag, v69 M flags, v70 zero
v_lshlrev_b32 v64, 2, v11
v_add_u32 v64, {UB0+UPAD}, v64
s_mov_b32 s{sP0}, 0x05040100
s_mov_b32 s{sP1}, 0x07060302
; band fragments (0/1 window matrices): IO wave ch builds window ch, wave 7 also the two-tap mask
s_mov_b32 s{sT1}, {7 << 11}
s_cmp_eq_u32 s{sCH}, 1
s_cselect_b32 s{sT1}, {31 << 6}, s{sT1}
s_cmp_eq_u32 s{sCH}, 2
s_cselect_b32 s{sT1}, {127 << 5}, s{sT1}
s_cmp_eq_u32 s{sCH}, 3
s_cselect_b32 s{sT1}, {511 << 4}, s{sT1}
s_mov_b32 s{sT0}, 0x10001
s_mov_b32 s{sT3}, 0x3f80
s_lshl_b32 s{sT2}, s{sCH}, 10
s_add_u32 s{sT2}, s{sT2}, {BND}
v_lshl_add_u32 v9, v{LANE}, 4, s{sT2}
v_and_b32 v10, 15, v{LANE}
v_lshrrev_b32 v13, 4, v{LANE}
v_lshlrev_b32 v13, 3, v13
v_lshlrev_b32 v12, v10, s{sT1}
v_bfe_u32 v12, v12, v13, 8
v_lshl_or_b32 v12, v12, 15, v12
v_lshrrev_b32 v41, 2, v12
v_lshrrev_b32 v42, 4, v12
v_lshrrev_b32 v43, 6, v12
v_and_b32 v40, s{sT0}, v12
v_and_b32 v41, s{sT0}, v41
v_and_b32 v42, s{sT0}, v42
v_and_b32 v43, s{sT0}, v43
v_mul_u32_u24 v40, s{sT3}, v40
v_mul_u32_u24 v41, s{sT3}, v41
v_mul_u32_u24 v42, s{sT3}, v42
v_mul_u32_u24 v43, s{sT3}, v43
ds_write_b128 v9, v[40:43]
{"s_setprio 1" if KPRIO == 'io' else ""}
''')
if 'early' in OPT: stamp(6)
E(f'''s_lshl_b32 s{sT1}, s{sIO}, 8
s_mul_i32 s{sT2}, s{sCH}, {LOB}
s_add_u32 m0, s{sT2}, s{sT1}
s_mul_i32 s{sT2}, s{sCH}, {HIB}
s_add_u32 s{sT1}, s{sT1}, s{sT2}
s_add_u32 s{sT1}, s{sT1}, {HIX}
s_cmp_eq_u32 s{sIO}, 0
s_waitcnt vmcnt({2*NUP + CL + TC + XE})''')
if 'early' in OPT: stamp(8)
E('; ---- tables exp(z 8a) and C exp(z h) in bf16, one (channel, mode) per lane\nL_ckgen:')
stamp(2)
a, b, c, d = 10, 11, 12, 13
vW1, vW8, vW256 = 36, 38, 40
E(f'''v_mul_f32 v{a}, {f32(L2E)}, v{vLA}
v_mul_f32 v{b}, {f32(L2E)}, v{vDT}
v_exp_f32 v{a}, v{a}
v_exp_f32 v{b}, v{b}
v_mov_b32 v35, 0x3f80
v_cvt_pk_bf16_f32 v{a}, v{a}, v{b}
ds_write_addtid_b32 v35 offset:0
v_and_b32 v{vDT}, 0xffff0000, v{a}
v_lshlrev_b32 v{a}, 16, v{a}
v_mul_f32 v{vAI}, v{vAI}, v{vDT}
v_mul_f32 v{vLA}, v{a}, v{vDT}
v_mul_f32 v{b}, {f32(8*0.15915494309189535)}, v{vAI}
v_mul_f32 v{a}, {f32(-8*L2E)}, v{vLA}
v_fract_f32 v{b}, v{b}
v_exp_f32 v{a}, v{a}
v_cos_f32 v{vW8}, v{b}
v_sin_f32 v{vW8+1}, v{b}
v_mul_f32 v{d}, {f32(0.15915494309189535)}, v{vAI}
v_pk_mul_f32 {vr(vW8,2)}, {vr(vW8,2)}, {vr(a,2)} op_sel:[0,0] op_sel_hi:[1,0]''')
later = [f'v_mul_f32 v{c}, {f32(-L2E)}, v{vLA}', f'v_fract_f32 v{d}, v{d}', f'v_exp_f32 v{c}, v{c}', f'v_cos_f32 v{vW1}, v{d}', f'v_sin_f32 v{vW1+1}, v{d}',
         f'v_add_f32 v{vDT}, v{vDT}, v{vDT}', f'v_pk_mul_f32 {vr(vW1,2)}, {vr(vW1,2)}, {vr(c,2)} op_sel:[0,0] op_sel_hi:[1,0]']
if 'early' in OPT: stamp(9)
tmpc = [0]
pendw = []
nextp = [NUP]
def flushw():
    while pendw: E(pendw.pop(0))
def cmul(D, X, W):
    E(f'v_pk_mul_f32 {vr(D,2)}, {vr(X,2)}, {vr(W,2)} op_sel:[0,0] op_sel_hi:[0,1]')
    flushw()
    E(f'v_pk_fma_f32 {vr(D,2)}, {vr(X,2)}, {vr(W,2)}, {vr(D,2)} op_sel:[1,1,0] op_sel_hi:[1,0,1] neg_lo:[1,0,0]')
def put(X, off, neg):
    t = 32 + (tmpc[0] & 3)
    E(f'v_cvt_pk_bf16_f32 v{t}, v{X}, {"-" if neg else ""}v{X+1}')
    pendw.append(f'ds_write_addtid_b32 v{t} offset:{off}')
    tmpc[0] += 1
    if later and tmpc[0] >= 2: E(later.pop(0))
    if tmpc[0] == int(OPT.get('kdrop', 40)): E('s_setprio 0')
    if LP:
        n = tmpc[0]
        if n == 32: E('s_cbranch_scc1 L_lf\nds_write_b32 v44, v44\nL_lf:')
        if n in (LR0, LR0+2):
            E(f's_cbranch_scc0 L_lr{n}')
            for s_ in range(4*(n != LR0), 4*(n != LR0) + 4): E(f'ds_read_b128 {vr(GF+4*s_,4)}, v{vB} offset:{32*s_}')
            E(f'L_lr{n}:')
        if n == LR1: E(f's_cbranch_scc0 L_lr{n}\nds_read_b32 v45, v44\nL_lr{n}:')
        if n in (LR1+3, LR1+5):
            E(f's_cbranch_scc0 L_lr{n}')
            if n == LR1+3: E('s_waitcnt lgkmcnt(3)\nv_cmp_ne_u32 vcc, 0, v45\ns_cbranch_vccz L_lslow\nL_lok:')
            for s_ in range(8 + 4*(n != LR1+3), 12 + 4*(n != LR1+3)): E(f'ds_read_b128 {vr(GF+4*s_,4)}, v{vB} offset:{32*s_}')
            E(f'L_lr{n}:')
    if tmpc[0] == 30:
        assert not TC and not WW and nextp[0] >= 1
        if CL: E(f's_cbranch_scc0 L_cw1\ns_waitcnt vmcnt({1 + XWARM})\nL_cw1:\ns_waitcnt vmcnt({2*nextp[0]})')
        E(f'v_pk_mul_f32 {vr(vCR,2)}, {vr(vCR,2)}, {vr(vDT,2)} op_sel:[0,0] op_sel_hi:[1,0]')
    while nextp[0] < 4 and UPOS[nextp[0]] == tmpc[0]:
        E(f's_cbranch_scc1 L_mid{nextp[0]}')
        uload(nextp[0])
        E(f'L_mid{nextp[0]}:')
        nextp[0] += 1
put(vW8, ROWB, False)
P0, P1 = 46, 48
cur = vW8
for i in range(2, 32):
    nxt = P0 if cur != P0 else P1
    cmul(nxt, cur, vW8)
    put(nxt, i*ROWB, False)
    cur = nxt
cmul(vW256, cur, vW8)
E(f's_mov_b32 m0, s{sT1}')
hoff = lambda row: HI0 - HIX + STOR[row]*ROWB
H = [50, 52, 54, 56, 58]
put(vCR, hoff(0), True)
cur = vCR
keep = {0: vCR}
for e in range(1, 9):
    nxt = H[e//2] if e % 2 == 0 else P0
    cmul(nxt, cur, vW1)
    put(nxt, hoff(e), True)
    cur = nxt
    if e % 2 == 0: keep[e] = nxt
for e, row in ((0, 13), (2, 14), (6, 16)):
    cmul(P0, keep[e], vW256)
    put(P0, hoff(row), True)
cur = keep[4]
for row in (15, 9, 18):
    nxt = P0 if cur != P0 else P1
    cmul(nxt, cur, vW256); put(nxt, hoff(row), True); cur = nxt
cur = keep[8]
for row in (17, 10, 19, 11, 20, 12, 21):
    nxt = P0 if cur != P0 else P1
    cmul(nxt, cur, vW256); put(nxt, hoff(row), True); cur = nxt
flushw()
NMID = nextp[0] - 1
stamp(3)
if 'early' in OPT: E('s_branch L_cdone')
E(f's_cbranch_scc0 L_cio1')
if STAMPS:
    for i_ in (5, 6, 8, 9, 14, 15): E(f's_mov_b64 s[{SB+2*i_}:{SB+2*i_+1}], 0')
m_begin = len(out)
def gread(s):
    r = GF + 8*(s % 8)
    E(f'ds_read_b128 {vr(r,4)}, v{vA} offset:{32*s}')
    E(f'ds_read_b128 {vr(r+4,4)}, v{vB} offset:{32*s}')
fill = [f's_add_u32 s{sT2}, s{sW}, {SM0+FLG}', f'v_mov_b32 v{vFL}, s{sT2}', f'v_mov_b32 v8, {SM0+FLG}', 'v_mov_b32 v13, -1', f'v_and_b32 v12, 1, v{LANE}', f's_mov_b32 s{sT2}, {(0x03020706 - 0x05040100) & 0xffffffff}', f'v_mul_lo_u32 v12, v12, s{sT2}', 'v_add_u32 v12, 0x05040100, v12',
        f'v_lshlrev_b32 v10, 4, v{LANE}', f'v_add_u32 v10, {BND}, v10']
def dofill(n):
    while n > 0 and fill:
        x = fill.pop(0); E(x)
        if x.startswith('v_'): n -= 1
BPOS = int(OPT.get('bpos', 4 if LP else 5))
def gemm_all(extra):
    q = []
    GD = int(OPT.get('gd', 5 if LP else 3))
    NB = 6 if LP else 8
    def rd(s_):
        if LP: E(f'ds_read_b128 {vr(DT+4*(s_ % 6),4)}, v{vA} offset:{32*s_}'); q.append(s_)
        else: gread(s_); q.extend([s_, s_])
    for s_ in range(GD): rd(s_)
    dofill(99)
    nxt = GD
    ex = extra()
    for s_ in range(16):
        last = len(q) - 1 - q[::-1].index(s_)
        E(f's_waitcnt lgkmcnt({len(q) - 1 - last})')
        if LP: E(f'v_mfma_f32_32x32x16_bf16 {vr(GA,16)}, {vr(DT+4*(s_ % 6),4)}, {vr(GF+4*s_,4)}, {vr(GA,16)}')
        else:
            r = GF + 8*(s_ % 8)
            E(f'v_mfma_f32_32x32x16_bf16 {vr(GA,16)}, {vr(r,4)}, {vr(r+4,4)}, {vr(GA,16)}')
        if s_ == BPOS - 2:
            E(f'ds_read_u8 v5, v{vFL} offset:96'); q.append('f')
        if s_ == BPOS:
            stamp(13)
            E(f's_waitcnt lgkmcnt({q[::-1].index("f")})\nv_cmp_ne_u32 vcc, 0, v5\ns_cbranch_vccz L_tslow\nL_tok:')
            stamp(4)
        if s_ == 13 - GD:
            E(f'ds_read_b32 v4, v8 offset:32'); q.append('g')
        if s_ == 15 - GD:
            E(f's_waitcnt lgkmcnt({q[::-1].index("g")})\nv_cmp_eq_u32 vcc, -1, v4\ns_cbranch_vccz L_uc0\nL_uc0d:')
        while nxt < 16 and nxt - NB <= s_ and (nxt < 8 or s_ >= BPOS) and nxt - s_ <= GD:
            rd(nxt); nxt += 1
        if (LP and s_ > BPOS) or s_ == 15 - GD:
            for _ in range((1 if nxt < 16 else 2) if LP else 99):
                if ex: ex.pop(0)(); q.append('x')
    assert not ex
    lastg = len(q) - 1 - q[::-1].index(15)
    done_upto[0] = q[:lastg].count('x')
    T_[0] = 0; TL[0] = 0
    for n_ in range(len(fin)): fin[n_] = 40
E(f'''s_waitcnt vmcnt(0) lgkmcnt(1)
s_mov_b64 exec, 1
v_add_f32 v{GA}, -1.0, v{GA}
s_mov_b64 exec, -1''')

def aread(q):
    base, off = (vCA, (1024-64*q)//4) if q >= 9 else (vCA2, (512-64*q)//4)
    return [f'ds_read2_b32 {vr(AF+4*q,2)}, v{base} offset0:{off} offset1:{off+1}',
            f'ds_read2_b32 {vr(AF+4*q+2,2)}, v{base} offset0:{off+2} offset1:{off+3}']
def tzread(i):
    off = 4*((i//3)*64 + 32 - 16*(i % 3)) if i < 6 else 4*(128 + 48 - 16*(i-6))
    return [f'ds_read_b64 {vr(TZ+4*i,2)}, v{vTZ} offset:{off}', f'ds_read_b64 {vr(TZ+4*i+2,2)}, v{vTZ} offset:{off+8}']
def boff(k):
    kind, tp, q = k
    return UPAD + 512*tp - 32 - (16 if kind == 'Z' else 64*q)
band = lambda i: vr(vBAND+4*i, 4)
stream = []
def mk(tile, a_, b_, dst=None): stream.append(('m', tile, a_, b_, dst))
def parts(tp):
    G0 = ('B', tp, 0) if tp == 0 else ('G', tp, 0); Z = ('Z', tp, 0); B0 = ('B', tp, 0)
    gen = []; cv = []
    if tp <= 5:
        gen += [(8, Z, 0), (12, Z, 1)]
        if tp <= 3: gen += [(20, Z, 3)]
        gen += [(0, G0, 0), (4, G0, 1)]
        if tp <= 3: gen += [(16, G0, 2)]
        for base in ((8, 0, 16) if tp <= 3 else (8, 0)):
            for jj in range(4): cv.append(f'v_cvt_pk_bf16_f32 v{DT+base+jj}, v{DT+base+jj}, v{DT+base+4+jj}')
    own = [(tp, ('A', q), ('B', tp, q)) for q in range(8)]
    nxt = [(tp+1, ('A', q+8), ('B', tp, q)) for q in range(8)] if tp < 7 else []
    lead = []
    if tp <= 5: lead.append((tp+2, ('A', 16), G0))
    if tp <= 3: lead.append((tp+4, band(4), G0))
    far = []
    if tp <= 5:
        for dl in range(3):
            if tp + 2 + dl <= 7:
                far.append((tp+2+dl, vr(DT+8, 4), ('T', 3+dl)))
                far.append((tp+2+dl, vr(DT, 4), ('T', dl)))
    if tp <= 3:
        for dl in range(4):
            if tp + 4 + dl <= 7: far.append((tp+4+dl, vr(DT+16, 4), ('T', 6+dl)))
    return gen, cv, own, nxt, lead, far
PT = [parts(tp) for tp in range(8)]
def with_cv(seq, cv, start, per=1):
    for i, t_ in enumerate(seq):
        mk(*t_)
        if i >= start:
            for _ in range(per):
                if cv:
                    x_ = cv.pop(0)
                    stream.append(('x2ok',) if x_ == 'X2OK' else ('v', x_))
    assert not cv
gen, cv = PT[0][0], PT[0][1]
gm = [(None, k, band(bi), DT+dof) for dof, k, bi in gen]
D = lambda r: f'v{GA+r}'
x2v = [f'v_cvt_pk_bf16_f32 v11, {D(10)}, 0', f'v_cvt_pk_bf16_f32 v14, 0, {D(8)}', f'v_cvt_pk_bf16_f32 v15, {D(8)}, {D(8)}',
       f'v_readlane_b32 s{sT2}, v11, 63', f'v_cvt_pk_bf16_f32 v1, {D(9)}, {D(10)}', f'v_cvt_pk_bf16_f32 v2, {D(11)}, {D(12)}',
       f'v_subrev_u32 v{vKX}, 8, v{vKX}']
mk4 = [f'v_mov_b32_dpp v11, v2 quad_perm:[1,0,3,2] {DPPF}', 'v_perm_b32 v2, v11, v2, v12', 'X2OK'] + [f'v_mul_u32_u24 v{vBAND+16+jj}, s{sT2}, v{vBAND+16+jj}' for jj in range(4)]
NG0 = int(OPT.get('ng0', 4))
with_cv(gm[:NG0], [], 0)
stream.append(('expand',))
with_cv(gm[NG0:], x2v, 0, 7 if NG0 > 4 else 4 if NG0 > 3 else 3)
if OPT.get('t0', '0') == '1':
    with_cv(PT[0][2], mk4, 2)
    stream.append(('mark', 0))
    seq = []
    for q in range(8): seq += [PT[1][2][q], PT[0][3][q], PT[1][3][q]]
    with_cv(seq[:23], cv, 0)
    stream.append(('mark', 1))
    with_cv(seq[23:] + [(t_, a_, ('C', 0, 0)) for t_, a_, b_ in PT[0][4]], [], 0)
else:
    seq = []
    for q in range(8):
        seq += [PT[0][2][q], PT[1][2][q], PT[0][3][q], PT[1][3][q]]
    with_cv(seq[:30], mk4 + cv, 4)
    del cv[:]
    stream.append(('mark', 0))
    with_cv(seq[30:31], [], 0)
    stream.append(('mark', 1))
    with_cv(seq[31:] + PT[0][4], [], 0)
for tp in range(2, 8):
    src = tp - 2
    if src >= 1:
        for dof, k, bi in PT[src][0]: mk(None, k, band(bi), DT+dof)
    seq = PT[src][4] if src >= 1 else []
    ownf = tp == 7 or str(tp) in OPT.get('ownf', '6')
    for q in range(8):
        if not ownf: seq = seq + [PT[tp][3][q]]
        seq = seq + [PT[tp][2][q]]
    cvs = PT[src][1]
    if ownf: with_cv(seq, cvs[:8], len(seq) - 4, 2); stream.append(('v', 's_nop 0'))
    else: with_cv(seq, cvs, 5)
    far = PT[src][5]
    with_cv(far[:2], [], 0)
    stream.append(('mark', tp))
    if ownf: with_cv(PT[tp][3], cvs[8:], 0)
    with_cv(far[2:], [], 0)
    if tp == 7 and OPT.get('p2', '1') != '2': stream.append(('part', 1))
    if tp == 6 and OPT.get('p2', '1') != '0': stream.append(('part', 0))
order = []
first, last = {}, {}
for i, it in enumerate(stream):
    if it[0] == 'm':
        for k in (it[2], it[3]):
            if isinstance(k, tuple):
                if k not in first: first[k] = i; order.append(k)
                last[k] = i
slot, free_after = {}, {}
slotfree = {(s_+6) % NSLOT: -1 for s_ in range(NSLOT)}
for k in order:
    if k[0] in 'BZGC':
        s_ = min(slotfree, key=lambda z: slotfree[z])
        slot[k] = s_; free_after[k] = slotfree[s_]; assert free_after[k] < first[k]
        del slotfree[s_]; slotfree[s_] = last[k]
def reg(k):
    if not isinstance(k, tuple): return k
    if k[0] == 'A': return vr(AF+4*k[1], 4)
    if k[0] == 'T': return vr(TZ+4*k[1], 4)
    return vr(BR+4*slot[k], 4)
issued = []; done_upto = [0]; lastop = {}; fin = []
checked = {0}; FOFF = 0
T_ = [0]; TL = [0]
LAT = int(OPT.get('lat', 90)); BACK = int(OPT.get('back', 36)); LOOK = int(OPT.get('look', 18))
state = {'exp': False, 'x2': False}
ops = []
def addop(key, txt, cost, pre='', post=''): ops.append(dict(key=key, txt=txt, cost=cost, pre=pre, post=post))
seenW = False
for k in order:
    if (k == ('A', 16) or k[0] == 'T') and not seenW:
        seenW = True
        addop(('X', 0), f'ds_write_b64 v{vKX}, v[14:15] offset:{KX}', 24, 's_mov_b32 exec_lo, 0\ns_mov_b32 exec_hi, 0x80000000', 's_mov_b64 exec, -1')
        addop(('X', 1), f'ds_write_b32 v{vKX}, v15 offset:{KY+4}', 16, 's_mov_b32 exec_lo, 0\ns_mov_b32 exec_hi, 0x80000000', 's_mov_b64 exec, -1')
        addop(('X', 2), f'ds_write2_b32 v{vK3}, v1, v1 offset0:0 offset1:{FC2}', 24)
        addop(('X', 3), f'ds_write2_b32 v{vK4}, v2, v2 offset0:0 offset1:{FC2}', 24)
        for n_ in range(5): first[('X', n_)] = first[k]
    if k[0] == 'A':
        for x in aread(k[1]): addop(k, x, 16)
    elif k[0] == 'T':
        for x in tzread(k[1]): addop(k, x, 8)
    else: addop(k, f'ds_read_b128 {reg(k)}, v{vCB} offset:{boff(k)}', 16)
def wait_for(idx):
    if idx < done_upto[0]: return
    T_[0] = max(T_[0], fin[idx])
    while idx + 1 < len(issued) and fin[idx+1] + 16 <= T_[0]: idx += 1
    n = len(issued) - 1 - idx
    assert n <= 15
    E(f's_waitcnt lgkmcnt({n})')
    done_upto[0] = idx + 1
def lds(txt, key=None, cost=16):
    if len(issued) - done_upto[0] >= 15: wait_for(done_upto[0])
    E(txt); issued.append(key)
    TL[0] = max(TL[0], T_[0]) + cost
    fin.append(TL[0] + LAT)
    T_[0] = max(T_[0] + 4, TL[0] - 64)
    if key is not None: lastop[key] = len(issued) - 1
def ready(o, i, pos):
    k = o['key']
    if k[0] == 'X': return state['x2']
    if k == ('A', 16) or k[0] == 'T': return not any(p['key'][0] == 'X' for p in ops)
    if k[0] == 'A': return state['exp']
    if free_after[k] > i: return False
    return k[1]//2 in checked or first[k] <= i + LOOK
def doop(o):
    ops.remove(o)
    k = o['key']
    if k[0] in 'BZGC' and k[1]//2 not in checked:
        ph = k[1]//2
        if ('F', ph) not in lastop: lds(f'ds_read_b32 v4, v8 offset:{32+4*ph}', ('F', ph), 8)
        wait_for(lastop[('F', ph)])
        E(f'''v_cmp_eq_u32 vcc, -1, v4
        s_cbranch_vccz L_uc{ph}
        L_uc{ph}d:''')
        T_[0] += 24
        checked.add(ph)
    if len(issued) - done_upto[0] >= 15: wait_for(done_upto[0])
    if o['pre']: E(o['pre'])
    lds(o['txt'], k, o['cost'])
    if o['post']: E(o['post'])
def feed(i, until, maxn=99):
    un = [o['key'] for o in ops if o['key'][0] in 'BZGC' and o['key'][1]//2 not in checked]
    if un and ('F', un[0][1]//2) not in lastop and first[un[0]] <= i + LOOK + 10:
        lds(f'ds_read_b32 v4, v8 offset:{32+4*(un[0][1]//2)}', ('F', un[0][1]//2), 8); maxn -= 1
    while maxn > 0 and TL[0] - until < BACK:
        if len(issued) - done_upto[0] >= 14:
            if fin[done_upto[0] + 2] > T_[0]: break
            wait_for(done_upto[0])
        cand = [o for n_, o in enumerate(ops[:40]) if ready(o, i, n_)]
        if not cand: break
        doop(cand[0]); maxn -= 1
def expand():
    global NOPX
    NOPX = max(0, 11 - (ninstr() - gemm_end - ('mid' in OPT)))
    t = TZ
    E(f'''s_nop NOPX
    v_cvt_pk_bf16_f32 v{t}, {D(7)}, {D(6)}
    v_cvt_pk_bf16_f32 v{t+1}, {D(5)}, {D(4)}
    v_cvt_pk_bf16_f32 v{t+2}, {D(3)}, {D(2)}
    v_cvt_pk_bf16_f32 v{t+3}, {D(1)}, {D(0)}''')
    T_[0] = max(T_[0], 80) + 20
    lds(f'ds_write_b128 v{vKX}, {vr(t,4)} offset:{KX}', None, 52)
    E(f'''v_cvt_pk_bf16_f32 v{t+4}, {D(8)}, {D(7)}
    v_cvt_pk_bf16_f32 v{t+5}, {D(6)}, {D(5)}
    v_cvt_pk_bf16_f32 v{t+6}, {D(4)}, {D(3)}
    v_cvt_pk_bf16_f32 v{t+7}, {D(2)}, {D(1)}
    v_cvt_pk_bf16_f32 v{t+10}, {D(0)}, 0''')
    T_[0] += 24
    lds(f'ds_write_b128 v{vKX}, {vr(t+4,4)} offset:{KY}', None, 52)
    E('s_mov_b64 exec, 1')
    lds(f'ds_write_b32 v{vKX}, v{t+10} offset:{KY+16}', None, 16)
    E('s_mov_b64 exec, -1')
    state['exp'] = True
    for o in [o_ for o_ in ops if o_['key'][0] == 'A'][:4]: doop(o)
    if 'mid' in OPT: stamp(5)
vPA = 10
accinit = set()
ypend = []
NPRE = int(OPT.get('npre', 6 if LP else 2))
def first_b():
    l = [(lambda bi=bi: lds(f'ds_read_b128 {band(bi)}, v10 offset:{1024*bi}', ('W', bi))) for bi in (0, 1, 3, 2)]
    l += [(lambda o=o: doop(o)) for o in [o_ for o_ in ops if o_['key'][0] in 'BZGC'][:NPRE]]
    return l
GD_ = int(OPT.get('gd', 3))
gemm_all(first_b)
assert not fill, fill
gemm_end = ninstr()
if 'mid' in OPT: stamp(8)
TM = [32]
for i, it in enumerate(stream):
    n0 = ninstr()
    if it[0] == 'mark':
        tp = it[1]
        if 'mid' in OPT and tp in (1, 2, 3, 5): stamp({1: 6, 2: 9, 3: 14, 5: 15}[tp])
        if 'sim' in OPT: sys.stderr.write(f'T{tp} at {TM[0]}\n')
        ypend.append([8, [('ds', f'ds_write_b128 v{vY}, {vr(ACC+4*tp,4)} offset:{4*YG*tp}', 52), ('ds', f'ds_write_b8 v{vFL}, v13 offset:{4*tp}', 16)]])
        continue
    if it[0] == 'expand': expand()
    elif it[0] == 'x2ok': state['x2'] = True
    elif it[0] == 'part':
        late = it[1]
        both = OPT.get('p2', '1') == '1'
        E(f's_cmp_lg_u32 s{sW}, 0\ns_cbranch_scc1 L_nopart{late}')
        if late: E('s_setprio 3')
        if not (late and both):
            E(f'''s_lshl_b32 s{sT2}, s{sI}, {4 if PM else 10}
            s_add_u32 s{sT2}, s{sT2}, {WS_PART}
            v_min_u32 v{vPA}, 55, v{LANE}''')
            if PM: E(f'v_mul_u32_u24 v{vPA}, {PM}, v{vPA}\nv_add_u32 v{vPA}, s{sT2}, v{vPA}')
            else: E(f'v_lshl_add_u32 v{vPA}, v{vPA}, 4, s{sT2}')
        E(f'global_load_dwordx4 {vr(TZ+24+(4 if late and both else 0),4)}, v{vPA}, {sp(sWS)} sc1\nL_nopart{late}:')
        n0 = ninstr() - 2
    elif it[0] == 'v':
        E(it[1]); T_[0] = max(T_[0], TM[0] - 8) + 4
    else:
        _, tile, a_, b_, dst = it
        keys = [k for k in (a_, b_) if isinstance(k, tuple)]
        for k in keys:
            while any(o['key'] == k for o in ops):
                o = [o for n_, o in enumerate(ops) if ready(o, i-1, n_)][0]
                doop(o)
        need = [lastop[k] for k in keys]
        if need and max(need) >= done_upto[0]:
            if fin[max(need)] > max(T_[0], TM[0]): feed(i-1, fin[max(need)] - LAT + 48)
            wait_for(max(need))
        if tile is None: E(f'v_mfma_f32_16x16x32_bf16 {vr(dst,4)}, {reg(a_)}, {reg(b_)}, 0')
        else:
            c_ = vr(ACC+4*tile, 4) if tile in accinit else '0'
            accinit.add(tile)
            E(f'v_mfma_f32_16x16x32_bf16 {vr(ACC+4*tile,4)}, {reg(a_)}, {reg(b_)}, {c_}')
        T_[0] = max(T_[0], TM[0]); TM[0] = T_[0] + 16; T_[0] += 4
        for p in ypend: p[0] -= ninstr() - n0
        n0 = ninstr()
        if ypend and ypend[0][0] <= 0:
            for _ in range(int(OPT.get('yw', 1))):
                if ypend[0][1]:
                    kind, txt, cost = ypend[0][1].pop(0)
                    if kind == 'ds': lds(txt, None, cost)
                    else: E(txt)
            if not ypend[0][1]: ypend.pop(0)
        else:
            feed(i, T_[0], 2)
            QN = int(OPT.get('qn', 3))
            if QN and ypend and ypend[0][0] - (ninstr() - n0) > 1:
                k_ = min(QN, ypend[0][0] - (ninstr() - n0) - 1)
                E(f's_nop {k_-1}')
                for p in ypend: p[0] -= k_ - 1
    for p in ypend: p[0] -= ninstr() - n0
order = ops
assert not order
for p in ypend:
    if p[0] > 0: E(f's_nop {p[0]-1}')
    n0 = ninstr()
    for kind, txt, cost in p[1]: E(txt)
    for p2 in ypend: p2[0] -= max(p[0], 0) + ninstr() - n0
def isize(x):
    x = x.strip()
    if x.endswith(':'): return 0
    op = x.split(' ')[0]
    if op in ('s_waitcnt', 's_nop', 's_barrier', 's_cbranch_vccz', 's_cbranch_scc1', 'v_min_u32', 'v_and_b32', 'v_mov_b32', 's_mov_b64', 'v_subrev_u32', 'v_cmp_le_u32'): return 4
    return 8
if 'strip' in OPT:
    import re as _re
    pat = _re.compile(OPT['strip'])
    body = out[m_begin:]; del out[m_begin:]
    out += [x for x in body if not pat.search(x)]
NHOP = 0
if ICW:
    body = out[m_begin:]; del out[m_begin:]
    acc = ICW
    for j, x in enumerate(body):
        out.append(x); acc += isize(x)
        nxt_ok = 'v_mfma' in x or acc >= ICW - 8
        if acc >= ICW - 28 and nxt_ok and not x.endswith(':'):
            out.append(f'L_hop{NHOP}:'); out.append(f'    s_cbranch_execz L_hop{NHOP+1}'); NHOP += 1; acc = 4
    out.append(f'L_hop{NHOP}:'); out.append('    s_cbranch_execz L_hopend')
stamp(7)
if 'twice' in OPT: E(f's_waitcnt lgkmcnt(0) vmcnt(0)\nv_add_u32 v{vKX}, 8, v{vKX}\ns_add_u32 s7, s7, 1\ns_cmp_eq_u32 s7, 1\ns_cbranch_scc1 L_twice')
if 'noepi' in OPT or 'nofin' in OPT: E('s_branch L_cdone')
E(f'''s_cmp_lg_u32 s{sW}, 0
s_cbranch_scc1 L_cdone''')
HM = OPT.get('hm', '0') == '1'
fr_begin = len(out)
PL = TZ + 24
both = OPT.get('p2', '1') == '1'
if OPT.get('p2', '1') == '2': E('s_setprio 3')
E(f'''s_mov_b32 s{sSPIN}, {SPIN_MAX}
s_mov_b32 s{sT0}, 0x0c0c0400
s_mov_b32 s{sT1}, 0x04000c0c
L_mb:
ds_read_b128 v[28:31], v8 offset:48
ds_read_b128 v[20:23], v8 offset:64
ds_read_b128 v[24:27], v8 offset:80
ds_read_b32 v4, v8 offset:28
s_waitcnt lgkmcnt(0)
v_and_b32 v4, v4, v31
v_cmp_eq_u32 vcc, -1, v4
s_cbranch_vccnz L_mbd''')
spin_check('L_mb')
E('L_mbd:')
for k in range(4):
    E(f'ds_read_b32 v{16+k}, v26 offset:{k*LOB}')
E(f'v_and_b32 v27, 0x1ffff8, v27\nv_subrev_u32 v5, 56, v{LANE}\nv_ashrrev_i32 v5, 31, v5\nv_lshlrev_b32 v5, 8, v5')
def pchk(lbl):
    E(f'''v_perm_b32 v36, v{PL+1}, v{PL}, s{sT0}
    v_perm_b32 v37, v{PL+3}, v{PL+2}, s{sT1}
    v_or_b32 v36, v36, v37
    v_cmp_ne_u32 vcc, v28, v36
    s_cbranch_vccz {lbl}''')
if both:
    E('s_waitcnt vmcnt(1)')
    pchk('L_ppd')
    E('s_waitcnt vmcnt(0)')
    for k in range(4): E(f'v_mov_b32 v{PL+k}, v{PL+4+k}')
E(f'''s_mov_b32 s{sSPIN}, {SPIN_MAX}
s_branch L_pp1
L_pp:
global_load_dwordx4 {vr(PL,4)}, v{vPA}, {sp(sWS)} sc1
L_pp1:
s_waitcnt vmcnt(0)''')
pchk('L_ppd')
spin_check('L_pp')
E('L_ppd:')
stamp(12)
E(f'''v_and_b32 v{PL}, v5, v{PL}
v_and_b32 v{PL+2}, v5, v{PL+2}
v_and_b32 v{PL+1}, v5, v{PL+1}
v_and_b32 v{PL+3}, v5, v{PL+3}
s_waitcnt lgkmcnt(0)
v_permlane32_swap_b32 v{PL}, v{PL+2}
v_permlane32_swap_b32 v{PL+1}, v{PL+3}
v_add_f32 v{PL}, v{PL}, v{PL+2}
v_add_f32 v{PL+1}, v{PL+1}, v{PL+3}
v_fmac_f32 v20, v16, v24
v_fmac_f32 v21, v17, v24
v_permlane16_swap_b32 v{PL}, v{PL+1}
v_add_f32 v{PL}, v{PL}, v{PL+1}
v_fmac_f32 v22, v18, v24
v_fmac_f32 v23, v19, v24''')
for sh in (8, 4, 2, 1):
    E(f'''v_add_f32_dpp v{PL}, v{PL}, v{PL} row_ror:{sh} {DPPF}''')
    if sh != 1: E('s_nop 1')
E(f'''v_cvt_pk_bf16_f32 v{PL}, 0, v{PL}
s_mov_b64 exec, 1
v_readlane_b32 s{sT1}, v{PL}, 16
v_readlane_b32 s{sT2}, v{PL}, 32
v_readlane_b32 s{sT3}, v{PL}, 48
v_fmac_f32 v20, v{PL}, v25
v_fmac_f32 v21, s{sT1}, v25
v_fmac_f32 v22, s{sT2}, v25
v_fmac_f32 v23, s{sT3}, v25
v_cvt_pk_bf16_f32 v16, v20, v21
v_cvt_pk_bf16_f32 v17, v22, v23
global_store_dwordx2 v27, v[16:17], {sp(sOUT)}
s_branch L_cdone''')
if HM: islands('hm', fr_begin)
E(f'''L_tslow:
s_mov_b32 s{sSPIN}, {SPIN_MAX}
L_tsl:
ds_read_u8 v5, v{vFL} offset:96
s_waitcnt lgkmcnt(0)
v_cmp_ne_u32 vcc, 0, v5
s_cbranch_vccnz L_tok
s_sub_u32 s{sSPIN}, s{sSPIN}, 1
s_cbranch_scc0 L_tsl
s_branch L_tok
L_uc0:''')
wait_word('u0', 8, 32, 4, 0)
E('s_branch L_uc0d')
for ph in (1, 2, 3):
    E(f'L_uc{ph}:')
    if 'mid' not in OPT: stamp({1: 5, 2: 8, 3: 14}[ph])
    wait_word(f'u{ph}', 8, 32+4*ph, 4, 0)
    if 'mid' not in OPT: stamp({1: 6, 2: 9, 3: 15}[ph])
    E(f's_branch L_uc{ph}d')
if LP:
    E(f'''L_lslow:
    s_mov_b32 s{sSPIN}, {SPIN_MAX}
    L_lsl:
    ds_read_b32 v45, v44
    s_waitcnt lgkmcnt(0)
    v_cmp_ne_u32 vcc, 0, v45
    s_cbranch_vccnz L_lsd
    s_sub_u32 s{sSPIN}, s{sSPIN}, 1
    s_cbranch_scc0 L_lsl
    L_lsd:
    s_cmp_eq_u32 s{sIO}, 0
    s_branch L_lok''')
vP, vG, vGF, vYV = 80, 72, 112, 32
def stage(p):
    for k in range(4):
        E(f'v_perm_b32 v{40+k}, v{vX+4*p+2+(k>>1)}, v{vX+4*p+(k>>1)}, s{sP1 if k & 1 else sP0}')
    for k in range(4):
        E(f'ds_write_b32 v64, v{40+k} offset:{k*UCB+1024*p}')
def unpack(p):
    for j in range(2):
        for h in range(2):
            E(f'''v_lshlrev_b32 v{vP+8*p+4*j+2*h}, 16, v{vX+4*p+2*j+h}
            v_and_b32 v{vP+8*p+4*j+2*h+1}, 0xffff0000, v{vX+4*p+2*j+h}''')
G1 = OPT.get('g1', '0') == '1'
NA = 3 if G1 else 2
def pollA():
    E(f'''global_load_dwordx2 v[12:13], v70, {sp(sDBG)} sc1
    global_load_dwordx2 {vr(vG,2)}, v66, {sp(sWS)} offset:-4096 sc1''')
    if G1: E(f'global_load_dwordx2 {vr(vG+2,2)}, v66, {sp(sWS)} offset:-2048 sc1')
def pollB():
    E(f'global_load_dwordx2 v[52:53], v65, {sp(sWS)} sc1')
    for p in range(2 if G1 else 1, 4):
        E(f'global_load_dwordx2 {vr(vG+2*p,2)}, v66, {sp(sWS)} offset:{-4096+2048*p} sc1')
def chkA():
    E(f'''v_cmp_eq_u32 vcc, 1, v13
    v_cmp_eq_u32 {sp(sM0)}, v12, v{vG+1}
    s_and_b64 vcc, vcc, {sp(sM0)}''')
    if G1: E(f'v_cmp_eq_u32 {sp(sM0)}, v12, v{vG+3}\ns_and_b64 vcc, vcc, {sp(sM0)}')
    E('s_cmp_eq_u64 vcc, -1\ns_cbranch_scc1 L_pad')
def epi(p, masked):
    if PRIO == str(p): E('s_setprio 2')
    if PRIO == 'w': E('s_setprio 0')
    if str(p) in OPT.get('spec', '3'):
        wait_word(f'd{p}', 71, 8*p-4, 48, SLEEP)
        if OPT.get('sps', '0') != '0': E(f's_sleep {OPT["sps"]}')
        E(f's_mov_b32 s{sSPIN}, {SPIN_MAX}\nL_wf_e{p}:\nds_read_b32 v48, v71 offset:{8*p}')
        for k in range(4):
            E(f'ds_read_b64 {vr(vYV+2*k,2)}, v67 offset:{k*LOB+8*YG*p}')
        E(f's_waitcnt lgkmcnt(4)\nv_cmp_eq_u32 vcc, -1, v48\ns_cbranch_vccnz L_wfd_e{p}')
        spin_check(f'L_wf_e{p}')
        E(f'L_wfd_e{p}:')
        if p == 3: stamp(14)
    else:
        wait_word(f'e{p}', 71, 8*p, 48, SLEEP if p < 3 else int(OPT.get('sl3', 0)))
        if p == 0: stamp(8)
        if p == 3: stamp(14)
        for k in range(4):
            E(f'ds_read_b64 {vr(vYV+2*k,2)}, v67 offset:{k*LOB+8*YG*p}')
    if 'ph' in OPT: stamp([1, 2, 3, 13][p])
    if PRIO == 'w': E('s_setprio 2')
    E('s_waitcnt lgkmcnt(0)')
    for j in range(2):
        r = vP + 8*p + 4*j
        for k in range(4):
            E(f'v_fmac_f32 v{r+k}, v{vYV+2*k+j}, v{vGF+2*p+j}')
        E(f'''v_cvt_pk_bf16_f32 v{r}, v{r}, v{r+1}
        v_cvt_pk_bf16_f32 v{r+1}, v{r+2}, v{r+3}''')
        if masked: E(f's_cmp_eq_u32 s{sJ}, {2*p+j}\ns_cselect_b64 exec, {sp(sEX)}, -1')
        if 'no3' in OPT and p == 1: E(f's_lshr_b32 s{sT0}, s{sI}, 4\ns_cmp_eq_u32 s{sT0}, 3\ns_cselect_b64 exec, 1, exec')
        if str(p) in OPT.get('noall', ''): E('s_mov_b64 exec, 1')
        E(f'global_store_dwordx2 v{vXO+p}, {vr(r,2)}, {sp(sOUT)} offset:{1024*j}')
        if masked: E('s_mov_b64 exec, -1')
    if 'ph' in OPT and p < 3: stamp([12, 15, 7][p])
    if PRIO == 'w': E('s_setprio 0')
def gun(p):
    E(f'''v_lshlrev_b32 v{vGF+2*p}, 16, v{vG+2*p}
    v_and_b32 v{vGF+2*p+1}, 0xffff0000, v{vG+2*p}''')
E('; ---- I/O waves\nL_cio1:')
E(f'''s_add_u32 s{sT2}, s{sCH}, {SM0+FLG+32}
v_mov_b32 v68, s{sT2}
v_mov_b32 v59, -1
ds_write_b8 v68, v59 offset:64''')
U2F = OPT.get('u2f', '1') == '1'
if NMID == 1 and U2F: uload(2); NMID = 2
E(f's_waitcnt vmcnt({2*NMID})')
stamp(13)
stage(0)
E('ds_write_b8 v68, v59')
if NMID == 1: uload(2); NMID = 2
stamp(4)
if KPRIO == 'io': E('s_setprio 0')
E(f'''v_lshlrev_b32 v65, 3, v{LANE}
v_add_u32 v65, {WS_KEYS}, v65
v_and_b32 v66, 255, v0
v_lshlrev_b32 v66, 3, v66
v_add_u32 v66, {WS_G+4096}, v66
v_mov_b32 v70, 0
v_bfe_u32 v12, v0, 1, 2
v_bfe_u32 v13, v0, 7, 1
v_lshl_add_u32 v12, v13, 2, v12
v_mul_u32_u24 v67, {YG}, v12
v_bfe_u32 v12, v0, 3, 4
v_lshl_add_u32 v67, v12, 4, v67
v_and_b32 v12, 1, v0
v_lshl_add_u32 v67, v12, 3, v67
v_mov_b32 v69, {SM0+FLG}
v_lshl_add_u32 v71, v13, 2, v69
''')
assert NMID in (1, 2)
U3E = OPT.get('u3e', '0') == '1'
def stagef(p):
    stage(p)
    E(f'ds_write_b8 v68, v59 offset:{4*p}')
if U3E: pollA(); uload(3)
E(f's_waitcnt vmcnt({2*(NMID-1) + 4*U3E})')
stagef(1)
stamp(12)
if not U3E:
    pollA()
    if NMID == 1: uload(2)
    uload(3)
unpack(0); unpack(1)
assert NMID == 2 and not U3E
E(f's_waitcnt vmcnt({NA + 2})')
stagef(2)
stamp(15)
E('s_waitcnt vmcnt(2)')
if PRIO == 'io': E('s_setprio 2')
E(f's_mov_b32 s{sS3}, 0')
chkA()
E('s_waitcnt vmcnt(0)')
stagef(3)
E(f'''s_mov_b32 s{sS3}, 1
s_mov_b32 s{sSPIN}, {SPIN_MAX}
L_pa:''')
pollA()
E('s_waitcnt vmcnt(0)')
chkA()
spin_check('L_pa')
E('L_pad:')
stamp(6)
if not G1: pollB()
gun(0)
E(f'v_readfirstlane_b32 s{sTAG}, v12')
epi(0, False)
E(f'''s_cmp_lg_u32 s{sS3}, 0
s_cbranch_scc1 L_s3d
s_waitcnt vmcnt({2 if G1 else 6})''')
stagef(3)
E('L_s3d:')
stamp(5)
if G1:
    pollB()
    gun(1)
    epi(1, False)
unpack(2); unpack(3)
E(f'''s_mov_b32 s{sSPIN}, {SPIN_MAX}
s_waitcnt vmcnt(2)
s_branch L_pb1
L_pb:''')
pollB()
E(f'''s_waitcnt vmcnt(0)
L_pb1:
v_cmp_eq_u32 vcc, s{sTAG}, v53
v_cmp_eq_u32 {sp(sM0)}, s{sTAG}, v{vG+3}
v_cmp_eq_u32 {sp(sM1)}, s{sTAG}, v{vG+5}
s_and_b64 vcc, vcc, {sp(sM0)}
v_cmp_eq_u32 {sp(sM0)}, s{sTAG}, v{vG+7}
s_and_b64 vcc, vcc, {sp(sM1)}
s_and_b64 vcc, vcc, {sp(sM0)}
s_cmp_eq_u64 vcc, -1
s_cbranch_scc1 L_pbd''')
spin_check('L_pb')
E('L_pbd:')
stamp(9)
key_reduce(52)
for p in range(2 if G1 else 1, 4): gun(p)
E(f'''s_andn2_b32 s{sIDX}, 2047, s{sKEY}
s_lshr_b32 s{sT0}, s{sIDX}, 1
s_mov_b64 {sp(sEX)}, -1
s_bitset0_b64 {sp(sEX)}, s{sT0}
s_lshr_b32 s{sT2}, s{sIDX}, 9
s_lshl_b32 s{sJ}, s{sT2}, 1
s_and_b32 s{sT1}, s{sIDX}, 1
s_add_u32 s{sJ}, s{sJ}, s{sT1}
s_bfe_u32 s{sT1}, s{sIDX}, 0x20007
s_cmp_eq_u32 s{sT1}, s{sCH}
s_cselect_b32 s{sJ}, s{sJ}, 8
s_cbranch_scc0 L_nomb
s_and_b32 s{sT0}, s{sT0}, 63
v_readlane_b32 s{sT1}, v{vG}, s{sT0}
v_readlane_b32 s{sT3}, v{vG+2}, s{sT0}
v_readlane_b32 s{sT4}, v{vG+4}, s{sT0}
v_readlane_b32 s{sT5}, v{vG+6}, s{sT0}
s_bitcmp1_b32 s{sT2}, 0
s_cselect_b32 s{sT1}, s{sT3}, s{sT1}
s_cselect_b32 s{sT4}, s{sT5}, s{sT4}
s_bitcmp1_b32 s{sT2}, 1
s_cselect_b32 s{sT1}, s{sT4}, s{sT1}
; x of the routed row straight from this lane's raw rows
s_lshl_b32 s{sT3}, s{sJ}, 1
s_set_gpr_idx_on s{sT3}, 1
v_mov_b32 v40, v{vX}
v_mov_b32 v41, v{vX+1}
s_set_gpr_idx_off
s_bitcmp1_b32 s{sIDX}, 0
s_cselect_b32 s{sT3}, 0, 16
s_lshl_b32 s{sT1}, s{sT1}, s{sT3}
s_and_b32 s{sT1}, s{sT1}, 0xffff0000
v_readlane_b32 s{sT4}, v40, s{sT0}
v_readlane_b32 s{sT5}, v41, s{sT0}
s_and_b32 s{sT0}, s{sKEY}, 0xffff0000
s_xor_b32 s{sT3}, s{sT0}, 0xffff0000
s_xor_b32 s{sT0}, s{sT0}, 0x80000000
s_bitcmp1_b32 s{sKEY}, 31
s_cselect_b32 s{sT0}, s{sT0}, s{sT3}
v_mov_b32 v45, {f32(-L2E)}
v_mul_f32 v45, s{sT0}, v45
v_exp_f32 v45, v45
v_mov_b32 v44, s{sT1}
v_add_f32 v45, 1.0, v45
v_rcp_f32 v45, v45
v_sub_f32 v46, 1.0, v44
v_cvt_pk_bf16_f32 v45, 0, v45
v_cvt_pk_bf16_f32 v46, 0, v46
v_mul_f32 v45, v45, v46
s_lshl_b32 s{sT0}, s{sT4}, 16
s_and_b32 s{sT1}, s{sT4}, 0xffff0000
s_lshl_b32 s{sT3}, s{sT5}, 16
s_and_b32 s{sT4}, s{sT5}, 0xffff0000
v_mov_b32 v40, s{sT0}
v_mov_b32 v41, s{sT1}
v_mov_b32 v42, s{sT3}
v_mov_b32 v43, s{sT4}
s_lshr_b32 s{sT3}, s{sIDX}, 8
s_lshl_b32 s{sT0}, s{sT3}, 2
s_bfe_u32 s{sT1}, s{sIDX}, 0x20002
s_add_u32 s{sT0}, s{sT0}, s{sT1}
s_mul_i32 s{sT0}, s{sT0}, {YG}
s_and_b32 s{sT1}, s{sIDX}, 0xf0
s_add_u32 s{sT0}, s{sT0}, s{sT1}
s_and_b32 s{sT1}, s{sIDX}, 3
s_lshl_b32 s{sT1}, s{sT1}, 2
s_add_u32 s{sT0}, s{sT0}, s{sT1}
v_mov_b32 v46, s{sT0}
s_lshl_b32 s{sT0}, s{sIDX}, 10
s_lshl_b32 s{sT1}, s{sI}, 3
s_add_u32 s{sT0}, s{sT0}, s{sT1}
v_mov_b32 v47, s{sT0}
ds_write_b128 v69, v[40:43] offset:64
ds_write_b128 v69, v[44:47] offset:80
v_mov_b32 v48, s{sTAG}
v_mov_b32 v51, -1
; a routed row of the first phase was stored like any other: its store must be complete before the final one is allowed
s_cmp_ge_u32 s{sT2}, {2 if G1 else 1}
s_cbranch_scc1 L_mb1
s_waitcnt vmcnt(0)
L_mb1:
ds_write_b128 v69, v[48:51] offset:48
L_nomb:''')
if 'ph' not in OPT: stamp(7)
HE = OPT.get('he', '0') == '1'
if not G1: epi(1, True)
if HM: hop('hm', sCH, 4)
if HE: hop('he', sCH, 4)
e_begin = len(out)
epi(2, True); epi(3, True)
if HE: islands('he', e_begin)
E('L_cdone:')
stamp(10)
if STAMPS:
    E('s_waitcnt vmcnt(0)')
    stamp(11)
write_stamps()
E('s_endpgm')

A_T = 0
E(f"""; ================= router workgroups =================
L_rg:
{"v_mov_b32 v37, 128" if 'r' in TW else ""}
{"global_load_dword v37, v37, " + sp(sWS) if 'r' in TW else ""}
s_lshl_b32 s{sT0}, s{sI}, 2
s_lshl_b32 s{sT1}, s{sW}, 8
s_add_u32 s{sT0}, s{sT0}, s{sT1}
s_lshl_b32 s{sT1}, s{sT0}, 2
s_add_u32 s{sT1}, s{sT1}, {WS_G}
v_mov_b32 v49, s{sT1}
s_sub_u32 s{sT0}, 2047, s{sT0}
v_bfe_u32 v6, v{LANE}, 3, 1
v_lshrrev_b32 v5, 5, v{LANE}
v_lshl_add_u32 v5, v6, 1, v5
s_lshl_b32 s{sT1}, s{sW}, 4
v_lshl_add_u32 v6, v5, 2, s{sT1}
v_sub_u32 v5, s{sT0}, v5
v_and_b32 v48, 15, v{LANE}
v_lshlrev_b32 v48, 3, v48
s_lshl_b32 s{sT0}, s{sI}, 3
s_add_u32 s{sT0}, s{sT0}, {WS_KEYS}
v_mov_b32 v45, s{sT0}
s_cmp_ge_u32 s{sI}, 32
s_cselect_b32 s{sT1}, 8, 0
s_sub_u32 s{sT0}, s{sI}, s{sT1}
s_lshl_b32 s{sT0}, s{sT0}, 3
s_add_u32 s{sT0}, s{sT0}, s{sW}
s_lshl_b32 s{sT0}, s{sT0}, 12
v_and_b32 v47, 31, v{LANE}
v_lshl_add_u32 v47, v47, 7, s{sT0}
s_lshr_b32 s{sT1}, s{sT0}, 18
s_lshl_b32 s{sT1}, s{sT1}, 9
s_bfe_u32 s{sT0}, s{sT0}, 0x5000d
s_mul_i32 s{sT0}, s{sT0}, {16*3584}
s_add_u32 s{sT0}, s{sT0}, s{sT1}
v_and_b32 v39, 15, v{LANE}
v_mul_u32_u24 v39, 3584, v39
s_bitcmp1_b32 s{sW}, 1
s_cselect_b32 s{sT1}, {48 if OPT.get('rsx', '0') != '0' else 0}, {48 if OPT.get('rsx', '0') == '2' else 0}
v_and_b32 v38, s{sT1}, v{LANE}
v_xor_b32 v38, 48, v38
v_lshl_add_u32 v39, v38, 3, v39
v_add_u32 v39, s{sT0}, v39
s_bitcmp1_b32 s{sW}, 0
s_cselect_b64 {sp(sT4)}, {sp(sWU)}, {sp(sWG)}
{"global_load_dword v38, v39, " + sp(sT4) if RS == '1' else ""}
s_waitcnt lgkmcnt(0)
s_add_u32 s{sTAG}, s{sTAG}, {TAGINC}
v_mov_b32 v61, s{sTAG}
v_mov_b32 v41, s{sTAG}
v_mov_b32 v43, s{sTAG}
s_add_u32 s{sT0}, s{sI}, s{sW}
s_cmp_lg_u32 s{sT0}, 0
s_cbranch_scc1 L_anotag
v_mov_b32 v7, 0
v_mov_b32 v62, s{sTAG}
v_mov_b32 v63, 1
s_mov_b64 exec, 1
s_waitcnt vmcnt(0)
global_store_dwordx2 v7, v[62:63], {sp(sDBG)} sc1
s_mov_b64 exec, -1
s_branch L_rg1
L_anotag:
s_waitcnt vmcnt({2 + (RS == '1') + ('r' in TW)})""")
def dots(rows):
    for k in range(4):
        for r in rows:
            E(f'v_dot2_f32_bf16 v{50+r}, v{vXA+4*r+k}, v{vWRv+k}, {"0" if k == 0 else "v%d" % (50+r)}')
            E(f'v_dot2_f32_bf16 v{54+r}, v{vXA+4*r+k}, v{vGWv+k}, {"0" if k == 0 else "v%d" % (54+r)}')
E('L_rg1:')
dots((0, 1))
E(f's_cbranch_scc0 L_rg2\ns_waitcnt vmcnt({int(RS == "1") + ("r" in TW)})\nL_rg2:')
if RS == '2': E(f'global_load_dword v38, v39, {sp(sT4)}')
stamp(2)
if RW == 'pre': E(f'global_load_dword v46, v47, {sp(sWD)}')
dots((2, 3))
E(f"""v_permlane32_swap_b32 v50, v51
v_permlane32_swap_b32 v54, v55
v_add_f32 v50, v50, v51
v_permlane32_swap_b32 v52, v53
v_add_f32 v54, v54, v55
v_permlane32_swap_b32 v56, v57
v_add_f32 v52, v52, v53
v_add_f32 v56, v56, v57
v_permlane16_swap_b32 v50, v54
s_nop 0
v_permlane16_swap_b32 v52, v56
v_add_f32 v50, v50, v54
v_add_f32 v52, v52, v56
s_nop 0
v_add_f32_dpp v51, v50, v50 row_ror:8 row_mask:0xf bank_mask:0x3
v_add_f32_dpp v53, v52, v52 row_ror:8 row_mask:0xf bank_mask:0xf
s_nop 1
v_mov_b32_dpp v51, v53 quad_perm:[0,1,2,3] row_mask:0xf bank_mask:0xc
s_nop 1
v_add_f32_dpp v51, v51, v51 row_half_mirror {DPPF}
s_nop 1
v_add_f32_dpp v51, v51, v51 quad_perm:[1,0,3,2] {DPPF}
s_nop 1
v_add_f32_dpp v50, v51, v51 quad_perm:[2,3,0,1] {DPPF}
v_cvt_pk_bf16_f32 v50, 0, v50
v_mul_f32 v52, {f32(-L2E)}, v50
v_exp_f32 v52, v52
v_ashrrev_i32 v51, 31, v50
v_add_f32 v52, 1.0, v52
v_rcp_f32 v52, v52
v_or_b32 v51, 0x80000000, v51
v_xor_b32 v50, v50, v51
v_mov_b32 v53, v52
v_and_b32 v50, 0xffff0000, v50
v_or_b32 v50, v50, v5
v_permlane32_swap_b32 v52, v53
s_mov_b32 exec_lo, 0x00000101
s_mov_b32 exec_hi, 0x00000101
ds_write_b32 v6, v50 offset:{A_T}
s_mov_b64 exec, -1
v_cvt_pk_bf16_f32 v40, v52, v53
s_nop 1
v_mov_b32_dpp v42, v40 row_ror:8 {DPPF}
s_mov_b64 exec, 0x10000
global_store_dwordx4 v49, v[40:43], {sp(sWS)} sc1
s_mov_b64 exec, -1""")
stamp(5)
E("""s_waitcnt lgkmcnt(0)
s_barrier""")
stamp(3)
E(f"""s_cmp_lg_u32 s{sW}, 0
s_cbranch_scc1 L_rg3
ds_read_b64 v[52:53], v48 offset:{A_T}
s_waitcnt lgkmcnt(0)
v_max_u32 v60, v52, v53
s_nop 1""")
for sh in (8, 4, 2, 1):
    E(f'v_max_u32_dpp v60, v60, v60 row_ror:{sh} {DPPF}')
    if sh != 1: E('s_nop 1')
E(f"""s_mov_b64 exec, 1
global_store_dwordx2 v45, v[60:61], {sp(sWS)} sc1""")
stamp(4)
E('s_mov_b64 exec, -1\nL_rg3:')
if RW == 'post': E(f's_lshr_b32 s{sT0}, s{sI}, 3\ns_cmp_eq_u32 s{sT0}, 3\ns_cbranch_scc1 L_adone\ns_barrier\n{"global_load_dword v38, v39, " + sp(sT4) if RS == "3" else ""}\nglobal_load_dword v46, v47, {sp(sWD)}\ns_waitcnt vmcnt(0)')
if RW == 'pre': E('s_waitcnt vmcnt(0)')
E('s_branch L_adone')
if 'idle' in OPT:
    E(f'''L_idle:
    s_lshr_b32 s{sT0}, s{sSLOT}, 1
    s_lshl_b32 s{sT0}, s{sT0}, 6
    s_lshr_b32 s{sT1}, s{sW}, 1
    s_add_u32 s{sT0}, s{sT0}, s{sT1}
    s_add_u32 s{sT0}, s{sT0}, 28
    s_mul_i32 s{sT0}, s{sT0}, 3584
    v_and_b32 v4, 31, v{LANE}
    v_min_u32 v4, 27, v4
    v_lshl_add_u32 v4, v4, 7, s{sT0}
    v_lshrrev_b32 v5, 5, v{LANE}
    v_mul_u32_u24 v5, {32*3584}, v5
    v_add_u32 v4, v4, v5
    v_subrev_u32 v6, {4*3584}, v4
    s_bitcmp1_b32 s{sW}, 0
    s_waitcnt lgkmcnt(0)
    s_cselect_b64 {sp(sT4)}, {sp(sWU)}, {sp(sWG)}
    global_load_dword v5, v4, {sp(sT4)}
    global_load_dword v7, v6, {sp(sT4)}
    s_waitcnt vmcnt(0)
    s_branch L_adone''')
F_IDX, F_PART, F_X = 98304, 98304 + 64, 98304 + 64 + 2048
XL = OPT.get('xl', '1') == '1'
LD = OPT.get('ld', '1') == '1'
vFG, vFU, vFD, vBT = 64, 80, 96, 112
FLEAD = int(OPT.get('flead', 0))
OPP = OPT.get('opp', '1') == '1'
DLATE = OPT.get('dlate', '2') != '0'
D2 = OPT.get('dlate', '2') == '2'
FBAR = OPT.get('fbar', '1') == '1'
EPOLL = OPT.get('epoll', '0') == '1'
E(f"""; ================= FFN workgroups =================
L_ffn:
{'s_branch L_adone' if 'nof' in OPT else ''}
; slices live on seven of the eight column groups (group 3 has the slowest output path): fi = 8*g' + k
s_cmp_eq_u32 s{sT0}, 3
s_cbranch_scc1 {'L_idle' if 'idle' in OPT else 'L_adone'}
s_lshr_b32 s{sFI}, s{sI}, 1
s_cmp_gt_u32 s{sT0}, 3
s_cselect_b32 s{sT1}, 8, 0
s_sub_u32 s{sFI}, s{sFI}, s{sT1}
v_lshrrev_b32 v8, 2, v{LANE}
v_and_b32 v9, 3, v{LANE}
v_mul_u32_u24 v16, 3584, v8
v_lshl_add_u32 v16, v9, 4, v16
s_mul_i32 s{sT0}, s{sW}, {64*3584}
s_lshl_b32 s{sT1}, s{sFI}, 6
s_add_u32 s{sT0}, s{sT0}, s{sT1}
s_mul_i32 s{sT3}, s{sW}, 12288
s_and_b32 s{sT1}, s{sFI}, {1 if OPP else 0}
s_mul_i32 s{sT2}, s{sT1}, {32*3584}
s_lshl_b32 s{sT1}, s{sT1}, 11
s_add_u32 s{sT4}, s{sT3}, s{sT1}
s_xor_b32 s{sT5}, s{sT4}, 2048
s_add_u32 s{sT1}, s{sT0}, s{sT2}
s_sub_u32 s{sT0}, s{sT0}, s{sT2}
s_add_u32 s{sT0}, s{sT0}, {32*3584}
v_add_u32 v18, s{sT0}, v16
v_add_u32 v16, s{sT1}, v16
v_add_u32 v17, {16*3584}, v16
v_add_u32 v19, {16*3584}, v18
s_waitcnt lgkmcnt(0)""")
stamp(1)
def gu(j):
    sb = sT4 if j < 2 else sT5
    E(f"""s_add_u32 m0, s{sb}, {1024*(j & 1)}
    s_nop 0
    global_load_lds_dwordx4 v{16+j}, {sp(sWG)}{NTW}
    s_add_u32 m0, s{sb}, {4096+1024*(j & 1)}
    s_nop 0
    global_load_lds_dwordx4 v{16+j}, {sp(sWU)}{NTW}""")
FTHR = OPT.get('fthr', '0')
if 'f' in TW:
    E(f'''s_cmp_lt_u32 s{sW}, 4
    s_cbranch_scc1 L_fnt
    s_cmp_eq_u32 s{sW}, 5
    s_cselect_b64 {sp(sM0)}, {sp(sWS)}, {sp(sX)}
    s_cmp_eq_u32 s{sW}, 6
    s_cselect_b64 {sp(sM0)}, {sp(sDBG)}, {sp(sM0)}
    s_cmp_eq_u32 s{sW}, 7
    s_cselect_b64 {sp(sM0)}, {sp(sWD)}, {sp(sM0)}
    v_mov_b32 v4, 128
    global_load_dword v4, v4, {sp(sM0)}
    L_fnt:''')
if FTHR == '2': E(f'v_mov_b32 v4, 0\nglobal_load_dword v4, v4, {sp(sWG)}\ns_waitcnt vmcnt(0)')
if FTHR == '3': E(f'v_mov_b32 v4, 0\nglobal_load_dword v4, v4, {sp(sWG)}\ns_waitcnt vmcnt(0)\nv_mov_b32 v4, 0\nglobal_load_dword v4, v4, {sp(sWU)}\ns_waitcnt vmcnt(0)')
if FTHR == '4':
    E(f'''s_cmp_lg_u32 s{sW}, 0
    s_cbranch_scc1 L_ftd
    v_mov_b32 v4, 0
    s_mov_b32 s{sSPIN}, {SPIN_MAX}
    L_ft:
    global_load_dwordx2 v[6:7], v4, {sp(sDBG)} sc1
    s_waitcnt vmcnt(0)
    v_cmp_eq_u32 vcc, 1, v7
    s_cbranch_vccnz L_ftd''')
    spin_check('L_ft')
    E('L_ftd:\ns_barrier')
stamp(3)
gu(0)
if FTHR == '1': E('s_waitcnt vmcnt(0)\ns_barrier')
gu(1)
E(f"""v_lshrrev_b32 v44, 3, v{LANE}
v_and_b32 v21, 7, v{LANE}
v_lshlrev_b32 v21, 4, v21
v_lshl_add_u32 v44, v44, 10, v21
s_lshl_b32 s{sT0}, s{sFI}, 15
s_lshl_b32 s{sT1}, s{sW}, 7
s_add_u32 s{sT0}, s{sT0}, s{sT1}
v_add_u32 v44, s{sT0}, v44
v_lshlrev_b32 v22, 3, v{LANE}
v_add_u32 v22, {WS_KEYS}, v22
v_mov_b32 v23, 0""")
def down():
    E(f's_add_u32 m0, s{sT3}, 8192\ns_nop 0')
    for j in range(4):
        E(f'global_load_lds_dwordx4 v44, {sp(sWD)}{NTD}')
        if j < 3: E('s_add_u32 m0, m0, 1024\nv_add_u32 v44, 8192, v44')
if RW == 'no' and not DLATE: down()
if FBAR: E('s_barrier')
stamp(2)
gu(2); gu(3)
if RW != 'no' and not DLATE:
    E('s_barrier')
    down()
if EPOLL: E(f"""s_cmp_lg_u32 s{sW}, {FLEAD}
s_cbranch_scc1 L_fnp
global_load_dwordx2 v[16:17], v22, {sp(sWS)} sc1
global_load_dwordx2 v[18:19], v23, {sp(sDBG)} sc1
L_fnp:""")
stamp(5)
E(f"""v_and_b32 v5, 15, v{LANE}
v_lshrrev_b32 v6, 4, v{LANE}
v_bfe_u32 v14, v{LANE}, 2, 2
v_lshlrev_b32 v14, 6, v14
v_lshl_add_u32 v14, v6, 9, v14
v_lshl_add_u32 v14, v9, 3, v14
v_add_u32 v14, s{sT3}, v14
v_lshlrev_b32 v8, 7, v8
v_lshl_add_u32 v8, v9, 3, v8
v_add_u32 v8, s{sT3}, v8
s_lshl_b32 s{sT1}, s{sW}, 7
{'s_add_u32 s%d, s%d, %d' % (sT1, sT1, F_X) if XL else ''}
v_lshl_add_u32 v10, v6, 4, s{sT1}
v_lshrrev_b32 v12, 2, v5
v_lshlrev_b32 v13, 6, v12
v_lshl_add_u32 v13, v6, 4, v13
s_lshl_b32 s{sT1}, s{sW}, 8
s_add_u32 s{sT1}, s{sT1}, {F_PART}
v_lshl_add_u32 v11, v{LANE}, 2, s{sT1}
v_lshl_add_u32 v13, v9, 2, v13
v_add_u32 v7, {F_PART}, v13
v_lshl_add_u32 v13, v12, 2, v6
s_lshl_b32 s{sT1}, s{sW}, {8 if PM else 14}
s_mul_i32 s{sT2}, s{sFI}, {PM if PM else 16}
s_add_u32 s{sT1}, s{sT1}, s{sT2}
s_add_u32 s{sT1}, s{sT1}, {WS_PART}
{('v_lshl_add_u32 v13, v%d, 2, s%d' % (LANE, sT1)) if PC else ('v_lshl_add_u32 v13, v13, %d, s%d' % (4 if PM else 10, sT1))}
{('v_lshlrev_b32 v46, 3, v9') if PC else ''}
v_mov_b32 v21, {F_IDX}""")
HF = OPT.get('hf', '0') == '1'
if HF: hop('hf', sW, 8)
f_begin = len(out)
E('s_waitcnt vmcnt(0)')
if D2 and XL and LD:
    E(f's_cmp_eq_u32 s{sW}, {FLEAD}\ns_cbranch_scc1 L_fnd')
    down()
    E('L_fnd:')
elif D2: down()
for s_ in range(2):
    for ct in range(2):
        for h in range(2):
            E(f'ds_read_b64_tr_b16 {vr(vFG+8*s_+4*ct+2*h,2)}, v14 offset:{2048*s_+256*h+32*ct}')
            E(f'ds_read_b64_tr_b16 {vr(vFU+8*s_+4*ct+2*h,2)}, v14 offset:{4096+2048*s_+256*h+32*ct}')
    E('s_waitcnt lgkmcnt(4)')
def dtr():
    for t in range(4):
        for hh in range(2):
            E(f'ds_read_b64_tr_b16 {vr(vFD+4*t+2*hh,2)}, v8 offset:{8192+2048*hh+32*t}')
if not DLATE: dtr()
stamp(6)
E(f"""s_cmp_lg_u32 s{sW}, {FLEAD}
s_cbranch_scc1 L_anopoll
s_mov_b32 s{sSPIN}, {SPIN_MAX}
{'s_branch L_pk1' if EPOLL else ''}
L_pk:
global_load_dwordx2 v[16:17], v22, {sp(sWS)} sc1
global_load_dwordx2 v[18:19], v23, {sp(sDBG)} sc1
s_waitcnt vmcnt(0)
L_pk1:
v_cmp_eq_u32 vcc, v18, v17
v_cmp_eq_u32 {sp(sM0)}, 1, v19
s_and_b64 vcc, vcc, {sp(sM0)}
s_cmp_eq_u64 vcc, -1
s_cbranch_scc1 L_pkd""")
spin_check('L_pk')
E('L_pkd:')
key_reduce(16)
if XL:
    E(f"""s_andn2_b32 s{sIDX}, 2047, s{sKEY}
    s_lshl_b32 s{sT0}, s{sIDX}, 10
    s_mov_b32 m0, {F_X}
    v_lshl_add_u32 v45, v{LANE}, 4, s{sT0}
    global_load_lds_dwordx4 v45, {sp(sX)}""")
    if LD: down()
E(f"""v_mov_b32 v16, s{sKEY}
ds_write_b64 v21, v[16:17]
{('s_waitcnt vmcnt(4)' if LD else 's_waitcnt vmcnt(0)') if XL else ''}
L_anopoll:
s_waitcnt lgkmcnt(0)
s_barrier""")
stamp(7)
if XL:
    E(f"""ds_read_b128 v[16:19], v10
    ds_read_b128 v[40:43], v10 offset:64
    ds_read_b32 v128, v21 offset:4
    s_waitcnt lgkmcnt(1)""")
    stamp(13)
else:
    E(f"""ds_read_b64 v[130:131], v21
s_waitcnt lgkmcnt(0)
v_not_b32 v16, v130
v_and_b32 v16, 2047, v16
v_lshl_add_u32 v10, v16, 10, v10
global_load_dwordx4 v[16:19], v10, {sp(sX)}
global_load_dwordx4 v[20:23], v10, {sp(sX)} offset:64
v_mov_b32 v128, v131
v_lshrrev_b32 v129, 8, v131
v_lshrrev_b32 v130, 16, v131
v_lshrrev_b32 v131, 24, v131""")
    if DLATE and not D2: down()
    stamp(12)
    if D2:
        E('s_waitcnt vmcnt(2)')
        dtr()
    E(f's_waitcnt vmcnt({4 if DLATE and not D2 else 0})')
    stamp(13)
for q in range(4):
    fb = (vFU if q >> 1 else vFG) + 4*(q & 1)
    for s_ in range(2):
        E(f'v_mfma_f32_16x16x32_bf16 {vr(24+4*q,4)}, {vr(40 if XL and s_ else 16+4*s_,4)}, {vr(fb+8*s_,4)}, {"0" if s_ == 0 else vr(24+4*q,4)}')
if XL and PC: E('s_waitcnt lgkmcnt(0)\nv_lshrrev_b32 v129, v46, v128\ns_nop 1')
elif XL: E('s_waitcnt lgkmcnt(0)\nv_lshrrev_b32 v129, 8, v128\nv_lshrrev_b32 v130, 16, v128\nv_lshrrev_b32 v131, 24, v128')
else: E('s_nop 3')
E(f'''v_mov_b32_dpp v24, v28 quad_perm:[0,1,2,3] row_mask:0x2 bank_mask:0xf
s_nop 1
v_mov_b32_dpp v24, v32 quad_perm:[0,1,2,3] row_mask:0x4 bank_mask:0xf
s_nop 1
v_mov_b32_dpp v24, v36 quad_perm:[0,1,2,3] row_mask:0x8 bank_mask:0xf
ds_write_b32 v11, v24''')
DPL = OPT.get('dpl', '1')
if XL and DPL == '0':
    E('s_waitcnt vmcnt(0)')
    dtr()
    E('s_waitcnt lgkmcnt(8)')
else: E('s_waitcnt lgkmcnt(0)')
stamp(14)
E('s_barrier')
stamp(8)
E(f"""ds_read2st64_b32 v[16:17], v7 offset0:0 offset1:1
ds_read2st64_b32 v[18:19], v7 offset0:2 offset1:3
ds_read2st64_b32 v[20:21], v7 offset0:4 offset1:5
ds_read2st64_b32 v[22:23], v7 offset0:6 offset1:7
s_mov_b32 s{sT0}, 0xff
s_waitcnt lgkmcnt(2)
v_pk_add_f32 v[16:17], v[16:17], v[18:19]
s_waitcnt lgkmcnt(0)
v_pk_add_f32 v[20:21], v[20:21], v[22:23]
v_pk_add_f32 v[16:17], v[16:17], v[20:21]
v_add_f32 v16, v16, v17""")
if (DLATE and not D2) or (XL and DPL == '1'):
    E('s_waitcnt vmcnt(0)')
    dtr()
E(f"""v_cvt_pk_bf16_f32 v18, 0, v16
v_mul_f32 v16, {f32(-L2E)}, v18
v_exp_f32 v16, v16
v_mov_b32_dpp v19, v18 row_ror:8 {DPPF}
v_add_f32 v16, 1.0, v16
v_rcp_f32 v16, v16
s_nop 0
v_mul_f32 v16, v16, v18
v_cvt_pk_bf16_f32 v16, 0, v16
v_mul_f32 v16, v16, v19""")
if XL and DPL == '2':
    E('s_waitcnt vmcnt(0)')
    dtr()
E(f"""s_nop 1
v_mov_b32_dpp v17, v16 quad_perm:[1,1,3,3] {DPPF}
v_cvt_pk_bf16_f32 v16, v16, v17
s_nop 1""")
for jj in range(4):
    E(f'v_mov_b32_dpp v{vBT+jj}, v16 row_newbcast:{2*jj} {DPPF}')
E('s_waitcnt lgkmcnt(0)\ns_nop 0')
for t in range(4):
    E(f'v_mfma_f32_16x16x32_bf16 {vr(24+4*t,4)}, {vr(vBT,4)}, {vr(vFD+4*t,4)}, 0')
E(f'''s_nop 5
v_mov_b32_dpp v24, v28 quad_perm:[0,1,2,3] row_mask:0x2 bank_mask:0xf
v_mov_b32_dpp v36, v32 quad_perm:[0,1,2,3] row_mask:0x4 bank_mask:0xf
s_nop 1
v_mov_b32_dpp v24, v36 quad_perm:[0,1,2,3] row_mask:0xc bank_mask:0xf
v_bfi_b32 v24, s{sT0}, v129, v24
global_store_dword v13, v24, {sp(sWS)} sc1''')
stamp(9)
E(f'''s_add_u32 s{sT0}, s{sFI}, s{sW}
s_cmp_lg_u32 s{sT0}, 0
s_cbranch_scc1 L_adone
s_mov_b64 exec, 1
v_mov_b32 v23, 0
global_store_dword v23, v128, {sp(sWS)} offset:{WS_EPOCH} sc1''')
if 'fwb' in OPT:
    E(f'''s_add_u32 s{sT0}, s{sSLOT}, s{sW}
    s_cmp_lg_u32 s{sT0}, 0
    s_cbranch_scc1 L_adone
    {"s_waitcnt vmcnt(0)" if OPT['fwb'] == '2' else ""}
    buffer_wbl2 sc1''')
if HF: islands('hf', f_begin)
E('L_adone:')
stamp(10)
if STAMPS:
    E('s_waitcnt vmcnt(0)')
    stamp(11)
write_stamps()
E('L_end:')
E('s_endpgm')
out.append(f'''.section .rodata,"a"
.p2align 6
.amdhsa_kernel {KN}_kernel
  .amdhsa_next_free_vgpr {NVGPR}
  .amdhsa_next_free_sgpr 96
  .amdhsa_accum_offset {(NVGPR+3)//4*4}
  .amdhsa_group_segment_fixed_size 0
  .amdhsa_kernarg_size 128
  .amdhsa_user_sgpr_count 2
  .amdhsa_user_sgpr_kernarg_segment_ptr 1
  .amdhsa_system_sgpr_workgroup_id_x 1
.end_amdhsa_kernel''')
txt = _re2.sub(r'@(\w+)@(\d+)@(\d+)@', lambda m: f'L_{m.group(1)}{int(m.group(2))*SUBS[m.group(1)]//int(m.group(3))}', '\n'.join(out))
if OPT.get('cf', '0') == '1':
    L = txt.split('\n')
    a = next(i for i, x in enumerate(L) if x.strip() == 's_cbranch_scc0 L_conv')
    b = next(i for i, x in enumerate(L) if x.strip().startswith('; ================= conv workgroups'))
    c = next(i for i, x in enumerate(L) if x.strip() == 's_cbranch_scc1 L_cio0')
    c2 = next(i for i in range(c, len(L)) if L[i].strip() == 's_mov_b64 exec, -1')
    L = L[:a] + ['    s_cbranch_scc1 L_aux0'] + L[b:c2+1] + ['    s_branch L_conv2', 'L_aux0:'] + L[a+1:b] + ['L_conv2:'] + L[c2+1:]
    txt = '\n'.join(L)
print(txt.replace('NOPX', str(NOPX)).replace('HOPQ1', f'L_hop{NHOP//4}').replace('HOPQ2', f'L_hop{NHOP//2}').replace('HOPQ3', f'L_hop{3*NHOP//4}'))
```
